```python
import torch

def _softmax(x, axis=-1):
    return torch.softmax(x, dim=axis)
def _gelu(x):
    return torch.nn.functional.gelu(x, approximate="tanh")
def _silu(x):
    return torch.nn.functional.silu(x)
def _sigmoid(x):
    return torch.sigmoid(x)
def _layernorm(x, axis=-1, eps=1e-5):
    m = x.mean(dim=axis, keepdim=True)
    v = x.var(dim=axis, keepdim=True, unbiased=False)
    return (x - m) / torch.sqrt(v + eps)
def _scatter_add(tgt, idx, src, axis=0):
    return tgt.clone().index_add_(axis, idx, src)
def _segment_sum(src, seg, n):
    out = torch.zeros((n,) + src.shape[1:], dtype=src.dtype)
    return out.index_add_(0, seg, src)
def _pad(x, pw):
    flat = tuple(v for pair in reversed(pw) for v in pair)
    return torch.nn.functional.pad(x, flat)

kernel_name = 'standalone__paged_block_table_kv_pagedattention__decode'

def setup_inputs():

    _w = (lambda a: (lambda t: t.to(torch.bfloat16) if t.is_floating_point() else t)(torch.as_tensor(a)))
    B, Hq, Hkv, Sq, Skv, D = 1, 32, 8, 1, 65536, 128
    bs = 16
    nbps = max(1, Skv // bs)
    num_phys = B * nbps + 4
    bt = torch.randperm(num_phys)[: B * nbps].reshape(B, nbps).to(torch.int64)
    cl = (nbps * bs - (torch.arange(1, B + 1, dtype=torch.int64) * 2654435761) % max(1, nbps * bs // 2)).to(torch.int64)
    return {
        "q": _w((lambda *s: torch.randn(*s, dtype=torch.bfloat16) * 0.8)(B, Hq, Sq, D)),
        "k_cache": _w((lambda *s: torch.randn(*s, dtype=torch.bfloat16) * 0.8)(num_phys, bs, Hkv, D)),
        "v_cache": _w((lambda *s: torch.randn(*s, dtype=torch.bfloat16) * 0.05)(num_phys, bs, Hkv, D)),
        "block_table": _w(bt),
        "context_lens": _w(cl),
    }

def reference(q, k_cache, v_cache, block_table, context_lens):
    B, Hq, Sq, D = q.shape
    bs = k_cache.shape[1]
    Hkv = k_cache.shape[2]
    nbps = block_table.shape[1]
    Skv = nbps * bs
    bt = block_table.reshape(-1)
    k = (lambda x, *d: x.permute(*d))(k_cache[bt].reshape(B, Skv, Hkv, D), 0, 2, 1, 3)
    v = (lambda x, *d: x.permute(*d))(v_cache[bt].reshape(B, Skv, Hkv, D), 0, 2, 1, 3)
    g = Hq // Hkv
    qg = q.reshape(B, Hkv, g, Sq, D)
    scores = torch.einsum("bhgqd,bhkd->bhgqk", qg, k) * (D ** -0.5)
    pos = torch.arange(Skv)
    msk = pos[None, :] < context_lens[:, None]
    scores = torch.where(msk[:, None, None, None, :], scores, -1e9)
    p = _softmax(scores, axis=-1)
    out = torch.einsum("bhgqk,bhkd->bhgqd", p, v)
    return out.reshape(B, Hq, Sq, D)
```

```python
import re

TRANS = ("v_exp_f32", "v_log_f32", "v_rcp_f32", "v_rsq_f32", "v_sqrt_f32", "v_sin_f32",
         "v_cos_f32", "v_rcp_iflag_f32")
MFMA_PASSES = {
    "v_mfma_f32_16x16x32_bf16": 4,
    "v_mfma_f32_16x16x16_bf16": 4,
    "v_mfma_f32_32x32x16_bf16": 8,
    "v_mfma_f32_32x32x8_bf16": 8,
    "v_mfma_f32_4x4x4_16b_bf16": 2,
}


def _regs(tok):
    tok = tok.strip()
    neg = tok.startswith("-")
    if neg:
        tok = tok[1:]
    m = re.fullmatch(r"abs\((.*)\)", tok) or re.fullmatch(r"\|(.*)\|", tok)
    if m:
        tok = m.group(1)
    m = re.fullmatch(r"([vsa])(\d+)", tok)
    if m:
        return {(m.group(1), int(m.group(2)))}
    m = re.fullmatch(r"([vsa])\[(\d+):(\d+)\]", tok)
    if m:
        return {(m.group(1), i) for i in range(int(m.group(2)), int(m.group(3)) + 1)}
    if tok == "vcc":
        return {("s", "vcc_lo"), ("s", "vcc_hi")}
    if tok in ("vcc_lo", "vcc_hi", "m0"):
        return {("s", tok)}
    if tok == "exec":
        return {("s", "exec_lo"), ("s", "exec_hi")}
    if tok in ("exec_lo", "exec_hi"):
        return {("s", tok)}
    return set()


class Ins:
    def __init__(self, text):
        self.text = text
        t = text.split(";")[0].strip()
        self.label = None
        self.op = None
        if t.endswith(":"):
            self.label = t[:-1]
            return
        if t.startswith(".") or not t:
            return
        parts = t.split(None, 1)
        self.op = op = parts[0]
        rest = parts[1] if len(parts) > 1 else ""
        ops, depth, cur = [], 0, ""
        for ch in rest:
            if ch in "[(":
                depth += 1
            if ch in "])":
                depth -= 1
            if ch == "," and depth == 0:
                ops.append(cur.strip())
                cur = ""
            else:
                cur += ch
        if cur.strip():
            ops.append(cur.strip())
        mods = ""
        if ops:
            sp = ops[-1].split(None, 1)
            ops[-1] = sp[0]
            mods = sp[1] if len(sp) > 1 else ""
        self.ops, self.mods = ops, mods
        base = re.sub(r"_(e32|e64|dpp|sdwa)$", "", op)
        self.base = base
        self.states = 1
        self.rd, self.wr = set(), set()
        self.mfma = base in MFMA_PASSES
        assert self.mfma or not base.startswith("v_mfma"), base
        self.valu = op.startswith("v_") and not self.mfma
        self.trans = base in TRANS
        self.dpp = op.endswith("_dpp") or "quad_perm" in mods or "row_" in mods
        self.permlane = base.startswith("v_permlane")
        self.readlane = base in ("v_readlane_b32", "v_readfirstlane_b32", "v_writelane_b32")
        self.vmem = op.startswith(("buffer_", "global_", "flat_", "scratch_"))
        self.ds = op.startswith("ds_")
        self.smem = op.startswith(("s_load", "s_buffer_load", "s_memtime", "s_memrealtime", "s_atomic"))
        self.branch = op.startswith(("s_branch", "s_cbranch"))
        self.target = ops[0] if self.branch else None
        self.end = op in ("s_endpgm", "s_branch")
        self.salu = op.startswith("s_") and not self.smem and not self.branch
        self.wide_store_data = set()
        self.lds_dma = self.vmem and (" lds" in (" " + mods) or "_lds_" in op)
        R = [_regs(o) for o in ops]
        if op == "s_nop":
            self.states = int(ops[0], 0) + 1
        elif self.mfma:
            self.passes = MFMA_PASSES[base]
            self.D, self.A, self.B, self.C = R[0], R[1], R[2], R[3]
            self.wr = set(R[0])
            self.rd = R[1] | R[2] | R[3]
        elif self.valu:
            if base.startswith("v_cmp"):
                self.wr = set(R[0])
                self.rd = set().union(*R[1:])
                if base.startswith("v_cmpx"):
                    self.wr |= _regs("exec")
            elif self.permlane and "swap" in base:
                self.wr = R[0] | R[1]
                self.rd = R[0] | R[1]
            elif base in ("v_add_co_u32", "v_sub_co_u32", "v_addc_co_u32", "v_subb_co_u32",
                          "v_subrev_co_u32", "v_div_scale_f32", "v_mad_u64_u32"):
                self.wr = R[0] | R[1]
                self.rd = set().union(*R[2:])
            elif base == "v_nop":
                pass
            else:
                self.wr = set(R[0])
                self.rd = set().union(*R[1:]) if len(R) > 1 else set()
                if base in ("v_fmac_f32", "v_dot2c_f32_bf16", "v_writelane_b32", "v_pk_fmac_f16") or self.dpp:
                    self.rd |= R[0]
                if base == "v_div_fmas_f32":
                    self.rd |= _regs("vcc")
            if self.readlane and base != "v_readfirstlane_b32":
                self.lanesel = R[2]
            else:
                self.lanesel = set()
        elif self.vmem:
            if self.lds_dma:
                self.rd = set().union(*R) | {("s", "m0")}
            elif "_load" in op:
                self.wr = set(R[0])
                self.rd = set().union(*R[1:])
            elif "_store" in op:
                self.rd = set().union(*R)
                if "x4" in op or "x3" in op:
                    self.wide_store_data = R[0] if op.startswith("buffer_") else R[1]
            elif "atomic" in op:
                self.rd = set().union(*R)
                if "sc0" in mods:
                    self.wr = set(R[0])
            elif op in ("buffer_inv", "buffer_wbl2"):
                pass
            else:
                raise ValueError(text)
        elif self.ds:
            if "read" in op or "permute" in op or "swizzle" in op or "_rtn" in op:
                self.wr = set(R[0])
                self.rd = set().union(*R[1:])
            else:
                self.rd = set().union(*R)
        elif self.smem:
            self.wr = set(R[0])
            self.rd = set().union(*R[1:]) if len(R) > 1 else set()
        elif self.salu:
            if op.startswith("s_cmp") or op in ("s_waitcnt", "s_barrier", "s_endpgm", "s_sleep",
                                                "s_setprio", "s_sethalt", "s_bitcmp0_b32", "s_bitcmp1_b32"):
                self.rd = set().union(*R) if R else set()
            else:
                self.wr = set(R[0]) if R else set()
                self.rd = set().union(*R[1:]) if len(R) > 1 else set()
                if "saveexec" in op:
                    self.wr |= _regs("exec")


def _v(s):
    return {r for r in s if r[0] in "va"}


def _s(s):
    return {r for r in s if r[0] == "s"}


def need(p, c):
    n = 0
    EX = _regs("exec")
    if p.valu:
        sw = _s(p.wr)
        vw = _v(p.wr)
        if c.vmem and sw & c.rd:
            n = max(n, 5)
        if c.valu and c.readlane and sw & getattr(c, "lanesel", set()):
            n = max(n, 4)
        if (c.valu or c.mfma) and sw & c.rd:
            n = max(n, 2)
        if c.valu and c.base == "v_div_fmas_f32" and sw & _regs("vcc"):
            n = max(n, 4)
        if c.valu and c.dpp and vw & c.rd:
            n = max(n, 2)
        if sw & EX:
            if c.valu and c.dpp:
                n = max(n, 5)
            if c.valu and (c.readlane or c.permlane):
                n = max(n, 4)
            if c.mfma:
                n = max(n, 4)
        if c.valu and c.readlane and vw & c.rd:
            n = max(n, 1)
        if p.trans and c.valu and not c.trans and vw & c.rd:
            n = max(n, 1)
        if c.valu and c.permlane and vw & c.rd:
            n = max(n, 2)
        if c.mfma and vw & c.rd:
            n = max(n, 2)
    if p.vmem and p.wide_store_data:
        if p.wide_store_data & c.wr:
            n = max(n, 2)
    if p.mfma:
        idx = {2: 0, 4: 1, 8: 2, 16: 3}[p.passes]
        if c.mfma:
            if p.D & c.C:
                if p.D == c.C and p.passes == c.passes:
                    n = max(n, (2, 0, 0, 0)[idx])
                else:
                    n = max(n, (4, 6, 10, 18)[idx])
            if p.D & (c.A | c.B):
                n = max(n, (5, 8, 12, 20)[idx])
            if p.D & c.D and not (p.D & c.C):
                n = max(n, (5, 8, 12, 20)[idx])
        elif c.valu or c.vmem or c.ds:
            if p.D & (c.rd | c.wr):
                n = max(n, (5, 8, 12, 20)[idx])
            if c.valu and p.C & c.wr:
                n = max(n, (1, 3, 7, 15)[idx])
    if p.salu and ("s", "m0") in p.wr and (c.lds_dma if c.vmem else False):
        n = max(n, 1)
    return n


MAXW = 20


def fix_hazards(lines, verbose=False):
    total = 0
    while True:
        ins = [Ins(l) for l in lines]
        labels = {x.label: i for i, x in enumerate(ins) if x.label}
        preds = {i: [] for i in range(len(ins))}
        for i, x in enumerate(ins):
            if i + 1 < len(ins) and not (x.op and x.end):
                preds[i + 1].append(i)
            if x.op and x.branch:
                preds[labels[x.target]].append(i)
        fix = None
        for ci, c in enumerate(ins):
            if not c.op or c.op == "s_nop":
                continue
            worst = 0
            why = None
            seen = {}
            stack = [(p, 0) for p in preds[ci]]
            while stack:
                pi, dist = stack.pop()
                if dist >= MAXW:
                    continue
                if pi in seen and seen[pi] <= dist:
                    continue
                seen[pi] = dist
                p = ins[pi]
                if p.op:
                    nd = need(p, c) - dist
                    if nd > worst:
                        worst, why = nd, p.text
                    d2 = dist + p.states
                else:
                    d2 = dist
                for q in preds[pi]:
                    stack.append((q, d2))
            if worst > 0:
                fix = (ci, worst, why)
                break
        if fix is None:
            break
        ci, worst, why = fix
        if verbose:
            print(f"; nop {worst} before [{lines[ci].strip()}] after [{why.strip()}]")
        total += worst
        add = []
        while worst > 0:
            k = min(worst, 16)
            add.append(f"  s_nop {k - 1}")
            worst -= k
        lines = lines[:ci] + add + lines[ci:]
    return lines


class K:
    def __init__(self):
        self.lines = []

    def __call__(self, text):
        for l in text.strip("\n").split("\n"):
            l = l.rstrip()
            if not l.strip():
                continue
            s = l.strip()
            if s.split(";")[0].strip().endswith(":"):
                self.lines.append(s)
            else:
                self.lines.append("  " + s)

    def done(self, verbose=False):
        return "\n".join(fix_hazards(self.lines, verbose)) + "\n"


def vr(a, n=1):
    return f"v{a}" if n == 1 else f"v[{a}:{a + n - 1}]"


def sr(a, n=1):
    return f"s{a}" if n == 1 else f"s[{a}:{a + n - 1}]"
```

```python
import sys
import struct
from asmlib import K, vr, sr

NAME = "standalone__paged_block_table_kv_pagedattention__decode"
KV_BYTES = 4100 * 32768
HEADER = open("cdna_kernels/" + NAME + ".s.ref").read().split("; Override")[0]


def f32(x):
    return "0x%08x" % struct.unpack("<I", struct.pack("<f", x))[0]


def gen(R=4, POL="nt", MAP=0, DIAG=0, NOCOMP=0):
    k = K()
    sQ, sKp, sVp, sBT, sCTX, sOUT, sDBG, sWS = 4, 6, 8, 10, 12, 14, 16, 18
    SK, SV, SB, SQ, SW = 20, 24, 28, 32, 36
    sH, sS, sWv, sJ, sCtx, sN, sI, sRem, sOff, sC, sPlo, sPhi, sT0, sT1, sNeg, sIdx = range(40, 56)
    sTS = 56
    vLane, vKo0, vKo1, vVo0, vVo1, vBt, vG4, vM, vL, vMx, vTmp, vAl, vAb = range(1, 14)
    vP = 14
    vQ = 16
    vT = 20
    vD = 24
    vB = 40
    vAcc = 56
    vRing = 88
    NV = vRing + 32 * R

    def Kr(r, i):
        return vRing + 32 * r + 4 * i

    def Vr(r, i):
        return vRing + 32 * r + 16 + 4 * i

    pol = (" " + POL) if POL else ""

    def loadK(r):
        k(f"""
        buffer_load_dwordx4 {vr(Kr(r,0),4)}, v{vKo0}, {sr(SK,4)}, s{sOff} offen{pol}
        buffer_load_dwordx4 {vr(Kr(r,1),4)}, v{vKo0}, {sr(SK,4)}, s{sOff} offen offset:2048{pol}
        buffer_load_dwordx4 {vr(Kr(r,2),4)}, v{vKo1}, {sr(SK,4)}, s{sOff} offen{pol}
        buffer_load_dwordx4 {vr(Kr(r,3),4)}, v{vKo1}, {sr(SK,4)}, s{sOff} offen offset:2048{pol}
        """)

    def loadV(r):
        k(f"""
        buffer_load_dwordx4 {vr(Vr(r,0),4)}, v{vVo0}, {sr(SV,4)}, s{sOff} offen{pol}
        buffer_load_dwordx4 {vr(Vr(r,1),4)}, v{vVo0}, {sr(SV,4)}, s{sOff} offen offset:2048{pol}
        buffer_load_dwordx4 {vr(Vr(r,2),4)}, v{vVo1}, {sr(SV,4)}, s{sOff} offen{pol}
        buffer_load_dwordx4 {vr(Vr(r,3),4)}, v{vVo1}, {sr(SV,4)}, s{sOff} offen offset:2048{pol}
        """)

    k(f"""
    s_cmp_ge_u32 s2, 256
    s_cbranch_scc1 L_end
    s_load_dwordx16 s[4:19], s[0:1], 0
    """)
    if DIAG:
        k(f"s_memrealtime {sr(sTS,2)}")
    k(f"""
    v_lshrrev_b32 v{vTmp}, 6, v0
    v_and_b32 v{vLane}, 63, v0
    v_readfirstlane_b32 s{sWv}, v{vTmp}
    """)
    if MAP == 0:
        k(f"""
        s_and_b32 s{sH}, s2, 7
        s_lshr_b32 s{sS}, s2, 3
        """)
    else:
        k(f"""
        s_lshr_b32 s{sT0}, s2, 3
        s_and_b32 s{sH}, s{sT0}, 7
        s_lshr_b32 s{sT0}, s{sT0}, 3
        s_and_b32 s{sS}, s2, 7
        s_lshl_b32 s{sS}, s{sS}, 2
        s_add_u32 s{sS}, s{sS}, s{sT0}
        """)
    k(f"""
    s_lshl_b32 s{sJ}, s{sWv}, 5
    s_add_u32 s{sJ}, s{sJ}, s{sS}
    s_lshl_b32 s{sT0}, s{sJ}, 2
    v_lshlrev_b32 v{vBt}, 10, v{vLane}
    v_add_u32 v{vBt}, s{sT0}, v{vBt}          ; (j + 256*lane)*4
    v_lshrrev_b32 v{vG4}, 4, v{vLane}
    v_lshlrev_b32 v{vG4}, 2, v{vG4}            ; 4*g
    v_and_b32 v{vTmp}, 3, v{vLane}
    v_add_u32 v{vTmp}, v{vTmp}, v{vG4}
    v_lshlrev_b32 v{vTmp}, 4, v{vTmp}          ; chunk*16
    v_bfe_u32 v{vMx}, v{vLane}, 2, 2           ; tau
    s_lshl_b32 s{sT1}, s{sH}, 8                ; h*256
    v_lshl_add_u32 v{vKo0}, v{vMx}, 13, v{vTmp}
    v_add_u32 v{vKo0}, s{sT1}, v{vKo0}
    v_add_u32 v{vKo1}, 0x1000, v{vKo0}
    v_lshl_add_u32 v{vAl}, v{vMx}, 8, v{vTmp}    ; q*256 + chunk*16
    s_lshl_b32 s{sT0}, s{sH}, 10
    v_add_u32 v{vAl}, s{sT0}, v{vAl}           ; Q offset
    v_and_b32 v{vTmp}, 15, v{vLane}
    v_lshlrev_b32 v{vTmp}, 4, v{vTmp}
    v_lshl_add_u32 v{vVo0}, v{vG4}, 11, v{vTmp}
    v_add_u32 v{vVo0}, s{sT1}, v{vVo0}
    v_add_u32 v{vVo1}, 0x1000, v{vVo0}
    s_mov_b32 s{SB+2}, 16384
    s_mov_b32 s{SB+3}, 0x20000
    s_mov_b32 s{SQ+2}, 8192
    s_mov_b32 s{SQ+3}, 0x20000
    s_mov_b32 s{SK+2}, {KV_BYTES}
    s_mov_b32 s{SK+3}, 0x20000
    s_mov_b32 s{SV+2}, {KV_BYTES}
    s_mov_b32 s{SV+3}, 0x20000
    s_mov_b32 s{SW+2}, 0x100000
    s_mov_b32 s{SW+3}, 0x20000
    s_waitcnt lgkmcnt(0)
    s_load_dword s{sCtx}, {sr(sCTX,2)}, 0
    s_mov_b32 s{SB}, s{sBT}
    s_mov_b32 s{SB+1}, s{sBT+1}
    buffer_load_dword v{vBt}, v{vBt}, {sr(SB,4)}, 0 offen
    s_mov_b32 s{SQ}, s{sQ}
    s_mov_b32 s{SQ+1}, s{sQ+1}
    buffer_load_dwordx4 {vr(vQ,4)}, v{vAl}, {sr(SQ,4)}, 0 offen
    s_mov_b32 s{SK}, s{sKp}
    s_mov_b32 s{SK+1}, s{sKp+1}
    s_mov_b32 s{SV}, s{sVp}
    s_mov_b32 s{SV+1}, s{sVp+1}
    s_mov_b32 s{SW}, s{sWS}
    s_mov_b32 s{SW+1}, s{sWS+1}
    s_mov_b32 s{sC}, {f32(128 ** -0.5 * 1.4426950408889634)}
    s_mov_b32 s{sPlo}, 0x05040100
    s_mov_b32 s{sPhi}, 0x07060302
    s_mov_b32 s{sNeg}, {f32(-1e9 * 1.4426950408889634)}
    v_mov_b32 v{vM}, {f32(-3.0e38)}
    v_mov_b32 v{vL}, 0
    v_mov_b32 v{vAb}, 0
    """)
    for i in range(32):
        k(f"v_mov_b32 v{vAcc+i}, 0")
    k(f"""
    v_mov_b32 v{vTmp}, 0x80000000
    s_waitcnt lgkmcnt(0)
    s_min_i32 s{sT0}, s{sCtx}, 65536
    s_cmp_le_i32 s{sCtx}, 0
    s_cselect_b32 s{sT0}, 65536, s{sT0}
    s_add_u32 s{sT0}, s{sT0}, 15
    s_lshr_b32 s{sT0}, s{sT0}, 4               ; npages
    s_add_u32 s{sT0}, s{sT0}, 255
    s_sub_u32 s{sT0}, s{sT0}, s{sJ}
    s_lshr_b32 s{sN}, s{sT0}, 8
    s_min_i32 s{sCtx}, s{sCtx}, 65536
    s_max_i32 s{sCtx}, s{sCtx}, 0
    s_lshl_b32 s{sT0}, s{sJ}, 4
    s_sub_i32 s{sRem}, s{sCtx}, s{sT0}
    v_cmp_gt_u32 vcc, s{sN}, v{vLane}
    s_waitcnt vmcnt(1)
    v_lshlrev_b32 v{vBt}, 15, v{vBt}
    v_cndmask_b32 v{vBt}, v{vTmp}, v{vBt}, vcc
    """)
    for r in range(R):
        k(f"v_readlane_b32 s{sOff}, v{vBt}, {r}")
        loadK(r)
        loadV(r)
    if DIAG:
        k(f"s_memrealtime {sr(sTS+2,2)}")
    k(f"""
    s_mov_b32 s{sI}, 0
    s_mov_b32 s{sIdx}, {R}
    s_cmp_eq_u32 s{sN}, 0
    s_cbranch_scc1 L_done
    L_loop:
    """)
    W = 8 * (R - 1) + 4
    for r in range(R):
        k(f"""
        v_readlane_b32 s{sOff}, v{vBt}, s{sIdx}
        s_waitcnt vmcnt({W})
        """)
        if not NOCOMP:
            for i in range(4):
                k(f"v_mfma_f32_16x16x32_bf16 {vr(vD+4*i,4)}, {vr(Kr(r,i),4)}, {vr(vQ,4)}, 0")
        else:
            for i in range(4):
                k(f"v_xor_b32 v{vAcc}, v{vAcc}, v{Kr(r,i)}")
        loadK(r)
        if not NOCOMP:
            for j in (1, 2, 3):
                for i in range(4):
                    src1 = vD + 4 * i if j == 1 else vT + i
                    k(f"v_add_f32_dpp v{vT+i}, v{vD+4*i+j}, v{src1} quad_perm:[{j},{j},{j},{j}] row_mask:0xf bank_mask:0xf")
            for i in range(4):
                k(f"v_mul_f32 v{vT+i}, s{sC}, v{vT+i}")
            k(f"""
            s_cmp_ge_i32 s{sRem}, 16
            s_cbranch_scc1 L_nomask{r}
            v_mov_b32 v{vTmp}, s{sNeg}
            """)
            for i in range(4):
                k(f"""
                s_sub_i32 s{sT0}, s{sRem}, {i}
                v_cmp_gt_i32 vcc, s{sT0}, v{vG4}
                v_cndmask_b32 v{vT+i}, v{vTmp}, v{vT+i}, vcc
                """)
            k(f"""
            L_nomask{r}:
            v_max3_f32 v{vMx}, v{vT}, v{vT+1}, v{vT+2}
            v_max3_f32 v{vMx}, v{vMx}, v{vT+3}, v{vM}
            v_mov_b32 v{vTmp}, v{vMx}
            v_permlane32_swap_b32 v{vMx}, v{vTmp}
            v_max_f32 v{vMx}, v{vMx}, v{vTmp}
            v_mov_b32 v{vTmp}, v{vMx}
            v_permlane16_swap_b32 v{vMx}, v{vTmp}
            v_max_f32 v{vMx}, v{vMx}, v{vTmp}
            v_sub_f32 v{vAl}, v{vM}, v{vMx}
            v_mov_b32 v{vM}, v{vMx}
            v_exp_f32 v{vAl}, v{vAl}
            """)
            for i in range(4):
                k(f"v_sub_f32 v{vT+i}, v{vT+i}, v{vMx}")
            for i in range(4):
                k(f"v_exp_f32 v{vT+i}, v{vT+i}")
            for g in range(4):
                k(f"v_mov_b32_dpp v{vAb}, v{vAl} row_newbcast:{4*g} row_mask:{hex(1<<g)} bank_mask:0xf")
            k(f"""
            v_fma_f32 v{vL}, v{vL}, v{vAl}, v{vT}
            v_add_f32 v{vTmp}, v{vT+1}, v{vT+2}
            v_cvt_pk_bf16_f32 v{vP}, v{vT}, v{vT+1}
            v_cvt_pk_bf16_f32 v{vP+1}, v{vT+2}, v{vT+3}
            v_add_f32 v{vL}, v{vL}, v{vT+3}
            v_add_f32 v{vL}, v{vL}, v{vTmp}
            """)
            for e in range(8):
                k(f"v_mul_f32 v{vAcc+4*e}, v{vAb}, v{vAcc+4*e}")
        k(f"s_waitcnt vmcnt({W})")
        if not NOCOMP:
            for j in range(4):
                for hi in range(2):
                    e = 2 * j + hi
                    sel = sPhi if hi else sPlo
                    k(f"v_perm_b32 v{vB+2*e}, v{Vr(r,1)+j}, v{Vr(r,0)+j}, s{sel}")
                    k(f"v_perm_b32 v{vB+2*e+1}, v{Vr(r,3)+j}, v{Vr(r,2)+j}, s{sel}")
        else:
            for i in range(4):
                k(f"v_xor_b32 v{vAcc}, v{vAcc}, v{Vr(r,i)}")
        loadV(r)
        if not NOCOMP:
            for e in range(8):
                k(f"v_mfma_f32_16x16x16_bf16 {vr(vAcc+4*e,4)}, {vr(vP,2)}, {vr(vB+2*e,2)}, {vr(vAcc+4*e,4)}")
        k(f"""
        s_add_u32 s{sI}, s{sI}, 1
        s_add_u32 s{sIdx}, s{sIdx}, 1
        s_sub_i32 s{sRem}, s{sRem}, 4096
        s_cmp_ge_u32 s{sI}, s{sN}
        """)
        if r < R - 1:
            k("s_cbranch_scc1 L_done")
        else:
            k("s_cbranch_scc0 L_loop")
    k("L_done:")
    if DIAG:
        k(f"s_memrealtime {sr(sTS+4,2)}")
    k(f"""
    v_mov_b32 v{vTmp}, v{vL}
    v_permlane32_swap_b32 v{vL}, v{vTmp}
    v_add_f32 v{vL}, v{vL}, v{vTmp}
    v_mov_b32 v{vTmp}, v{vL}
    v_permlane16_swap_b32 v{vL}, v{vTmp}
    v_add_f32 v{vL}, v{vL}, v{vTmp}
    """)
    for e in range(8):
        k(f"v_mov_b32 v{vD+e}, v{vAcc+4*e}")
    k(f"""
    s_lshl_b32 s{sT0}, s{sWv}, 11
    v_lshlrev_b32 v{vTmp}, 4, v{vLane}
    v_add_u32 v{vTmp}, s{sT0}, v{vTmp}
    ds_write_b128 v{vTmp}, {vr(vD,4)}
    ds_write_b128 v{vTmp}, {vr(vD+4,4)} offset:1024
    s_lshl_b32 s{sT0}, s{sWv}, 2
    v_lshlrev_b32 v{vMx}, 3, v{vLane}
    v_add_u32 v{vMx}, s{sT0}, v{vMx}
    s_mov_b32 exec_lo, 0x1111
    s_mov_b32 exec_hi, 0
    ds_write_b32 v{vMx}, v{vM} offset:16384
    ds_write_b32 v{vMx}, v{vL} offset:16512
    s_mov_b64 exec, -1
    s_waitcnt lgkmcnt(0)
    s_barrier
    s_cmp_ge_u32 s{sWv}, 2
    s_cbranch_scc1 L_end2
    v_lshlrev_b32 v{vTmp}, 4, v0               ; t*16
    v_lshrrev_b32 v{vMx}, 4, v{vLane}
    v_lshlrev_b32 v{vMx}, 5, v{vMx}            ; q*32
    """)
    vO = vAcc
    vMm = vD
    vLl = vD + 8
    k(f"""
    ds_read_b128 {vr(vMm,4)}, v{vMx} offset:16384
    ds_read_b128 {vr(vMm+4,4)}, v{vMx} offset:16400
    ds_read_b128 {vr(vLl,4)}, v{vMx} offset:16512
    ds_read_b128 {vr(vLl+4,4)}, v{vMx} offset:16528
    """)
    for w in range(8):
        k(f"ds_read_b128 {vr(vO+4*w,4)}, v{vTmp} offset:{w*2048}")
    vR = vB
    k(f"""
    s_lshl_b32 s{sT0}, s{sH}, 5
    s_add_u32 s{sT0}, s{sT0}, s{sS}
    s_lshl_b32 s{sT0}, s{sT0}, 11
    s_waitcnt lgkmcnt(8)
    v_max3_f32 v{vR+4}, v{vMm}, v{vMm+1}, v{vMm+2}
    v_max3_f32 v{vR+4}, v{vR+4}, v{vMm+3}, v{vMm+4}
    v_max3_f32 v{vR+4}, v{vR+4}, v{vMm+5}, v{vMm+6}
    v_max_f32 v{vR+4}, v{vR+4}, v{vMm+7}
    """)
    for w in range(8):
        k(f"v_sub_f32 v{vMm+w}, v{vMm+w}, v{vR+4}")
    for w in range(8):
        k(f"v_exp_f32 v{vMm+w}, v{vMm+w}")
    k(f"v_mul_f32 v{vR+5}, v{vMm}, v{vLl}")
    for w in range(1, 8):
        k(f"v_fmac_f32 v{vR+5}, v{vMm+w}, v{vLl+w}")
    k("s_waitcnt lgkmcnt(0)")
    for j in range(4):
        k(f"v_mul_f32 v{vR+j}, v{vMm}, v{vO+j}")
    for w in range(1, 8):
        for j in range(4):
            k(f"v_fmac_f32 v{vR+j}, v{vMm+w}, v{vO+4*w+j}")
    k(f"""
    buffer_store_dwordx4 {vr(vR,4)}, v{vTmp}, {sr(SW,4)}, s{sT0} offen
    s_cmp_eq_u32 s{sWv}, 0
    s_cbranch_scc0 L_end2
    s_lshl_b32 s{sT0}, s{sH}, 10
    s_lshl_b32 s{sT1}, s{sS}, 3
    s_add_u32 s{sT0}, s{sT0}, s{sT1}
    s_add_u32 s{sT0}, s{sT0}, 0x80000
    v_lshlrev_b32 v{vMx}, 3, v{vMx}            ; q*256
    s_mov_b32 exec_lo, 0x00010001
    s_mov_b32 exec_hi, 0x00010001
    buffer_store_dwordx2 {vr(vR+4,2)}, v{vMx}, {sr(SW,4)}, s{sT0} offen
    s_mov_b64 exec, -1
    L_end2:
    """)
    if DIAG:
        k(f"""
        s_waitcnt vmcnt(0)
        s_memrealtime {sr(sTS+6,2)}
        s_getreg_b32 s{sT1}, hwreg(HW_REG_XCC_ID)
        s_waitcnt lgkmcnt(0)
        v_mov_b32 v{vD}, s{sTS}
        v_mov_b32 v{vD+1}, s{sTS+2}
        v_mov_b32 v{vD+2}, s{sTS+4}
        v_mov_b32 v{vD+3}, s{sTS+6}
        v_mov_b32 v{vD+4}, s{sT1}
        s_lshl_b32 s{sT0}, s2, 3
        s_add_u32 s{sT0}, s{sT0}, s{sWv}
        s_lshl_b32 s{sT0}, s{sT0}, 5
        s_add_u32 s{sT0}, s{sT0}, 0xC0000
        v_mov_b32 v{vTmp}, 0
        s_mov_b64 exec, 1
        buffer_store_dwordx4 {vr(vD,4)}, v{vTmp}, {sr(SW,4)}, s{sT0} offen
        buffer_store_dword v{vD+4}, v{vTmp}, {sr(SW,4)}, s{sT0} offen offset:16
        """)
    k("""
    L_end:
    s_endpgm
    """)
    body1 = k.done()

    c = K()
    vLn, vOf, vMl, vW, vX, vLs = 1, 2, 4, 6, 7, 8
    vA = 12
    vA2 = 16
    vOO = 20
    c(f"""
    s_cmp_ge_u32 s2, 32
    s_cbranch_scc1 C_end
    s_load_dwordx2 s[4:5], s[0:1], 40
    s_load_dwordx2 s[8:9], s[0:1], 56
    s_lshr_b32 s12, s2, 2                      ; h
    s_and_b32 s13, s2, 3                       ; q
    v_and_b32 v{vLn}, 15, v0
    v_bfe_u32 v{vX}, v0, 4, 1
    v_lshrrev_b32 v{vW}, 5, v0
    v_lshlrev_b32 v{vOf}, 4, v{vLn}
    v_lshl_add_u32 v{vOf}, v{vX}, 10, v{vOf}
    v_lshl_add_u32 v{vOf}, v{vW}, 15, v{vOf}
    s_lshl_b32 s14, s12, 16
    s_lshl_b32 s15, s13, 8
    s_add_u32 s14, s14, s15
    v_add_u32 v{vOf}, s14, v{vOf}
    v_lshlrev_b32 v{vLs}, 3, v{vLn}
    v_lshl_add_u32 v{vLs}, v{vW}, 7, v{vLs}
    s_lshl_b32 s14, s2, 8
    s_add_u32 s14, s14, 0x80000
    v_add_u32 v{vLs}, s14, v{vLs}
    v_lshlrev_b32 v3, 4, v{vLn}
    v_lshl_add_u32 v3, v{vX}, 3, v3
    s_lshl_b32 s14, s2, 8
    v_add_u32 v3, s14, v3
    s_mov_b32 s6, 8192
    s_mov_b32 s7, 0x20000
    s_mov_b32 s10, 0x100000
    s_mov_b32 s11, 0x20000
    """)
    for i in range(1, 8):
        c(f"s_mov_b32 s{16+i}, {i*4096}")
    c(f"""
    s_waitcnt lgkmcnt(0)
    buffer_load_dwordx2 {vr(vMl,2)}, v{vLs}, s[8:11], 0 offen
    """)
    for kk in range(16):
        so = "0" if kk < 2 else f"s{16+kk//2}"
        off = " offset:2048" if kk & 1 else ""
        c(f"buffer_load_dwordx4 {vr(vOO+4*kk,4)}, v{vOf}, s[8:11], {so} offen{off}")
    c(f"""
    s_waitcnt vmcnt(16)
    v_mov_b32 v{vW}, v{vMl}
    """)
    for sh in (8, 4, 2, 1):
        c(f"v_max_f32_dpp v{vW}, v{vW}, v{vW} row_ror:{sh} row_mask:0xf bank_mask:0xf")
    c(f"""
    v_mov_b32 v{vX}, v{vW}
    v_permlane32_swap_b32 v{vW}, v{vX}
    v_max_f32 v{vW}, v{vW}, v{vX}
    v_sub_f32 v{vW}, v{vMl}, v{vW}
    v_exp_f32 v{vW}, v{vW}
    v_mul_f32 v{vLs}, v{vW}, v{vMl+1}
    """)
    for sh in (8, 4, 2, 1):
        c(f"v_add_f32_dpp v{vLs}, v{vLs}, v{vLs} row_ror:{sh} row_mask:0xf bank_mask:0xf")
    c(f"""
    v_mov_b32 v{vX}, v{vLs}
    v_permlane32_swap_b32 v{vLs}, v{vX}
    v_add_f32 v{vLs}, v{vLs}, v{vX}
    v_rcp_f32 v{vLs}, v{vLs}
    """)
    for j in range(4):
        c(f"v_mov_b32 v{vA+j}, 0")
    for kk in range(16):
        c(f"s_waitcnt vmcnt({15-kk})")
        for j in range(4):
            c(f"v_fmac_f32_dpp v{vA+j}, v{vW}, v{vOO+4*kk+j} row_newbcast:{kk} row_mask:0xf bank_mask:0xf")
    for j in range(4):
        c(f"v_mov_b32 v{vA2+j}, v{vA+j}")
    for j in range(4):
        c(f"v_permlane32_swap_b32 v{vA+j}, v{vA2+j}")
    for j in range(4):
        c(f"v_add_f32 v{vA+j}, v{vA+j}, v{vA2+j}")
    for j in range(4):
        c(f"v_mul_f32 v{vA+j}, v{vA+j}, v{vLs}")
    c(f"""
    v_cvt_pk_bf16_f32 v{vA2}, v{vA}, v{vA+1}
    v_cvt_pk_bf16_f32 v{vA2+1}, v{vA+2}, v{vA+3}
    s_mov_b32 exec_hi, 0
    buffer_store_dwordx2 {vr(vA2,2)}, v3, s[4:7], 0 offen
    C_end:
    s_endpgm
    """)
    body2 = c.done()

    def desc(name, nv, ns):
        return f""".amdhsa_kernel {name}
  .amdhsa_next_free_vgpr {nv}
  .amdhsa_next_free_sgpr {ns}
  .amdhsa_accum_offset {(nv + 3) // 4 * 4}
  .amdhsa_group_segment_fixed_size 0
  .amdhsa_kernarg_size 64
  .amdhsa_user_sgpr_count 2
  .amdhsa_user_sgpr_kernarg_segment_ptr 1
  .amdhsa_system_sgpr_workgroup_id_x 1
.end_amdhsa_kernel
"""

    out = HEADER
    out += f"; @launch kernel={NAME}_kernel grid=(256,1,1) block=(512,1,1) lds=16640\n"
    out += f"; @launch kernel=pa_combine_kernel grid=(32,1,1) block=(64,1,1) lds=0\n"
    out += '.amdgcn_target "amdgcn-amd-amdhsa--gfx950"\n.text\n'
    out += f".globl {NAME}_kernel\n.p2align 8\n.type {NAME}_kernel,@function\n{NAME}_kernel:\n"
    out += body1
    out += ".globl pa_combine_kernel\n.p2align 8\n.type pa_combine_kernel,@function\npa_combine_kernel:\n"
    out += body2
    out += '.section .rodata,"a"\n.p2align 6\n'
    out += desc(NAME + "_kernel", NV, 64)
    out += ".p2align 6\n"
    out += desc("pa_combine_kernel", 84, 32)
    return out


if __name__ == "__main__":
    kw = {}
    outp = sys.argv[1]
    for a in sys.argv[2:]:
        key, val = a.split("=")
        kw[key] = val if key == "POL" else int(val)
    open(outp, "w").write(gen(**kw))
```

```python
import sys
import struct
from asmlib import K, vr, sr

NAME = "standalone__paged_block_table_kv_pagedattention__decode"
KV_BYTES = 4100 * 32768
HEADER = open("cdna_kernels/" + NAME + ".s.ref").read().split("; Override")[0]


def f32(x):
    return "0x%08x" % struct.unpack("<I", struct.pack("<f", x))[0]


def gen(R=4, POL="nt", POLV=None, MAP=0, DIAG=0, NOCOMP=0, LIST="mc"):
    k = K()
    sQ, sKp, sVp, sBT, sCTX, sOUT, sDBG, sWS = 4, 6, 8, 10, 12, 14, 16, 18
    SK, SV, SB, SQ, SW = 20, 24, 28, 32, 36
    sH, sS, sWv, sJ, sCtx, sN, sI, sRem, sOff, sC, sPlo, sPhi, sT0, sT1, sNeg, sIdx = range(40, 56)
    sTS = 56
    vLane, vKo0, vKo1, vVo0, vVo1, vBt, vG4, vM, vL, vMx, vTmp, vAl, vAb = range(1, 14)
    vP = 14
    vQ = 16
    vT = 20
    vD = 24
    vB = 40
    vAcc = 56
    vRing = 88
    NV = vRing + 32 * R

    def Kr(r, i):
        return vRing + 32 * r + 4 * i

    def Vr(r, i):
        return vRing + 32 * r + 16 + 4 * i

    pol = (" " + POL.replace("+", " ")) if POL else ""
    if POLV is None:
        POLV = POL
    polv = (" " + POLV.replace("+", " ")) if POLV else ""

    def loadK(r):
        k(f"""
        buffer_load_dwordx4 {vr(Kr(r,0),4)}, v{vKo0}, {sr(SK,4)}, s{sOff} offen{pol}
        buffer_load_dwordx4 {vr(Kr(r,1),4)}, v{vKo0}, {sr(SK,4)}, s{sOff} offen offset:2048{pol}
        buffer_load_dwordx4 {vr(Kr(r,2),4)}, v{vKo1}, {sr(SK,4)}, s{sOff} offen{pol}
        buffer_load_dwordx4 {vr(Kr(r,3),4)}, v{vKo1}, {sr(SK,4)}, s{sOff} offen offset:2048{pol}
        """)

    def loadV(r):
        k(f"""
        buffer_load_dwordx4 {vr(Vr(r,0),4)}, v{vVo0}, {sr(SV,4)}, s{sOff} offen{polv}
        buffer_load_dwordx4 {vr(Vr(r,1),4)}, v{vVo0}, {sr(SV,4)}, s{sOff} offen offset:2048{polv}
        buffer_load_dwordx4 {vr(Vr(r,2),4)}, v{vVo1}, {sr(SV,4)}, s{sOff} offen{polv}
        buffer_load_dwordx4 {vr(Vr(r,3),4)}, v{vVo1}, {sr(SV,4)}, s{sOff} offen offset:2048{polv}
        """)

    k(f"""
    s_cmp_ge_u32 s2, 256
    s_cbranch_scc1 L_end
    s_load_dwordx16 s[4:19], s[0:1], 0
    """)
    if DIAG:
        k(f"s_memrealtime {sr(sTS,2)}")
    k(f"""
    v_lshrrev_b32 v{vTmp}, 6, v0
    v_and_b32 v{vLane}, 63, v0
    v_readfirstlane_b32 s{sWv}, v{vTmp}
    """)
    if MAP == 0:
        k(f"""
        s_and_b32 s{sH}, s2, 7
        s_lshr_b32 s{sS}, s2, 3
        """)
    else:
        k(f"""
        s_lshr_b32 s{sT0}, s2, 3
        s_and_b32 s{sH}, s{sT0}, 7
        s_lshr_b32 s{sT0}, s{sT0}, 3
        s_and_b32 s{sS}, s2, 7
        s_lshl_b32 s{sS}, s{sS}, 2
        s_add_u32 s{sS}, s{sS}, s{sT0}
        """)
    k(f"""
    s_lshl_b32 s{sJ}, s{sWv}, 5
    s_add_u32 s{sJ}, s{sJ}, s{sS}
    s_lshl_b32 s{sT0}, s{sJ}, 2
    v_lshlrev_b32 v{vBt}, 10, v{vLane}
    v_add_u32 v{vBt}, s{sT0}, v{vBt}          ; (j + 256*lane)*4
    v_lshrrev_b32 v{vG4}, 4, v{vLane}
    v_lshlrev_b32 v{vG4}, 2, v{vG4}            ; 4*g
    v_and_b32 v{vTmp}, 3, v{vLane}
    v_add_u32 v{vTmp}, v{vTmp}, v{vG4}
    v_lshlrev_b32 v{vTmp}, 4, v{vTmp}          ; chunk*16
    v_bfe_u32 v{vMx}, v{vLane}, 2, 2           ; tau
    s_lshl_b32 s{sT1}, s{sH}, 8                ; h*256
    v_lshl_add_u32 v{vKo0}, v{vMx}, 13, v{vTmp}
    v_add_u32 v{vKo0}, s{sT1}, v{vKo0}
    v_add_u32 v{vKo1}, 0x1000, v{vKo0}
    v_lshl_add_u32 v{vAl}, v{vMx}, 8, v{vTmp}    ; q*256 + chunk*16
    s_lshl_b32 s{sT0}, s{sH}, 10
    v_add_u32 v{vAl}, s{sT0}, v{vAl}           ; Q offset
    v_and_b32 v{vTmp}, 15, v{vLane}
    v_lshlrev_b32 v{vTmp}, 4, v{vTmp}
    v_lshl_add_u32 v{vVo0}, v{vG4}, 11, v{vTmp}
    v_add_u32 v{vVo0}, s{sT1}, v{vVo0}
    v_add_u32 v{vVo1}, 0x1000, v{vVo0}
    s_mov_b32 s{SB+2}, 16384
    s_mov_b32 s{SB+3}, 0x20000
    s_mov_b32 s{SQ+2}, 8192
    s_mov_b32 s{SQ+3}, 0x20000
    s_mov_b32 s{SK+2}, {KV_BYTES}
    s_mov_b32 s{SK+3}, 0x20000
    s_mov_b32 s{SV+2}, {KV_BYTES}
    s_mov_b32 s{SV+3}, 0x20000
    s_mov_b32 s{SW+2}, 0x100000
    s_mov_b32 s{SW+3}, 0x20000
    s_waitcnt lgkmcnt(0)
    s_load_dword s{sCtx}, {sr(sCTX,2)}, 0
    s_mov_b32 s{SB}, s{sBT}
    s_mov_b32 s{SB+1}, s{sBT+1}
    buffer_load_dword v{vBt}, v{vBt}, {sr(SB,4)}, 0 offen
    s_mov_b32 s{SQ}, s{sQ}
    s_mov_b32 s{SQ+1}, s{sQ+1}
    buffer_load_dwordx4 {vr(vQ,4)}, v{vAl}, {sr(SQ,4)}, 0 offen
    s_mov_b32 s{SK}, s{sKp}
    s_mov_b32 s{SK+1}, s{sKp+1}
    s_mov_b32 s{SV}, s{sVp}
    s_mov_b32 s{SV+1}, s{sVp+1}
    s_mov_b32 s{SW}, s{sWS}
    s_mov_b32 s{SW+1}, s{sWS+1}
    s_mov_b32 s{sC}, {f32(128 ** -0.5 * 1.4426950408889634)}
    s_mov_b32 s{sPlo}, 0x05040100
    s_mov_b32 s{sPhi}, 0x07060302
    s_mov_b32 s{sNeg}, {f32(-1e9 * 1.4426950408889634)}
    v_mov_b32 v{vM}, {f32(-3.0e38)}
    v_mov_b32 v{vL}, 0
    v_mov_b32 v{vAb}, 0
    """)
    for i in range(32):
        k(f"v_mov_b32 v{vAcc+i}, 0")
    k(f"""
    v_mov_b32 v{vTmp}, 0x80000000
    s_waitcnt lgkmcnt(0)
    s_min_i32 s{sT0}, s{sCtx}, 65536
    s_cmp_le_i32 s{sCtx}, 0
    s_cselect_b32 s{sT0}, 65536, s{sT0}
    s_add_u32 s{sT0}, s{sT0}, 15
    s_lshr_b32 s{sT0}, s{sT0}, 4               ; npages
    s_add_u32 s{sT0}, s{sT0}, 255
    s_sub_u32 s{sT0}, s{sT0}, s{sJ}
    s_lshr_b32 s{sN}, s{sT0}, 8
    s_min_i32 s{sCtx}, s{sCtx}, 65536
    s_max_i32 s{sCtx}, s{sCtx}, 0
    s_lshl_b32 s{sT0}, s{sJ}, 4
    s_sub_i32 s{sRem}, s{sCtx}, s{sT0}
    v_cmp_gt_u32 vcc, s{sN}, v{vLane}
    s_waitcnt vmcnt(1)
    v_lshlrev_b32 v{vBt}, 15, v{vBt}
    v_cndmask_b32 v{vBt}, v{vTmp}, v{vBt}, vcc
    """)
    for r in range(R):
        k(f"v_readlane_b32 s{sOff}, v{vBt}, {r}")
        loadK(r)
        loadV(r)
    if DIAG:
        k(f"s_memrealtime {sr(sTS+2,2)}")
    k(f"""
    s_mov_b32 s{sI}, 0
    s_mov_b32 s{sIdx}, {R}
    s_cmp_eq_u32 s{sN}, 0
    s_cbranch_scc1 L_done
    L_loop:
    """)
    W = 8 * (R - 1) + 4
    for r in range(R):
        k(f"""
        v_readlane_b32 s{sOff}, v{vBt}, s{sIdx}
        s_waitcnt vmcnt({W})
        """)
        if not NOCOMP:
            for i in range(4):
                k(f"v_mfma_f32_16x16x32_bf16 {vr(vD+4*i,4)}, {vr(Kr(r,i),4)}, {vr(vQ,4)}, 0")
        else:
            for i in range(4):
                k(f"v_xor_b32 v{vAcc}, v{vAcc}, v{Kr(r,i)}")
        loadK(r)
        if not NOCOMP:
            for j in (1, 2, 3):
                for i in range(4):
                    src1 = vD + 4 * i if j == 1 else vT + i
                    k(f"v_add_f32_dpp v{vT+i}, v{vD+4*i+j}, v{src1} quad_perm:[{j},{j},{j},{j}] row_mask:0xf bank_mask:0xf")
            for i in range(4):
                k(f"v_mul_f32 v{vT+i}, s{sC}, v{vT+i}")
            k(f"""
            s_cmp_ge_i32 s{sRem}, 16
            s_cbranch_scc1 L_nomask{r}
            v_mov_b32 v{vTmp}, s{sNeg}
            """)
            for i in range(4):
                k(f"""
                s_sub_i32 s{sT0}, s{sRem}, {i}
                v_cmp_gt_i32 vcc, s{sT0}, v{vG4}
                v_cndmask_b32 v{vT+i}, v{vTmp}, v{vT+i}, vcc
                """)
            k(f"""
            L_nomask{r}:
            v_max3_f32 v{vMx}, v{vT}, v{vT+1}, v{vT+2}
            v_max3_f32 v{vMx}, v{vMx}, v{vT+3}, v{vM}
            v_mov_b32 v{vTmp}, v{vMx}
            v_permlane32_swap_b32 v{vMx}, v{vTmp}
            v_max_f32 v{vMx}, v{vMx}, v{vTmp}
            v_mov_b32 v{vTmp}, v{vMx}
            v_permlane16_swap_b32 v{vMx}, v{vTmp}
            v_max_f32 v{vMx}, v{vMx}, v{vTmp}
            v_sub_f32 v{vAl}, v{vM}, v{vMx}
            v_mov_b32 v{vM}, v{vMx}
            v_exp_f32 v{vAl}, v{vAl}
            """)
            for i in range(4):
                k(f"v_sub_f32 v{vT+i}, v{vT+i}, v{vMx}")
            for i in range(4):
                k(f"v_exp_f32 v{vT+i}, v{vT+i}")
            for g in range(4):
                k(f"v_mov_b32_dpp v{vAb}, v{vAl} row_newbcast:{4*g} row_mask:{hex(1<<g)} bank_mask:0xf")
            k(f"""
            v_fma_f32 v{vL}, v{vL}, v{vAl}, v{vT}
            v_add_f32 v{vTmp}, v{vT+1}, v{vT+2}
            v_cvt_pk_bf16_f32 v{vP}, v{vT}, v{vT+1}
            v_cvt_pk_bf16_f32 v{vP+1}, v{vT+2}, v{vT+3}
            v_add_f32 v{vL}, v{vL}, v{vT+3}
            v_add_f32 v{vL}, v{vL}, v{vTmp}
            """)
            for e in range(8):
                k(f"v_mul_f32 v{vAcc+4*e}, v{vAb}, v{vAcc+4*e}")
        k(f"s_waitcnt vmcnt({W})")
        if not NOCOMP:
            for j in range(4):
                for hi in range(2):
                    e = 2 * j + hi
                    sel = sPhi if hi else sPlo
                    k(f"v_perm_b32 v{vB+2*e}, v{Vr(r,1)+j}, v{Vr(r,0)+j}, s{sel}")
                    k(f"v_perm_b32 v{vB+2*e+1}, v{Vr(r,3)+j}, v{Vr(r,2)+j}, s{sel}")
        else:
            for i in range(4):
                k(f"v_xor_b32 v{vAcc}, v{vAcc}, v{Vr(r,i)}")
        loadV(r)
        if not NOCOMP:
            for e in range(8):
                k(f"v_mfma_f32_16x16x16_bf16 {vr(vAcc+4*e,4)}, {vr(vP,2)}, {vr(vB+2*e,2)}, {vr(vAcc+4*e,4)}")
        k(f"""
        s_add_u32 s{sI}, s{sI}, 1
        s_add_u32 s{sIdx}, s{sIdx}, 1
        s_sub_i32 s{sRem}, s{sRem}, 4096
        s_cmp_ge_u32 s{sI}, s{sN}
        """)
        if r < R - 1:
            k("s_cbranch_scc1 L_done")
        else:
            k("s_cbranch_scc0 L_loop")
    k("L_done:")
    if DIAG:
        k(f"s_memrealtime {sr(sTS+4,2)}")
    k(f"""
    v_mov_b32 v{vTmp}, v{vL}
    v_permlane32_swap_b32 v{vL}, v{vTmp}
    v_add_f32 v{vL}, v{vL}, v{vTmp}
    v_mov_b32 v{vTmp}, v{vL}
    v_permlane16_swap_b32 v{vL}, v{vTmp}
    v_add_f32 v{vL}, v{vL}, v{vTmp}
    """)
    for e in range(8):
        k(f"v_mov_b32 v{vD+e}, v{vAcc+4*e}")
    k(f"""
    s_lshl_b32 s{sT0}, s{sWv}, 11
    v_lshlrev_b32 v{vTmp}, 4, v{vLane}
    v_add_u32 v{vTmp}, s{sT0}, v{vTmp}
    ds_write_b128 v{vTmp}, {vr(vD,4)}
    ds_write_b128 v{vTmp}, {vr(vD+4,4)} offset:1024
    s_lshl_b32 s{sT0}, s{sWv}, 2
    v_lshlrev_b32 v{vMx}, 3, v{vLane}
    v_add_u32 v{vMx}, s{sT0}, v{vMx}
    s_mov_b32 exec_lo, 0x1111
    s_mov_b32 exec_hi, 0
    ds_write_b32 v{vMx}, v{vM} offset:16384
    ds_write_b32 v{vMx}, v{vL} offset:16512
    s_mov_b64 exec, -1
    s_waitcnt lgkmcnt(0)
    s_barrier
    s_cmp_ge_u32 s{sWv}, 2
    s_cbranch_scc1 L_end2
    v_lshlrev_b32 v{vTmp}, 4, v0               ; t*16
    v_lshrrev_b32 v{vMx}, 4, v{vLane}
    v_lshlrev_b32 v{vMx}, 5, v{vMx}            ; q*32
    """)
    vO = vAcc
    vMm = vD
    vLl = vD + 8
    k(f"""
    ds_read_b128 {vr(vMm,4)}, v{vMx} offset:16384
    ds_read_b128 {vr(vMm+4,4)}, v{vMx} offset:16400
    ds_read_b128 {vr(vLl,4)}, v{vMx} offset:16512
    ds_read_b128 {vr(vLl+4,4)}, v{vMx} offset:16528
    """)
    for w in range(8):
        k(f"ds_read_b128 {vr(vO+4*w,4)}, v{vTmp} offset:{w*2048}")
    vR = vB
    k(f"""
    s_lshl_b32 s{sT0}, s{sH}, 5
    s_add_u32 s{sT0}, s{sT0}, s{sS}
    s_lshl_b32 s{sT0}, s{sT0}, 11
    s_waitcnt lgkmcnt(8)
    v_max3_f32 v{vR+4}, v{vMm}, v{vMm+1}, v{vMm+2}
    v_max3_f32 v{vR+4}, v{vR+4}, v{vMm+3}, v{vMm+4}
    v_max3_f32 v{vR+4}, v{vR+4}, v{vMm+5}, v{vMm+6}
    v_max_f32 v{vR+4}, v{vR+4}, v{vMm+7}
    """)
    for w in range(8):
        k(f"v_sub_f32 v{vMm+w}, v{vMm+w}, v{vR+4}")
    for w in range(8):
        k(f"v_exp_f32 v{vMm+w}, v{vMm+w}")
    k(f"v_mul_f32 v{vR+5}, v{vMm}, v{vLl}")
    for w in range(1, 8):
        k(f"v_fmac_f32 v{vR+5}, v{vMm+w}, v{vLl+w}")
    k("s_waitcnt lgkmcnt(0)")
    for j in range(4):
        k(f"v_mul_f32 v{vR+j}, v{vMm}, v{vO+j}")
    for w in range(1, 8):
        for j in range(4):
            k(f"v_fmac_f32 v{vR+j}, v{vMm+w}, v{vO+4*w+j}")
    k(f"""
    buffer_store_dwordx4 {vr(vR,4)}, v{vTmp}, {sr(SW,4)}, s{sT0} offen
    s_cmp_eq_u32 s{sWv}, 0
    s_cbranch_scc0 L_end2
    s_lshl_b32 s{sT0}, s{sH}, 10
    s_lshl_b32 s{sT1}, s{sS}, 3
    s_add_u32 s{sT0}, s{sT0}, s{sT1}
    s_add_u32 s{sT0}, s{sT0}, 0x80000
    v_lshlrev_b32 v{vMx}, 3, v{vMx}            ; q*256
    s_mov_b32 exec_lo, 0x00010001
    s_mov_b32 exec_hi, 0x00010001
    buffer_store_dwordx2 {vr(vR+4,2)}, v{vMx}, {sr(SW,4)}, s{sT0} offen
    s_mov_b64 exec, -1
    L_end2:
    """)
    if DIAG:
        k(f"""
        s_waitcnt vmcnt(0)
        s_memrealtime {sr(sTS+6,2)}
        s_getreg_b32 s{sT1}, hwreg(HW_REG_XCC_ID)
        s_waitcnt lgkmcnt(0)
        v_mov_b32 v{vD}, s{sTS}
        v_mov_b32 v{vD+1}, s{sTS+2}
        v_mov_b32 v{vD+2}, s{sTS+4}
        v_mov_b32 v{vD+3}, s{sTS+6}
        v_mov_b32 v{vD+4}, s{sT1}
        s_lshl_b32 s{sT0}, s2, 3
        s_add_u32 s{sT0}, s{sT0}, s{sWv}
        s_lshl_b32 s{sT0}, s{sT0}, 5
        s_add_u32 s{sT0}, s{sT0}, 0xC0000
        v_mov_b32 v{vTmp}, 0
        s_mov_b64 exec, 1
        buffer_store_dwordx4 {vr(vD,4)}, v{vTmp}, {sr(SW,4)}, s{sT0} offen
        buffer_store_dword v{vD+4}, v{vTmp}, {sr(SW,4)}, s{sT0} offen offset:16
        """)
    k("""
    L_end:
    s_endpgm
    """)
    body1 = k.done()

    c = K()
    vLn, vOf, vMl, vW, vX, vLs = 1, 2, 4, 6, 7, 8
    vA = 12
    vA2 = 16
    vOO = 20
    c(f"""
    s_cmp_ge_u32 s2, 32
    s_cbranch_scc1 C_end
    s_load_dwordx2 s[4:5], s[0:1], 40
    s_load_dwordx2 s[8:9], s[0:1], 56
    s_lshr_b32 s12, s2, 2                      ; h
    s_and_b32 s13, s2, 3                       ; q
    v_and_b32 v{vLn}, 15, v0
    v_bfe_u32 v{vX}, v0, 4, 1
    v_lshrrev_b32 v{vW}, 5, v0
    v_lshlrev_b32 v{vOf}, 4, v{vLn}
    v_lshl_add_u32 v{vOf}, v{vX}, 10, v{vOf}
    v_lshl_add_u32 v{vOf}, v{vW}, 15, v{vOf}
    s_lshl_b32 s14, s12, 16
    s_lshl_b32 s15, s13, 8
    s_add_u32 s14, s14, s15
    v_add_u32 v{vOf}, s14, v{vOf}
    v_lshlrev_b32 v{vLs}, 3, v{vLn}
    v_lshl_add_u32 v{vLs}, v{vW}, 7, v{vLs}
    s_lshl_b32 s14, s2, 8
    s_add_u32 s14, s14, 0x80000
    v_add_u32 v{vLs}, s14, v{vLs}
    v_lshlrev_b32 v3, 4, v{vLn}
    v_lshl_add_u32 v3, v{vX}, 3, v3
    s_lshl_b32 s14, s2, 8
    v_add_u32 v3, s14, v3
    s_mov_b32 s6, 8192
    s_mov_b32 s7, 0x20000
    s_mov_b32 s10, 0x100000
    s_mov_b32 s11, 0x20000
    """)
    for i in range(1, 8):
        c(f"s_mov_b32 s{16+i}, {i*4096}")
    c(f"""
    s_waitcnt lgkmcnt(0)
    buffer_load_dwordx2 {vr(vMl,2)}, v{vLs}, s[8:11], 0 offen
    """)
    for kk in range(16):
        so = "0" if kk < 2 else f"s{16+kk//2}"
        off = " offset:2048" if kk & 1 else ""
        c(f"buffer_load_dwordx4 {vr(vOO+4*kk,4)}, v{vOf}, s[8:11], {so} offen{off}")
    c(f"""
    s_waitcnt vmcnt(16)
    v_mov_b32 v{vW}, v{vMl}
    """)
    for sh in (8, 4, 2, 1):
        c(f"v_max_f32_dpp v{vW}, v{vW}, v{vW} row_ror:{sh} row_mask:0xf bank_mask:0xf")
    c(f"""
    v_mov_b32 v{vX}, v{vW}
    v_permlane32_swap_b32 v{vW}, v{vX}
    v_max_f32 v{vW}, v{vW}, v{vX}
    v_sub_f32 v{vW}, v{vMl}, v{vW}
    v_exp_f32 v{vW}, v{vW}
    v_mul_f32 v{vLs}, v{vW}, v{vMl+1}
    """)
    for sh in (8, 4, 2, 1):
        c(f"v_add_f32_dpp v{vLs}, v{vLs}, v{vLs} row_ror:{sh} row_mask:0xf bank_mask:0xf")
    c(f"""
    v_mov_b32 v{vX}, v{vLs}
    v_permlane32_swap_b32 v{vLs}, v{vX}
    v_add_f32 v{vLs}, v{vLs}, v{vX}
    v_rcp_f32 v{vLs}, v{vLs}
    """)
    for j in range(4):
        c(f"v_mov_b32 v{vA+j}, 0")
    for kk in range(16):
        c(f"s_waitcnt vmcnt({15-kk})")
        for j in range(4):
            c(f"v_fmac_f32_dpp v{vA+j}, v{vW}, v{vOO+4*kk+j} row_newbcast:{kk} row_mask:0xf bank_mask:0xf")
    for j in range(4):
        c(f"v_mov_b32 v{vA2+j}, v{vA+j}")
    for j in range(4):
        c(f"v_permlane32_swap_b32 v{vA+j}, v{vA2+j}")
    for j in range(4):
        c(f"v_add_f32 v{vA+j}, v{vA+j}, v{vA2+j}")
    for j in range(4):
        c(f"v_mul_f32 v{vA+j}, v{vA+j}, v{vLs}")
    c(f"""
    v_cvt_pk_bf16_f32 v{vA2}, v{vA}, v{vA+1}
    v_cvt_pk_bf16_f32 v{vA2+1}, v{vA+2}, v{vA+3}
    s_mov_b32 exec_hi, 0
    buffer_store_dwordx2 {vr(vA2,2)}, v3, s[4:7], 0 offen
    C_end:
    s_endpgm
    """)
    body2 = c.done()

    def desc(name, nv, ns):
        return f""".amdhsa_kernel {name}
  .amdhsa_next_free_vgpr {nv}
  .amdhsa_next_free_sgpr {ns}
  .amdhsa_accum_offset {(nv + 3) // 4 * 4}
  .amdhsa_group_segment_fixed_size 0
  .amdhsa_kernarg_size 64
  .amdhsa_user_sgpr_count 2
  .amdhsa_user_sgpr_kernarg_segment_ptr 1
  .amdhsa_system_sgpr_workgroup_id_x 1
.end_amdhsa_kernel
"""

    out = HEADER
    for ch in LIST:
        if ch == "m":
            out += f"; @launch kernel={NAME}_kernel grid=(256,1,1) block=(512,1,1) lds=16640\n"
        else:
            out += f"; @launch kernel=pa_combine_kernel grid=(32,1,1) block=(64,1,1) lds=0\n"
    out += '.amdgcn_target "amdgcn-amd-amdhsa--gfx950"\n.text\n'
    out += f".globl {NAME}_kernel\n.p2align 8\n.type {NAME}_kernel,@function\n{NAME}_kernel:\n"
    out += body1
    out += ".globl pa_combine_kernel\n.p2align 8\n.type pa_combine_kernel,@function\npa_combine_kernel:\n"
    out += body2
    out += '.section .rodata,"a"\n.p2align 6\n'
    out += desc(NAME + "_kernel", NV, 64)
    out += ".p2align 6\n"
    out += desc("pa_combine_kernel", 84, 32)
    return out


if __name__ == "__main__":
    kw = {}
    outp = sys.argv[1]
    for a in sys.argv[2:]:
        key, val = a.split("=")
        kw[key] = val if key in ("POL", "POLV", "LIST") else int(val)
    open(outp, "w").write(gen(**kw))
```

```python
import sys
import struct
from asmlib import K, vr, sr

NAME = "standalone__paged_block_table_kv_pagedattention__decode"
KV_BYTES = 4100 * 32768
HEADER = open("cdna_kernels/" + NAME + ".s.ref").read().split("; Override")[0]


def f32(x):
    return "0x%08x" % struct.unpack("<I", struct.pack("<f", x))[0]


def gen(R=4, POL="nt", POLV=None, MAP=0, DIAG=0, NOCOMP=0, LIST="mc", SPIN=0):
    k = K()
    sQ, sKp, sVp, sBT, sCTX, sOUT, sDBG, sWS = 4, 6, 8, 10, 12, 14, 16, 18
    SK, SV, SB, SQ, SW = 20, 24, 28, 32, 36
    sH, sS, sWv, sJ, sCtx, sN, sI, sRem, sOff, sC, sPlo, sPhi, sT0, sT1, sNeg, sIdx = range(40, 56)
    sTS = 56
    vLane, vKo0, vKo1, vVo0, vVo1, vBt, vG4, vM, vL, vMx, vTmp, vAl, vAb = range(1, 14)
    vP = 14
    vQ = 16
    vT = 20
    vD = 24
    vB = 40
    vAcc = 56
    vRing = 88
    NV = vRing + 32 * R

    def Kr(r, i):
        return vRing + 32 * r + 4 * i

    def Vr(r, i):
        return vRing + 32 * r + 16 + 4 * i

    pol = (" " + POL.replace("+", " ")) if POL else ""
    if POLV is None:
        POLV = POL
    polv = (" " + POLV.replace("+", " ")) if POLV else ""

    def loadK(r):
        k(f"""
        buffer_load_dwordx4 {vr(Kr(r,0),4)}, v{vKo0}, {sr(SK,4)}, s{sOff} offen{pol}
        buffer_load_dwordx4 {vr(Kr(r,1),4)}, v{vKo0}, {sr(SK,4)}, s{sOff} offen offset:2048{pol}
        buffer_load_dwordx4 {vr(Kr(r,2),4)}, v{vKo1}, {sr(SK,4)}, s{sOff} offen{pol}
        buffer_load_dwordx4 {vr(Kr(r,3),4)}, v{vKo1}, {sr(SK,4)}, s{sOff} offen offset:2048{pol}
        """)

    def loadV(r):
        k(f"""
        buffer_load_dwordx4 {vr(Vr(r,0),4)}, v{vVo0}, {sr(SV,4)}, s{sOff} offen{polv}
        buffer_load_dwordx4 {vr(Vr(r,1),4)}, v{vVo0}, {sr(SV,4)}, s{sOff} offen offset:2048{polv}
        buffer_load_dwordx4 {vr(Vr(r,2),4)}, v{vVo1}, {sr(SV,4)}, s{sOff} offen{polv}
        buffer_load_dwordx4 {vr(Vr(r,3),4)}, v{vVo1}, {sr(SV,4)}, s{sOff} offen offset:2048{polv}
        """)

    k(f"""
    s_cmp_ge_u32 s2, 256
    s_cbranch_scc1 L_end
    s_load_dwordx16 s[4:19], s[0:1], 0
    """)
    if DIAG:
        k(f"s_memrealtime {sr(sTS,2)}")
    k(f"""
    v_lshrrev_b32 v{vTmp}, 6, v0
    v_and_b32 v{vLane}, 63, v0
    v_readfirstlane_b32 s{sWv}, v{vTmp}
    """)
    if MAP == 0:
        k(f"""
        s_and_b32 s{sH}, s2, 7
        s_lshr_b32 s{sS}, s2, 3
        """)
    else:
        k(f"""
        s_lshr_b32 s{sT0}, s2, 3
        s_and_b32 s{sH}, s{sT0}, 7
        s_lshr_b32 s{sT0}, s{sT0}, 3
        s_and_b32 s{sS}, s2, 7
        s_lshl_b32 s{sS}, s{sS}, 2
        s_add_u32 s{sS}, s{sS}, s{sT0}
        """)
    k(f"""
    s_lshl_b32 s{sJ}, s{sWv}, 5
    s_add_u32 s{sJ}, s{sJ}, s{sS}
    s_lshl_b32 s{sT0}, s{sJ}, 2
    v_lshlrev_b32 v{vBt}, 10, v{vLane}
    v_add_u32 v{vBt}, s{sT0}, v{vBt}          ; (j + 256*lane)*4
    v_lshrrev_b32 v{vG4}, 4, v{vLane}
    v_lshlrev_b32 v{vG4}, 2, v{vG4}            ; 4*g
    v_and_b32 v{vTmp}, 3, v{vLane}
    v_add_u32 v{vTmp}, v{vTmp}, v{vG4}
    v_lshlrev_b32 v{vTmp}, 4, v{vTmp}          ; chunk*16
    v_bfe_u32 v{vMx}, v{vLane}, 2, 2           ; tau
    s_lshl_b32 s{sT1}, s{sH}, 8                ; h*256
    v_lshl_add_u32 v{vKo0}, v{vMx}, 13, v{vTmp}
    v_add_u32 v{vKo0}, s{sT1}, v{vKo0}
    v_add_u32 v{vKo1}, 0x1000, v{vKo0}
    v_lshl_add_u32 v{vAl}, v{vMx}, 8, v{vTmp}    ; q*256 + chunk*16
    s_lshl_b32 s{sT0}, s{sH}, 10
    v_add_u32 v{vAl}, s{sT0}, v{vAl}           ; Q offset
    v_and_b32 v{vTmp}, 15, v{vLane}
    v_lshlrev_b32 v{vTmp}, 4, v{vTmp}
    v_lshl_add_u32 v{vVo0}, v{vG4}, 11, v{vTmp}
    v_add_u32 v{vVo0}, s{sT1}, v{vVo0}
    v_add_u32 v{vVo1}, 0x1000, v{vVo0}
    s_mov_b32 s{SB+2}, 16384
    s_mov_b32 s{SB+3}, 0x20000
    s_mov_b32 s{SQ+2}, 8192
    s_mov_b32 s{SQ+3}, 0x20000
    s_mov_b32 s{SK+2}, {KV_BYTES}
    s_mov_b32 s{SK+3}, 0x20000
    s_mov_b32 s{SV+2}, {KV_BYTES}
    s_mov_b32 s{SV+3}, 0x20000
    s_mov_b32 s{SW+2}, 0x100000
    s_mov_b32 s{SW+3}, 0x20000
    s_waitcnt lgkmcnt(0)
    s_load_dword s{sCtx}, {sr(sCTX,2)}, 0
    s_mov_b32 s{SB}, s{sBT}
    s_mov_b32 s{SB+1}, s{sBT+1}
    buffer_load_dword v{vBt}, v{vBt}, {sr(SB,4)}, 0 offen
    s_mov_b32 s{SQ}, s{sQ}
    s_mov_b32 s{SQ+1}, s{sQ+1}
    buffer_load_dwordx4 {vr(vQ,4)}, v{vAl}, {sr(SQ,4)}, 0 offen
    s_mov_b32 s{SK}, s{sKp}
    s_mov_b32 s{SK+1}, s{sKp+1}
    s_mov_b32 s{SV}, s{sVp}
    s_mov_b32 s{SV+1}, s{sVp+1}
    s_mov_b32 s{SW}, s{sWS}
    s_mov_b32 s{SW+1}, s{sWS+1}
    s_mov_b32 s{sC}, {f32(128 ** -0.5 * 1.4426950408889634)}
    s_mov_b32 s{sPlo}, 0x05040100
    s_mov_b32 s{sPhi}, 0x07060302
    s_mov_b32 s{sNeg}, {f32(-1e9 * 1.4426950408889634)}
    v_mov_b32 v{vM}, {f32(-3.0e38)}
    v_mov_b32 v{vL}, 0
    v_mov_b32 v{vAb}, 0
    """)
    for i in range(32):
        k(f"v_mov_b32 v{vAcc+i}, 0")
    k(f"""
    v_mov_b32 v{vTmp}, 0x80000000
    s_waitcnt lgkmcnt(0)
    s_min_i32 s{sT0}, s{sCtx}, 65536
    s_cmp_le_i32 s{sCtx}, 0
    s_cselect_b32 s{sT0}, 65536, s{sT0}
    s_add_u32 s{sT0}, s{sT0}, 15
    s_lshr_b32 s{sT0}, s{sT0}, 4               ; npages
    s_add_u32 s{sT0}, s{sT0}, 255
    s_sub_u32 s{sT0}, s{sT0}, s{sJ}
    s_lshr_b32 s{sN}, s{sT0}, 8
    s_min_i32 s{sCtx}, s{sCtx}, 65536
    s_max_i32 s{sCtx}, s{sCtx}, 0
    s_lshl_b32 s{sT0}, s{sJ}, 4
    s_sub_i32 s{sRem}, s{sCtx}, s{sT0}
    v_cmp_gt_u32 vcc, s{sN}, v{vLane}
    s_waitcnt vmcnt(1)
    v_lshlrev_b32 v{vBt}, 15, v{vBt}
    v_cndmask_b32 v{vBt}, v{vTmp}, v{vBt}, vcc
    """)
    for r in range(R):
        k(f"v_readlane_b32 s{sOff}, v{vBt}, {r}")
        loadK(r)
        loadV(r)
    if DIAG:
        k(f"s_memrealtime {sr(sTS+2,2)}")
    k(f"""
    s_mov_b32 s{sI}, 0
    s_mov_b32 s{sIdx}, {R}
    s_cmp_eq_u32 s{sN}, 0
    s_cbranch_scc1 L_done
    L_loop:
    """)
    W = 8 * (R - 1) + 4
    for r in range(R):
        k(f"""
        v_readlane_b32 s{sOff}, v{vBt}, s{sIdx}
        s_waitcnt vmcnt({W})
        """)
        if not NOCOMP:
            for i in range(4):
                k(f"v_mfma_f32_16x16x32_bf16 {vr(vD+4*i,4)}, {vr(Kr(r,i),4)}, {vr(vQ,4)}, 0")
        else:
            for i in range(4):
                k(f"v_xor_b32 v{vAcc}, v{vAcc}, v{Kr(r,i)}")
        loadK(r)
        if not NOCOMP:
            for j in (1, 2, 3):
                for i in range(4):
                    src1 = vD + 4 * i if j == 1 else vT + i
                    k(f"v_add_f32_dpp v{vT+i}, v{vD+4*i+j}, v{src1} quad_perm:[{j},{j},{j},{j}] row_mask:0xf bank_mask:0xf")
            for i in range(4):
                k(f"v_mul_f32 v{vT+i}, s{sC}, v{vT+i}")
            k(f"""
            s_cmp_ge_i32 s{sRem}, 16
            s_cbranch_scc1 L_nomask{r}
            v_mov_b32 v{vTmp}, s{sNeg}
            """)
            for i in range(4):
                k(f"""
                s_sub_i32 s{sT0}, s{sRem}, {i}
                v_cmp_gt_i32 vcc, s{sT0}, v{vG4}
                v_cndmask_b32 v{vT+i}, v{vTmp}, v{vT+i}, vcc
                """)
            k(f"""
            L_nomask{r}:
            v_max3_f32 v{vMx}, v{vT}, v{vT+1}, v{vT+2}
            v_max3_f32 v{vMx}, v{vMx}, v{vT+3}, v{vM}
            v_mov_b32 v{vTmp}, v{vMx}
            v_permlane32_swap_b32 v{vMx}, v{vTmp}
            v_max_f32 v{vMx}, v{vMx}, v{vTmp}
            v_mov_b32 v{vTmp}, v{vMx}
            v_permlane16_swap_b32 v{vMx}, v{vTmp}
            v_max_f32 v{vMx}, v{vMx}, v{vTmp}
            v_sub_f32 v{vAl}, v{vM}, v{vMx}
            v_mov_b32 v{vM}, v{vMx}
            v_exp_f32 v{vAl}, v{vAl}
            """)
            for i in range(4):
                k(f"v_sub_f32 v{vT+i}, v{vT+i}, v{vMx}")
            for i in range(4):
                k(f"v_exp_f32 v{vT+i}, v{vT+i}")
            for g in range(4):
                k(f"v_mov_b32_dpp v{vAb}, v{vAl} row_newbcast:{4*g} row_mask:{hex(1<<g)} bank_mask:0xf")
            k(f"""
            v_fma_f32 v{vL}, v{vL}, v{vAl}, v{vT}
            v_add_f32 v{vTmp}, v{vT+1}, v{vT+2}
            v_cvt_pk_bf16_f32 v{vP}, v{vT}, v{vT+1}
            v_cvt_pk_bf16_f32 v{vP+1}, v{vT+2}, v{vT+3}
            v_add_f32 v{vL}, v{vL}, v{vT+3}
            v_add_f32 v{vL}, v{vL}, v{vTmp}
            """)
            for e in range(8):
                k(f"v_mul_f32 v{vAcc+4*e}, v{vAb}, v{vAcc+4*e}")
        k(f"s_waitcnt vmcnt({W})")
        if not NOCOMP:
            for j in range(4):
                for hi in range(2):
                    e = 2 * j + hi
                    sel = sPhi if hi else sPlo
                    k(f"v_perm_b32 v{vB+2*e}, v{Vr(r,1)+j}, v{Vr(r,0)+j}, s{sel}")
                    k(f"v_perm_b32 v{vB+2*e+1}, v{Vr(r,3)+j}, v{Vr(r,2)+j}, s{sel}")
        else:
            for i in range(4):
                k(f"v_xor_b32 v{vAcc}, v{vAcc}, v{Vr(r,i)}")
        loadV(r)
        if not NOCOMP:
            for e in range(8):
                k(f"v_mfma_f32_16x16x16_bf16 {vr(vAcc+4*e,4)}, {vr(vP,2)}, {vr(vB+2*e,2)}, {vr(vAcc+4*e,4)}")
        k(f"""
        s_add_u32 s{sI}, s{sI}, 1
        s_add_u32 s{sIdx}, s{sIdx}, 1
        s_sub_i32 s{sRem}, s{sRem}, 4096
        s_cmp_ge_u32 s{sI}, s{sN}
        """)
        if r < R - 1:
            k("s_cbranch_scc1 L_done")
        else:
            k("s_cbranch_scc0 L_loop")
    k("L_done:")
    if DIAG:
        k(f"s_memrealtime {sr(sTS+4,2)}")
    k(f"""
    v_mov_b32 v{vTmp}, v{vL}
    v_permlane32_swap_b32 v{vL}, v{vTmp}
    v_add_f32 v{vL}, v{vL}, v{vTmp}
    v_mov_b32 v{vTmp}, v{vL}
    v_permlane16_swap_b32 v{vL}, v{vTmp}
    v_add_f32 v{vL}, v{vL}, v{vTmp}
    """)
    for e in range(8):
        k(f"v_mov_b32 v{vD+e}, v{vAcc+4*e}")
    k(f"""
    s_lshl_b32 s{sT0}, s{sWv}, 11
    v_lshlrev_b32 v{vTmp}, 4, v{vLane}
    v_add_u32 v{vTmp}, s{sT0}, v{vTmp}
    ds_write_b128 v{vTmp}, {vr(vD,4)}
    ds_write_b128 v{vTmp}, {vr(vD+4,4)} offset:1024
    s_lshl_b32 s{sT0}, s{sWv}, 2
    v_lshlrev_b32 v{vMx}, 3, v{vLane}
    v_add_u32 v{vMx}, s{sT0}, v{vMx}
    s_mov_b32 exec_lo, 0x1111
    s_mov_b32 exec_hi, 0
    ds_write_b32 v{vMx}, v{vM} offset:16384
    ds_write_b32 v{vMx}, v{vL} offset:16512
    s_mov_b64 exec, -1
    s_waitcnt lgkmcnt(0)
    s_barrier
    s_cmp_ge_u32 s{sWv}, 2
    s_cbranch_scc1 L_end2
    v_lshlrev_b32 v{vTmp}, 4, v0               ; t*16
    v_lshrrev_b32 v{vMx}, 4, v{vLane}
    v_lshlrev_b32 v{vMx}, 5, v{vMx}            ; q*32
    """)
    vO = vAcc
    vMm = vD
    vLl = vD + 8
    k(f"""
    ds_read_b128 {vr(vMm,4)}, v{vMx} offset:16384
    ds_read_b128 {vr(vMm+4,4)}, v{vMx} offset:16400
    ds_read_b128 {vr(vLl,4)}, v{vMx} offset:16512
    ds_read_b128 {vr(vLl+4,4)}, v{vMx} offset:16528
    """)
    for w in range(8):
        k(f"ds_read_b128 {vr(vO+4*w,4)}, v{vTmp} offset:{w*2048}")
    vR = vB
    k(f"""
    s_lshl_b32 s{sT0}, s{sH}, 5
    s_add_u32 s{sT0}, s{sT0}, s{sS}
    s_lshl_b32 s{sT0}, s{sT0}, 11
    s_waitcnt lgkmcnt(8)
    v_max3_f32 v{vR+4}, v{vMm}, v{vMm+1}, v{vMm+2}
    v_max3_f32 v{vR+4}, v{vR+4}, v{vMm+3}, v{vMm+4}
    v_max3_f32 v{vR+4}, v{vR+4}, v{vMm+5}, v{vMm+6}
    v_max_f32 v{vR+4}, v{vR+4}, v{vMm+7}
    """)
    for w in range(8):
        k(f"v_sub_f32 v{vMm+w}, v{vMm+w}, v{vR+4}")
    for w in range(8):
        k(f"v_exp_f32 v{vMm+w}, v{vMm+w}")
    k(f"v_mul_f32 v{vR+5}, v{vMm}, v{vLl}")
    for w in range(1, 8):
        k(f"v_fmac_f32 v{vR+5}, v{vMm+w}, v{vLl+w}")
    k("s_waitcnt lgkmcnt(0)")
    for j in range(4):
        k(f"v_mul_f32 v{vR+j}, v{vMm}, v{vO+j}")
    for w in range(1, 8):
        for j in range(4):
            k(f"v_fmac_f32 v{vR+j}, v{vMm+w}, v{vO+4*w+j}")
    k(f"""
    buffer_store_dwordx4 {vr(vR,4)}, v{vTmp}, {sr(SW,4)}, s{sT0} offen
    s_cmp_eq_u32 s{sWv}, 0
    s_cbranch_scc0 L_end2
    s_lshl_b32 s{sT0}, s{sH}, 10
    s_lshl_b32 s{sT1}, s{sS}, 3
    s_add_u32 s{sT0}, s{sT0}, s{sT1}
    s_add_u32 s{sT0}, s{sT0}, 0x80000
    v_lshlrev_b32 v{vMx}, 3, v{vMx}            ; q*256
    s_mov_b32 exec_lo, 0x00010001
    s_mov_b32 exec_hi, 0x00010001
    buffer_store_dwordx2 {vr(vR+4,2)}, v{vMx}, {sr(SW,4)}, s{sT0} offen
    s_mov_b64 exec, -1
    L_end2:
    """)
    if DIAG:
        k(f"""
        s_waitcnt vmcnt(0)
        s_memrealtime {sr(sTS+6,2)}
        s_getreg_b32 s{sT1}, hwreg(HW_REG_XCC_ID)
        s_waitcnt lgkmcnt(0)
        v_mov_b32 v{vD}, s{sTS}
        v_mov_b32 v{vD+1}, s{sTS+2}
        v_mov_b32 v{vD+2}, s{sTS+4}
        v_mov_b32 v{vD+3}, s{sTS+6}
        v_mov_b32 v{vD+4}, s{sT1}
        s_lshl_b32 s{sT0}, s2, 3
        s_add_u32 s{sT0}, s{sT0}, s{sWv}
        s_lshl_b32 s{sT0}, s{sT0}, 5
        s_add_u32 s{sT0}, s{sT0}, 0xC0000
        v_mov_b32 v{vTmp}, 0
        s_mov_b64 exec, 1
        buffer_store_dwordx4 {vr(vD,4)}, v{vTmp}, {sr(SW,4)}, s{sT0} offen
        buffer_store_dword v{vD+4}, v{vTmp}, {sr(SW,4)}, s{sT0} offen offset:16
        """)
    k("""
    L_end:
    s_endpgm
    """)
    body1 = k.done()

    c = K()
    vLn, vOf, vMl, vW, vX, vLs = 1, 2, 4, 6, 7, 8
    vA = 12
    vA2 = 16
    vOO = 20
    c(f"""
    s_cmp_ge_u32 s2, 32
    s_cbranch_scc1 C_end
    s_load_dwordx2 s[4:5], s[0:1], 40
    s_load_dwordx2 s[8:9], s[0:1], 56
    s_lshr_b32 s12, s2, 2                      ; h
    s_and_b32 s13, s2, 3                       ; q
    v_and_b32 v{vLn}, 15, v0
    v_bfe_u32 v{vX}, v0, 4, 1
    v_lshrrev_b32 v{vW}, 5, v0
    v_lshlrev_b32 v{vOf}, 4, v{vLn}
    v_lshl_add_u32 v{vOf}, v{vX}, 10, v{vOf}
    v_lshl_add_u32 v{vOf}, v{vW}, 15, v{vOf}
    s_lshl_b32 s14, s12, 16
    s_lshl_b32 s15, s13, 8
    s_add_u32 s14, s14, s15
    v_add_u32 v{vOf}, s14, v{vOf}
    v_lshlrev_b32 v{vLs}, 3, v{vLn}
    v_lshl_add_u32 v{vLs}, v{vW}, 7, v{vLs}
    s_lshl_b32 s14, s2, 8
    s_add_u32 s14, s14, 0x80000
    v_add_u32 v{vLs}, s14, v{vLs}
    v_lshlrev_b32 v3, 4, v{vLn}
    v_lshl_add_u32 v3, v{vX}, 3, v3
    s_lshl_b32 s14, s2, 8
    v_add_u32 v3, s14, v3
    s_mov_b32 s6, 8192
    s_mov_b32 s7, 0x20000
    s_mov_b32 s10, 0x100000
    s_mov_b32 s11, 0x20000
    """)
    for i in range(1, 8):
        c(f"s_mov_b32 s{16+i}, {i*4096}")
    c(f"""
    s_waitcnt lgkmcnt(0)
    buffer_load_dwordx2 {vr(vMl,2)}, v{vLs}, s[8:11], 0 offen
    """)
    for kk in range(16):
        so = "0" if kk < 2 else f"s{16+kk//2}"
        off = " offset:2048" if kk & 1 else ""
        c(f"buffer_load_dwordx4 {vr(vOO+4*kk,4)}, v{vOf}, s[8:11], {so} offen{off}")
    c(f"""
    s_waitcnt vmcnt(16)
    v_mov_b32 v{vW}, v{vMl}
    """)
    for sh in (8, 4, 2, 1):
        c(f"v_max_f32_dpp v{vW}, v{vW}, v{vW} row_ror:{sh} row_mask:0xf bank_mask:0xf")
    c(f"""
    v_mov_b32 v{vX}, v{vW}
    v_permlane32_swap_b32 v{vW}, v{vX}
    v_max_f32 v{vW}, v{vW}, v{vX}
    v_sub_f32 v{vW}, v{vMl}, v{vW}
    v_exp_f32 v{vW}, v{vW}
    v_mul_f32 v{vLs}, v{vW}, v{vMl+1}
    """)
    for sh in (8, 4, 2, 1):
        c(f"v_add_f32_dpp v{vLs}, v{vLs}, v{vLs} row_ror:{sh} row_mask:0xf bank_mask:0xf")
    c(f"""
    v_mov_b32 v{vX}, v{vLs}
    v_permlane32_swap_b32 v{vLs}, v{vX}
    v_add_f32 v{vLs}, v{vLs}, v{vX}
    v_rcp_f32 v{vLs}, v{vLs}
    """)
    for j in range(4):
        c(f"v_mov_b32 v{vA+j}, 0")
    for kk in range(16):
        c(f"s_waitcnt vmcnt({15-kk})")
        for j in range(4):
            c(f"v_fmac_f32_dpp v{vA+j}, v{vW}, v{vOO+4*kk+j} row_newbcast:{kk} row_mask:0xf bank_mask:0xf")
    for j in range(4):
        c(f"v_mov_b32 v{vA2+j}, v{vA+j}")
    for j in range(4):
        c(f"v_permlane32_swap_b32 v{vA+j}, v{vA2+j}")
    for j in range(4):
        c(f"v_add_f32 v{vA+j}, v{vA+j}, v{vA2+j}")
    for j in range(4):
        c(f"v_mul_f32 v{vA+j}, v{vA+j}, v{vLs}")
    c(f"""
    v_cvt_pk_bf16_f32 v{vA2}, v{vA}, v{vA+1}
    v_cvt_pk_bf16_f32 v{vA2+1}, v{vA+2}, v{vA+3}
    s_mov_b32 exec_hi, 0
    buffer_store_dwordx2 {vr(vA2,2)}, v3, s[4:7], 0 offen
    """)
    if SPIN:
        c(f"""
        s_load_dword s24, s[8:9], 0xC0000
        s_waitcnt lgkmcnt(0)
        C_spin:
        s_memrealtime s[26:27]
        s_waitcnt lgkmcnt(0)
        s_sub_u32 s25, s26, s24
        s_cmp_lt_u32 s25, {SPIN}
        s_cbranch_scc1 C_spin
        """)
    c(f"""
    C_end:
    s_endpgm
    """)
    body2 = c.done()

    def desc(name, nv, ns):
        return f""".amdhsa_kernel {name}
  .amdhsa_next_free_vgpr {nv}
  .amdhsa_next_free_sgpr {ns}
  .amdhsa_accum_offset {(nv + 3) // 4 * 4}
  .amdhsa_group_segment_fixed_size 0
  .amdhsa_kernarg_size 64
  .amdhsa_user_sgpr_count 2
  .amdhsa_user_sgpr_kernarg_segment_ptr 1
  .amdhsa_system_sgpr_workgroup_id_x 1
.end_amdhsa_kernel
"""

    out = HEADER
    for ch in LIST:
        if ch == "m":
            out += f"; @launch kernel={NAME}_kernel grid=(256,1,1) block=(512,1,1) lds=16640\n"
        else:
            out += f"; @launch kernel=pa_combine_kernel grid=(32,1,1) block=(64,1,1) lds=0\n"
    out += '.amdgcn_target "amdgcn-amd-amdhsa--gfx950"\n.text\n'
    out += f".globl {NAME}_kernel\n.p2align 8\n.type {NAME}_kernel,@function\n{NAME}_kernel:\n"
    out += body1
    out += ".globl pa_combine_kernel\n.p2align 8\n.type pa_combine_kernel,@function\npa_combine_kernel:\n"
    out += body2
    out += '.section .rodata,"a"\n.p2align 6\n'
    out += desc(NAME + "_kernel", NV, 64)
    out += ".p2align 6\n"
    out += desc("pa_combine_kernel", 84, 32)
    return out


if __name__ == "__main__":
    kw = {}
    outp = sys.argv[1]
    for a in sys.argv[2:]:
        key, val = a.split("=")
        kw[key] = val if key in ("POL", "POLV", "LIST") else int(val)
    open(outp, "w").write(gen(**kw))
```

```python
import sys
import struct
from asmlib import K, vr, sr

NAME = "standalone__paged_block_table_kv_pagedattention__decode"
KV_BYTES = 4100 * 32768
HEADER = open("cdna_kernels/" + NAME + ".s.ref").read().split("; Override")[0]
ML_OFF = 0x200000
WS_USED = 0x208000
DIAG_OFF = 0x300000


def f32(x):
    return "0x%08x" % struct.unpack("<I", struct.pack("<f", x))[0]


def gen(R=1, POL="nt", JMAP=0, DIAG=0, SLEEP=1, BARIT=1, NOCO=0, NOCM=0, CPOL='sc1', DLY=0, NOAT=0, NPROD=256, PRERD=0, NOPUB=0, NOCONS=0, PPOL='sc1'):
    k = K()
    sQ, sKp, sVp, sBT, sCTX, sOUT, sDBG, sWS = 4, 6, 8, 10, 12, 14, 16, 18
    SK, SV, SB, SQ, SW, SD, SO = 20, 24, 28, 32, 36, 68, 72
    sH, sHg, sWv, sJ, sCtx, sN, sI, sRem, sOff, sC, sPlo, sPhi, sT0, sT1, sNeg, sIdx = range(40, 56)
    sTS = 56
    sBt0 = 64
    sMask = 76
    vLane, vKo0, vKo1, vVo0, vVo1, vBt, vG4, vM, vL, vMx, vTmp, vAl, vAb = range(1, 14)
    vP = 14
    vQ = 16
    vT = 20
    vD = 24
    vB = 40
    vAcc = 56
    vRing = 88
    NV = vRing + 32 * R
    wsz = 0x400000 if DIAG else WS_USED

    def Kr(r, i):
        return vRing + 32 * r + 4 * i

    def Vr(r, i):
        return vRing + 32 * r + 16 + 4 * i

    pol = (" " + POL.replace("+", " ")) if POL else ""

    def loadK(r, so):
        k(f"""
        buffer_load_dwordx4 {vr(Kr(r,0),4)}, v{vKo0}, {sr(SK,4)}, s{so} offen{pol}
        buffer_load_dwordx4 {vr(Kr(r,1),4)}, v{vKo0}, {sr(SK,4)}, s{so} offen offset:2048{pol}
        buffer_load_dwordx4 {vr(Kr(r,2),4)}, v{vKo1}, {sr(SK,4)}, s{so} offen{pol}
        buffer_load_dwordx4 {vr(Kr(r,3),4)}, v{vKo1}, {sr(SK,4)}, s{so} offen offset:2048{pol}
        """)

    def loadV(r, so):
        k(f"""
        buffer_load_dwordx4 {vr(Vr(r,0),4)}, v{vVo0}, {sr(SV,4)}, s{so} offen{pol}
        buffer_load_dwordx4 {vr(Vr(r,1),4)}, v{vVo0}, {sr(SV,4)}, s{so} offen offset:2048{pol}
        buffer_load_dwordx4 {vr(Vr(r,2),4)}, v{vVo1}, {sr(SV,4)}, s{so} offen{pol}
        buffer_load_dwordx4 {vr(Vr(r,3),4)}, v{vVo1}, {sr(SV,4)}, s{so} offen offset:2048{pol}
        """)

    def diag_store(tag):
        k(f"""
        s_memrealtime {sr(sTS+6,2)}
        s_getreg_b32 s{sT1}, hwreg(HW_REG_XCC_ID)
        s_waitcnt lgkmcnt(0)
        s_mov_b64 exec, -1
        v_mov_b32 v{vD}, s{sTS}
        v_mov_b32 v{vD+1}, s{sTS+2}
        v_mov_b32 v{vD+2}, s{sTS+4}
        v_mov_b32 v{vD+3}, s{sTS+6}
        v_mov_b32 v{vD+4}, s{sT1}
        v_mov_b32 v{vD+5}, s{sWv}
        s_getreg_b32 s{sT1}, hwreg(HW_REG_HW_ID)
        v_mov_b32 v{vD+6}, s{sT1}
        v_mov_b32 v{vD+7}, s{sI}
        s_mul_i32 s{sT0}, s2, 5
        s_add_u32 s{sT0}, s{sT0}, s{sWv}
        s_lshl_b32 s{sT0}, s{sT0}, 5
        s_add_u32 s{sT0}, s{sT0}, {DIAG_OFF}
        v_mov_b32 v{vTmp}, 0
        s_mov_b64 exec, 1
        buffer_store_dwordx4 {vr(vD,4)}, v{vTmp}, {sr(SW,4)}, s{sT0} offen
        buffer_store_dwordx4 {vr(vD+4,4)}, v{vTmp}, {sr(SW,4)}, s{sT0} offen offset:16
        """)

    k(f"""
    s_load_dwordx16 s[4:19], s[0:1], 0
    s_cmp_ge_u32 s2, 256
    s_cbranch_scc1 L_end
    """)
    if DIAG:
        k(f"s_memrealtime {sr(sTS,2)}")
    k(f"""
    v_lshrrev_b32 v{vTmp}, 6, v0
    v_and_b32 v{vLane}, 63, v0
    v_readfirstlane_b32 s{sWv}, v{vTmp}
    s_lshr_b32 s{sT0}, s2, 3
    s_and_b32 s{sHg}, s{sT0}, 1
    s_lshr_b32 s{sT0}, s{sT0}, 1               ; shard 0..15
    s_and_b32 s{sT1}, s2, 7
    """)
    if JMAP == 0:
        k(f"""
        s_lshl_b32 s{sT1}, s{sT1}, 4
        s_add_u32 s{sJ}, s{sT1}, s{sT0}
        """)
    else:
        k(f"""
        s_lshl_b32 s{sT0}, s{sT0}, 3
        s_add_u32 s{sJ}, s{sT1}, s{sT0}
        """)
    k(f"""
    s_mov_b32 s{SW+2}, {wsz}
    s_mov_b32 s{SW+3}, 0x20000
    s_cmp_eq_u32 s{sWv}, 4
    s_cbranch_scc1 L_service
    s_lshl_b32 s{sH}, s{sHg}, 2
    s_add_u32 s{sH}, s{sH}, s{sWv}
    s_lshl_b32 s{sIdx}, s{sJ}, 2               ; j*4
    v_lshrrev_b32 v{vG4}, 4, v{vLane}
    v_lshlrev_b32 v{vG4}, 2, v{vG4}            ; 4*g
    v_and_b32 v{vTmp}, 3, v{vLane}
    v_add_u32 v{vTmp}, v{vTmp}, v{vG4}
    v_lshlrev_b32 v{vTmp}, 4, v{vTmp}          ; chunk*16
    v_bfe_u32 v{vMx}, v{vLane}, 2, 2           ; tau
    s_lshl_b32 s{sT1}, s{sH}, 8                ; h*256
    v_lshl_add_u32 v{vKo0}, v{vMx}, 13, v{vTmp}
    v_add_u32 v{vKo0}, s{sT1}, v{vKo0}
    v_add_u32 v{vKo1}, 0x1000, v{vKo0}
    s_mov_b32 s{SK+2}, {KV_BYTES}
    s_mov_b32 s{SK+3}, 0x20000
    s_mov_b32 s{SV+2}, {KV_BYTES}
    s_mov_b32 s{SV+3}, 0x20000
    s_waitcnt lgkmcnt(0)
    s_load_dword s{sBt0}, {sr(sBT,2)}, s{sIdx}
    s_load_dword s{sCtx}, {sr(sCTX,2)}, 0
    v_lshlrev_b32 v{vBt}, 9, v{vLane}
    v_add_u32 v{vBt}, s{sIdx}, v{vBt}          ; (j + 128*lane)*4
    s_mov_b32 s{SB}, s{sBT}
    s_mov_b32 s{SB+1}, s{sBT+1}
    s_mov_b32 s{SB+2}, 16384
    s_mov_b32 s{SB+3}, 0x20000
    buffer_load_dword v{vBt}, v{vBt}, {sr(SB,4)}, 0 offen
    v_lshl_add_u32 v{vAl}, v{vMx}, 8, v{vTmp}    ; q*256 + chunk*16
    s_lshl_b32 s{sT0}, s{sH}, 10
    s_mov_b32 s{SQ}, s{sQ}
    s_mov_b32 s{SQ+1}, s{sQ+1}
    s_mov_b32 s{SQ+2}, 8192
    s_mov_b32 s{SQ+3}, 0x20000
    buffer_load_dwordx4 {vr(vQ,4)}, v{vAl}, {sr(SQ,4)}, s{sT0} offen
    v_and_b32 v{vTmp}, 15, v{vLane}
    v_lshlrev_b32 v{vTmp}, 4, v{vTmp}
    v_lshl_add_u32 v{vVo0}, v{vG4}, 11, v{vTmp}
    v_add_u32 v{vVo0}, s{sT1}, v{vVo0}
    v_add_u32 v{vVo1}, 0x1000, v{vVo0}
    s_mov_b32 s{SK}, s{sKp}
    s_mov_b32 s{SK+1}, s{sKp+1}
    s_mov_b32 s{SV}, s{sVp}
    s_mov_b32 s{SV+1}, s{sVp+1}
    s_waitcnt lgkmcnt(0)
    s_lshl_b32 s{sOff}, s{sBt0}, 15
    """)
    loadK(0, sOff)
    loadV(0, sOff)
    k(f"""
    s_mov_b32 s{SW}, s{sWS}
    s_mov_b32 s{SW+1}, s{sWS+1}
    s_mov_b32 s{sC}, {f32(128 ** -0.5 * 1.4426950408889634)}
    s_mov_b32 s{sPlo}, 0x05040100
    s_mov_b32 s{sPhi}, 0x07060302
    s_mov_b32 s{sNeg}, {f32(-1e9 * 1.4426950408889634)}
    v_mov_b32 v{vM}, {f32(-3.0e38)}
    v_mov_b32 v{vL}, 0
    v_mov_b32 v{vAb}, 0
    """)
    for i in range(32):
        k(f"v_mov_b32 v{vAcc+i}, 0")
    k(f"""
    v_mov_b32 v{vTmp}, 0x80000000
    s_min_i32 s{sT0}, s{sCtx}, 65536
    s_cmp_le_i32 s{sCtx}, 0
    s_cselect_b32 s{sT0}, 65536, s{sT0}
    s_add_u32 s{sT0}, s{sT0}, 15
    s_lshr_b32 s{sT0}, s{sT0}, 4               ; npages
    s_add_u32 s{sT0}, s{sT0}, 127
    s_sub_u32 s{sT0}, s{sT0}, s{sJ}
    s_lshr_b32 s{sN}, s{sT0}, 7
    s_min_i32 s{sCtx}, s{sCtx}, 65536
    s_max_i32 s{sCtx}, s{sCtx}, 0
    s_lshl_b32 s{sT0}, s{sJ}, 4
    s_sub_i32 s{sRem}, s{sCtx}, s{sT0}
    v_cmp_gt_u32 vcc, s{sN}, v{vLane}
    s_waitcnt vmcnt(9)
    v_lshlrev_b32 v{vBt}, 15, v{vBt}
    v_cndmask_b32 v{vBt}, v{vTmp}, v{vBt}, vcc
    """)
    for r in range(1, R):
        k(f"v_readlane_b32 s{sOff}, v{vBt}, {r}")
        loadK(r, sOff)
        loadV(r, sOff)
    if DIAG:
        k(f"s_memrealtime {sr(sTS+2,2)}")
    k(f"""
    s_mov_b32 s{sI}, 0
    s_mov_b32 s{sIdx}, {R}
    s_cmp_eq_u32 s{sN}, 0
    s_cbranch_scc1 L_done
    L_loop:
    """)
    W = 8 * (R - 1) + 4
    for r in range(R):
        k(f"""
        v_readlane_b32 s{sOff}, v{vBt}, s{sIdx}
        s_waitcnt vmcnt({W})
        """)
        for i in range(4):
            k(f"v_mfma_f32_16x16x32_bf16 {vr(vD+4*i,4)}, {vr(Kr(r,i),4)}, {vr(vQ,4)}, 0")
        loadK(r, sOff)
        for j in (1, 2, 3):
            for i in range(4):
                src1 = vD + 4 * i if j == 1 else vT + i
                k(f"v_add_f32_dpp v{vT+i}, v{vD+4*i+j}, v{src1} quad_perm:[{j},{j},{j},{j}] row_mask:0xf bank_mask:0xf")
        for i in range(4):
            k(f"v_mul_f32 v{vT+i}, s{sC}, v{vT+i}")
        k(f"""
        s_cmp_ge_i32 s{sRem}, 16
        s_cbranch_scc1 L_nomask{r}
        v_mov_b32 v{vTmp}, s{sNeg}
        """)
        for i in range(4):
            k(f"""
            s_sub_i32 s{sT0}, s{sRem}, {i}
            v_cmp_gt_i32 vcc, s{sT0}, v{vG4}
            v_cndmask_b32 v{vT+i}, v{vTmp}, v{vT+i}, vcc
            """)
        k(f"""
        L_nomask{r}:
        v_max3_f32 v{vMx}, v{vT}, v{vT+1}, v{vT+2}
        v_max3_f32 v{vMx}, v{vMx}, v{vT+3}, v{vM}
        v_mov_b32 v{vTmp}, v{vMx}
        v_permlane32_swap_b32 v{vMx}, v{vTmp}
        v_max_f32 v{vMx}, v{vMx}, v{vTmp}
        v_mov_b32 v{vTmp}, v{vMx}
        v_permlane16_swap_b32 v{vMx}, v{vTmp}
        v_max_f32 v{vMx}, v{vMx}, v{vTmp}
        v_sub_f32 v{vAl}, v{vM}, v{vMx}
        v_mov_b32 v{vM}, v{vMx}
        v_exp_f32 v{vAl}, v{vAl}
        """)
        for i in range(4):
            k(f"v_sub_f32 v{vT+i}, v{vT+i}, v{vMx}")
        for i in range(4):
            k(f"v_exp_f32 v{vT+i}, v{vT+i}")
            k(f"v_mov_b32_dpp v{vAb}, v{vAl} row_newbcast:{4*i} row_mask:{hex(1<<i)} bank_mask:0xf")
            if i == 1:
                k(f"v_fma_f32 v{vL}, v{vL}, v{vAl}, v{vT}")
            if i == 2:
                k(f"v_cvt_pk_bf16_f32 v{vP}, v{vT}, v{vT+1}")
        k(f"""
        v_add_f32 v{vTmp}, v{vT+1}, v{vT+2}
        v_cvt_pk_bf16_f32 v{vP+1}, v{vT+2}, v{vT+3}
        v_add_f32 v{vL}, v{vL}, v{vT+3}
        v_add_f32 v{vL}, v{vL}, v{vTmp}
        """)
        for e in range(8):
            k(f"v_mul_f32 v{vAcc+4*e}, v{vAb}, v{vAcc+4*e}")
        k(f"s_waitcnt vmcnt({W})")
        for j in range(4):
            for hi in range(2):
                e = 2 * j + hi
                sel = sPhi if hi else sPlo
                k(f"v_perm_b32 v{vB+2*e}, v{Vr(r,1)+j}, v{Vr(r,0)+j}, s{sel}")
                k(f"v_perm_b32 v{vB+2*e+1}, v{Vr(r,3)+j}, v{Vr(r,2)+j}, s{sel}")
        loadV(r, sOff)
        for e in range(8):
            k(f"v_mfma_f32_16x16x16_bf16 {vr(vAcc+4*e,4)}, {vr(vP,2)}, {vr(vB+2*e,2)}, {vr(vAcc+4*e,4)}")
        k(f"""
        s_cmp_eq_u32 s{sI}, {BARIT}
        s_cbranch_scc0 L_nobar{r}
        s_barrier
        L_nobar{r}:
        s_add_u32 s{sI}, s{sI}, 1
        s_add_u32 s{sIdx}, s{sIdx}, 1
        s_sub_i32 s{sRem}, s{sRem}, 2048
        s_cmp_ge_u32 s{sI}, s{sN}
        """)
        if r < R - 1:
            k("s_cbranch_scc1 L_done")
        else:
            k("s_cbranch_scc0 L_loop")
    k(f"""
    L_done:
    s_cmp_gt_u32 s{sI}, {BARIT}
    s_cbranch_scc1 L_pub
    s_barrier
    L_pub:
    """)
    if DIAG:
        k(f"s_memrealtime {sr(sTS+4,2)}")
    k(f"""
    s_lshl_b32 s{sT0}, s{sH}, 7
    s_add_u32 s{sT0}, s{sT0}, s{sJ}
    s_lshl_b32 s{sT0}, s{sT0}, 11
    v_lshlrev_b32 v{vMx}, 4, v{vLane}
    v_mov_b32 v{vTmp}, v{vL}
    s_lshl_b32 s{sT1}, s{sH}, 12
    v_permlane32_swap_b32 v{vL}, v{vTmp}
    v_add_f32 v{vL}, v{vL}, v{vTmp}
    s_lshl_b32 s{sOff}, s{sJ}, 3
    v_mov_b32 v{vTmp}, v{vL}
    s_add_u32 s{sT1}, s{sT1}, s{sOff}
    v_min_u32 v{vT}, -2, v{vM}
    v_permlane16_swap_b32 v{vL}, v{vTmp}
    v_add_f32 v{vL}, v{vL}, v{vTmp}
    s_add_u32 s{sT1}, s{sT1}, {ML_OFF}         ; ML + (h*4*128 + j)*8
    v_lshlrev_b32 v{vAl}, 8, v{vLane}
    v_min_u32 v{vT+1}, -2, v{vL}
    """)
    for e in range(8):
        k(f"v_min_u32 v{vD+e}, -2, v{vAcc+4*e}")
    ppol = PPOL.replace("+", " ")
    if NOPUB < 1:
        k(f"buffer_store_dwordx4 {vr(vD,4)}, v{vMx}, {sr(SW,4)}, s{sT0} offen {ppol}")
    if NOPUB < 2:
        k(f"buffer_store_dwordx4 {vr(vD+4,4)}, v{vMx}, {sr(SW,4)}, s{sT0} offen offset:1024 {ppol}")
    k(f"""
    s_mov_b32 exec_lo, 0x1111
    s_mov_b32 exec_hi, 0
    buffer_store_dwordx2 {vr(vT,2)}, v{vAl}, {sr(SW,4)}, s{sT1} offen sc1
    s_barrier
    """)
    if DIAG:
        k("s_waitcnt vmcnt(0)")
        diag_store("w")
    k("s_endpgm")

    vS = 16
    vOf = 2
    vMo = 6
    vOo = 7
    vX, vY, vWa, vWb, vLs = 8, 9, 10, 11, 12
    vML = 20
    vA = 24
    vA2 = 28
    vO = 32
    k(f"""
    L_service:
    v_mov_b32 v{vS}, -1
    v_mov_b32 v{vS+1}, -1
    v_mov_b32 v{vS+2}, -1
    v_mov_b32 v{vS+3}, -1
    v_lshlrev_b32 v{vX}, 4, v{vLane}
    s_lshl_b32 s{sT0}, s{sHg}, 9
    s_add_u32 s{sT0}, s{sT0}, s{sJ}
    s_lshl_b32 s{sT0}, s{sT0}, 11              ; (hg*4*128 + j)*2048
    v_lshlrev_b32 v{vY}, 10, v{vLane}
    s_lshl_b32 s{sT1}, s{sHg}, 14
    s_lshl_b32 s{sOff}, s{sJ}, 3
    s_add_u32 s{sT1}, s{sT1}, s{sOff}
    s_add_u32 s{sT1}, s{sT1}, {ML_OFF}
    s_mov_b32 s{SD+2}, 256
    s_mov_b32 s{SD+3}, 0x20000
    s_mov_b32 s{SO+2}, 8192
    s_mov_b32 s{SO+3}, 0x20000
    s_mov_b32 s{sI}, 0
    s_waitcnt lgkmcnt(0)
    s_mov_b32 s{SW}, s{sWS}
    s_mov_b32 s{SW+1}, s{sWS+1}
    s_mov_b32 s{SD}, s{sDBG}
    s_mov_b32 s{SD+1}, s{sDBG+1}
    s_mov_b32 s{SO}, s{sOUT}
    s_mov_b32 s{SO+1}, s{sOUT+1}
    """)
    cpol = CPOL.replace("+", " ")
    if PRERD:
        for w in range(4):
            k(f"""
            buffer_load_dwordx4 {vr(vO+8*w,4)}, v{vX}, {sr(SW,4)}, s{sT0} offen {cpol}
            buffer_load_dwordx4 {vr(vO+8*w+4,4)}, v{vX}, {sr(SW,4)}, s{sT0} offen offset:1024 {cpol}
            s_add_u32 s{sT0}, s{sT0}, {128*2048}
            """)
    for w in range(4):
        if NOCO:
            break
        if DLY:
            k(f"s_sleep {DLY}")
        k(f"""
        buffer_store_dwordx4 {vr(vS,4)}, v{vX}, {sr(SW,4)}, s{sT0} offen {cpol}
        buffer_store_dwordx4 {vr(vS,4)}, v{vX}, {sr(SW,4)}, s{sT0} offen offset:1024 {cpol}
        s_add_u32 s{sT0}, s{sT0}, {128*2048}
        """)
    k(f"""
    s_mov_b32 exec_lo, 0xffff
    s_mov_b32 exec_hi, 0
    {"" if NOCM else f"buffer_store_dwordx2 {vr(vS,2)}, v{vY}, {sr(SW,4)}, s{sT1} offen sc1"}
    s_mov_b64 exec, -1
    s_and_b32 s{sT0}, s2, 7
    s_lshl_b32 s{sT0}, s{sT0}, 4
    s_lshr_b32 s{sT1}, s2, 4
    s_add_u32 s{sT0}, s{sT0}, s{sT1}           ; 7 bits
    s_lshr_b32 s{sH}, s{sT0}, 2                ; hq
    s_bfe_u32 s{sN}, s{sT0}, 0x10001           ; half
    s_and_b32 s{sT0}, s{sT0}, 1
    s_lshl_b32 s{sT0}, s{sT0}, 1
    s_bfe_u32 s{sT1}, s2, 0x10003
    s_add_u32 s{sRem}, s{sT0}, s{sT1}          ; jq 0..3
    s_lshr_b32 s{sT0}, s{sH}, 2
    s_lshl_b32 s{sT0}, s{sT0}, 18
    s_lshl_b32 s{sT1}, s{sN}, 10
    s_add_u32 s{sT0}, s{sT0}, s{sT1}
    s_and_b32 s{sT1}, s{sH}, 3
    s_lshl_b32 s{sT1}, s{sT1}, 8
    s_add_u32 s{sT0}, s{sT0}, s{sT1}
    s_lshl_b32 s{sT1}, s{sRem}, 6
    s_add_u32 s{sT0}, s{sT0}, s{sT1}
    v_lshrrev_b32 v{vY}, 2, v{vLane}
    v_lshlrev_b32 v{vY}, 14, v{vY}
    v_and_b32 v{vWa}, 3, v{vLane}
    v_lshl_add_u32 v{vY}, v{vWa}, 4, v{vY}
    v_add_u32 v{vOf}, s{sT0}, v{vY}
    v_add_u32 v{vOf+1}, 0x1000, v{vOf}
    v_add_u32 v{vOf+2}, 0x2000, v{vOf}
    v_add_u32 v{vOf+3}, 0x3000, v{vOf}
    s_lshl_b32 s{sT0}, s{sH}, 10
    s_add_u32 s{sT0}, s{sT0}, {ML_OFF}
    v_add_u32 v{vMo}, s{sT0}, v{vX}
    s_lshl_b32 s{sT0}, s{sH}, 8
    s_lshl_b32 s{sT1}, s{sRem}, 6
    s_add_u32 s{sT0}, s{sT0}, s{sT1}
    s_lshl_b32 s{sT1}, s{sN}, 3
    s_add_u32 s{sT0}, s{sT0}, s{sT1}
    v_lshlrev_b32 v{vOo}, 4, v{vWa}
    v_add_u32 v{vOo}, s{sT0}, v{vOo}
    v_mov_b32 v{vX}, 0
    v_mov_b32 v{vY}, 1
    s_waitcnt vmcnt(0)
    s_mov_b64 exec, 1
    {"" if NOAT else f"buffer_atomic_add v{vY}, v{vX}, {sr(SD,4)}, 0 offen sc1"}
    s_mov_b64 exec, -1
    s_barrier
    """)
    if DIAG:
        k(f"s_memrealtime {sr(sTS+2,2)}")
    k(f"""
    L_wclr:
    buffer_load_dword v{vY}, v{vX}, {sr(SD,4)}, 0 offen sc1
    s_waitcnt vmcnt(0)
    v_readfirstlane_b32 s{sT0}, v{vY}
    s_cmp_ge_u32 s{sT0}, {0 if NOAT else 256}
    s_cbranch_scc1 L_clr_ok
    s_add_u32 s{sI}, s{sI}, 1
    s_cmp_ge_u32 s{sI}, 0x40000
    s_cbranch_scc1 L_end
    s_sleep 8
    s_branch L_wclr
    L_clr_ok:
    s_mov_b32 s{sI}, 0
    """)
    for i in range(9):
        k(f"s_mov_b64 {sr(sMask+2*i,2)}, {0 if NOCONS else -1}")
    k("s_barrier")
    if DIAG:
        k(f"s_memrealtime {sr(sTS+4,2)}")
    k("L_poll:")
    k(f"""
    s_mov_b64 exec, {sr(sMask+16,2)}
    s_cbranch_execz L_sk8
    buffer_load_dwordx4 {vr(vML,4)}, v{vMo}, {sr(SW,4)}, 0 offen sc1
    L_sk8:
    """)
    for i in range(8):
        off = " offset:2048" if i & 1 else ""
        k(f"""
        s_mov_b64 exec, {sr(sMask+2*i,2)}
        s_cbranch_execz L_sk{i}
        buffer_load_dwordx4 {vr(vO+4*i,4)}, v{vOf+i//2}, {sr(SW,4)}, 0 offen{off} sc1
        L_sk{i}:
        """)
    k(f"""
    s_mov_b64 exec, -1
    s_add_u32 s{sI}, s{sI}, 1
    s_waitcnt vmcnt(0)
    v_max3_u32 v{vX}, v{vML}, v{vML+1}, v{vML+2}
    v_max_u32 v{vX}, v{vX}, v{vML+3}
    v_cmp_eq_u32 {sr(sMask+16,2)}, -1, v{vX}
    """)
    for i in range(8):
        t = vA + (i & 3)
        k(f"""
        v_max3_u32 v{t}, v{vO+4*i}, v{vO+4*i+1}, v{vO+4*i+2}
        v_max_u32 v{t}, v{t}, v{vO+4*i+3}
        v_cmp_eq_u32 {sr(sMask+2*i,2)}, -1, v{t}
        v_max_u32 v{vX}, v{vX}, v{t}
        """)
    k(f"""
    v_cmp_eq_u32 vcc, -1, v{vX}
    s_cbranch_vccz L_all
    s_cmp_ge_u32 s{sI}, 0x40000
    s_cbranch_scc1 L_end
    s_sleep {SLEEP}
    s_branch L_poll
    L_all:
    v_max_f32 v{vX}, v{vML}, v{vML+2}
    """)
    for sh in (8, 4, 2, 1):
        k(f"v_max_f32_dpp v{vX}, v{vX}, v{vX} row_ror:{sh} row_mask:0xf bank_mask:0xf")
    k(f"""
    v_mov_b32 v{vY}, v{vX}
    v_permlane16_swap_b32 v{vX}, v{vY}
    v_max_f32 v{vX}, v{vX}, v{vY}
    v_mov_b32 v{vY}, v{vX}
    v_permlane32_swap_b32 v{vX}, v{vY}
    v_max_f32 v{vX}, v{vX}, v{vY}
    v_sub_f32 v{vWa}, v{vML}, v{vX}
    v_sub_f32 v{vWb}, v{vML+2}, v{vX}
    v_exp_f32 v{vWa}, v{vWa}
    v_exp_f32 v{vWb}, v{vWb}
    v_mov_b32 v{vA}, 0
    v_mov_b32 v{vA+1}, 0
    v_mov_b32 v{vA+2}, 0
    v_mov_b32 v{vA+3}, 0
    v_mul_f32 v{vLs}, v{vWa}, v{vML+1}
    v_fmac_f32 v{vLs}, v{vWb}, v{vML+3}
    """)
    for i in range(8):
        w = vWb if i & 1 else vWa
        ql = i >> 1
        for j in range(4):
            k(f"v_fmac_f32_dpp v{vA+j}, v{w}, v{vO+4*i+j} quad_perm:[{ql},{ql},{ql},{ql}] row_mask:0xf bank_mask:0xf")
        if i < 2:
            sh = (1, 2)[i]
            k(f"v_add_f32_dpp v{vLs}, v{vLs}, v{vLs} row_ror:{sh} row_mask:0xf bank_mask:0xf")
    five = [vA, vA + 1, vA + 2, vA + 3, vLs]
    tmp5 = [vA2, vA2 + 1, vA2 + 2, vA2 + 3, vY]
    for sh in (4, 8):
        for a in five:
            k(f"v_add_f32_dpp v{a}, v{a}, v{a} row_ror:{sh} row_mask:0xf bank_mask:0xf")
    for sw in ("16", "32"):
        for a, t in zip(five, tmp5):
            k(f"v_mov_b32 v{t}, v{a}")
        for a, t in zip(five, tmp5):
            k(f"v_permlane{sw}_swap_b32 v{a}, v{t}")
        for a, t in zip(reversed(five), reversed(tmp5)):
            k(f"v_add_f32 v{a}, v{a}, v{t}")
    k(f"v_rcp_f32 v{vLs}, v{vLs}")
    for j in range(4):
        k(f"v_mul_f32 v{vA+j}, v{vA+j}, v{vLs}")
    k(f"""
    v_cvt_pk_bf16_f32 v{vA2}, v{vA}, v{vA+1}
    v_cvt_pk_bf16_f32 v{vA2+1}, v{vA+2}, v{vA+3}
    s_mov_b64 exec, 15
    buffer_store_dwordx2 {vr(vA2,2)}, v{vOo}, {sr(SO,4)}, 0 offen
    """)
    if DIAG:
        k("s_waitcnt vmcnt(0)")
        diag_store("s")
    k("""
    L_end:
    s_endpgm
    """)
    body = k.done()

    out = HEADER
    if DIAG:
        out += f"; nwaves=1280 diagoff={DIAG_OFF}\n"
    out += f"; @launch grid=(256,1,1) block=(320,1,1) lds=0\n"
    out += '.amdgcn_target "amdgcn-amd-amdhsa--gfx950"\n.text\n'
    out += f".globl {NAME}_kernel\n.p2align 8\n.type {NAME}_kernel,@function\n{NAME}_kernel:\n"
    out += body
    out += f""".section .rodata,"a"
.p2align 6
.amdhsa_kernel {NAME}_kernel
  .amdhsa_next_free_vgpr {NV}
  .amdhsa_next_free_sgpr 96
  .amdhsa_accum_offset {(NV + 3) // 4 * 4}
  .amdhsa_group_segment_fixed_size 0
  .amdhsa_kernarg_size 64
  .amdhsa_user_sgpr_count 2
  .amdhsa_user_sgpr_kernarg_segment_ptr 1
  .amdhsa_system_sgpr_workgroup_id_x 1
.end_amdhsa_kernel
"""
    return out


if __name__ == "__main__":
    kw = {}
    for a in sys.argv[2:]:
        key, val = a.split("=")
        kw[key] = val if key in ("POL", "CPOL", "PPOL") else int(val)
    open(sys.argv[1], "w").write(gen(**kw))
```

```python
import sys
import struct
from asmlib import K, vr, sr

NAME = "standalone__paged_block_table_kv_pagedattention__decode"
KV_BYTES = 4100 * 32768
HEADER = open("cdna_kernels/" + NAME + ".s.ref").read().split("; Override")[0]
ML_OFF = 0x100000
WS_USED = 0x108000
DIAG_OFF = 0x300000


def f32(x):
    return "0x%08x" % struct.unpack("<I", struct.pack("<f", x))[0]


def gen(POL="nt", JMAP=0, DIAG=0, SLEEP=1, SLEEP1=2, SLEEP2=16, T=12, T2=64, SNAPW=0, NOSNAP=0, NOPOLL=0, NOWSNAP=0, NOML=0, LPOL='sc1', WAIT0=0, SKIPO=0):
    k = K()
    sQ, sKp, sVp, sBT, sCTX, sOUT, sDBG, sWS = 4, 6, 8, 10, 12, 14, 16, 18
    SK, SV, SB, SQ, SW, SD, SO = 20, 24, 28, 32, 36, 68, 72
    sH, sHg, sWv, sJ, sCtx, sN, sI, sRem, sOff, sC, sPlo, sPhi, sT0, sT1, sNeg, sIdx = range(40, 56)
    sTS = 56
    sBt0, sRec, sMl, sOk = 64, 65, 66, 67
    sMask = 76
    vLane, vKo0, vKo1, vVo0, vVo1, vBt, vG4, vM, vL, vMx, vTmp, vAl, vAb = range(1, 14)
    vP = 14
    vQ = 16
    vT = 20
    vD = 24
    vB = 40
    vAcc = 56
    vK = 88
    vV = 104
    vRo, vMo_w = 120, 121
    vSn = 122
    vSo = 124
    NV = 128
    wsz = 0x400000 if DIAG else WS_USED
    lpol = LPOL.replace("+", " ")
    pol = (" " + POL.replace("+", " ")) if POL else ""

    def loadK(so):
        k(f"""
        buffer_load_dwordx4 {vr(vK,4)}, v{vKo0}, {sr(SK,4)}, s{so} offen{pol}
        buffer_load_dwordx4 {vr(vK+4,4)}, v{vKo0}, {sr(SK,4)}, s{so} offen offset:2048{pol}
        buffer_load_dwordx4 {vr(vK+8,4)}, v{vKo1}, {sr(SK,4)}, s{so} offen{pol}
        buffer_load_dwordx4 {vr(vK+12,4)}, v{vKo1}, {sr(SK,4)}, s{so} offen offset:2048{pol}
        """)

    def loadV(so):
        k(f"""
        buffer_load_dwordx4 {vr(vV,4)}, v{vVo0}, {sr(SV,4)}, s{so} offen{pol}
        buffer_load_dwordx4 {vr(vV+4,4)}, v{vVo0}, {sr(SV,4)}, s{so} offen offset:2048{pol}
        buffer_load_dwordx4 {vr(vV+8,4)}, v{vVo1}, {sr(SV,4)}, s{so} offen{pol}
        buffer_load_dwordx4 {vr(vV+12,4)}, v{vVo1}, {sr(SV,4)}, s{so} offen offset:2048{pol}
        """)

    def diag_store():
        k(f"""
        s_memrealtime {sr(sTS+6,2)}
        s_getreg_b32 s{sT1}, hwreg(HW_REG_XCC_ID)
        s_waitcnt lgkmcnt(0)
        s_mov_b64 exec, -1
        v_mov_b32 v{vD}, s{sTS}
        v_mov_b32 v{vD+1}, s{sTS+2}
        v_mov_b32 v{vD+2}, s{sTS+4}
        v_mov_b32 v{vD+3}, s{sTS+6}
        v_mov_b32 v{vD+4}, s{sT1}
        v_mov_b32 v{vD+5}, s{sWv}
        s_getreg_b32 s{sT1}, hwreg(HW_REG_HW_ID)
        v_mov_b32 v{vD+6}, s{sT1}
        v_mov_b32 v{vD+7}, s{sI}
        s_mul_i32 s{sT0}, s2, 5
        s_add_u32 s{sT0}, s{sT0}, s{sWv}
        s_lshl_b32 s{sT0}, s{sT0}, 5
        s_add_u32 s{sT0}, s{sT0}, {DIAG_OFF}
        v_mov_b32 v{vTmp}, 0
        s_mov_b64 exec, 1
        buffer_store_dwordx4 {vr(vD,4)}, v{vTmp}, {sr(SW,4)}, s{sT0} offen
        buffer_store_dwordx4 {vr(vD+4,4)}, v{vTmp}, {sr(SW,4)}, s{sT0} offen offset:16
        """)

    k(f"""
    s_load_dwordx16 s[4:19], s[0:1], 0
    s_cmp_ge_u32 s2, 256
    s_cbranch_scc1 L_end
    """)
    if DIAG:
        k(f"s_memrealtime {sr(sTS,2)}")
    k(f"""
    v_lshrrev_b32 v{vTmp}, 6, v0
    v_and_b32 v{vLane}, 63, v0
    v_readfirstlane_b32 s{sWv}, v{vTmp}
    s_lshr_b32 s{sT0}, s2, 3
    s_and_b32 s{sHg}, s{sT0}, 1
    s_lshr_b32 s{sT0}, s{sT0}, 1               ; shard 0..15
    s_and_b32 s{sT1}, s2, 7
    """)
    if JMAP == 0:
        k(f"""
        s_lshl_b32 s{sT1}, s{sT1}, 4
        s_add_u32 s{sJ}, s{sT1}, s{sT0}
        """)
    else:
        k(f"""
        s_lshl_b32 s{sT0}, s{sT0}, 3
        s_add_u32 s{sJ}, s{sT1}, s{sT0}
        """)
    k(f"""
    s_mov_b32 s{SW+2}, {wsz}
    s_mov_b32 s{SW+3}, 0x20000
    s_cmp_eq_u32 s{sWv}, 4
    s_cbranch_scc1 L_service
    s_lshl_b32 s{sH}, s{sHg}, 2
    s_add_u32 s{sH}, s{sH}, s{sWv}
    s_lshl_b32 s{sIdx}, s{sJ}, 2               ; j*4
    v_lshrrev_b32 v{vG4}, 4, v{vLane}
    v_lshlrev_b32 v{vG4}, 2, v{vG4}            ; 4*g
    v_and_b32 v{vTmp}, 3, v{vLane}
    v_add_u32 v{vTmp}, v{vTmp}, v{vG4}
    v_lshlrev_b32 v{vTmp}, 4, v{vTmp}          ; chunk*16
    v_bfe_u32 v{vMx}, v{vLane}, 2, 2           ; tau
    s_lshl_b32 s{sT1}, s{sH}, 8                ; h*256
    v_lshl_add_u32 v{vKo0}, v{vMx}, 13, v{vTmp}
    v_add_u32 v{vKo0}, s{sT1}, v{vKo0}
    v_add_u32 v{vKo1}, 0x1000, v{vKo0}
    s_mov_b32 s{SK+2}, {KV_BYTES}
    s_mov_b32 s{SK+3}, 0x20000
    s_mov_b32 s{SV+2}, {KV_BYTES}
    s_mov_b32 s{SV+3}, 0x20000
    s_waitcnt lgkmcnt(0)
    s_load_dword s{sBt0}, {sr(sBT,2)}, s{sIdx}
    s_load_dword s{sCtx}, {sr(sCTX,2)}, 0
    v_lshlrev_b32 v{vBt}, 9, v{vLane}
    v_add_u32 v{vBt}, s{sIdx}, v{vBt}          ; (j + 128*lane)*4
    s_mov_b32 s{SB}, s{sBT}
    s_mov_b32 s{SB+1}, s{sBT+1}
    s_mov_b32 s{SB+2}, 16384
    s_mov_b32 s{SB+3}, 0x20000
    buffer_load_dword v{vBt}, v{vBt}, {sr(SB,4)}, 0 offen
    v_lshl_add_u32 v{vAl}, v{vMx}, 8, v{vTmp}    ; q*256 + chunk*16
    s_lshl_b32 s{sT0}, s{sH}, 10
    s_mov_b32 s{SQ}, s{sQ}
    s_mov_b32 s{SQ+1}, s{sQ+1}
    s_mov_b32 s{SQ+2}, 8192
    s_mov_b32 s{SQ+3}, 0x20000
    buffer_load_dwordx4 {vr(vQ,4)}, v{vAl}, {sr(SQ,4)}, s{sT0} offen
    v_and_b32 v{vTmp}, 15, v{vLane}
    v_lshlrev_b32 v{vTmp}, 4, v{vTmp}
    v_lshl_add_u32 v{vVo0}, v{vG4}, 11, v{vTmp}
    v_add_u32 v{vVo0}, s{sT1}, v{vVo0}
    v_add_u32 v{vVo1}, 0x1000, v{vVo0}
    s_mov_b32 s{SK}, s{sKp}
    s_mov_b32 s{SK+1}, s{sKp+1}
    s_mov_b32 s{SV}, s{sVp}
    s_mov_b32 s{SV+1}, s{sVp+1}
    s_lshl_b32 s{sRec}, s{sH}, 7
    s_add_u32 s{sRec}, s{sRec}, s{sJ}
    s_lshl_b32 s{sRec}, s{sRec}, 10
    s_lshl_b32 s{sMl}, s{sH}, 12
    s_lshl_b32 s{sT0}, s{sJ}, 3
    s_add_u32 s{sMl}, s{sMl}, s{sT0}
    s_add_u32 s{sMl}, s{sMl}, {ML_OFF}         ; ML + (h*4*128 + j)*8
    v_lshlrev_b32 v{vRo}, 4, v{vLane}
    v_lshlrev_b32 v{vMo_w}, 8, v{vLane}
    s_mov_b32 s{SW}, s{sWS}
    s_mov_b32 s{SW+1}, s{sWS+1}
    {f"s_mov_b32 s{SW+2}, 0" if NOWSNAP else ""}
    buffer_load_dwordx4 {vr(vSo,4)}, v{vRo}, {sr(SW,4)}, s{sRec} offen {lpol}
    s_mov_b32 exec_lo, 0x1111
    s_mov_b32 exec_hi, 0
    buffer_load_dwordx2 {vr(vSn,2)}, v{vMo_w}, {sr(SW,4)}, s{sMl} offen {lpol}
    {f"s_mov_b32 s{SW+2}, {wsz}" if NOWSNAP else ""}
    s_mov_b64 exec, -1
    s_waitcnt lgkmcnt(0)
    s_lshl_b32 s{sOff}, s{sBt0}, 15
    """)
    loadK(sOff)
    loadV(sOff)
    k(f"""
    s_mov_b32 s{sC}, {f32(128 ** -0.5 * 1.4426950408889634)}
    s_mov_b32 s{sPlo}, 0x05040100
    s_mov_b32 s{sPhi}, 0x07060302
    s_mov_b32 s{sNeg}, {f32(-1e9 * 1.4426950408889634)}
    v_mov_b32 v{vM}, {f32(-3.0e38)}
    v_mov_b32 v{vL}, 0
    v_mov_b32 v{vAb}, 0
    """)
    for i in range(32):
        k(f"v_mov_b32 v{vAcc+i}, 0")
    k(f"""
    s_min_i32 s{sT0}, s{sCtx}, 65536
    s_cmp_le_i32 s{sCtx}, 0
    s_cselect_b32 s{sT0}, 65536, s{sT0}
    s_add_u32 s{sT0}, s{sT0}, 15
    s_lshr_b32 s{sT0}, s{sT0}, 4               ; npages
    s_add_u32 s{sT0}, s{sT0}, 127
    s_sub_u32 s{sT0}, s{sT0}, s{sJ}
    s_lshr_b32 s{sN}, s{sT0}, 7
    s_min_i32 s{sCtx}, s{sCtx}, 65536
    s_max_i32 s{sCtx}, s{sCtx}, 0
    s_lshl_b32 s{sT0}, s{sJ}, 4
    s_sub_i32 s{sRem}, s{sCtx}, s{sT0}
    s_waitcnt vmcnt(11)
    v_lshlrev_b32 v{vBt}, 15, v{vBt}
    """)
    if DIAG:
        k(f"s_memrealtime {sr(sTS+2,2)}")
    k(f"""
    s_mov_b32 s{sI}, 1
    s_cmp_eq_u32 s{sN}, 0
    s_cbranch_scc0 L_loop
    s_waitcnt vmcnt(0)
    s_branch L_done
    L_loop:
    v_readlane_b32 s{sOff}, v{vBt}, s{sI}
    s_cmp_lt_u32 s{sI}, s{sN}
    s_waitcnt vmcnt(4)
    """)
    for i in range(4):
        k(f"v_mfma_f32_16x16x32_bf16 {vr(vD+4*i,4)}, {vr(vK+4*i,4)}, {vr(vQ,4)}, 0")
    k("s_cbranch_scc0 L_nok")
    loadK(sOff)
    k("L_nok:")
    for j in (1, 2, 3):
        for i in range(4):
            src1 = vD + 4 * i if j == 1 else vT + i
            k(f"v_add_f32_dpp v{vT+i}, v{vD+4*i+j}, v{src1} quad_perm:[{j},{j},{j},{j}] row_mask:0xf bank_mask:0xf")
    for i in range(4):
        k(f"v_mul_f32 v{vT+i}, s{sC}, v{vT+i}")
    k(f"""
    s_cmp_ge_i32 s{sRem}, 16
    s_cbranch_scc1 L_nomask
    v_mov_b32 v{vTmp}, s{sNeg}
    """)
    for i in range(4):
        k(f"""
        s_sub_i32 s{sT0}, s{sRem}, {i}
        v_cmp_gt_i32 vcc, s{sT0}, v{vG4}
        v_cndmask_b32 v{vT+i}, v{vTmp}, v{vT+i}, vcc
        """)
    k(f"""
    L_nomask:
    v_max3_f32 v{vMx}, v{vT}, v{vT+1}, v{vT+2}
    v_max3_f32 v{vMx}, v{vMx}, v{vT+3}, v{vM}
    v_mov_b32 v{vTmp}, v{vMx}
    s_sub_i32 s{sRem}, s{sRem}, 2048
    v_permlane32_swap_b32 v{vMx}, v{vTmp}
    v_max_f32 v{vMx}, v{vMx}, v{vTmp}
    v_mov_b32 v{vTmp}, v{vMx}
    s_cmp_lt_u32 s{sI}, s{sN}
    v_permlane16_swap_b32 v{vMx}, v{vTmp}
    v_max_f32 v{vMx}, v{vMx}, v{vTmp}
    v_sub_f32 v{vAl}, v{vM}, v{vMx}
    v_mov_b32 v{vM}, v{vMx}
    v_exp_f32 v{vAl}, v{vAl}
    """)
    for i in range(4):
        k(f"v_sub_f32 v{vT+i}, v{vT+i}, v{vMx}")
    for i in range(4):
        k(f"v_exp_f32 v{vT+i}, v{vT+i}")
        k(f"v_mov_b32_dpp v{vAb}, v{vAl} row_newbcast:{4*i} row_mask:{hex(1<<i)} bank_mask:0xf")
        if i == 1:
            k(f"v_fma_f32 v{vL}, v{vL}, v{vAl}, v{vT}")
        if i == 2:
            k(f"v_cvt_pk_bf16_f32 v{vP}, v{vT}, v{vT+1}")
    k(f"""
    v_add_f32 v{vTmp}, v{vT+1}, v{vT+2}
    v_cvt_pk_bf16_f32 v{vP+1}, v{vT+2}, v{vT+3}
    v_add_f32 v{vL}, v{vL}, v{vT+3}
    v_add_f32 v{vL}, v{vL}, v{vTmp}
    """)
    for e in range(8):
        k(f"v_mul_f32 v{vAcc+4*e}, v{vAb}, v{vAcc+4*e}")

    def perms():
        for j in range(4):
            for hi in range(2):
                e = 2 * j + hi
                sel = sPhi if hi else sPlo
                k(f"v_perm_b32 v{vB+2*e}, v{vV+4+j}, v{vV+j}, s{sel}")
                k(f"v_perm_b32 v{vB+2*e+1}, v{vV+12+j}, v{vV+8+j}, s{sel}")

    def pv():
        for e in range(8):
            k(f"v_mfma_f32_16x16x16_bf16 {vr(vAcc+4*e,4)}, {vr(vP,2)}, {vr(vB+2*e,2)}, {vr(vAcc+4*e,4)}")

    k(f"""
    s_cbranch_scc0 L_last
    s_waitcnt vmcnt(4)
    """)
    perms()
    loadV(sOff)
    pv()
    k(f"""
    s_add_u32 s{sI}, s{sI}, 1
    s_branch L_loop
    L_last:
    v_mov_b32 v{vTmp}, v{vL}
    v_permlane32_swap_b32 v{vL}, v{vTmp}
    v_add_f32 v{vL}, v{vL}, v{vTmp}
    v_mov_b32 v{vTmp}, v{vL}
    v_permlane16_swap_b32 v{vL}, v{vTmp}
    v_add_f32 v{vL}, v{vL}, v{vTmp}
    s_waitcnt vmcnt(0)
    """)
    for e in range(8):
        j, hi = e >> 1, e & 1
        sel = sPhi if hi else sPlo
        k(f"v_perm_b32 v{vB+2*e}, v{vV+4+j}, v{vV+j}, s{sel}")
        k(f"v_perm_b32 v{vB+2*e+1}, v{vV+12+j}, v{vV+8+j}, s{sel}")
        if e >= 1:
            ee = e - 1
            k(f"v_mfma_f32_16x16x16_bf16 {vr(vAcc+4*ee,4)}, {vr(vP,2)}, {vr(vB+2*ee,2)}, {vr(vAcc+4*ee,4)}")
    k(f"v_mfma_f32_16x16x16_bf16 {vr(vAcc+28,4)}, {vr(vP,2)}, {vr(vB+14,2)}, {vr(vAcc+28,4)}")
    k(f"""
    L_done:
    v_min_u32 v{vT}, -2, v{vM}
    v_min_u32 v{vT+1}, -2, v{vL}
    v_xnor_b32 v{vT}, v{vT}, v{vSn}
    v_xnor_b32 v{vT+1}, v{vT+1}, v{vSn+1}
    """)
    for j in range(4):
        k(f"v_cvt_pk_bf16_f32 v{vD+j}, v{vAcc+8*j}, v{vAcc+8*j+4}")
    for j in range(4):
        k(f"v_min_u32 v{vD+j}, -2, v{vD+j}")
    for j in range(4):
        k(f"v_xnor_b32 v{vD+j}, v{vD+j}, v{vSo+j}")
    if DIAG:
        k(f"s_memrealtime {sr(sTS+4,2)}")
    k(f"""
    buffer_store_dwordx4 {vr(vD,4)}, v{vRo}, {sr(SW,4)}, s{sRec} offen sc1
    s_mov_b32 exec_lo, 0x1111
    s_mov_b32 exec_hi, 0
    {"" if NOML else f"buffer_store_dwordx2 {vr(vT,2)}, v{vMo_w}, {sr(SW,4)}, s{sMl} offen sc1"}
    s_barrier
    """)
    if DIAG:
        k("s_waitcnt vmcnt(0)")
        diag_store()
    k("s_endpgm")

    vOf = 2
    vMo = 6
    vOo = 7
    vX, vY, vWa, vWb, vLs = 8, 9, 10, 11, 12
    vMLr = 16
    vML = 20
    vA = 24
    vA2 = 28
    vO = 32
    vU = 48
    vOr = 80
    vOs = 96
    vMs = 112
    k(f"""
    L_service:
    s_mov_b32 s{SO+2}, 8192
    s_mov_b32 s{SO+3}, 0x20000
    s_mov_b32 s{sI}, 0
    s_and_b32 s{sT0}, s2, 7
    s_lshl_b32 s{sT0}, s{sT0}, 3
    s_lshr_b32 s{sT1}, s2, 5
    s_add_u32 s{sT0}, s{sT0}, s{sT1}           ; 6 bits
    s_lshr_b32 s{sH}, s{sT0}, 1                ; hq
    s_and_b32 s{sT0}, s{sT0}, 1
    s_lshl_b32 s{sT0}, s{sT0}, 2
    s_bfe_u32 s{sT1}, s2, 0x20003
    s_add_u32 s{sRem}, s{sT0}, s{sT1}          ; oct 0..7
    s_lshl_b32 s{sRem}, s{sRem}, 5             ; oct*32
    s_lshr_b32 s{sT0}, s{sH}, 2
    s_lshl_b32 s{sT0}, s{sT0}, 17
    s_and_b32 s{sT1}, s{sH}, 3
    s_lshl_b32 s{sT1}, s{sT1}, 8
    s_add_u32 s{sT0}, s{sT0}, s{sT1}
    s_add_u32 s{sT0}, s{sT0}, s{sRem}
    v_lshrrev_b32 v{vY}, 2, v{vLane}
    v_lshlrev_b32 v{vY}, 13, v{vY}
    v_and_b32 v{vWa}, 3, v{vLane}
    v_lshl_add_u32 v{vY}, v{vWa}, 3, v{vY}
    v_add_u32 v{vOf}, s{sT0}, v{vY}
    v_add_u32 v{vOf+1}, 0x1000, v{vOf}
    s_lshl_b32 s{sT0}, s{sH}, 10
    s_add_u32 s{sT0}, s{sT0}, {ML_OFF}
    v_lshlrev_b32 v{vX}, 4, v{vLane}
    v_add_u32 v{vMo}, s{sT0}, v{vX}
    s_lshl_b32 s{sT0}, s{sH}, 8
    s_add_u32 s{sT0}, s{sT0}, s{sRem}
    v_lshlrev_b32 v{vOo}, 3, v{vWa}
    v_add_u32 v{vOo}, s{sT0}, v{vOo}
    v_lshrrev_b32 v{vX}, 4, v{vLane}
    v_lshl_add_u32 v{vOo}, v{vX}, 1, v{vOo}
    s_mov_b32 s{sC}, 0xffff0000
    s_waitcnt lgkmcnt(0)
    s_mov_b32 s{SW}, s{sWS}
    s_mov_b32 s{SW+1}, s{sWS+1}
    s_mov_b32 s{SO}, s{sOUT}
    s_mov_b32 s{SO+1}, s{sOUT+1}
    {f"s_sleep {SNAPW}" if SNAPW else ""}
    """)
    if not NOSNAP:
        k(f"buffer_load_dwordx4 {vr(vMs,4)}, v{vMo}, {sr(SW,4)}, 0 offen {lpol}")
    for i in range(8):
        off = f" offset:{(i&3)*1024}" if i & 3 else ""
        if not NOSNAP:
            k(f"buffer_load_dwordx2 {vr(vOs+2*i,2)}, v{vOf+i//4}, {sr(SW,4)}, 0 offen{off} {lpol}")
    for i in range(9):
        k(f"s_mov_b64 {sr(sMask+2*i,2)}, -1")
    k("s_waitcnt vmcnt(0)")
    if DIAG:
        k(f"s_memrealtime {sr(sTS+2,2)}")
    k(f"""
    s_barrier
    {f"s_sleep {WAIT0}" if WAIT0 else ""}
    s_branch {"L_all" if NOPOLL else "L_ph1"}
    L_ph1s:
    s_cmp_gt_u32 s{sT0}, {T2}
    s_cbranch_scc0 L_ph1t
    s_sleep {SLEEP2}
    L_ph1t:
    s_sleep {SLEEP1}
    L_ph1:
    buffer_load_dwordx4 {vr(vMLr,4)}, v{vMo}, {sr(SW,4)}, 0 offen {lpol}
    s_add_u32 s{sI}, s{sI}, 1
    s_cmp_ge_u32 s{sI}, 0x2000
    s_cbranch_scc1 L_end
    s_waitcnt vmcnt(0)
    v_cmp_eq_u32 vcc, v{vMs}, v{vMLr}
    v_cmp_eq_u32 {sr(sMask,2)}, v{vMs+2}, v{vMLr+2}
    s_bcnt1_i32_b64 s{sT0}, vcc
    s_bcnt1_i32_b64 s{sT1}, {sr(sMask,2)}
    s_add_u32 s{sT0}, s{sT0}, s{sT1}
    s_cmp_gt_u32 s{sT0}, {T}
    s_cbranch_scc1 L_ph1s
    s_mov_b64 {sr(sMask,2)}, -1
    """)
    if DIAG:
        k(f"s_memrealtime {sr(sTS+4,2)}")
    if SKIPO:
        k("s_branch L_all")
    k("L_poll:")
    k(f"""
    s_mov_b64 exec, {sr(sMask+16,2)}
    s_cbranch_execz L_sk8
    buffer_load_dwordx4 {vr(vMLr,4)}, v{vMo}, {sr(SW,4)}, 0 offen {lpol}
    L_sk8:
    """)
    for i in range(8):
        off = f" offset:{(i&3)*1024}" if i & 3 else ""
        k(f"""
        s_mov_b64 exec, {sr(sMask+2*i,2)}
        s_cbranch_execz L_sk{i}
        buffer_load_dwordx2 {vr(vOr+2*i,2)}, v{vOf+i//4}, {sr(SW,4)}, 0 offen{off} {lpol}
        L_sk{i}:
        """)
    k(f"""
    s_mov_b64 exec, -1
    s_add_u32 s{sI}, s{sI}, 1
    s_waitcnt vmcnt(0)
    """)
    for j in range(4):
        k(f"v_xnor_b32 v{vML+j}, v{vMLr+j}, v{vMs+j}")
    for j in range(16):
        k(f"v_xnor_b32 v{vO+j}, v{vOr+j}, v{vOs+j}")
    k(f"""
    v_max3_u32 v{vX}, v{vML}, v{vML+1}, v{vML+2}
    v_max3_u32 v{vY}, v{vML+3}, v{vO}, v{vO+1}
    v_max3_u32 v{vWa}, v{vO+2}, v{vO+3}, v{vO+4}
    v_max3_u32 v{vWb}, v{vO+5}, v{vO+6}, v{vO+7}
    v_max3_u32 v{vY}, v{vY}, v{vO+8}, v{vO+9}
    v_max3_u32 v{vWa}, v{vWa}, v{vO+10}, v{vO+11}
    v_max3_u32 v{vWb}, v{vWb}, v{vO+12}, v{vO+13}
    v_max3_u32 v{vY}, v{vY}, v{vO+14}, v{vO+15}
    v_max3_u32 v{vWa}, v{vWa}, v{vWb}, v{vX}
    v_max_u32 v{vY}, v{vY}, v{vWa}
    v_cmp_eq_u32 vcc, -1, v{vY}
    s_cbranch_vccz L_all
    v_max_u32 v{vX}, v{vX}, v{vML+3}
    v_cmp_eq_u32 {sr(sMask+16,2)}, -1, v{vX}
    """)
    for i in range(8):
        k(f"v_max_u32 v{vU+i}, v{vO+2*i}, v{vO+2*i+1}")
        k(f"v_cmp_eq_u32 {sr(sMask+2*i,2)}, -1, v{vU+i}")
    k(f"""
    s_cmp_ge_u32 s{sI}, 0x2000
    s_cbranch_scc1 L_end
    {f"s_sleep {SLEEP}" if SLEEP else ""}
    s_branch L_poll
    L_all:
    v_max_f32 v{vX}, v{vML}, v{vML+2}
    """)
    unp = []
    for i in range(8):
        for d in range(2):
            unp.append(f"v_lshlrev_b32 v{vU+4*i+2*d}, 16, v{vO+2*i+d}")
            unp.append(f"v_and_b32 v{vU+4*i+2*d+1}, s{sC}, v{vO+2*i+d}")

    def fill(n):
        for _ in range(n):
            if unp:
                k(unp.pop(0))

    for sh in (8, 4, 2, 1):
        fill(2)
        k(f"v_max_f32_dpp v{vX}, v{vX}, v{vX} row_ror:{sh} row_mask:0xf bank_mask:0xf")
    for sw in ("16", "32"):
        k(f"v_mov_b32 v{vY}, v{vX}")
        fill(2)
        k(f"v_permlane{sw}_swap_b32 v{vX}, v{vY}")
        k(f"v_max_f32 v{vX}, v{vX}, v{vY}")
    k(f"""
    v_sub_f32 v{vWa}, v{vML}, v{vX}
    v_sub_f32 v{vWb}, v{vML+2}, v{vX}
    v_exp_f32 v{vWa}, v{vWa}
    v_exp_f32 v{vWb}, v{vWb}
    """)
    fill(64)
    k(f"""
    v_mul_f32 v{vLs}, v{vWa}, v{vML+1}
    v_fmac_f32 v{vLs}, v{vWb}, v{vML+3}
    """)
    for i in range(8):
        w = vWb if i & 1 else vWa
        ql = i >> 1
        for j in range(4):
            op = "v_mul_f32_dpp" if i == 0 else "v_fmac_f32_dpp"
            k(f"{op} v{vA+j}, v{w}, v{vU+4*i+j} quad_perm:[{ql},{ql},{ql},{ql}] row_mask:0xf bank_mask:0xf")
        if i < 4:
            sh = (1, 2, 4, 8)[i]
            k(f"v_add_f32_dpp v{vLs}, v{vLs}, v{vLs} row_ror:{sh} row_mask:0xf bank_mask:0xf")
        if i in (4, 6):
            k(f"v_mov_b32 v{vY}, v{vLs}")
        if i in (5, 7):
            k(f"v_permlane{16 if i == 5 else 32}_swap_b32 v{vLs}, v{vY}")
            k(f"v_add_f32 v{vLs}, v{vLs}, v{vY}")
    k(f"v_rcp_f32 v{vLs}, v{vLs}")
    four = [vA, vA + 1, vA + 2, vA + 3]
    tmp4 = [vA2, vA2 + 1, vA2 + 2, vA2 + 3]
    for sh in (4, 8):
        for a in four:
            k(f"v_add_f32_dpp v{a}, v{a}, v{a} row_ror:{sh} row_mask:0xf bank_mask:0xf")
    k(f"""
    v_permlane16_swap_b32 v{vA}, v{vA+1}
    v_permlane16_swap_b32 v{vA+2}, v{vA+3}
    v_add_f32 v{vA}, v{vA}, v{vA+1}
    v_add_f32 v{vA+2}, v{vA+2}, v{vA+3}
    v_permlane32_swap_b32 v{vA}, v{vA+2}
    v_add_f32 v{vA}, v{vA}, v{vA+2}
    v_mul_f32 v{vA}, v{vA}, v{vLs}
    v_cvt_pk_bf16_f32 v{vA}, v{vA}, v{vA}
    s_mov_b32 exec_lo, 0x000f000f
    s_mov_b32 exec_hi, 0x000f000f
    buffer_store_short v{vA}, v{vOo}, {sr(SO,4)}, 0 offen
    """)
    if DIAG:
        k("s_waitcnt vmcnt(0)")
        diag_store()
    k("""
    L_end:
    s_endpgm
    """)
    body = k.done()

    out = HEADER
    if DIAG:
        out += f"; nwaves=1280 diagoff={DIAG_OFF}\n"
    out += f"; @launch grid=(256,1,1) block=(320,1,1) lds=0\n"
    out += '.amdgcn_target "amdgcn-amd-amdhsa--gfx950"\n.text\n'
    out += f".globl {NAME}_kernel\n.p2align 8\n.type {NAME}_kernel,@function\n{NAME}_kernel:\n"
    out += body
    out += f""".section .rodata,"a"
.p2align 6
.amdhsa_kernel {NAME}_kernel
  .amdhsa_next_free_vgpr {NV}
  .amdhsa_next_free_sgpr 96
  .amdhsa_accum_offset {(NV + 3) // 4 * 4}
  .amdhsa_group_segment_fixed_size 0
  .amdhsa_kernarg_size 64
  .amdhsa_user_sgpr_count 2
  .amdhsa_user_sgpr_kernarg_segment_ptr 1
  .amdhsa_system_sgpr_workgroup_id_x 1
.end_amdhsa_kernel
"""
    return out


if __name__ == "__main__":
    kw = {}
    for a in sys.argv[2:]:
        key, val = a.split("=")
        kw[key] = val if key in ("POL", "LPOL") else int(val)
    open(sys.argv[1], "w").write(gen(**kw))
```

```python
import sys
import struct
from asmlib import K, vr, sr

NAME = "standalone__paged_block_table_kv_pagedattention__decode"
KV_BYTES = 4100 * 32768
HEADER = open("cdna_kernels/" + NAME + ".s.ref").read().split("; Override")[0]
ML_OFF = 0x100000
WS_USED = 0x108000
DIAG_OFF = 0x300000


def f32(x):
    return "0x%08x" % struct.unpack("<I", struct.pack("<f", x))[0]


def gen(POL="nt", JMAP=1, DIAG=0, SLEEP=4, SLEEP1=8, SLEEP2=16, T=12, T2=64, D=6, DEEP=1, NOPOLL=0,
        SNPOL="sc1", LIMIT=0x2000):
    k = K()
    cold = K()
    sQ, sKp, sVp, sBT, sCTX, sOUT, sDBG, sWS = 4, 6, 8, 10, 12, 14, 16, 18
    SK, SV, SB, SQ, SW, SC, SO = 20, 24, 28, 32, 36, 68, 72
    sH, sHg, sWv, sJ, sCtx, sN, sI, sRem, sOff, sC, sPlo, sPhi, sT0, sT1, sNeg, sIdx = range(40, 56)
    sTS = 56
    sBt0, sRec, sMl, sNxt = 64, 65, 66, 67
    sMask = 76
    vLane, vKo0, vKo1, vVo0, vVo1, vBt, vG4, vM, vL, vMx, vTmp, vAl, vAb = range(1, 14)
    vP = 14
    vQ = 16
    vT = 20
    vD = 24
    vB = 40
    vAcc = 56
    vKA, vVA = 88, 104
    vRo, vMo_w = 120, 121
    vSn = 122
    vSo = 124
    vKB, vVB = 128, 144
    vCx = 160
    NV = 161
    wsz = 0x400000 if DIAG else WS_USED
    pol = (" " + POL.replace("+", " ")) if POL else ""
    snpol = SNPOL.replace("+", " ")

    def ld(which, i, base, so):
        vo = (vKo0, vKo1) if which == "K" else (vVo0, vVo1)
        S = SK if which == "K" else SV
        off = " offset:2048" if i & 1 else ""
        k(f"buffer_load_dwordx4 {vr(base+4*i,4)}, v{vo[i>>1]}, {sr(S,4)}, s{so} offen{off}{pol}")

    def diag_store():
        k(f"""
        s_memrealtime {sr(sTS+6,2)}
        s_getreg_b32 s{sT1}, hwreg(HW_REG_XCC_ID)
        s_waitcnt lgkmcnt(0)
        s_mov_b64 exec, -1
        v_mov_b32 v{vD}, s{sTS}
        v_mov_b32 v{vD+1}, s{sTS+2}
        v_mov_b32 v{vD+2}, s{sTS+4}
        v_mov_b32 v{vD+3}, s{sTS+6}
        v_mov_b32 v{vD+4}, s{sT1}
        v_mov_b32 v{vD+5}, s{sWv}
        s_getreg_b32 s{sT1}, hwreg(HW_REG_HW_ID)
        v_mov_b32 v{vD+6}, s{sT1}
        v_mov_b32 v{vD+7}, s{sI}
        s_mul_i32 s{sT0}, s2, 5
        s_add_u32 s{sT0}, s{sT0}, s{sWv}
        s_lshl_b32 s{sT0}, s{sT0}, 5
        s_add_u32 s{sT0}, s{sT0}, {DIAG_OFF}
        v_mov_b32 v{vTmp}, 0
        s_mov_b64 exec, 1
        buffer_store_dwordx4 {vr(vD,4)}, v{vTmp}, {sr(SW,4)}, s{sT0} offen
        buffer_store_dwordx4 {vr(vD+4,4)}, v{vTmp}, {sr(SW,4)}, s{sT0} offen offset:16
        """)

    k(f"""
    s_load_dwordx16 s[4:19], s[0:1], 0
    s_cmp_ge_u32 s2, 256
    s_cbranch_scc1 L_end
    """)
    if DIAG:
        k(f"s_memrealtime {sr(sTS,2)}")
    k(f"""
    v_lshrrev_b32 v{vTmp}, 6, v0
    v_and_b32 v{vLane}, 63, v0
    v_readfirstlane_b32 s{sWv}, v{vTmp}
    s_bfe_u32 s{sHg}, s2, 0x10003
    s_lshr_b32 s{sT0}, s2, 4                   ; shard 0..15
    s_and_b32 s{sT1}, s2, 7
    """)
    if JMAP == 0:
        k(f"""
        s_lshl_b32 s{sT1}, s{sT1}, 4
        s_add_u32 s{sJ}, s{sT1}, s{sT0}
        """)
    else:
        k(f"s_lshl3_add_u32 s{sJ}, s{sT0}, s{sT1}")
    k(f"""
    s_mov_b32 s{SW+2}, {wsz}
    s_mov_b32 s{SW+3}, 0x20000
    s_cmp_eq_u32 s{sWv}, 4
    s_cbranch_scc1 L_service
    s_lshl2_add_u32 s{sH}, s{sHg}, s{sWv}
    s_lshl_b32 s{sIdx}, s{sJ}, 2               ; j*4
    v_lshrrev_b32 v{vG4}, 4, v{vLane}
    v_lshlrev_b32 v{vG4}, 2, v{vG4}            ; 4*g
    v_and_b32 v{vTmp}, 3, v{vLane}
    v_add_lshl_u32 v{vTmp}, v{vTmp}, v{vG4}, 4 ; chunk*16
    v_bfe_u32 v{vMx}, v{vLane}, 2, 2           ; tau
    s_lshl_b32 s{sT1}, s{sH}, 8                ; h*256
    v_lshl_add_u32 v{vKo0}, v{vMx}, 13, v{vTmp}
    v_add_u32 v{vKo0}, s{sT1}, v{vKo0}
    v_add_u32 v{vKo1}, 0x1000, v{vKo0}
    v_lshl_add_u32 v{vAl}, v{vMx}, 8, v{vTmp}    ; q*256 + chunk*16
    v_and_b32 v{vTmp}, 15, v{vLane}
    v_lshlrev_b32 v{vTmp}, 4, v{vTmp}
    v_lshl_add_u32 v{vVo0}, v{vG4}, 11, v{vTmp}
    v_add_u32 v{vVo0}, s{sT1}, v{vVo0}
    v_add_u32 v{vVo1}, 0x1000, v{vVo0}
    v_lshlrev_b32 v{vBt}, 9, v{vLane}          ; 128*lane*4
    s_mov_b32 s{SK+2}, {KV_BYTES}
    s_mov_b32 s{SK+3}, 0x20000
    s_mov_b32 s{SV+2}, {KV_BYTES}
    s_mov_b32 s{SV+3}, 0x20000
    s_mov_b32 s{SB+2}, 16384
    s_mov_b32 s{SB+3}, 0x20000
    s_waitcnt lgkmcnt(0)
    s_load_dword s{sBt0}, {sr(sBT,2)}, s{sIdx}
    s_mov_b32 s{SB}, s{sBT}
    s_mov_b32 s{SB+1}, s{sBT+1}
    buffer_load_dword v{vBt}, v{vBt}, {sr(SB,4)}, s{sIdx} offen
    s_mov_b32 s{SC}, s{sCTX}
    s_mov_b32 s{SC+1}, s{sCTX+1}
    s_mov_b32 s{SC+2}, 4
    s_mov_b32 s{SC+3}, 0x20000
    buffer_load_dword v{vCx}, off, {sr(SC,4)}, 0
    s_lshl_b32 s{sT0}, s{sH}, 10
    s_mov_b32 s{SQ}, s{sQ}
    s_mov_b32 s{SQ+1}, s{sQ+1}
    s_mov_b32 s{SQ+2}, 8192
    s_mov_b32 s{SQ+3}, 0x20000
    buffer_load_dwordx4 {vr(vQ,4)}, v{vAl}, {sr(SQ,4)}, s{sT0} offen
    s_mov_b32 s{SK}, s{sKp}
    s_mov_b32 s{SK+1}, s{sKp+1}
    s_mov_b32 s{SV}, s{sVp}
    s_mov_b32 s{SV+1}, s{sVp+1}
    s_lshl_b32 s{sRec}, s{sH}, 7
    s_add_u32 s{sRec}, s{sRec}, s{sJ}
    s_lshl_b32 s{sRec}, s{sRec}, 10
    s_lshl_b32 s{sMl}, s{sH}, 12
    s_lshl3_add_u32 s{sMl}, s{sJ}, s{sMl}
    s_add_u32 s{sMl}, s{sMl}, {ML_OFF}         ; ML + (h*4*128 + j)*8
    v_lshlrev_b32 v{vRo}, 4, v{vLane}
    v_lshlrev_b32 v{vMo_w}, 8, v{vLane}
    s_mov_b32 s{SW}, s{sWS}
    s_mov_b32 s{SW+1}, s{sWS+1}
    buffer_load_dwordx4 {vr(vSo,4)}, v{vRo}, {sr(SW,4)}, s{sRec} offen {snpol}
    s_mov_b32 exec_lo, 0x1111
    s_mov_b32 exec_hi, 0
    buffer_load_dwordx2 {vr(vSn,2)}, v{vMo_w}, {sr(SW,4)}, s{sMl} offen {snpol}
    s_mov_b64 exec, -1
    s_waitcnt lgkmcnt(0)
    s_lshl_b32 s{sOff}, s{sBt0}, 15
    """)
    seq = [("K", i) for i in range(4)] + [("V", i) for i in range(4)]
    for w, i in seq[:D]:
        ld(w, i, vKA if w == "K" else vVA, sOff)
    if DIAG:
        k(f"s_memrealtime {sr(sTS+2,2)}")
    k(f"""
    s_mov_b32 s{sC}, {f32(128 ** -0.5 * 1.4426950408889634)}
    s_mov_b32 s{sPlo}, 0x05040100
    s_mov_b32 s{sPhi}, 0x07060302
    s_mov_b32 s{sNeg}, {f32(-1e9 * 1.4426950408889634)}
    v_mov_b32 v{vM}, {f32(-3.0e38)}
    v_mov_b32 v{vL}, 0
    v_mov_b32 v{vAb}, 0
    """)
    for i in range(32):
        k(f"v_mov_b32 v{vAcc+i}, 0")
    k(f"""
    s_waitcnt vmcnt({D+3})
    v_readfirstlane_b32 s{sCtx}, v{vCx}
    v_lshlrev_b32 v{vBt}, 15, v{vBt}
    s_min_i32 s{sT0}, s{sCtx}, 65536
    s_cmp_le_i32 s{sCtx}, 0
    s_cselect_b32 s{sT0}, 65536, s{sT0}
    s_add_u32 s{sT0}, s{sT0}, 15
    s_lshr_b32 s{sT0}, s{sT0}, 4               ; npages
    s_add_u32 s{sT0}, s{sT0}, 127
    s_sub_u32 s{sT0}, s{sT0}, s{sJ}
    s_lshr_b32 s{sN}, s{sT0}, 7
    s_min_i32 s{sCtx}, s{sCtx}, 65536
    s_max_i32 s{sCtx}, s{sCtx}, 0
    s_lshl_b32 s{sT0}, s{sJ}, 4
    s_sub_i32 s{sRem}, s{sCtx}, s{sT0}
    s_mov_b32 s{sI}, 1
    s_cmp_eq_u32 s{sN}, 0
    s_cbranch_scc1 L_none
    s_cmp_le_u32 s{sN}, {2 if DEEP else 1}
    s_cbranch_scc1 L_tail
    """)

    def qk(i, vK):
        k(f"v_mfma_f32_16x16x32_bf16 {vr(vD+4*i,4)}, {vr(vK+4*i,4)}, {vr(vQ,4)}, 0")

    def soft_a(tag):
        for j in (1, 2, 3):
            for i in range(4):
                src1 = vD + 4 * i if j == 1 else vT + i
                k(f"v_add_f32_dpp v{vT+i}, v{vD+4*i+j}, v{src1} quad_perm:[{j},{j},{j},{j}] row_mask:0xf bank_mask:0xf")
        for i in range(4):
            k(f"v_mul_f32 v{vT+i}, s{sC}, v{vT+i}")
        k(f"""
        s_cmp_lt_i32 s{sRem}, 16
        s_cbranch_scc1 L_mask{tag}
        L_nomask{tag}:
        """)
        cold(f"""
        L_mask{tag}:
        v_mov_b32 v{vTmp}, s{sNeg}
        """)
        for i in range(4):
            cold(f"""
            s_sub_i32 s{sT0}, s{sRem}, {i}
            v_cmp_gt_i32 vcc, s{sT0}, v{vG4}
            v_cndmask_b32 v{vT+i}, v{vTmp}, v{vT+i}, vcc
            """)
        cold(f"s_branch L_nomask{tag}")
        k(f"""
        v_max3_f32 v{vMx}, v{vT}, v{vT+1}, v{vT+2}
        v_max3_f32 v{vMx}, v{vMx}, v{vT+3}, v{vM}
        v_mov_b32 v{vTmp}, v{vMx}
        s_sub_i32 s{sRem}, s{sRem}, 2048
        v_permlane32_swap_b32 v{vMx}, v{vTmp}
        v_max_f32 v{vMx}, v{vMx}, v{vTmp}
        v_mov_b32 v{vTmp}, v{vMx}
        v_permlane16_swap_b32 v{vMx}, v{vTmp}
        v_max_f32 v{vMx}, v{vMx}, v{vTmp}
        """)

    def soft_b():
        k(f"""
        v_sub_f32 v{vAl}, v{vM}, v{vMx}
        v_mov_b32 v{vM}, v{vMx}
        v_exp_f32 v{vAl}, v{vAl}
        """)
        for i in range(4):
            k(f"v_sub_f32 v{vT+i}, v{vT+i}, v{vMx}")
        for i in range(4):
            k(f"v_exp_f32 v{vT+i}, v{vT+i}")
            k(f"v_mov_b32_dpp v{vAb}, v{vAl} row_newbcast:{4*i} row_mask:{hex(1<<i)} bank_mask:0xf")
            if i == 1:
                k(f"v_fma_f32 v{vL}, v{vL}, v{vAl}, v{vT}")
            if i == 2:
                k(f"v_cvt_pk_bf16_f32 v{vP}, v{vT}, v{vT+1}")
        k(f"""
        v_add_f32 v{vTmp}, v{vT+1}, v{vT+2}
        v_cvt_pk_bf16_f32 v{vP+1}, v{vT+2}, v{vT+3}
        v_add_f32 v{vL}, v{vL}, v{vT+3}
        v_add_f32 v{vL}, v{vL}, v{vTmp}
        """)
        for e in range(8):
            k(f"v_mul_f32 v{vAcc+4*e}, v{vAb}, v{vAcc+4*e}")

    def perm(e, half, vV):
        j, hi = e >> 1, e & 1
        sel = sPhi if hi else sPlo
        k(f"v_perm_b32 v{vB+2*e+half}, v{vV+8*half+4+j}, v{vV+8*half+j}, s{sel}")

    def pv(e):
        k(f"v_mfma_f32_16x16x16_bf16 {vr(vAcc+4*e,4)}, {vr(vP,2)}, {vr(vB+2*e,2)}, {vr(vAcc+4*e,4)}")

    def perm_pv(vV):
        perm(0, 1, vV)
        perm(1, 1, vV)
        for e in range(8):
            if e + 2 < 8:
                perm(e + 2, 1, vV)
            pv(e)

    def lreduce():
        k(f"""
        v_mov_b32 v{vTmp}, v{vL}
        v_permlane32_swap_b32 v{vL}, v{vTmp}
        v_add_f32 v{vL}, v{vL}, v{vTmp}
        v_mov_b32 v{vTmp}, v{vL}
        v_permlane16_swap_b32 v{vL}, v{vTmp}
        v_add_f32 v{vL}, v{vL}, v{vTmp}
        """)

    def issue(pos):
        t = pos + D
        w, i = seq[t % 8]
        ld(w, i, vKA if w == "K" else vVA, sOff if t < 8 else sNxt)

    assert 5 <= D <= 7
    k(f"""
    L_loop:
    v_readlane_b32 s{sNxt}, v{vBt}, s{sI}
    s_add_u32 s{sI}, s{sI}, 1
    """)
    for i in range(4):
        k(f"s_waitcnt vmcnt({D-1})")
        qk(i, vKA)
        issue(i)
    soft_a("m")
    k(f"s_waitcnt vmcnt({D-1})")
    issue(4)
    soft_b()
    k(f"s_waitcnt vmcnt({D-1})")
    if D == 7:
        for e in range(8):
            perm(e, 0, vVA)
        issue(5)
    else:
        issue(5)
        for e in range(8):
            perm(e, 0, vVA)
    k(f"s_waitcnt vmcnt({D-1})")
    issue(6)
    k(f"s_add_u32 s{sT0}, s{sI}, {1 if DEEP else 0}")
    k(f"s_waitcnt vmcnt({D-1})")
    if D == 7:
        for e in range(8):
            perm(e, 1, vVA)
        issue(7)
        for e in range(8):
            pv(e)
    else:
        issue(7)
        perm_pv(vVA)
    k(f"""
    s_mov_b32 s{sOff}, s{sNxt}
    s_cmp_lt_u32 s{sT0}, s{sN}
    s_cbranch_scc1 L_loop
    L_tail:
    """)
    for w, i in seq[D:]:
        ld(w, i, vVA, sOff)
    if DEEP:
        k(f"""
        v_readlane_b32 s{sNxt}, v{vBt}, s{sI}
        s_cmp_lt_u32 s{sI}, s{sN}
        s_cselect_b32 s{sNxt}, s{sNxt}, 0x80000000
        """)
        for w, i in seq:
            ld(w, i, vKB if w == "K" else vVB, sNxt)
        k("s_waitcnt vmcnt(12)")
        for i in range(4):
            qk(i, vKA)
        soft_a("p")
        soft_b()
        k("s_waitcnt vmcnt(10)")
        for e in range(8):
            perm(e, 0, vVA)
        k("s_waitcnt vmcnt(8)")
        perm_pv(vVA)
        k(f"""
        s_cmp_lt_u32 s{sI}, s{sN}
        s_cbranch_scc0 L_one
        """)
        vKL, vVL = vKB, vVB
    else:
        vKL, vVL = vKA, vVA
    k("s_waitcnt vmcnt(4)")
    for i in range(4):
        qk(i, vKL)
    soft_a("l")
    soft_b()
    lreduce()
    k(f"""
    v_min_u32 v{vT}, -2, v{vM}
    v_min_u32 v{vT+1}, -2, v{vL}
    v_xnor_b32 v{vT}, v{vT}, v{vSn}
    v_xnor_b32 v{vT+1}, v{vT+1}, v{vSn+1}
    s_waitcnt vmcnt(2)
    """)
    for e in range(8):
        perm(e, 0, vVL)
    k("s_waitcnt vmcnt(0)")
    perm_pv(vVL)
    k("L_done:")
    for j in range(4):
        k(f"v_cvt_pk_bf16_f32 v{vD+j}, v{vAcc+8*j}, v{vAcc+8*j+4}")
        if j < 3:
            k(f"v_min_u32 v{vD+j}, -2, v{vD+j}")
            k(f"v_xnor_b32 v{vD+j}, v{vD+j}, v{vSo+j}")
    k(f"v_min_u32 v{vD+3}, -2, v{vD+3}")
    k(f"v_xnor_b32 v{vD+3}, v{vD+3}, v{vSo+3}")
    if DIAG:
        k(f"s_memrealtime {sr(sTS+4,2)}")
    k(f"""
    buffer_store_dwordx4 {vr(vD,4)}, v{vRo}, {sr(SW,4)}, s{sRec} offen sc1
    s_mov_b32 exec_lo, 0x1111
    s_mov_b32 exec_hi, 0
    buffer_store_dwordx2 {vr(vT,2)}, v{vMo_w}, {sr(SW,4)}, s{sMl} offen sc1
    s_barrier
    """)
    if DIAG:
        k("s_waitcnt vmcnt(0)")
        diag_store()
    k("s_endpgm")
    cold(f"""
    L_none:
    s_waitcnt vmcnt(0)
    L_one:
    v_mov_b32 v{vTmp}, v{vL}
    v_permlane32_swap_b32 v{vL}, v{vTmp}
    v_add_f32 v{vL}, v{vL}, v{vTmp}
    v_mov_b32 v{vTmp}, v{vL}
    v_permlane16_swap_b32 v{vL}, v{vTmp}
    v_add_f32 v{vL}, v{vL}, v{vTmp}
    v_min_u32 v{vT}, -2, v{vM}
    v_min_u32 v{vT+1}, -2, v{vL}
    v_xnor_b32 v{vT}, v{vT}, v{vSn}
    v_xnor_b32 v{vT+1}, v{vT+1}, v{vSn+1}
    s_branch L_done
    """)

    vOf = 2
    vMo = 6
    vOo = 7
    vX, vY, vWa, vWb, vLs = 8, 9, 10, 11, 12
    vMLr = 16
    vML = 20
    vA = 24
    vO = 32
    vU = 48
    vOr = 80
    vOs = 96
    vMs = 112
    k(f"""
    L_service:
    s_mov_b32 s{SO+2}, 8192
    s_mov_b32 s{SO+3}, 0x20000
    s_mov_b32 s{sI}, 0
    s_and_b32 s{sT0}, s2, 7
    s_lshr_b32 s{sT1}, s2, 5
    s_lshl3_add_u32 s{sT0}, s{sT0}, s{sT1}     ; 6 bits
    s_lshr_b32 s{sH}, s{sT0}, 1                ; hq
    s_and_b32 s{sT0}, s{sT0}, 1
    s_bfe_u32 s{sT1}, s2, 0x20003
    s_lshl2_add_u32 s{sRem}, s{sT0}, s{sT1}    ; oct 0..7
    s_lshl_b32 s{sRem}, s{sRem}, 5             ; oct*32
    s_lshr_b32 s{sT0}, s{sH}, 2
    s_lshl_b32 s{sT0}, s{sT0}, 17
    s_and_b32 s{sT1}, s{sH}, 3
    s_lshl_b32 s{sT1}, s{sT1}, 8
    s_add_u32 s{sT0}, s{sT0}, s{sT1}
    s_add_u32 s{sT0}, s{sT0}, s{sRem}
    v_lshrrev_b32 v{vY}, 2, v{vLane}
    v_lshlrev_b32 v{vY}, 13, v{vY}
    v_and_b32 v{vWa}, 3, v{vLane}
    v_lshl_add_u32 v{vY}, v{vWa}, 3, v{vY}
    v_add_u32 v{vOf}, s{sT0}, v{vY}
    v_add_u32 v{vOf+1}, 0x1000, v{vOf}
    s_lshl_b32 s{sT0}, s{sH}, 10
    s_add_u32 s{sT0}, s{sT0}, {ML_OFF}
    v_lshlrev_b32 v{vX}, 4, v{vLane}
    v_add_u32 v{vMo}, s{sT0}, v{vX}
    s_waitcnt lgkmcnt(0)
    s_mov_b32 s{SW}, s{sWS}
    s_mov_b32 s{SW+1}, s{sWS+1}
    buffer_load_dwordx4 {vr(vMs,4)}, v{vMo}, {sr(SW,4)}, 0 offen {snpol}
    """)
    for i in range(8):
        off = f" offset:{(i&3)*1024}" if i & 3 else ""
        k(f"buffer_load_dwordx2 {vr(vOs+2*i,2)}, v{vOf+i//4}, {sr(SW,4)}, 0 offen{off} {snpol}")
    k(f"""
    s_lshl_b32 s{sT0}, s{sH}, 8
    s_add_u32 s{sT0}, s{sT0}, s{sRem}
    v_lshlrev_b32 v{vOo}, 3, v{vWa}
    v_add_u32 v{vOo}, s{sT0}, v{vOo}
    v_lshrrev_b32 v{vX}, 4, v{vLane}
    v_lshl_add_u32 v{vOo}, v{vX}, 1, v{vOo}
    s_mov_b32 s{sC}, 0xffff0000
    s_mov_b32 s{SO}, s{sOUT}
    s_mov_b32 s{SO+1}, s{sOUT+1}
    """)
    for i in range(9):
        k(f"s_mov_b64 {sr(sMask+2*i,2)}, -1")
    k("s_waitcnt vmcnt(0)")
    if DIAG:
        k(f"s_memrealtime {sr(sTS+2,2)}")
    k(f"""
    s_barrier
    s_branch {"L_all" if NOPOLL else "L_ph1"}
    L_ph1s:
    s_cmp_gt_u32 s{sT0}, {T2}
    s_cbranch_scc0 L_ph1t
    s_sleep {SLEEP2}
    L_ph1t:
    s_sleep {SLEEP1}
    L_ph1:
    buffer_load_dwordx4 {vr(vMLr,4)}, v{vMo}, {sr(SW,4)}, 0 offen sc1
    s_add_u32 s{sI}, s{sI}, 1
    s_cmp_ge_u32 s{sI}, {LIMIT}
    s_cbranch_scc1 L_end
    s_waitcnt vmcnt(0)
    v_cmp_eq_u32 vcc, v{vMs}, v{vMLr}
    v_cmp_eq_u32 {sr(sMask,2)}, v{vMs+2}, v{vMLr+2}
    s_bcnt1_i32_b64 s{sT0}, vcc
    s_bcnt1_i32_b64 s{sT1}, {sr(sMask,2)}
    s_add_u32 s{sT0}, s{sT0}, s{sT1}
    s_cmp_gt_u32 s{sT0}, {T}
    s_cbranch_scc1 L_ph1s
    s_mov_b64 {sr(sMask,2)}, -1
    """)
    if DIAG:
        k(f"s_memrealtime {sr(sTS+4,2)}")
    k(f"""
    L_poll:
    s_mov_b64 exec, {sr(sMask+16,2)}
    s_cbranch_execz L_sk8
    buffer_load_dwordx4 {vr(vMLr,4)}, v{vMo}, {sr(SW,4)}, 0 offen sc1
    L_sk8:
    """)
    for i in range(8):
        off = f" offset:{(i&3)*1024}" if i & 3 else ""
        k(f"""
        s_mov_b64 exec, {sr(sMask+2*i,2)}
        s_cbranch_execz L_sk{i}
        buffer_load_dwordx2 {vr(vOr+2*i,2)}, v{vOf+i//4}, {sr(SW,4)}, 0 offen{off} sc1
        L_sk{i}:
        """)
    k(f"""
    s_mov_b64 exec, -1
    s_add_u32 s{sI}, s{sI}, 1
    s_waitcnt vmcnt(0)
    """)
    for j in range(4):
        k(f"v_xnor_b32 v{vML+j}, v{vMLr+j}, v{vMs+j}")
    for j in range(16):
        k(f"v_xnor_b32 v{vO+j}, v{vOr+j}, v{vOs+j}")
    k(f"""
    v_max3_u32 v{vX}, v{vML}, v{vML+1}, v{vML+2}
    v_max3_u32 v{vY}, v{vML+3}, v{vO}, v{vO+1}
    v_max3_u32 v{vWa}, v{vO+2}, v{vO+3}, v{vO+4}
    v_max3_u32 v{vWb}, v{vO+5}, v{vO+6}, v{vO+7}
    v_max3_u32 v{vY}, v{vY}, v{vO+8}, v{vO+9}
    v_max3_u32 v{vWa}, v{vWa}, v{vO+10}, v{vO+11}
    v_max3_u32 v{vWb}, v{vWb}, v{vO+12}, v{vO+13}
    v_max3_u32 v{vY}, v{vY}, v{vO+14}, v{vO+15}
    v_max3_u32 v{vWa}, v{vWa}, v{vWb}, v{vX}
    v_max_u32 v{vY}, v{vY}, v{vWa}
    v_cmp_eq_u32 vcc, -1, v{vY}
    s_cbranch_vccz L_all
    v_max_u32 v{vX}, v{vX}, v{vML+3}
    v_cmp_eq_u32 {sr(sMask+16,2)}, -1, v{vX}
    """)
    for i in range(8):
        k(f"v_max_u32 v{vU+i}, v{vO+2*i}, v{vO+2*i+1}")
        k(f"v_cmp_eq_u32 {sr(sMask+2*i,2)}, -1, v{vU+i}")
    k(f"""
    s_cmp_ge_u32 s{sI}, {LIMIT}
    s_cbranch_scc1 L_end
    {f"s_sleep {SLEEP}" if SLEEP else ""}
    s_branch L_poll
    L_all:
    v_max_f32 v{vX}, v{vML}, v{vML+2}
    """)
    unp = []
    for i in range(8):
        for d in range(2):
            unp.append(f"v_lshlrev_b32 v{vU+4*i+2*d}, 16, v{vO+2*i+d}")
            unp.append(f"v_and_b32 v{vU+4*i+2*d+1}, s{sC}, v{vO+2*i+d}")

    def fill(n):
        for _ in range(n):
            if unp:
                k(unp.pop(0))

    for sh in (8, 4, 2, 1):
        fill(2)
        k(f"v_max_f32_dpp v{vX}, v{vX}, v{vX} row_ror:{sh} row_mask:0xf bank_mask:0xf")
    for sw in ("16", "32"):
        k(f"v_mov_b32 v{vY}, v{vX}")
        fill(2)
        k(f"v_permlane{sw}_swap_b32 v{vX}, v{vY}")
        k(f"v_max_f32 v{vX}, v{vX}, v{vY}")
    k(f"""
    v_sub_f32 v{vWa}, v{vML}, v{vX}
    v_sub_f32 v{vWb}, v{vML+2}, v{vX}
    v_exp_f32 v{vWa}, v{vWa}
    v_exp_f32 v{vWb}, v{vWb}
    """)
    fill(64)
    k(f"""
    v_mul_f32 v{vLs}, v{vWa}, v{vML+1}
    v_fmac_f32 v{vLs}, v{vWb}, v{vML+3}
    """)
    for i in range(8):
        w = vWb if i & 1 else vWa
        ql = i >> 1
        for j in range(4):
            op = "v_mul_f32_dpp" if i == 0 else "v_fmac_f32_dpp"
            k(f"{op} v{vA+j}, v{w}, v{vU+4*i+j} quad_perm:[{ql},{ql},{ql},{ql}] row_mask:0xf bank_mask:0xf")
        if i < 4:
            sh = (1, 2, 4, 8)[i]
            k(f"v_add_f32_dpp v{vLs}, v{vLs}, v{vLs} row_ror:{sh} row_mask:0xf bank_mask:0xf")
        if i in (4, 6):
            k(f"v_mov_b32 v{vY}, v{vLs}")
        if i in (5, 7):
            k(f"v_permlane{16 if i == 5 else 32}_swap_b32 v{vLs}, v{vY}")
            k(f"v_add_f32 v{vLs}, v{vLs}, v{vY}")
    k(f"v_rcp_f32 v{vLs}, v{vLs}")
    four = [vA, vA + 1, vA + 2, vA + 3]
    for sh in (4, 8):
        for a in four:
            k(f"v_add_f32_dpp v{a}, v{a}, v{a} row_ror:{sh} row_mask:0xf bank_mask:0xf")
    k(f"""
    s_mov_b32 vcc_lo, 0x000f000f
    s_mov_b32 vcc_hi, 0x000f000f
    v_permlane16_swap_b32 v{vA}, v{vA+1}
    v_permlane16_swap_b32 v{vA+2}, v{vA+3}
    v_add_f32 v{vA}, v{vA}, v{vA+1}
    v_add_f32 v{vA+2}, v{vA+2}, v{vA+3}
    v_permlane32_swap_b32 v{vA}, v{vA+2}
    v_add_f32 v{vA}, v{vA}, v{vA+2}
    v_mul_f32 v{vA}, v{vA}, v{vLs}
    v_cvt_pk_bf16_f32 v{vA}, v{vA}, v{vA}
    s_mov_b64 exec, vcc
    buffer_store_short v{vA}, v{vOo}, {sr(SO,4)}, 0 offen
    """)
    if DIAG:
        k("s_waitcnt vmcnt(0)")
        diag_store()
    k("""
    L_end:
    s_endpgm
    """)
    k.lines += cold.lines
    body = k.done()

    out = HEADER
    if DIAG:
        out += f"; nwaves=1280 diagoff={DIAG_OFF}\n"
    out += f"; @launch grid=(256,1,1) block=(320,1,1) lds=0\n"
    out += '.amdgcn_target "amdgcn-amd-amdhsa--gfx950"\n.text\n'
    out += f".globl {NAME}_kernel\n.p2align 8\n.type {NAME}_kernel,@function\n{NAME}_kernel:\n"
    out += body
    out += f""".section .rodata,"a"
.p2align 6
.amdhsa_kernel {NAME}_kernel
  .amdhsa_next_free_vgpr {NV}
  .amdhsa_next_free_sgpr 96
  .amdhsa_accum_offset {(NV + 3) // 4 * 4}
  .amdhsa_group_segment_fixed_size 0
  .amdhsa_kernarg_size 64
  .amdhsa_user_sgpr_count 2
  .amdhsa_user_sgpr_kernarg_segment_ptr 1
  .amdhsa_system_sgpr_workgroup_id_x 1
.end_amdhsa_kernel
"""
    return out


if __name__ == "__main__":
    kw = {}
    for a in sys.argv[2:]:
        key, val = a.split("=")
        kw[key] = val if key in ("POL", "SNPOL") else int(val, 0)
    open(sys.argv[1], "w").write(gen(**kw))
```

```python
import sys
import struct
from asmlib import K, vr, sr

NAME = "standalone__paged_block_table_kv_pagedattention__decode"
KV_BYTES = 4100 * 32768
HEADER = open("cdna_kernels/" + NAME + ".s.ref").read().split("; Override")[0]
ML_OFF = 0x100000
WS_USED = 0x110000
DIAG_OFF = 0x300000
END = 0x80000000
PROG = 512
CTR = PROG + 64
PART = 1024


def f32(x):
    return "0x%08x" % struct.unpack("<I", struct.pack("<f", x))[0]


def gen(POL="nt", DIAG=0, SLEEP=0, SLEEP1=1, SLEEP2=8, T=12, T2=24, DV="66666666", NOPOLL=0,
        SNPOL="sc1", LIMIT=0x2000, KD=0, SIGP=2, SSL=1, TRACE=0, STAMP=0, NOSNAP=0, FORCEFB=0, SLEEPO=0):
    dv = [int(c) for c in DV]
    D = dv[7]
    k = K()
    cold = K()
    sQ, sKp, sVp, sBT, sCTX, sOUT, sDBG, sWS = 4, 6, 8, 10, 12, 14, 16, 18
    SK, SV, SB, SQ, SW, SD, SO = 20, 24, 28, 32, 36, 68, 72
    sH, sHg, sWv, sJ, sCtx, sN, sI, sCnt, sOff, sC, sPlo, sPhi, sT0, sT1, sNeg, sIdx = range(40, 56)
    sTS = 56
    sBt0, sRec, sMl, sNxt = 64, 65, 66, 67
    sMask, sR, sMA, sMB = 76, 78, 80, 82
    sCntN, sS, sE, sFb, sSh, sMld = 84, 85, 86, 87, 88, 89
    vLane, vKo0, vKo1, vVo0, vVo1, vLi, vG4, vM, vL, vMx, vTmp, vAl, vAb = range(1, 14)
    vP = 14
    vQ = 16
    vT = 20
    vD = 24
    vB = 40
    vAcc = 56
    vKA, vVA = 88, 104
    vRo, vMo_w, vEn, vPa, vTr = 120, 121, 122, 123, 124
    NV = 128
    wsz = 0x400000 if DIAG else WS_USED
    pol = (" " + POL.replace("+", " ")) if POL else ""
    snpol = SNPOL.replace("+", " ")

    def ld(which, i, so):
        vo = (vKo0, vKo1) if which == "K" else (vVo0, vVo1)
        S = SK if which == "K" else SV
        base = vKA if which == "K" else vVA
        off = " offset:2048" if i & 1 else ""
        k(f"buffer_load_dwordx4 {vr(base+4*i,4)}, v{vo[i>>1]}, {sr(S,4)}, s{so} offen{off}{pol}")

    def diag_store():
        k(f"""
        s_memrealtime {sr(sTS+6,2)}
        s_getreg_b32 s{sT1}, hwreg(HW_REG_XCC_ID)
        s_waitcnt lgkmcnt(0)
        s_mov_b64 exec, -1
        v_mov_b32 v{vD}, s{sTS}
        v_mov_b32 v{vD+1}, s{sTS+2}
        v_mov_b32 v{vD+2}, s{sTS+4}
        v_mov_b32 v{vD+3}, s{sTS+6}
        v_mov_b32 v{vD+4}, s{sT1}
        v_mov_b32 v{vD+5}, s{sWv}
        s_getreg_b32 s{sT1}, hwreg(HW_REG_HW_ID)
        v_mov_b32 v{vD+6}, s{sT1}
        v_mov_b32 v{vD+7}, s{sI}
        s_mul_i32 s{sT0}, s2, 12
        s_add_u32 s{sT0}, s{sT0}, s{sWv}
        s_lshl_b32 s{sT0}, s{sT0}, 5
        s_add_u32 s{sT0}, s{sT0}, {DIAG_OFF}
        v_mov_b32 v{vTmp}, 0
        s_mov_b64 exec, 1
        buffer_store_dwordx4 {vr(vD,4)}, v{vTmp}, {sr(SW,4)}, s{sT0} offen
        buffer_store_dwordx4 {vr(vD+4,4)}, v{vTmp}, {sr(SW,4)}, s{sT0} offen offset:16
        """)

    seq = [("K", i) for i in range(4)] + [("V", i) for i in range(4)]
    k(f"""
    s_load_dwordx16 s[4:19], s[0:1], 0
    s_cmp_ge_u32 s2, 256
    s_cbranch_scc1 L_end
    """)
    if DIAG:
        k(f"s_memrealtime {sr(sTS,2)}")
    k(f"""
    v_lshrrev_b32 v{vTmp}, 6, v0
    v_and_b32 v{vLane}, 63, v0
    v_readfirstlane_b32 s{sWv}, v{vTmp}
    s_bfe_u32 s{sHg}, s2, 0x10003
    s_lshr_b32 s{sSh}, s2, 4                   ; shard 0..15
    s_and_b32 s{sT1}, s2, 7
    s_lshl3_add_u32 s{sJ}, s{sSh}, s{sT1}      ; j = shard*8 + (b&7)
    s_lshl_b32 s{sIdx}, s{sJ}, 2               ; j*4
    s_mov_b64 {sr(sE,2)}, 0
    s_mov_b32 s{sMld}, 0
    s_cmp_ge_u32 s{sWv}, 4
    s_cbranch_scc1 L_service
    s_lshl2_add_u32 s{sH}, s{sHg}, s{sWv}
    L_setup:
    v_lshrrev_b32 v{vG4}, 4, v{vLane}
    v_lshlrev_b32 v{vG4}, 2, v{vG4}            ; 4*g
    v_and_b32 v{vTmp}, 3, v{vLane}
    v_add_lshl_u32 v{vTmp}, v{vTmp}, v{vG4}, 4 ; chunk*16
    v_bfe_u32 v{vMx}, v{vLane}, 2, 2           ; tau
    s_lshl_b32 s{sT1}, s{sH}, 8                ; h*256
    v_lshl_add_u32 v{vKo0}, v{vMx}, 13, v{vTmp}
    v_add_u32 v{vKo0}, s{sT1}, v{vKo0}
    v_add_u32 v{vKo1}, 0x1000, v{vKo0}
    v_lshl_add_u32 v{vAl}, v{vMx}, 8, v{vTmp}    ; q*256 + chunk*16
    v_and_b32 v{vTmp}, 15, v{vLane}
    v_lshlrev_b32 v{vTmp}, 4, v{vTmp}
    v_lshl_add_u32 v{vVo0}, v{vG4}, 11, v{vTmp}
    v_add_u32 v{vVo0}, s{sT1}, v{vVo0}
    v_add_u32 v{vVo1}, 0x1000, v{vVo0}
    s_mov_b32 s{SK+2}, {KV_BYTES}
    s_mov_b32 s{SK+3}, 0x20000
    s_mov_b32 s{SV+2}, {KV_BYTES}
    s_mov_b32 s{SV+3}, 0x20000
    s_mov_b32 s{SQ+2}, 8192
    s_mov_b32 s{SQ+3}, 0x20000
    s_lshl_b32 s{sT0}, s{sH}, 10
    s_waitcnt lgkmcnt(0)
    s_load_dword s{sBt0}, {sr(sBT,2)}, s{sIdx}
    s_mov_b32 s{SQ}, s{sQ}
    s_mov_b32 s{SQ+1}, s{sQ+1}
    buffer_load_dwordx4 {vr(vQ,4)}, v{vAl}, {sr(SQ,4)}, s{sT0} offen
    s_mov_b32 s{SK}, s{sKp}
    s_mov_b32 s{SK+1}, s{sKp+1}
    s_mov_b32 s{SV}, s{sVp}
    s_mov_b32 s{SV+1}, s{sVp+1}
    """)
    k(f"""
    L_first:
    s_waitcnt lgkmcnt(0)
    s_lshl_b32 s{sOff}, s{sBt0}, 15
    """)
    for w, i in seq[:D]:
        ld(w, i, sOff)
    if DIAG:
        k(f"s_memrealtime {sr(sTS+2,2)}")
    k(f"""
    v_mov_b32 v{vLi}, 0
    s_mov_b32 s{sI}, 0
    s_cmp_lg_u32 s{sE}, 0
    s_cbranch_scc1 L_go
    s_mov_b32 s{sC}, {f32(128 ** -0.5 * 1.4426950408889634)}
    s_mov_b32 s{sPlo}, 0x05040100
    s_mov_b32 s{sPhi}, 0x07060302
    s_mov_b32 s{sNeg}, {f32(-1e9 * 1.4426950408889634)}
    v_mov_b32 v{vM}, {f32(-3.0e38)}
    v_mov_b32 v{vL}, 0
    v_mov_b32 v{vAb}, 0
    """)
    for i in range(32):
        k(f"v_mov_b32 v{vAcc+i}, 0")
    k(f"""
    v_lshlrev_b32 v{vRo}, 4, v{vLane}
    v_lshlrev_b32 v{vMo_w}, 9, v{vLane}
    s_cmp_lg_u32 s{sFb}, 0
    s_cbranch_scc1 L_go
    s_memrealtime {sr(sR,2)}
    s_lshl_b32 s{sRec}, s{sH}, 7
    s_add_u32 s{sRec}, s{sRec}, s{sJ}
    s_lshl_b32 s{sRec}, s{sRec}, 10
    s_lshl_b32 s{sMl}, s{sH}, 13
    s_lshl4_add_u32 s{sMl}, s{sJ}, s{sMl}
    s_add_u32 s{sMl}, s{sMl}, {ML_OFF}         ; ML + (h*4*128 + j)*16
    s_mov_b32 s{SW}, s{sWS}
    s_mov_b32 s{SW+1}, s{sWS+1}
    s_mov_b32 s{SW+2}, {wsz}
    s_mov_b32 s{SW+3}, 0x20000
    s_waitcnt lgkmcnt(0)
    s_add_u32 s{sR}, s{sR}, s{sRec}
    s_mul_i32 s{sR}, s{sR}, 0x9e3779b1
    s_barrier
    L_go:
    s_lshl2_add_u32 s{sT0}, s{sWv}, {PROG}
    ds_read_b32 v{vEn}, v{vLi}
    v_mov_b32 v{vPa}, s{sT0}
    s_waitcnt lgkmcnt(0)
    v_readfirstlane_b32 s{sCnt}, v{vEn}
    s_cmp_eq_u32 s{sCnt}, {END}
    s_cbranch_scc1 L_none
    s_and_b32 s{sCnt}, s{sCnt}, 31
    """)

    def qk(i):
        k(f"v_mfma_f32_16x16x32_bf16 {vr(vD+4*i,4)}, {vr(vKA+4*i,4)}, {vr(vQ,4)}, 0")

    def soft_a():
        for j in (1, 2, 3):
            for i in range(4):
                src1 = vD + 4 * i if j == 1 else vT + i
                k(f"v_add_f32_dpp v{vT+i}, v{vD+4*i+j}, v{src1} quad_perm:[{j},{j},{j},{j}] row_mask:0xf bank_mask:0xf")
        for i in range(4):
            k(f"v_mul_f32 v{vT+i}, s{sC}, v{vT+i}")
        k(f"""
        s_cmp_lt_u32 s{sCnt}, 16
        s_cbranch_scc1 L_mask
        L_nomask:
        """)
        cold(f"""
        L_mask:
        v_mov_b32 v{vTmp}, s{sNeg}
        """)
        for i in range(4):
            cold(f"""
            s_sub_i32 s{sT0}, s{sCnt}, {i}
            v_cmp_gt_i32 vcc, s{sT0}, v{vG4}
            v_cndmask_b32 v{vT+i}, v{vTmp}, v{vT+i}, vcc
            """)
        cold(f"s_branch L_nomask")
        k(f"""
        v_max3_f32 v{vMx}, v{vT}, v{vT+1}, v{vT+2}
        v_max3_f32 v{vMx}, v{vMx}, v{vT+3}, v{vM}
        v_mov_b32 v{vTmp}, v{vMx}
        s_mov_b32 s{sCnt}, s{sCntN}
        v_permlane32_swap_b32 v{vMx}, v{vTmp}
        v_max_f32 v{vMx}, v{vMx}, v{vTmp}
        v_mov_b32 v{vTmp}, v{vMx}
        v_permlane16_swap_b32 v{vMx}, v{vTmp}
        v_max_f32 v{vMx}, v{vMx}, v{vTmp}
        """)

    def soft_b():
        k(f"""
        v_sub_f32 v{vAl}, v{vM}, v{vMx}
        v_mov_b32 v{vM}, v{vMx}
        v_exp_f32 v{vAl}, v{vAl}
        """)
        for i in range(4):
            k(f"v_sub_f32 v{vT+i}, v{vT+i}, v{vMx}")
        for i in range(4):
            k(f"v_exp_f32 v{vT+i}, v{vT+i}")
            k(f"v_mov_b32_dpp v{vAb}, v{vAl} row_newbcast:{4*i} row_mask:{hex(1<<i)} bank_mask:0xf")
            if i == 1:
                k(f"v_fma_f32 v{vL}, v{vL}, v{vAl}, v{vT}")
            if i == 2:
                k(f"v_cvt_pk_bf16_f32 v{vP}, v{vT}, v{vT+1}")
        k(f"""
        v_add_f32 v{vTmp}, v{vT+1}, v{vT+2}
        v_cvt_pk_bf16_f32 v{vP+1}, v{vT+2}, v{vT+3}
        v_add_f32 v{vL}, v{vL}, v{vT+3}
        v_add_f32 v{vL}, v{vL}, v{vTmp}
        """)
        for e in range(8):
            k(f"v_mul_f32 v{vAcc+4*e}, v{vAb}, v{vAcc+4*e}")

    def perm(e, half):
        j, hi = e >> 1, e & 1
        sel = sPhi if hi else sPlo
        k(f"v_perm_b32 v{vB+2*e+half}, v{vVA+8*half+4+j}, v{vVA+8*half+j}, s{sel}")

    def pv(e):
        k(f"v_mfma_f32_16x16x16_bf16 {vr(vAcc+4*e,4)}, {vr(vP,2)}, {vr(vB+2*e,2)}, {vr(vAcc+4*e,4)}")

    def perm_pv():
        perm(0, 1)
        perm(1, 1)
        for e in range(8):
            if e + 2 < 8:
                perm(e + 2, 1)
            pv(e)

    def lreduce(kk):
        kk(f"""
        v_mov_b32 v{vTmp}, v{vL}
        v_permlane32_swap_b32 v{vL}, v{vTmp}
        v_add_f32 v{vL}, v{vL}, v{vTmp}
        v_mov_b32 v{vTmp}, v{vL}
        v_permlane16_swap_b32 v{vL}, v{vTmp}
        v_add_f32 v{vL}, v{vL}, v{vTmp}
        """)

    U = [p + 1 + dv[p] for p in range(8)]
    prevU = [U[7] - 8] + U[:7]
    firstN = min(p for p in range(8) if U[p] > 8)
    assert all(U[p] >= prevU[p] for p in range(8)) and D <= 8 and firstN <= 3

    def issue(p):
        for t in range(prevU[p], U[p]):
            w, i = seq[t % 8]
            if t >= 8:
                need = {8: 0, 9: 1, 10: 2, 11: 3, 12: 5, 13: 5, 14: 7, 15: 7}[t]
                assert p >= need, (DV, p, t)
            ld(w, i, sOff if t < 8 else sNxt)

    def wait(p):
        k(f"s_waitcnt vmcnt({prevU[p] - p - 1})")

    def signal():
        k(f"ds_write_b32 v{vPa}, v{vLi}")

    if TRACE:
        k(f"""
        v_mov_b32 v{vTr}, 0
        s_memrealtime s[96:97]
        """)
    k("L_loop:")
    if TRACE:
        k(f"""
        s_waitcnt lgkmcnt(0)
        s_add_u32 m0, s{sI}, 1
        s_nop 0
        v_writelane_b32 v{vTr}, s96, m0
        s_nop 4
        s_memrealtime s[96:97]
        """)
    k(f"""
    v_add_u32 v{vLi}, 4, v{vLi}
    s_add_u32 s{sI}, s{sI}, 1
    """)
    for i in range(4):
        if i == min(SIGP, firstN):
            signal()
        if i == firstN:
            k(f"""
            L_get:
            ds_read_b32 v{vEn}, v{vLi}
            """)
        wait(i)
        qk(i)
        if i == firstN:
            k(f"""
            s_waitcnt lgkmcnt(0)
            v_readfirstlane_b32 s{sT0}, v{vEn}
            s_cmp_eq_u32 s{sT0}, -1
            s_cbranch_scc1 L_retry
            L_got:
            s_and_b32 s{sCntN}, s{sT0}, 31
            s_and_b32 s{sNxt}, s{sT0}, 0xffff8000
            """)
        issue(i)
    soft_a()
    wait(4)
    issue(4)
    soft_b()
    k(f"""
    s_cmp_eq_u32 s{sNxt}, {END}
    s_cbranch_scc1 L_ml
    L_mld:
    """)
    wait(5)
    if U[5] > 12:
        for e in range(8):
            perm(e, 0)
        issue(5)
    else:
        issue(5)
        for e in range(8):
            perm(e, 0)
    wait(6)
    issue(6)
    wait(7)
    if U[7] > 14:
        for e in range(8):
            perm(e, 1)
        issue(7)
        for e in range(8):
            pv(e)
    else:
        issue(7)
        perm_pv()
    k(f"""
    s_mov_b32 s{sOff}, s{sNxt}
    s_cmp_eq_u32 s{sNxt}, {END}
    s_cbranch_scc0 L_loop
    s_cmp_lg_u32 s{sFb}, 0
    s_cbranch_scc1 L_fbnext
    L_done:
    """)
    for j in range(4):
        k(f"v_cvt_pk_bf16_f32 v{vD+j}, v{vAcc+8*j}, v{vAcc+8*j+4}")
        k(f"v_xor_b32 v{vD+j}, s{sR}, v{vD+j}")
    if DIAG:
        k(f"s_memrealtime {sr(sTS+4,2)}")
    k(f"buffer_store_dwordx4 {vr(vD,4)}, v{vRo}, {sr(SW,4)}, s{sRec} offen sc1")
    if DIAG:
        k("s_waitcnt vmcnt(0)")
        diag_store()
    if TRACE:
        k(f"""
        s_mov_b64 exec, -1
        s_lshl2_add_u32 s{sT0}, s2, s{sWv}
        s_lshl_b32 s{sT0}, s{sT0}, 8
        s_add_u32 s{sT0}, s{sT0}, {DIAG_OFF + 0x40000}
        v_lshlrev_b32 v{vTmp}, 2, v{vLane}
        buffer_store_dword v{vTr}, v{vTmp}, {sr(SW,4)}, s{sT0} offen
        """)
    k("s_endpgm")
    k(f"""
    L_retry:
    s_add_u32 s{sBt0}, s{sBt0}, 1
    s_cmp_lt_u32 s{sBt0}, 0x400000
    s_cbranch_scc1 L_get
    s_mov_b32 s{sT0}, {END}
    s_branch L_got
    """)
    k(f"""
    L_ml:
    s_cmp_lg_u32 s{sFb}, 0
    s_cbranch_scc1 L_mld
    L_none:
    """)
    lreduce(k)
    k(f"""
    v_xor_b32 v{vT}, s{sR}, v{vM}
    v_mov_b32 v{vT+2}, s{sR}
    s_mov_b32 exec_lo, 0x1111
    s_mov_b32 exec_hi, 0
    v_xor_b32 v{vT+1}, s{sR}, v{vL}
    buffer_store_dwordx3 {vr(vT,3)}, v{vMo_w}, {sr(SW,4)}, s{sMl} offen sc1
    s_mov_b64 exec, -1
    s_barrier
    s_cmp_eq_u32 s{sI}, 0
    s_cbranch_scc0 L_mld
    s_branch L_done
    """)

    vOf, vMo, vPw, vPm, vPr_, vOo = 2, 3, 4, 5, 6, 7
    vX, vY, vW, vZ = 8, 9, 10, 11
    vML = 12
    vMa = 16
    vSa = 20
    vA = 24
    vOr, vOs = 32, 34
    vU = 36
    vBt, vDyn, vCo, vPr = 42, 43, 44, 28
    sHq, sOct = 90, 91

    def stamp(n):
        if DIAG and n - STAMP in (1, 2):
            k(f"s_memrealtime {sr(sTS+2*(n-STAMP),2)}")

    def entry(kk, vpage, vbt, vdst, vt):
        kk(f"""
        v_lshlrev_b32 v{vt}, 4, v{vpage}
        v_sub_u32 v{vt}, s{sCtx}, v{vt}
        v_med3_i32 v{vt}, v{vt}, 0, 16
        v_cmp_gt_u32 vcc, s{sN}, v{vpage}
        v_lshl_or_b32 v{vdst}, v{vbt}, 15, v{vt}
        v_bfrev_b32 v{vt}, 1
        v_and_b32 v{vdst}, 0x7fffffff, v{vdst}
        v_cndmask_b32 v{vdst}, v{vt}, v{vdst}, vcc
        """)

    k(f"""
    L_service:
    v_lshlrev_b32 v{vBt}, 9, v{vLane}          ; (j + 128*lane)*4
    s_mov_b32 s{SB+2}, 16384
    s_mov_b32 s{SB+3}, 0x20000
    s_and_b32 s{sT0}, s2, 7
    s_lshr_b32 s{sT1}, s2, 5
    s_lshl3_add_u32 s{sT0}, s{sT0}, s{sT1}     ; 6 bits
    s_lshr_b32 s{sHq}, s{sT0}, 1               ; hq
    s_and_b32 s{sT0}, s{sT0}, 1
    s_bfe_u32 s{sT1}, s2, 0x20003
    s_lshl2_add_u32 s{sOct}, s{sT0}, s{sT1}    ; oct 0..7
    s_sub_u32 s{sCnt}, s{sWv}, 4               ; c
    s_lshr_b32 s{sT0}, s{sHq}, 2
    s_lshl3_add_u32 s{sT0}, s{sT0}, s{sCnt}
    s_lshl_b32 s{sT0}, s{sT0}, 14
    s_and_b32 s{sT1}, s{sHq}, 3
    s_lshl_b32 s{sT1}, s{sT1}, 8
    s_add_u32 s{sT0}, s{sT0}, s{sT1}
    s_lshl_b32 s{sT1}, s{sOct}, 5
    s_add_u32 s{sT0}, s{sT0}, s{sT1}
    v_lshrrev_b32 v{vY}, 2, v{vLane}           ; pr
    v_and_b32 v{vW}, 3, v{vLane}               ; ql
    v_lshlrev_b32 v{vX}, 10, v{vY}
    v_lshl_add_u32 v{vX}, v{vW}, 3, v{vX}
    v_add_u32 v{vOf}, s{sT0}, v{vX}
    s_lshl3_add_u32 s{sT0}, s{sHq}, s{sCnt}
    s_lshl_b32 s{sT0}, s{sT0}, 8
    s_add_u32 s{sT0}, s{sT0}, {ML_OFF}
    v_lshl_add_u32 v{vMo}, v{vY}, 4, s{sT0}
    s_mov_b32 s{SW+2}, {0 if NOSNAP else wsz}
    s_mov_b32 s{SW+3}, 0x20000
    s_waitcnt lgkmcnt(0)
    s_load_dword s{sCtx}, {sr(sCTX,2)}, 0
    s_mov_b32 s{SB}, s{sBT}
    s_mov_b32 s{SB+1}, s{sBT+1}
    s_mov_b32 s{SW}, s{sWS}
    s_mov_b32 s{SW+1}, s{sWS+1}
    s_cmp_eq_u32 s{sWv}, 4
    s_cbranch_scc0 L_nobt
    buffer_load_dword v{vBt}, v{vBt}, {sr(SB,4)}, s{sIdx} offen
    L_nobt:
    buffer_load_dwordx3 {vr(vSa,3)}, v{vMo}, {sr(SW,4)}, 0 offen {snpol}
    buffer_load_dwordx2 {vr(vOs,2)}, v{vOf}, {sr(SW,4)}, 0 offen {snpol}
    s_mov_b32 s{SW+2}, {wsz}
    s_lshl_b32 s{sT0}, s{sHq}, 8
    s_add_u32 s{sT0}, s{sT0}, s{sT1}
    v_lshrrev_b32 v{vX}, 3, v{vLane}
    v_lshl_add_u32 v{vOo}, v{vX}, 2, s{sT0}
    v_and_b32 v{vZ}, 7, v{vLane}
    v_lshlrev_b32 v{vX}, 4, v{vX}
    v_lshl_add_u32 v{vPr_}, v{vZ}, 7, v{vX}
    s_lshl_b32 s{sT0}, s{sCnt}, 7
    v_lshl_add_u32 v{vPm}, v{vZ}, 4, s{sT0}    ; (M,L) address - 8
    v_lshrrev_b32 v{vX}, 5, v{vLane}           ; row>>1
    v_lshl_add_u32 v{vX}, v{vW}, 1, v{vX}
    v_bfe_u32 v{vZ}, v{vLane}, 4, 1
    v_lshlrev_b32 v{vZ}, 2, v{vZ}
    v_lshl_add_u32 v{vX}, v{vX}, 4, v{vZ}
    v_add_u32 v{vPw}, s{sT0}, v{vX}
    s_mov_b32 s{SO}, s{sOUT}
    s_mov_b32 s{SO+1}, s{sOUT+1}
    s_mov_b32 s{SO+2}, 8192
    s_mov_b32 s{SO+3}, 0x20000
    s_mov_b32 s{sC}, 0xffff0000
    s_waitcnt lgkmcnt(0)
    s_min_i32 s{sT0}, s{sCtx}, 65536
    s_cmp_le_i32 s{sCtx}, 0
    s_cselect_b32 s{sT0}, 65536, s{sT0}
    s_add_u32 s{sT0}, s{sT0}, 15
    s_lshr_b32 s{sN}, s{sT0}, 4                ; npages
    s_min_i32 s{sCtx}, s{sCtx}, 65536
    s_max_i32 s{sCtx}, s{sCtx}, 0
    s_cmp_eq_u32 s{sWv}, 4
    s_cbranch_scc1 L_sched
    s_barrier
    s_branch L_real
    L_sched:
    s_lshr_b32 s{sS}, s{sN}, 7
    s_sub_i32 s{sS}, s{sS}, {KD}
    s_max_i32 s{sS}, s{sS}, 1
    v_lshlrev_b32 v{vX}, 7, v{vLane}
    v_add_u32 v{vX}, s{sJ}, v{vX}
    v_lshlrev_b32 v{vCo}, 2, v{vLane}
    v_mov_b32 v{vZ}, -1
    v_mov_b32 v{vPr}, 0
    ds_write_b32 v{vCo}, v{vZ} offset:256
    ds_write_b32 v{vCo}, v{vPr} offset:{PROG}
    s_waitcnt vmcnt(2)
    """)
    entry(k, vX, vBt, vBt, vY)
    k(f"""
    v_cmp_gt_u32 vcc, s{sS}, v{vLane}
    s_lshl_b32 s{sT0}, s{sS}, 7
    s_add_u32 s{sT0}, s{sT0}, s{sSh}
    v_cndmask_b32 v{vBt}, v{vZ}, v{vBt}, vcc
    ds_write_b32 v{vCo}, v{vBt}
    v_lshl_add_u32 v{vX}, v{vLane}, 4, s{sT0}
    v_lshlrev_b32 v{vDyn}, 2, v{vX}
    s_waitcnt lgkmcnt(0)
    s_barrier
    buffer_load_dword v{vDyn}, v{vDyn}, {sr(SB,4)}, 0 offen
    s_mov_b32 s{SD}, s{sDBG}
    s_mov_b32 s{SD+1}, s{sDBG+1}
    s_mov_b32 s{SD+2}, 256
    s_mov_b32 s{SD+3}, 0x20000
    s_lshl1_add_u32 s{sT0}, s{sSh}, s{sHg}
    s_lshl_b32 s{sT0}, s{sT0}, 3
    v_mov_b32 v{vCo}, s{sT0}
    v_mov_b32 v{vW}, {PROG}
    s_lshl_b32 s{sE}, s{sS}, 2
    s_waitcnt vmcnt(0)
    """)
    entry(k, vX, vDyn, vDyn, vY)
    k(f"""
    s_mov_b32 s{sI}, 0
    s_cmp_lt_u32 s{sJ}, s{sN}
    s_cbranch_scc0 L_real
    L_s0:
    ds_read_b128 {vr(vPr,4)}, v{vW}
    s_waitcnt lgkmcnt(0)
    v_max3_u32 v{vX}, v{vPr}, v{vPr+1}, v{vPr+2}
    v_max_u32 v{vX}, v{vX}, v{vPr+3}
    s_sub_u32 s{sT1}, s{sE}, 4
    v_readfirstlane_b32 s{sT0}, v{vX}
    s_cmp_ge_u32 s{sT0}, s{sT1}
    s_cbranch_scc1 L_s1
    s_sleep {SSL}
    s_add_u32 s{sI}, s{sI}, 1
    s_cmp_lt_u32 s{sI}, 0x400000
    s_cbranch_scc1 L_s0
    L_s1:
    v_mov_b32 v{vX}, 1
    s_mov_b64 exec, 1
    buffer_atomic_add v{vX}, v{vCo}, {sr(SD,4)}, 0 offen sc0 sc1
    s_mov_b64 exec, -1
    v_mov_b32 v{vY}, s{sE}
    s_add_u32 s{sE}, s{sE}, 4
    s_waitcnt vmcnt(0)
    v_readfirstlane_b32 s{sT0}, v{vX}
    s_min_u32 s{sT0}, s{sT0}, 63
    v_readlane_b32 s{sT0}, v{vDyn}, s{sT0}
    v_mov_b32 v{vX}, s{sT0}
    ds_write_b32 v{vY}, v{vX}
    s_cmp_eq_u32 s{sT0}, {END}
    s_cbranch_scc0 L_s0
    L_real:
    s_mov_b32 s{sI}, {LIMIT if FORCEFB else 0}
    v_mov_b32 v{vCo}, {CTR}
    {f"s_mov_b32 s{sTS+4}, s{sTS}" if DIAG else ""}
    v_mov_b32 v{vBt}, 1
    s_waitcnt vmcnt(0) lgkmcnt(0)
    s_barrier
    """)
    stamp(1)
    if NOPOLL:
        k("s_branch L_arr")
    k(f"""
    s_branch L_m1
    L_m0:
    s_bcnt1_i32_b64 s{sT0}, vcc
    s_cmp_gt_u32 s{sT0}, {T2}
    s_cbranch_scc0 L_m2
    s_sleep {SLEEP2}
    L_m2:
    {f"s_sleep {SLEEP1}" if SLEEP1 else ""}
    L_m1:
    buffer_load_dwordx3 {vr(vMa,3)}, v{vMo}, {sr(SW,4)}, 0 offen sc1
    s_add_u32 s{sI}, s{sI}, 1
    s_cmp_ge_u32 s{sI}, {LIMIT}
    s_cbranch_scc1 L_fail
    s_waitcnt vmcnt(0)
    v_xor_b32 v{vU}, v{vMa}, v{vSa}
    v_xor_b32 v{vU+1}, v{vMa+1}, v{vSa+1}
    v_xor_b32 v{vU+2}, v{vMa+2}, v{vSa+2}
    v_min3_u32 v{vX}, v{vU}, v{vU+1}, v{vU+2}
    v_cmp_eq_u32 vcc, 0, v{vX}
    s_cbranch_vccnz L_m0
    buffer_load_dwordx2 {vr(vOr,2)}, v{vOf}, {sr(SW,4)}, 0 offen sc1
    """)
    stamp(2)
    k(f"""
    v_xor_b32 v{vW}, v{vMa}, v{vMa+2}          ; m
    v_xor_b32 v{vZ}, v{vMa+1}, v{vMa+2}        ; l
    v_max_f32_dpp v{vML}, v{vW}, v{vW} row_ror:4 row_mask:0xf bank_mask:0xf
    v_max_f32_dpp v{vML}, v{vML}, v{vML} row_ror:8 row_mask:0xf bank_mask:0xf
    v_mov_b32 v{vY}, v{vML}
    v_permlane16_swap_b32 v{vML}, v{vY}
    v_max_f32 v{vML}, v{vML}, v{vY}
    v_mov_b32 v{vY}, v{vML}
    v_permlane32_swap_b32 v{vML}, v{vY}
    v_max_f32 v{vML}, v{vML}, v{vY}
    v_sub_f32 v{vW}, v{vW}, v{vML}
    v_exp_f32 v{vW}, v{vW}
    v_mul_f32 v{vZ}, v{vW}, v{vZ}
    v_add_f32_dpp v{vZ}, v{vZ}, v{vZ} row_ror:4 row_mask:0xf bank_mask:0xf
    v_add_f32_dpp v{vZ}, v{vZ}, v{vZ} row_ror:8 row_mask:0xf bank_mask:0xf
    v_mov_b32 v{vY}, v{vZ}
    v_permlane16_swap_b32 v{vZ}, v{vY}
    v_add_f32 v{vZ}, v{vZ}, v{vY}
    v_mov_b32 v{vY}, v{vZ}
    v_permlane32_swap_b32 v{vZ}, v{vY}
    v_add_f32 v{vML+1}, v{vZ}, v{vY}
    ds_write_b64 v{vPm}, {vr(vML,2)} offset:{PART+8}
    s_branch L_o1
    L_o0:
    {f"s_sleep {SLEEPO}" if SLEEPO else ""}
    s_mov_b64 exec, vcc
    buffer_load_dwordx2 {vr(vOr,2)}, v{vOf}, {sr(SW,4)}, 0 offen sc1
    s_mov_b64 exec, -1
    s_add_u32 s{sI}, s{sI}, 1
    s_cmp_ge_u32 s{sI}, {LIMIT}
    s_cbranch_scc1 L_fail
    L_o1:
    s_waitcnt vmcnt(0)
    v_xor_b32 v{vU}, v{vOr}, v{vOs}
    v_xor_b32 v{vU+1}, v{vOr+1}, v{vOs+1}
    v_xor_b32 v{vX}, v{vOr}, v{vMa+2}
    v_min_u32 v{vU}, v{vU}, v{vU+1}
    v_xor_b32 v{vY}, v{vOr+1}, v{vMa+2}
    v_cmp_eq_u32 vcc, 0, v{vU}
    v_lshlrev_b32 v{vA}, 16, v{vX}
    v_and_b32 v{vA+1}, s{sC}, v{vX}
    v_lshlrev_b32 v{vA+2}, 16, v{vY}
    v_and_b32 v{vA+3}, s{sC}, v{vY}
    s_cbranch_vccnz L_o0
    """)
    for j in range(4):
        k(f"v_mul_f32 v{vA+j}, v{vW}, v{vA+j}")
    for sh in (4, 8):
        for j in range(4):
            k(f"v_add_f32_dpp v{vA+j}, v{vA+j}, v{vA+j} row_ror:{sh} row_mask:0xf bank_mask:0xf")
    k(f"""
    v_permlane16_swap_b32 v{vA}, v{vA+1}
    v_permlane16_swap_b32 v{vA+2}, v{vA+3}
    v_add_f32 v{vA}, v{vA}, v{vA+1}
    v_add_f32 v{vA+2}, v{vA+2}, v{vA+3}
    v_permlane32_swap_b32 v{vA}, v{vA+2}
    v_add_f32 v{vA}, v{vA}, v{vA+2}
    ds_write_b32 v{vPw}, v{vA} offset:{PART}
    L_arr:
    s_mov_b64 exec, 1
    ds_add_rtn_u32 v{vBt}, v{vCo}, v{vBt}
    s_mov_b64 exec, -1
    ds_read_b128 {vr(vA,4)}, v{vPr_} offset:{PART}
    s_waitcnt lgkmcnt(1)
    v_readfirstlane_b32 s{sT0}, v{vBt}
    s_and_b32 s{sT1}, s{sT0}, 15
    s_cmp_eq_u32 s{sT1}, 7
    s_cbranch_scc0 {"L_sdiag" if DIAG else "L_end"}
    s_or_b32 s{sT0}, s{sT0}, s{sMld}
    s_cmp_gt_u32 s{sT0}, 15
    s_cbranch_scc1 L_fb
    """)
    stamp(3)
    dp = ["quad_perm:[1,0,3,2]", "quad_perm:[2,3,0,1]", "row_half_mirror"]
    k("s_waitcnt lgkmcnt(0)")
    k(f"v_max_f32_dpp v{vX}, v{vA+2}, v{vA+2} {dp[0]} row_mask:0xf bank_mask:0xf")
    k(f"s_mov_b32 vcc_lo, 0x01010101")
    k(f"s_mov_b32 vcc_hi, 0x01010101")
    k(f"v_max_f32_dpp v{vX}, v{vX}, v{vX} {dp[1]} row_mask:0xf bank_mask:0xf")
    k(f"v_max_f32_dpp v{vX}, v{vX}, v{vX} {dp[2]} row_mask:0xf bank_mask:0xf")
    k(f"""
    v_sub_f32 v{vX}, v{vA+2}, v{vX}
    v_exp_f32 v{vX}, v{vX}
    v_mul_f32 v{vA+3}, v{vX}, v{vA+3}
    v_mul_f32 v{vA}, v{vX}, v{vA}
    v_mul_f32 v{vA+1}, v{vX}, v{vA+1}
    """)
    for d in dp:
        for a_ in (vA + 3, vA, vA + 1):
            k(f"v_add_f32_dpp v{a_}, v{a_}, v{a_} {d} row_mask:0xf bank_mask:0xf")
    k(f"""
    v_rcp_f32 v{vX}, v{vA+3}
    s_mov_b64 exec, vcc
    v_mul_f32 v{vA}, v{vA}, v{vX}
    v_mul_f32 v{vA+1}, v{vA+1}, v{vX}
    v_cvt_pk_bf16_f32 v{vA}, v{vA}, v{vA+1}
    buffer_store_dword v{vA}, v{vOo}, {sr(SO,4)}, 0 offen
    """)
    if DIAG:
        k("L_sdiag:")
        k("s_waitcnt vmcnt(0)")
        diag_store()
    k("""
    L_end:
    s_endpgm
    """)
    cold(f"""
    L_fail:
    v_mov_b32 v{vBt}, 17
    s_mov_b32 s{sMld}, 16
    s_branch L_arr
    """)
    vFp, vFb = 126, 127
    cold(f"""
    L_fb:
    s_waitcnt vmcnt(0) lgkmcnt(0)
    s_mov_b32 s{sE}, 0
    s_lshr_b32 s{sH}, s{sHq}, 2
    L_fbfill:
    v_add_u32 v{vFp}, s{sE}, v{vLane}
    v_lshlrev_b32 v{vFb}, 2, v{vFp}
    buffer_load_dword v{vFb}, v{vFb}, {sr(SB,4)}, 0 offen
    s_lshl_b32 s{sIdx}, s{sE}, 2
    s_waitcnt vmcnt(0)
    """)
    entry(cold, vFp, vFb, vFb, vTmp)
    cold(f"""
    s_bitset1_b32 s{sFb}, 31
    v_lshlrev_b32 v{vFp}, 2, v{vLane}
    v_writelane_b32 v{vFb}, s{sFb}, 63
    ds_write_b32 v{vFp}, v{vFb}
    s_cmp_eq_u32 s{sE}, 0
    s_cbranch_scc1 L_setup
    s_load_dword s{sBt0}, {sr(sBT,2)}, s{sIdx}
    s_branch L_first
    L_fbnext:
    s_waitcnt vmcnt(0)
    s_add_u32 s{sE}, s{sE}, 63
    s_cmp_lt_u32 s{sE}, s{sN}
    s_cbranch_scc1 L_fbfill
    """)
    lreduce(cold)
    cold(f"v_rcp_f32 v{vAl}, v{vL}")
    for i in range(4):
        cold(f"v_mov_b32_dpp v{vAb}, v{vAl} row_newbcast:{4*i} row_mask:{hex(1<<i)} bank_mask:0xf")
    for e in range(8):
        cold(f"v_mul_f32 v{vAcc+4*e}, v{vAb}, v{vAcc+4*e}")
    for j in range(4):
        cold(f"v_cvt_pk_bf16_f32 v{vD+j}, v{vAcc+8*j}, v{vAcc+8*j+4}")
    cold(f"""
    s_and_b32 s{sT0}, s{sHq}, 3
    s_lshl_b32 s{sT0}, s{sT0}, 4
    s_lshl1_add_u32 s{sT0}, s{sOct}, s{sT0}
    s_lshl_b32 s{sT1}, s{sH}, 10
    v_lshlrev_b32 v{vTmp}, 4, v{vLane}
    s_lshl_b64 exec, 3, s{sT0}
    buffer_store_dwordx4 {vr(vD,4)}, v{vTmp}, {sr(SO,4)}, s{sT1} offen
    s_endpgm
    """)
    k.lines += cold.lines
    body = k.done()

    out = HEADER
    if DIAG:
        out += f"; nwaves=3072 diagoff={DIAG_OFF} trace={TRACE}\n"
    out += f"; @launch grid=(256,1,1) block=(768,1,1) lds=2048\n"
    out += '.amdgcn_target "amdgcn-amd-amdhsa--gfx950"\n.text\n'
    out += f".globl {NAME}_kernel\n.p2align 8\n.type {NAME}_kernel,@function\n{NAME}_kernel:\n"
    out += body
    out += f""".section .rodata,"a"
.p2align 6
.amdhsa_kernel {NAME}_kernel
  .amdhsa_next_free_vgpr {NV}
  .amdhsa_next_free_sgpr 98
  .amdhsa_accum_offset {(NV + 3) // 4 * 4}
  .amdhsa_group_segment_fixed_size 0
  .amdhsa_kernarg_size 64
  .amdhsa_user_sgpr_count 2
  .amdhsa_user_sgpr_kernarg_segment_ptr 1
  .amdhsa_system_sgpr_workgroup_id_x 1
.end_amdhsa_kernel
"""
    return out


if __name__ == "__main__":
    kw = {}
    for a in sys.argv[2:]:
        key, val = a.split("=")
        kw[key] = val if key in ("POL", "SNPOL", "DV") else int(val, 0)
    open(sys.argv[1], "w").write(gen(**kw))
```

```python
import sys
import struct
from asmlib import K, vr, sr

NAME = "standalone__paged_block_table_kv_pagedattention__decode"
KV_BYTES = 4100 * 32768
HEADER = open("cdna_kernels/" + NAME + ".s.ref").read().split("; Override")[0]
ML_OFF = 0x100000
WS_USED = 0x110000
DIAG_OFF = 0x300000
END = 0x80000000
PROG = 512
CTR = PROG + 64
PART = 1024


def f32(x):
    return "0x%08x" % struct.unpack("<I", struct.pack("<f", x))[0]


def gen(POL="nt", DIAG=0, SLEEP=0, SLEEP1=1, SLEEP2=6, T=12, T2=8, DV="66666666", NOPOLL=0,
        SNPOL="sc1", LIMIT=0x400, KD=1, SIGP=4, SSL=1, TRACE=0, STAMP=0, NOSNAP=0, FORCEFB=0, SLEEPO=0, CWS=0, REM=3, LATESNAP=0, EBAR=0, APOLL=0, ASNAP=0, OAT=0, FAST=1, CLK=0, PRIO=0, SPIN=0, SPINX=-1):
    dv = [int(c) for c in DV]
    D = dv[7]
    k = K()
    cold = K()
    sQ, sKp, sVp, sBT, sCTX, sOUT, sDBG, sWS = 4, 6, 8, 10, 12, 14, 16, 18
    SK, SV, SB, SQ, SW, SD, SO = 20, 24, 28, 32, 36, 68, 72
    sH, sHg, sWv, sJ, sCtx, sN, sI, sCnt, sOff, sC, sPlo, sPhi, sT0, sT1, sNeg, sIdx = range(40, 56)
    sTS = 56
    sBt0, sRec, sMl, sNxt = 64, 65, 66, 67
    sMask, sR, sMA, sMB = 76, 78, 80, 82
    sCntN, sS, sE, sFb, sSh, sMld = 84, 85, 86, 87, 88, 89
    vLane, vKo0, vKo1, vVo0, vVo1, vLi, vG4, vM, vL, vMx, vTmp, vAl, vAb = range(1, 14)
    vP = 14
    vQ = 16
    vT = 20
    vD = 24
    vB = 40
    vAcc = 56
    vKA, vVA = 88, 104
    vRo, vMo_w, vEn, vPa, vTr = 120, 121, 122, 124, 125
    NV = 128
    wsz = 0x400000 if DIAG else WS_USED
    pol = (" " + POL.replace("+", " ")) if POL else ""
    snpol = SNPOL.replace("+", " ")

    def ld(which, i, so):
        vo = (vKo0, vKo1) if which == "K" else (vVo0, vVo1)
        S = SK if which == "K" else SV
        base = vKA if which == "K" else vVA
        off = " offset:2048" if i & 1 else ""
        k(f"buffer_load_dwordx4 {vr(base+4*i,4)}, v{vo[i>>1]}, {sr(S,4)}, s{so} offen{off}{pol}")

    def diag_store():
        k(f"""
        s_memrealtime {sr(sTS+6,2)}
        s_getreg_b32 s{sT1}, hwreg(HW_REG_XCC_ID)
        s_waitcnt lgkmcnt(0)
        s_mov_b64 exec, -1
        v_mov_b32 v{vD}, s{sTS}
        v_mov_b32 v{vD+1}, s{sTS+2}
        v_mov_b32 v{vD+2}, s{sTS+4}
        v_mov_b32 v{vD+3}, s{sTS+6}
        v_mov_b32 v{vD+4}, s{sT1}
        v_mov_b32 v{vD+5}, s{sWv}
        s_getreg_b32 s{sT1}, hwreg(HW_REG_HW_ID)
        v_mov_b32 v{vD+6}, s{sT1}
        v_mov_b32 v{vD+7}, s{sI}
        s_mul_i32 s{sT0}, s2, 12
        s_add_u32 s{sT0}, s{sT0}, s{sWv}
        s_lshl_b32 s{sT0}, s{sT0}, 5
        s_add_u32 s{sT0}, s{sT0}, {DIAG_OFF}
        v_mov_b32 v{vTmp}, 0
        s_mov_b64 exec, 1
        buffer_store_dwordx4 {vr(vD,4)}, v{vTmp}, {sr(SW,4)}, s{sT0} offen
        buffer_store_dwordx4 {vr(vD+4,4)}, v{vTmp}, {sr(SW,4)}, s{sT0} offen offset:16
        """)

    seq = [("K", i) for i in range(4)] + [("V", i) for i in range(4)]
    k(f"""
    s_load_dwordx16 s[4:19], s[0:1], 0
    s_lshr_b32 s{sSh}, s2, 4                   ; shard 0..15
    s_and_b32 s{sT1}, s2, 7
    s_lshl3_add_u32 s{sJ}, s{sSh}, s{sT1}      ; j = shard*8 + (b&7)
    s_lshl_b32 s{sIdx}, s{sJ}, 2               ; j*4
    s_cmp_ge_u32 s2, 256
    s_cbranch_scc1 L_end
    """)
    if DIAG or SPIN:
        k(f"s_memrealtime {sr(sTS,2)}")
    k(f"""
    v_lshrrev_b32 v{vTmp}, 6, v0
    v_and_b32 v{vLane}, 63, v0
    v_readfirstlane_b32 s{sWv}, v{vTmp}
    s_bfe_u32 s{sHg}, s2, 0x10003
    s_cmp_ge_u32 s{sWv}, 4
    s_cbranch_scc1 L_service
    {f"s_setprio {PRIO}" if PRIO else ""}
    s_waitcnt lgkmcnt(0)
    s_load_dword s{sBt0}, {sr(sBT,2)}, s{sIdx}
    s_mov_b64 {sr(sE,2)}, 0
    s_lshl2_add_u32 s{sH}, s{sHg}, s{sWv}
    L_setup:
    v_lshrrev_b32 v{vG4}, 4, v{vLane}
    v_lshlrev_b32 v{vG4}, 2, v{vG4}            ; 4*g
    v_and_b32 v{vTmp}, 3, v{vLane}
    v_add_lshl_u32 v{vTmp}, v{vTmp}, v{vG4}, 4 ; chunk*16
    v_bfe_u32 v{vMx}, v{vLane}, 2, 2           ; tau
    s_lshl_b32 s{sT1}, s{sH}, 8                ; h*256
    v_lshl_add_u32 v{vKo0}, v{vMx}, 13, v{vTmp}
    v_add_u32 v{vKo0}, s{sT1}, v{vKo0}
    v_add_u32 v{vKo1}, 0x1000, v{vKo0}
    v_lshl_add_u32 v{vAl}, v{vMx}, 8, v{vTmp}    ; q*256 + chunk*16
    v_and_b32 v{vTmp}, 15, v{vLane}
    v_lshlrev_b32 v{vTmp}, 4, v{vTmp}
    v_lshl_add_u32 v{vVo0}, v{vG4}, 11, v{vTmp}
    v_add_u32 v{vVo0}, s{sT1}, v{vVo0}
    v_add_u32 v{vVo1}, 0x1000, v{vVo0}
    s_mov_b32 s{SK+2}, {KV_BYTES}
    s_mov_b32 s{SK+3}, 0x20000
    s_mov_b32 s{SV+2}, {KV_BYTES}
    s_mov_b32 s{SV+3}, 0x20000
    s_mov_b32 s{SQ+2}, 8192
    s_mov_b32 s{SQ+3}, 0x20000
    s_lshl_b32 s{sT0}, s{sH}, 10
    s_mov_b32 s{SQ}, s{sQ}
    s_mov_b32 s{SQ+1}, s{sQ+1}
    buffer_load_dwordx4 {vr(vQ,4)}, v{vAl}, {sr(SQ,4)}, s{sT0} offen
    s_mov_b32 s{SK}, s{sKp}
    s_mov_b32 s{SK+1}, s{sKp+1}
    s_mov_b32 s{SV}, s{sVp}
    s_mov_b32 s{SV+1}, s{sVp+1}
    """)
    k(f"""
    L_first:
    s_waitcnt lgkmcnt(0)
    s_lshl_b32 s{sOff}, s{sBt0}, 15
    """)
    for w, i in seq[:D]:
        ld(w, i, sOff)
    if DIAG:
        k(f"s_memrealtime {sr(sTS+2,2)}")
    k(f"""
    v_mov_b32 v{vLi}, 0
    s_mov_b32 s{sI}, 0
    s_cmp_lg_u32 s{sE}, 0
    s_cbranch_scc1 L_go
    s_mov_b32 s{sC}, {f32(128 ** -0.5 * 1.4426950408889634)}
    s_mov_b32 s{sPlo}, 0x05040100
    s_mov_b32 s{sPhi}, 0x07060302
    s_mov_b32 s{sNeg}, {f32(-1e9 * 1.4426950408889634)}
    v_mov_b32 v{vM}, {f32(-3.0e38)}
    v_mov_b32 v{vL}, 0
    v_mov_b32 v{vAb}, 0
    """)
    for i in range(32):
        k(f"v_mov_b32 v{vAcc+i}, 0")
    k(f"""
    v_lshlrev_b32 v{vRo}, 4, v{vLane}
    v_lshlrev_b32 v{vMo_w}, 9, v{vLane}
    s_cmp_lg_u32 s{sFb}, 0
    s_cbranch_scc1 L_go
    {f"s_memrealtime {sr(sR,2)}" if CLK else ""}
    s_lshl_b32 s{sRec}, s{sH}, 7
    s_add_u32 s{sRec}, s{sRec}, s{sJ}
    s_lshl_b32 s{sRec}, s{sRec}, 10
    {"" if CLK else f"s_load_dword s{sR}, {sr(sWS,2)}, s{sRec}     ; salt source: what the record's first word holds on entry"}
    s_lshl_b32 s{sMl}, s{sH}, 13
    s_lshl4_add_u32 s{sMl}, s{sJ}, s{sMl}
    s_add_u32 s{sMl}, s{sMl}, {ML_OFF}         ; ML + (h*4*128 + j)*16
    s_mov_b32 s{SW}, s{sWS}
    s_mov_b32 s{SW+1}, s{sWS+1}
    s_mov_b32 s{SW+2}, {wsz}
    s_mov_b32 s{SW+3}, 0x20000
    L_go:
    s_lshl2_add_u32 s{sT0}, s{sWv}, {PROG}
    v_mov_b32 v{vPa}, s{sT0}
    """)

    def qk(i):
        k(f"v_mfma_f32_16x16x32_bf16 {vr(vD+4*i,4)}, {vr(vKA+4*i,4)}, {vr(vQ,4)}, 0")

    def soft_a():
        for j in (1, 2, 3):
            for i in range(4):
                src1 = vD + 4 * i if j == 1 else vT + i
                k(f"v_add_f32_dpp v{vT+i}, v{vD+4*i+j}, v{src1} quad_perm:[{j},{j},{j},{j}] row_mask:0xf bank_mask:0xf")
        for i in range(4):
            k(f"v_mul_f32 v{vT+i}, s{sC}, v{vT+i}")
        k(f"""
        s_cmp_lt_u32 s{sCnt}, 16
        s_cbranch_scc1 L_mask
        L_nomask:
        """)
        cold(f"""
        L_mask:
        v_mov_b32 v{vTmp}, s{sNeg}
        """)
        for i in range(4):
            cold(f"""
            s_sub_i32 s{sT0}, s{sCnt}, {i}
            v_cmp_gt_i32 vcc, s{sT0}, v{vG4}
            v_cndmask_b32 v{vT+i}, v{vTmp}, v{vT+i}, vcc
            """)
        cold(f"s_branch L_nomask")
        k(f"""
        v_max3_f32 v{vMx}, v{vT}, v{vT+1}, v{vT+2}
        v_max3_f32 v{vMx}, v{vMx}, v{vT+3}, v{vM}
        v_mov_b32 v{vTmp}, v{vMx}
        v_permlane32_swap_b32 v{vMx}, v{vTmp}
        v_max_f32 v{vMx}, v{vMx}, v{vTmp}
        v_mov_b32 v{vTmp}, v{vMx}
        v_permlane16_swap_b32 v{vMx}, v{vTmp}
        v_max_f32 v{vMx}, v{vMx}, v{vTmp}
        """)

    def soft_b():
        k(f"""
        v_sub_f32 v{vAl}, v{vM}, v{vMx}
        v_mov_b32 v{vM}, v{vMx}
        v_exp_f32 v{vAl}, v{vAl}
        """)
        for i in range(4):
            k(f"v_sub_f32 v{vT+i}, v{vT+i}, v{vMx}")
        for i in range(4):
            k(f"v_exp_f32 v{vT+i}, v{vT+i}")
            k(f"v_mov_b32_dpp v{vAb}, v{vAl} row_newbcast:{4*i} row_mask:{hex(1<<i)} bank_mask:0xf")
            if i == 1:
                k(f"v_fma_f32 v{vL}, v{vL}, v{vAl}, v{vT}")
            if i == 2:
                k(f"v_cvt_pk_bf16_f32 v{vP}, v{vT}, v{vT+1}")
        k(f"""
        v_add_f32 v{vTmp}, v{vT+1}, v{vT+2}
        v_cvt_pk_bf16_f32 v{vP+1}, v{vT+2}, v{vT+3}
        v_add_f32 v{vL}, v{vL}, v{vT+3}
        v_add_f32 v{vL}, v{vL}, v{vTmp}
        """)
        for e in range(8):
            k(f"v_mul_f32 v{vAcc+4*e}, v{vAb}, v{vAcc+4*e}")

    def perm(e, half):
        j, hi = e >> 1, e & 1
        sel = sPhi if hi else sPlo
        k(f"v_perm_b32 v{vB+2*e+half}, v{vVA+8*half+4+j}, v{vVA+8*half+j}, s{sel}")

    def pv(e):
        k(f"v_mfma_f32_16x16x16_bf16 {vr(vAcc+4*e,4)}, {vr(vP,2)}, {vr(vB+2*e,2)}, {vr(vAcc+4*e,4)}")

    def perm_pv():
        perm(0, 1)
        perm(1, 1)
        for e in range(8):
            if e + 2 < 8:
                perm(e + 2, 1)
            pv(e)

    def lreduce(kk):
        kk(f"""
        v_mov_b32 v{vTmp}, v{vL}
        v_permlane32_swap_b32 v{vL}, v{vTmp}
        v_add_f32 v{vL}, v{vL}, v{vTmp}
        v_mov_b32 v{vTmp}, v{vL}
        v_permlane16_swap_b32 v{vL}, v{vTmp}
        v_add_f32 v{vL}, v{vL}, v{vTmp}
        """)

    U = [p + 1 + dv[p] for p in range(8)]
    prevU = [U[7] - 8] + U[:7]
    firstN = min(p for p in range(8) if U[p] > 8)
    assert all(U[p] >= prevU[p] for p in range(8)) and D <= 8 and firstN <= 3

    def issue(p):
        for t in range(prevU[p], U[p]):
            w, i = seq[t % 8]
            if t >= 8:
                need = {8: 0, 9: 1, 10: 2, 11: 3, 12: 5, 13: 5, 14: 7, 15: 7}[t]
                assert p >= need, (DV, p, t)
            ld(w, i, sOff if t < 8 else sNxt)

    def wait(p):
        if p == SIGP and p > firstN:
            signal()
        k(f"s_waitcnt vmcnt({prevU[p] - p - 1})")

    def signal():
        k(f"ds_write_b32 v{vPa}, v{vLi}")

    if TRACE:
        k(f"""
        v_mov_b32 v{vTr}, 0
        s_memrealtime s[96:97]
        """)
    k("L_loop:")
    if TRACE:
        k(f"""
        s_waitcnt lgkmcnt(0)
        s_add_u32 m0, s{sI}, 1
        s_nop 0
        v_writelane_b32 v{vTr}, s96, m0
        s_nop 4
        s_memrealtime s[96:97]
        """)
    k(f"""
    s_add_u32 s{sI}, s{sI}, 1
    """)
    for i in range(4):
        if i == min(SIGP, firstN) and i < firstN:
            k(f"""
            s_cmp_eq_u32 s{sI}, 1
            s_cbranch_scc1 L_nosig
            """)
            signal()
            k("L_nosig:")
        if i == firstN:
            k(f"""
            s_or_b32 s{sT0}, s{sI}, s{sFb}
            s_cmp_eq_u32 s{sT0}, 1
            s_cbranch_scc0 L_nobar
            s_barrier
            L_nobar:
            """)
            if SIGP <= firstN:
                signal()
            k(f"""
            L_get:
            ds_read2_b32 {vr(vEn,2)}, v{vLi} offset0:0 offset1:1
            """)
        wait(i)
        qk(i)
        if i == firstN:
            k(f"""
            s_waitcnt lgkmcnt(0)
            v_readfirstlane_b32 s{sT0}, v{vEn+1}
            v_readfirstlane_b32 s{sCnt}, v{vEn}
            s_cmp_eq_u32 s{sT0}, -1
            s_cbranch_scc1 L_retry
            L_got:
            s_and_b32 s{sNxt}, s{sT0}, 0xffff8000
            s_and_b32 s{sCnt}, s{sCnt}, 31
            v_add_u32 v{vLi}, 4, v{vLi}
            """)
        issue(i)
    soft_a()
    wait(4)
    issue(4)
    soft_b()
    k(f"""
    s_cmp_eq_u32 s{sNxt}, {END}
    s_cbranch_scc1 L_ml
    L_mld:
    """)
    wait(5)
    if U[5] > 12:
        for e in range(8):
            perm(e, 0)
        issue(5)
    else:
        issue(5)
        for e in range(8):
            perm(e, 0)
    wait(6)
    issue(6)
    wait(7)
    if U[7] > 14:
        for e in range(8):
            perm(e, 1)
        issue(7)
        for e in range(8):
            pv(e)
    else:
        issue(7)
        perm_pv()
    k(f"""
    s_mov_b32 s{sOff}, s{sNxt}
    s_cmp_eq_u32 s{sNxt}, {END}
    s_cbranch_scc0 L_loop
    s_cmp_lg_u32 s{sFb}, 0
    s_cbranch_scc1 L_fbnext
    L_done:
    """)
    for j in range(4):
        k(f"v_cvt_pk_bf16_f32 v{vD+j}, v{vAcc+8*j}, v{vAcc+8*j+4}")
        k(f"v_xor_b32 v{vD+j}, s{sR}, v{vD+j}")
    if DIAG:
        k(f"s_memrealtime {sr(sTS+4,2)}")
    k(f"buffer_store_dwordx4 {vr(vD,4)}, v{vRo}, {sr(SW,4)}, s{sRec} offen sc1")
    if not EBAR:
        k("s_barrier")
    if DIAG:
        k("s_waitcnt vmcnt(0)")
        diag_store()
    if TRACE:
        k(f"""
        s_mov_b64 exec, -1
        s_lshl2_add_u32 s{sT0}, s2, s{sWv}
        s_lshl_b32 s{sT0}, s{sT0}, 8
        s_add_u32 s{sT0}, s{sT0}, {DIAG_OFF + 0x40000}
        v_lshlrev_b32 v{vTmp}, 2, v{vLane}
        buffer_store_dword v{vTr}, v{vTmp}, {sr(SW,4)}, s{sT0} offen
        """)
    k("s_endpgm")
    k(f"""
    L_retry:
    s_cmp_eq_u32 s{sCnt}, {END}
    s_cbranch_scc1 L_none
    s_add_u32 s{sBt0}, s{sBt0}, 1
    s_cmp_lt_u32 s{sBt0}, 0x400000
    s_cbranch_scc1 L_get
    s_mov_b32 s{sT0}, {END}
    s_branch L_got
    """)
    k(f"""
    L_ml:
    s_cmp_lg_u32 s{sFb}, 0
    s_cbranch_scc1 L_mld
    L_none:
    s_add_u32 s{sR}, s{sR}, s{sMl}
    s_mul_i32 s{sR}, s{sR}, 0x9e3779b1
    s_lshr_b32 s{sT0}, s{sR}, 15
    s_xor_b32 s{sR}, s{sR}, s{sT0}
    s_mul_i32 s{sR}, s{sR}, 0x85ebca6b
    """)
    lreduce(k)
    k(f"""
    v_xor_b32 v{vT}, s{sR}, v{vM}
    v_mov_b32 v{vT+2}, s{sR}
    v_mov_b32 v{vT+3}, s{sR}
    s_mov_b32 exec_lo, 0x1111
    s_mov_b32 exec_hi, 0
    v_xor_b32 v{vT+1}, s{sR}, v{vL}
    buffer_store_dwordx4 {vr(vT,4)}, v{vMo_w}, {sr(SW,4)}, s{sMl} offen sc1
    s_mov_b64 exec, -1
    {"s_barrier" if EBAR else ""}
    s_cmp_eq_u32 s{sCnt}, {END}
    s_cbranch_scc0 L_mld
    s_branch L_done
    """)

    vOf, vMo, vPw, vPm, vPr_, vOo = 2, 3, 4, 5, 6, 7
    vX, vY, vW, vZ = 8, 9, 10, 11
    vML = 12
    vMa = 16
    vSa = 20
    vA = 24
    vOr, vOs = 32, 34
    vU = 36
    vBt, vDyn, vCo, vPr = 42, 43, 44, 28
    sHq, sOct = 90, 91

    def stamp(n):
        if DIAG and n - STAMP in (1, 2):
            k(f"s_memrealtime {sr(sTS+2*(n-STAMP),2)}")

    def entry(kk, vpage, vbt, vdst, vt):
        kk(f"""
        v_lshlrev_b32 v{vt}, 4, v{vpage}
        v_sub_u32 v{vt}, s{sCtx}, v{vt}
        v_med3_i32 v{vt}, v{vt}, 0, 16
        v_cmp_gt_u32 vcc, s{sN}, v{vpage}
        v_lshl_or_b32 v{vdst}, v{vbt}, 15, v{vt}
        v_bfrev_b32 v{vt}, 1
        v_and_b32 v{vdst}, 0x7fffffff, v{vdst}
        v_cndmask_b32 v{vdst}, v{vt}, v{vdst}, vcc
        """)

    k(f"""
    L_service:
    s_mov_b64 {sr(sE,2)}, 0
    s_mov_b32 s{sMld}, 0
    s_mov_b32 s{SB+2}, 16384
    s_mov_b32 s{SB+3}, 0x20000
    s_cmp_eq_u32 s{sWv}, 4
    s_cbranch_scc0 L_cons
    v_lshlrev_b32 v{vBt}, 9, v{vLane}          ; (j + 128*lane)*4
    v_lshlrev_b32 v{vX}, 7, v{vLane}
    v_add_u32 v{vX}, s{sJ}, v{vX}
    v_lshlrev_b32 v{vCo}, 2, v{vLane}
    v_mov_b32 v{vZ}, -1
    v_mov_b32 v{vPr}, 0
    ds_write_b32 v{vCo}, v{vZ} offset:256
    ds_write_b32 v{vCo}, v{vPr} offset:{PROG}
    s_waitcnt lgkmcnt(0)
    s_load_dword s{sCtx}, {sr(sCTX,2)}, 0
    s_mov_b32 s{SB}, s{sBT}
    s_mov_b32 s{SB+1}, s{sBT+1}
    buffer_load_dword v{vBt}, v{vBt}, {sr(SB,4)}, s{sIdx} offen
    s_waitcnt lgkmcnt(0)
    s_min_i32 s{sT0}, s{sCtx}, 65536
    s_cmp_le_i32 s{sCtx}, 0
    s_cselect_b32 s{sT0}, 65536, s{sT0}
    s_add_u32 s{sT0}, s{sT0}, 15
    s_lshr_b32 s{sN}, s{sT0}, 4                ; npages
    s_min_i32 s{sCtx}, s{sCtx}, 65536
    s_max_i32 s{sCtx}, s{sCtx}, 0
    s_lshr_b32 s{sS}, s{sN}, 7
    s_sub_i32 s{sS}, s{sS}, {KD}
    s_max_i32 s{sS}, s{sS}, 1
    s_waitcnt vmcnt(0)
    """)
    entry(k, vX, vBt, vBt, vY)
    k(f"""
    v_cmp_gt_u32 vcc, s{sS}, v{vLane}
    s_lshl_b32 s{sT0}, s{sS}, 7
    s_add_u32 s{sT0}, s{sT0}, s{sSh}
    v_cndmask_b32 v{vBt}, v{vZ}, v{vBt}, vcc
    ds_write_b32 v{vCo}, v{vBt}
    v_lshl_add_u32 v{vBt}, v{vLane}, 4, s{sT0}
    v_lshlrev_b32 v{vDyn}, 2, v{vBt}
    buffer_load_dword v{vDyn}, v{vDyn}, {sr(SB,4)}, 0 offen
    L_cons:
    s_and_b32 s{sT0}, s2, 7
    s_lshr_b32 s{sT1}, s2, 5
    s_lshl3_add_u32 s{sT0}, s{sT0}, s{sT1}     ; 6 bits
    s_lshr_b32 s{sHq}, s{sT0}, 1               ; hq
    s_and_b32 s{sT0}, s{sT0}, 1
    s_bfe_u32 s{sT1}, s2, 0x20003
    s_lshl2_add_u32 s{sOct}, s{sT0}, s{sT1}    ; oct 0..7
    s_sub_u32 s{sCnt}, s{sWv}, 4               ; c
    s_lshr_b32 s{sT0}, s{sHq}, 2
    s_lshl3_add_u32 s{sT0}, s{sT0}, s{sCnt}
    s_lshl_b32 s{sT0}, s{sT0}, 14
    s_and_b32 s{sT1}, s{sHq}, 3
    s_lshl_b32 s{sT1}, s{sT1}, 8
    s_add_u32 s{sT0}, s{sT0}, s{sT1}
    s_lshl_b32 s{sT1}, s{sOct}, 5
    s_add_u32 s{sT0}, s{sT0}, s{sT1}
    v_lshrrev_b32 v{vY}, 2, v{vLane}           ; pr
    v_and_b32 v{vW}, 3, v{vLane}               ; ql
    v_lshlrev_b32 v{vX}, 10, v{vY}
    v_lshl_add_u32 v{vX}, v{vW}, 3, v{vX}
    v_add_u32 v{vOf}, s{sT0}, v{vX}
    s_lshl3_add_u32 s{sT0}, s{sHq}, s{sCnt}
    s_lshl_b32 s{sT0}, s{sT0}, 8
    s_add_u32 s{sT0}, s{sT0}, {ML_OFF}
    v_lshl_add_u32 v{vMo}, v{vLane}, 2, s{sT0}
    s_mov_b32 s{SW+2}, {0 if NOSNAP else wsz}
    s_mov_b32 s{SW+3}, 0x20000
    s_waitcnt lgkmcnt(0)
    {"s_barrier" if LATESNAP else ""}
    s_mov_b32 s{SW}, s{sWS}
    s_mov_b32 s{SW+1}, s{sWS+1}
    v_mov_b32 v{vSa}, 0
    {f"buffer_atomic_or v{vSa}, v{vMo}, {sr(SW,4)}, 0 offen sc0 sc1" if ASNAP else f"buffer_load_dword v{vSa}, v{vMo}, {sr(SW,4)}, 0 offen {snpol}"}
    buffer_load_dwordx2 {vr(vOs,2)}, v{vOf}, {sr(SW,4)}, 0 offen {snpol}
    {"" if LATESNAP else "s_barrier"}
    s_mov_b32 s{SW+2}, {wsz}
    s_lshl_b32 s{sT0}, s{sHq}, 8
    s_add_u32 s{sT0}, s{sT0}, s{sT1}
    v_lshrrev_b32 v{vX}, 3, v{vLane}
    v_lshl_add_u32 v{vOo}, v{vX}, 2, s{sT0}
    v_and_b32 v{vZ}, 7, v{vLane}
    v_lshlrev_b32 v{vX}, 4, v{vX}
    v_lshl_add_u32 v{vPr_}, v{vZ}, 7, v{vX}
    s_lshl_b32 s{sT0}, s{sCnt}, 7
    v_lshl_add_u32 v{vPm}, v{vZ}, 4, s{sT0}    ; (M,L) address - 8
    v_lshrrev_b32 v{vX}, 5, v{vLane}           ; row>>1
    v_lshl_add_u32 v{vX}, v{vW}, 1, v{vX}
    v_bfe_u32 v{vZ}, v{vLane}, 4, 1
    v_lshlrev_b32 v{vZ}, 2, v{vZ}
    v_lshl_add_u32 v{vX}, v{vX}, 4, v{vZ}
    v_add_u32 v{vPw}, s{sT0}, v{vX}
    s_mov_b32 s{SO}, s{sOUT}
    s_mov_b32 s{SO+1}, s{sOUT+1}
    s_mov_b32 s{SO+2}, 8192
    s_mov_b32 s{SO+3}, 0x20000
    s_mov_b32 s{sC}, 0xffff0000
    s_cmp_eq_u32 s{sWv}, 4
    s_cbranch_scc0 L_real
    s_mov_b32 s{SD}, s{sWS if CWS else sDBG}
    s_mov_b32 s{SD+1}, s{(sWS if CWS else sDBG)+1}
    s_mov_b32 s{SD+2}, {0x120000 if CWS else 256}
    s_mov_b32 s{SD+3}, 0x20000
    s_lshl1_add_u32 s{sT0}, s{sSh}, s{sHg}
    s_lshl_b32 s{sT0}, s{sT0}, {8 if CWS else 3}
    {f"s_add_u32 s{sT0}, s{sT0}, 0x110000" if CWS else ""}
    v_mov_b32 v{vCo}, s{sT0}
    v_mov_b32 v{vW}, {PROG}
    s_lshl_b32 s{sE}, s{sS}, 2
    s_add_u32 s{sS}, s{sE}, {4*(KD+1)}
    s_waitcnt vmcnt(2)
    """)
    entry(k, vBt, vDyn, vDyn, vY)
    k(f"""
    s_mov_b32 s{sI}, 0
    s_cmp_lt_u32 s{sJ}, s{sN}
    s_cbranch_scc0 L_real
    L_s0:
    ds_read_b128 {vr(vPr,4)}, v{vW}
    s_waitcnt lgkmcnt(0)
    v_max3_u32 v{vX}, v{vPr}, v{vPr+1}, v{vPr+2}
    v_max_u32 v{vX}, v{vX}, v{vPr+3}
    s_sub_i32 s{sT1}, s{sE}, {8 if SIGP <= firstN else 4}
    v_readfirstlane_b32 s{sT0}, v{vX}
    s_cmp_ge_i32 s{sT0}, s{sT1}
    s_cbranch_scc1 L_s1
    s_sleep {SSL}
    s_add_u32 s{sI}, s{sI}, 1
    s_cmp_lt_u32 s{sI}, 0x400000
    s_cbranch_scc1 L_s0
    L_s1:
    v_mov_b32 v{vX}, 1
    s_mov_b64 exec, 1
    buffer_atomic_add v{vX}, v{vCo}, {sr(SD,4)}, 0 offen sc0 sc1
    s_mov_b64 exec, -1
    v_mov_b32 v{vY}, s{sE}
    s_add_u32 s{sE}, s{sE}, 4
    s_waitcnt vmcnt(0)
    v_readfirstlane_b32 s{sT0}, v{vX}
    s_min_u32 s{sT1}, s{sT0}, {63-REM-1}
    v_readlane_b32 s{sT0}, v{vDyn}, s{sT1}
    s_cmp_ge_u32 s{sE}, s{sS}
    s_cselect_b32 s{sCnt}, {REM+1}, 1
    s_add_u32 s{sT1}, s{sT1}, s{sCnt}
    v_mov_b32 v{vX}, s{sT0}
    v_readlane_b32 s{sT1}, v{vDyn}, s{sT1}
    ds_write_b32 v{vY}, v{vX}
    s_cmp_eq_u32 s{sT1}, {END}
    s_cbranch_scc0 L_s0
    v_mov_b32 v{vX}, s{sT1}
    ds_write_b32 v{vY}, v{vX} offset:4
    L_real:
    s_mov_b32 s{sI}, {LIMIT if FORCEFB else 0}
    v_mov_b32 v{vCo}, {CTR}
    {f"s_mov_b32 s{sTS+4}, s{sTS}" if DIAG else ""}
    v_mov_b32 v{vBt}, 1
    s_waitcnt vmcnt(0) lgkmcnt(0)
    s_barrier
    """)
    stamp(1)
    if NOPOLL:
        k("s_branch L_arr")
    k(f"""
    s_branch L_m1
    L_m0:
    s_bcnt1_i32_b64 s{sT0}, vcc
    s_cmp_gt_u32 s{sT0}, {T2}
    s_cbranch_scc0 L_m2
    s_sleep {SLEEP2}
    L_m2:
    {f"s_sleep {SLEEP1}" if SLEEP1 else ""}
    L_m1:
    v_mov_b32 v{vMa}, 0
    {f"buffer_atomic_or v{vMa}, v{vMo}, {sr(SW,4)}, 0 offen sc0 sc1" if APOLL else f"buffer_load_dword v{vMa}, v{vMo}, {sr(SW,4)}, 0 offen sc1"}
    s_add_u32 s{sI}, s{sI}, 1
    s_cmp_ge_u32 s{sI}, {LIMIT}
    s_cbranch_scc1 L_fail
    v_mov_b32 v{vOr}, 0
    v_mov_b32 v{vOr+1}, 0
    s_waitcnt vmcnt(0)
    v_cmp_eq_u32 vcc, v{vMa}, v{vSa}
    s_cbranch_vccnz L_m0
    {f"buffer_atomic_or_x2 {vr(vOr,2)}, v{vOf}, {sr(SW,4)}, 0 offen sc0 sc1" if OAT else f"buffer_load_dwordx2 {vr(vOr,2)}, v{vOf}, {sr(SW,4)}, 0 offen sc1"}
    v_mov_b32_dpp v{vMa+2}, v{vMa} quad_perm:[2,2,2,2] row_mask:0xf bank_mask:0xf
    """)
    stamp(2)
    k(f"""
    v_xor_b32_dpp v{vW}, v{vMa}, v{vMa+2} quad_perm:[0,0,0,0] row_mask:0xf bank_mask:0xf   ; m
    v_xor_b32_dpp v{vZ}, v{vMa}, v{vMa+2} quad_perm:[1,1,1,1] row_mask:0xf bank_mask:0xf   ; l
    v_max_f32_dpp v{vML}, v{vW}, v{vW} row_ror:4 row_mask:0xf bank_mask:0xf
    v_max_f32_dpp v{vML}, v{vML}, v{vML} row_ror:8 row_mask:0xf bank_mask:0xf
    v_mov_b32 v{vY}, v{vML}
    v_permlane16_swap_b32 v{vML}, v{vY}
    v_max_f32 v{vML}, v{vML}, v{vY}
    v_mov_b32 v{vY}, v{vML}
    v_permlane32_swap_b32 v{vML}, v{vY}
    v_max_f32 v{vML}, v{vML}, v{vY}
    v_sub_f32 v{vW}, v{vW}, v{vML}
    v_exp_f32 v{vW}, v{vW}
    v_mul_f32 v{vZ}, v{vW}, v{vZ}
    v_add_f32_dpp v{vZ}, v{vZ}, v{vZ} row_ror:4 row_mask:0xf bank_mask:0xf
    v_add_f32_dpp v{vZ}, v{vZ}, v{vZ} row_ror:8 row_mask:0xf bank_mask:0xf
    v_mov_b32 v{vY}, v{vZ}
    v_permlane16_swap_b32 v{vZ}, v{vY}
    v_add_f32 v{vZ}, v{vZ}, v{vY}
    v_mov_b32 v{vY}, v{vZ}
    v_permlane32_swap_b32 v{vZ}, v{vY}
    v_add_f32 v{vML+1}, v{vZ}, v{vY}
    ds_write_b64 v{vPm}, {vr(vML,2)} offset:{PART+8}
    s_branch L_o1
    L_o0:
    {f"s_sleep {SLEEPO}" if SLEEPO else ""}
    s_mov_b64 exec, vcc
    {f"v_mov_b32 v{vOr}, 0" if OAT else ""}
    {f"v_mov_b32 v{vOr+1}, 0" if OAT else ""}
    {f"buffer_atomic_or_x2 {vr(vOr,2)}, v{vOf}, {sr(SW,4)}, 0 offen sc0 sc1" if OAT else f"buffer_load_dwordx2 {vr(vOr,2)}, v{vOf}, {sr(SW,4)}, 0 offen sc1"}
    s_mov_b64 exec, -1
    s_add_u32 s{sI}, s{sI}, 1
    s_cmp_ge_u32 s{sI}, {LIMIT}
    s_cbranch_scc1 L_fail
    L_o1:
    s_waitcnt vmcnt(0)
    v_xor_b32 v{vU}, v{vOr}, v{vOs}
    v_xor_b32 v{vU+1}, v{vOr+1}, v{vOs+1}
    v_xor_b32 v{vX}, v{vOr}, v{vMa+2}
    v_min_u32 v{vU}, v{vU}, v{vU+1}
    v_xor_b32 v{vY}, v{vOr+1}, v{vMa+2}
    v_cmp_eq_u32 vcc, 0, v{vU}
    v_lshlrev_b32 v{vA}, 16, v{vX}
    v_and_b32 v{vA+1}, s{sC}, v{vX}
    v_lshlrev_b32 v{vA+2}, 16, v{vY}
    v_and_b32 v{vA+3}, s{sC}, v{vY}
    s_cbranch_vccnz L_o0
    """)
    for j in range(4):
        k(f"v_mul_f32 v{vA+j}, v{vW}, v{vA+j}")
    for sh in (4, 8):
        for j in range(4):
            k(f"v_add_f32_dpp v{vA+j}, v{vA+j}, v{vA+j} row_ror:{sh} row_mask:0xf bank_mask:0xf")
    k(f"""
    v_permlane16_swap_b32 v{vA}, v{vA+1}
    v_permlane16_swap_b32 v{vA+2}, v{vA+3}
    v_add_f32 v{vA}, v{vA}, v{vA+1}
    v_add_f32 v{vA+2}, v{vA+2}, v{vA+3}
    v_permlane32_swap_b32 v{vA}, v{vA+2}
    v_add_f32 v{vA}, v{vA}, v{vA+2}
    ds_write_b32 v{vPw}, v{vA} offset:{PART}
    L_arr:
    s_mov_b64 exec, 1
    ds_add_rtn_u32 v{vBt}, v{vCo}, v{vBt}
    s_mov_b64 exec, -1
    ds_read_b128 {vr(vA,4)}, v{vPr_} offset:{PART}
    s_waitcnt lgkmcnt(1)
    v_readfirstlane_b32 s{sT0}, v{vBt}
    s_and_b32 s{sT1}, s{sT0}, 15
    s_cmp_eq_u32 s{sT1}, 7
    s_cbranch_scc0 {"L_sdiag" if DIAG else "L_end"}
    s_or_b32 s{sT0}, s{sT0}, s{sMld}
    s_cmp_gt_u32 s{sT0}, 15
    s_cbranch_scc1 L_fb
    """)
    stamp(3)
    dp = ["quad_perm:[1,0,3,2]", "quad_perm:[2,3,0,1]", "row_half_mirror"]
    k("s_waitcnt lgkmcnt(0)")
    k(f"v_max_f32_dpp v{vX}, v{vA+2}, v{vA+2} {dp[0]} row_mask:0xf bank_mask:0xf")
    k(f"s_mov_b32 vcc_lo, 0x01010101")
    k(f"s_mov_b32 vcc_hi, 0x01010101")
    k(f"v_max_f32_dpp v{vX}, v{vX}, v{vX} {dp[1]} row_mask:0xf bank_mask:0xf")
    k(f"v_max_f32_dpp v{vX}, v{vX}, v{vX} {dp[2]} row_mask:0xf bank_mask:0xf")
    k(f"""
    v_sub_f32 v{vX}, v{vA+2}, v{vX}
    v_exp_f32 v{vX}, v{vX}
    v_mul_f32 v{vA+3}, v{vX}, v{vA+3}
    v_mul_f32 v{vA}, v{vX}, v{vA}
    v_mul_f32 v{vA+1}, v{vX}, v{vA+1}
    """)
    for d in dp:
        for a_ in (vA + 3, vA, vA + 1):
            k(f"v_add_f32_dpp v{a_}, v{a_}, v{a_} {d} row_mask:0xf bank_mask:0xf")
    k(f"""
    v_rcp_f32 v{vX}, v{vA+3}
    s_mov_b64 exec, vcc
    v_mul_f32 v{vA}, v{vA}, v{vX}
    v_mul_f32 v{vA+1}, v{vA+1}, v{vX}
    v_cvt_pk_bf16_f32 v{vA}, v{vA}, v{vA+1}
    buffer_store_dword v{vA}, v{vOo}, {sr(SO,4)}, 0 offen
    """)
    if SPIN:
        if SPINX >= 0:
            k(f"""
            s_getreg_b32 s{sT1}, hwreg(HW_REG_XCC_ID)
            s_and_b32 s{sT1}, s{sT1}, 15
            s_cmp_eq_u32 s{sT1}, {SPINX}
            s_cbranch_scc0 L_end
            """)
        k(f"""
        L_spin:
        s_memrealtime {sr(sTS+2,2)}
        s_waitcnt lgkmcnt(0)
        s_sub_u32 s{sT0}, s{sTS+2}, s{sTS}
        s_cmp_lt_u32 s{sT0}, {SPIN}
        s_cbranch_scc1 L_spin
        """)
    if DIAG:
        k("L_sdiag:")
        k("s_waitcnt vmcnt(0)")
        diag_store()
    k("""
    L_end:
    s_endpgm
    """)
    cold(f"""
    L_fail:
    v_mov_b32 v{vBt}, 17
    s_mov_b32 s{sMld}, 16
    s_branch L_arr
    """)
    vFp, vFb = 126, 127
    cold(f"""
    L_fb:
    s_load_dword s{sCtx}, {sr(sCTX,2)}, 0
    s_mov_b32 s{SB}, s{sBT}
    s_mov_b32 s{SB+1}, s{sBT+1}
    s_waitcnt vmcnt(0) lgkmcnt(0)
    s_min_i32 s{sT0}, s{sCtx}, 65536
    s_cmp_le_i32 s{sCtx}, 0
    s_cselect_b32 s{sT0}, 65536, s{sT0}
    s_add_u32 s{sT0}, s{sT0}, 15
    s_lshr_b32 s{sN}, s{sT0}, 4                ; npages
    s_min_i32 s{sCtx}, s{sCtx}, 65536
    s_max_i32 s{sCtx}, s{sCtx}, 0
    s_mov_b32 s{sE}, 0
    s_lshr_b32 s{sH}, s{sHq}, 2
    L_fbfill:
    v_add_u32 v{vFp}, s{sE}, v{vLane}
    v_lshlrev_b32 v{vFb}, 2, v{vFp}
    buffer_load_dword v{vFb}, v{vFb}, {sr(SB,4)}, 0 offen
    s_lshl_b32 s{sIdx}, s{sE}, 2
    s_waitcnt vmcnt(0)
    """)
    entry(cold, vFp, vFb, vFb, vTmp)
    cold(f"""
    s_bitset1_b32 s{sFb}, 31
    v_lshlrev_b32 v{vFp}, 2, v{vLane}
    v_writelane_b32 v{vFb}, s{sFb}, 63
    ds_write_b32 v{vFp}, v{vFb}
    s_load_dword s{sBt0}, {sr(sBT,2)}, s{sIdx}
    s_cmp_eq_u32 s{sE}, 0
    s_cbranch_scc1 L_setup
    s_branch L_first
    L_fbnext:
    s_waitcnt vmcnt(0)
    s_add_u32 s{sE}, s{sE}, 63
    s_cmp_lt_u32 s{sE}, s{sN}
    s_cbranch_scc1 L_fbfill
    """)
    lreduce(cold)
    cold(f"v_rcp_f32 v{vAl}, v{vL}")
    for i in range(4):
        cold(f"v_mov_b32_dpp v{vAb}, v{vAl} row_newbcast:{4*i} row_mask:{hex(1<<i)} bank_mask:0xf")
    for e in range(8):
        cold(f"v_mul_f32 v{vAcc+4*e}, v{vAb}, v{vAcc+4*e}")
    for j in range(4):
        cold(f"v_cvt_pk_bf16_f32 v{vD+j}, v{vAcc+8*j}, v{vAcc+8*j+4}")
    cold(f"""
    s_and_b32 s{sT0}, s{sHq}, 3
    s_lshl_b32 s{sT0}, s{sT0}, 4
    s_lshl1_add_u32 s{sT0}, s{sOct}, s{sT0}
    s_lshl_b32 s{sT1}, s{sH}, 10
    v_lshlrev_b32 v{vTmp}, 4, v{vLane}
    s_lshl_b64 exec, 3, s{sT0}
    buffer_store_dwordx4 {vr(vD,4)}, v{vTmp}, {sr(SO,4)}, s{sT1} offen
    s_endpgm
    """)
    k.lines += cold.lines
    body = k.done()

    out = HEADER
    if DIAG:
        out += f"; nwaves=3072 diagoff={DIAG_OFF} trace={TRACE}\n"
    out += f"; @launch grid=(256,1,1) block=(768,1,1) lds=2048\n"
    out += '.amdgcn_target "amdgcn-amd-amdhsa--gfx950"\n.text\n'
    out += f".globl {NAME}_kernel\n.p2align 8\n.type {NAME}_kernel,@function\n{NAME}_kernel:\n"
    out += body
    out += f""".section .rodata,"a"
.p2align 6
.amdhsa_kernel {NAME}_kernel
  .amdhsa_next_free_vgpr {NV}
  .amdhsa_next_free_sgpr 98
  .amdhsa_accum_offset {(NV + 3) // 4 * 4}
  .amdhsa_group_segment_fixed_size 0
  .amdhsa_kernarg_size 64
  .amdhsa_user_sgpr_count 2
  .amdhsa_user_sgpr_kernarg_segment_ptr 1
  .amdhsa_system_sgpr_workgroup_id_x 1
.end_amdhsa_kernel
"""
    return out


if __name__ == "__main__":
    kw = {}
    for a in sys.argv[2:]:
        key, val = a.split("=")
        kw[key] = val if key in ("POL", "SNPOL", "DV") else int(val, 0)
    open(sys.argv[1], "w").write(gen(**kw))
```

```python
import sys
import struct
from asmlib import K, vr, sr

NAME = "standalone__paged_block_table_kv_pagedattention__decode"
KV_BYTES = 4100 * 32768
HEADER = open("cdna_kernels/" + NAME + ".s.ref").read().split("; Override")[0]
ML_OFF = 0x100000
WS_USED = 0x120000
DIAG_OFF = 0x300000
END = 0x80000000
PROG = 512
CTR = PROG + 64
PART = 1024


def f32(x):
    return "0x%08x" % struct.unpack("<I", struct.pack("<f", x))[0]


def gen(POL="nt", DIAG=0, SLEEP=0, SLEEP1=2, SLEEP2=20, T=12, T2=12, DV="66666666", NOPOLL=0,
        SNPOL="sc1+nt", LIMIT=0x400, KD=0, SIGP=4, SSL=1, TRACE=0, STAMP=0, NOSNAP=0, FORCEFB=0, SLEEPO=0, CWS=0, REM=2, LATESNAP=0, EBAR=0, APOLL=0, ASNAP=0, OAT=0, FAST=1, CLK=0, PRIO=0, SPIN=0, SPINX=-1, STATIC=0, PF=0, PFPOL='', WSOFF=0, MLB=6, MMASK=1, MLLATE=0, WAIT0=0, SNAPB=0, PROGO=0, MUL=0):
    dv = [int(c) for c in DV]
    D = dv[7]
    k = K()
    cold = K()
    sQ, sKp, sVp, sBT, sCTX, sOUT, sDBG, sWS = 4, 6, 8, 10, 12, 14, 16, 18
    SK, SV, SB, SQ, SW, SD, SO = 20, 24, 28, 32, 36, 68, 72
    sH, sHg, sWv, sJ, sCtx, sN, sI, sCnt, sOff, sC, sPlo, sPhi, sT0, sT1, sNeg, sIdx = range(40, 56)
    sTS = 56
    sBt0, sRec, sMl, sNxt = 64, 65, 66, 67
    sMask, sR, sMA, sMB = 76, 78, 80, 82
    sCntN, sS, sE, sFb, sSh, sMld = 84, 85, 86, 87, 88, 89
    vLane, vKo0, vKo1, vVo0, vVo1, vLi, vG4, vM, vL, vMx, vTmp, vAl, vAb = range(1, 14)
    vP = 14
    vQ = 16
    vT = 20
    vD = 24
    vB = 40
    vAcc = 56
    vKA, vVA = 88, 104
    vRo, vMo_w, vEn, vPa, vTr = 120, 121, 122, 124, 125
    NV = 128
    wsz = 0x400000 if DIAG else WS_USED
    pol = (" " + POL.replace("+", " ")) if POL else ""
    snpol = SNPOL.replace("+", " ")

    def ld(which, i, so):
        vo = (vKo0, vKo1) if which == "K" else (vVo0, vVo1)
        S = SK if which == "K" else SV
        base = vKA if which == "K" else vVA
        off = " offset:2048" if i & 1 else ""
        k(f"buffer_load_dwordx4 {vr(base+4*i,4)}, v{vo[i>>1]}, {sr(S,4)}, s{so} offen{off}{pol}")

    def diag_store():
        k(f"""
        s_memrealtime {sr(sTS+6,2)}
        s_getreg_b32 s{sT1}, hwreg(HW_REG_XCC_ID)
        s_waitcnt lgkmcnt(0)
        s_mov_b64 exec, -1
        v_mov_b32 v{vD}, s{sTS}
        v_mov_b32 v{vD+1}, s{sTS+2}
        v_mov_b32 v{vD+2}, s{sTS+4}
        v_mov_b32 v{vD+3}, s{sTS+6}
        v_mov_b32 v{vD+4}, s{sT1}
        v_mov_b32 v{vD+5}, s{sWv}
        s_getreg_b32 s{sT1}, hwreg(HW_REG_HW_ID)
        v_mov_b32 v{vD+6}, s{sT1}
        v_mov_b32 v{vD+7}, s{sI}
        s_mul_i32 s{sT0}, s2, 12
        s_add_u32 s{sT0}, s{sT0}, s{sWv}
        s_lshl_b32 s{sT0}, s{sT0}, 5
        s_add_u32 s{sT0}, s{sT0}, {DIAG_OFF}
        v_mov_b32 v{vTmp}, 0
        s_mov_b64 exec, 1
        buffer_store_dwordx4 {vr(vD,4)}, v{vTmp}, {sr(SW,4)}, s{sT0} offen
        buffer_store_dwordx4 {vr(vD+4,4)}, v{vTmp}, {sr(SW,4)}, s{sT0} offen offset:16
        """)

    seq = [("K", i) for i in range(4)] + [("V", i) for i in range(4)]
    k(f"""
    s_load_dwordx16 s[4:19], s[0:1], 0
    s_lshr_b32 s{sSh}, s2, 4                   ; shard 0..15
    s_and_b32 s{sT1}, s2, 7
    s_lshl3_add_u32 s{sJ}, s{sSh}, s{sT1}      ; j = shard*8 + (b&7)
    s_lshl_b32 s{sIdx}, s{sJ}, 2               ; j*4
    s_cmp_ge_u32 s2, 256
    s_cbranch_scc1 L_end
    """)
    if DIAG or SPIN or MUL:
        k(f"s_memrealtime {sr(sTS,2)}")
    k(f"""
    v_lshrrev_b32 v{vTmp}, 6, v0
    v_and_b32 v{vLane}, 63, v0
    v_readfirstlane_b32 s{sWv}, v{vTmp}
    s_bfe_u32 s{sHg}, s2, 0x10003
    s_cmp_ge_u32 s{sWv}, 4
    s_cbranch_scc1 L_service
    {f"s_setprio {PRIO}" if PRIO else ""}
    s_waitcnt lgkmcnt(0)
    s_load_dword s{sBt0}, {sr(sBT,2)}, s{sIdx}
    s_mov_b64 {sr(sE,2)}, 0
    s_lshl2_add_u32 s{sH}, s{sHg}, s{sWv}
    L_setup:
    v_lshrrev_b32 v{vG4}, 4, v{vLane}
    v_lshlrev_b32 v{vG4}, 2, v{vG4}            ; 4*g
    v_and_b32 v{vTmp}, 3, v{vLane}
    v_add_lshl_u32 v{vTmp}, v{vTmp}, v{vG4}, 4 ; chunk*16
    v_bfe_u32 v{vMx}, v{vLane}, 2, 2           ; tau
    s_lshl_b32 s{sT1}, s{sH}, 8                ; h*256
    v_lshl_add_u32 v{vKo0}, v{vMx}, 13, v{vTmp}
    v_add_u32 v{vKo0}, s{sT1}, v{vKo0}
    v_add_u32 v{vKo1}, 0x1000, v{vKo0}
    v_lshl_add_u32 v{vAl}, v{vMx}, 8, v{vTmp}    ; q*256 + chunk*16
    v_and_b32 v{vTmp}, 15, v{vLane}
    v_lshlrev_b32 v{vTmp}, 4, v{vTmp}
    v_lshl_add_u32 v{vVo0}, v{vG4}, 11, v{vTmp}
    v_add_u32 v{vVo0}, s{sT1}, v{vVo0}
    v_add_u32 v{vVo1}, 0x1000, v{vVo0}
    s_mov_b32 s{SK+2}, {KV_BYTES}
    s_mov_b32 s{SK+3}, 0x20000
    s_mov_b32 s{SV+2}, {KV_BYTES}
    s_mov_b32 s{SV+3}, 0x20000
    s_mov_b32 s{SQ+2}, 8192
    s_mov_b32 s{SQ+3}, 0x20000
    s_lshl_b32 s{sT0}, s{sH}, 10
    s_mov_b32 s{SQ}, s{sQ}
    s_mov_b32 s{SQ+1}, s{sQ+1}
    buffer_load_dwordx4 {vr(vQ,4)}, v{vAl}, {sr(SQ,4)}, s{sT0} offen
    s_mov_b32 s{SK}, s{sKp}
    s_mov_b32 s{SK+1}, s{sKp+1}
    s_mov_b32 s{SV}, s{sVp}
    s_mov_b32 s{SV+1}, s{sVp+1}
    """)
    k(f"""
    L_first:
    s_waitcnt lgkmcnt(0)
    s_lshl_b32 s{sOff}, s{sBt0}, 15
    """)
    for w, i in seq[:D]:
        ld(w, i, sOff)
    if DIAG:
        k(f"s_memrealtime {sr(sTS+2,2)}")
    k(f"""
    v_mov_b32 v{vLi}, 0
    s_add_u32 s{SW}, s{sWS}, {WSOFF}
    s_addc_u32 s{SW+1}, s{sWS+1}, 0
    s_mov_b32 s{SW+2}, {wsz}
    s_mov_b32 s{SW+3}, 0x20000
    v_lshlrev_b32 v{vRo}, 4, v{vLane}
    v_lshlrev_b32 v{vMo_w}, {2 if MLB else 9}, v{vLane}
    s_mov_b32 s{sI}, 0
    s_cmp_lg_u32 s{sE}, 0
    s_cbranch_scc1 L_go
    s_mov_b32 s{sC}, {f32(128 ** -0.5 * 1.4426950408889634)}
    s_mov_b32 s{sPlo}, 0x05040100
    s_mov_b32 s{sPhi}, 0x07060302
    s_mov_b32 s{sNeg}, {f32(-1e9 * 1.4426950408889634)}
    v_mov_b32 v{vM}, {f32(-3.0e38)}
    v_mov_b32 v{vL}, 0
    v_mov_b32 v{vAb}, 0
    """)
    for i in range(32):
        k(f"v_mov_b32 v{vAcc+i}, 0")
    k(f"""
    s_cmp_lg_u32 s{sFb}, 0
    s_cbranch_scc1 L_go
    {"s_barrier                                  ; first loads are out: the service waves may use the memory pipe" if SNAPB else ""}
    {f"s_memrealtime {sr(sR,2)}" if CLK else ""}
    s_lshl_b32 s{sRec}, s{sH}, 7
    s_add_u32 s{sRec}, s{sRec}, s{sJ}
    s_lshl_b32 s{sRec}, s{sRec}, 10
    {"" if CLK else f"s_load_dword s{sR}, {sr(SW,2)}, s{sRec}     ; salt source: what the record's first word holds on entry"}
    {f"s_lshr_b32 s{sMl}, s{sRec}, {10-MLB}" if MLB else f"s_lshl_b32 s{sMl}, s{sH}, 13"}
    {"" if MLB else f"s_lshl4_add_u32 s{sMl}, s{sJ}, s{sMl}"}
    s_add_u32 s{sMl}, s{sMl}, {ML_OFF}         ; ML + (h*4*128 + j)*16
    L_go:
    s_lshl2_add_u32 s{sT0}, s{sWv}, {PROG}
    v_mov_b32 v{vPa}, s{sT0}
    """)

    def qk(i):
        k(f"v_mfma_f32_16x16x32_bf16 {vr(vD+4*i,4)}, {vr(vKA+4*i,4)}, {vr(vQ,4)}, 0")

    def soft_a():
        for j in (1, 2, 3):
            for i in range(4):
                src1 = vD + 4 * i if j == 1 else vT + i
                k(f"v_add_f32_dpp v{vT+i}, v{vD+4*i+j}, v{src1} quad_perm:[{j},{j},{j},{j}] row_mask:0xf bank_mask:0xf")
        for i in range(4):
            k(f"v_mul_f32 v{vT+i}, s{sC}, v{vT+i}")
        k(f"""
        s_cmp_lt_u32 s{sCnt}, 16
        s_cbranch_scc1 L_mask
        L_nomask:
        """)
        cold(f"""
        L_mask:
        v_mov_b32 v{vTmp}, s{sNeg}
        """)
        for i in range(4):
            cold(f"""
            s_sub_i32 s{sT0}, s{sCnt}, {i}
            v_cmp_gt_i32 vcc, s{sT0}, v{vG4}
            v_cndmask_b32 v{vT+i}, v{vTmp}, v{vT+i}, vcc
            """)
        cold(f"s_branch L_nomask")
        k(f"""
        v_max3_f32 v{vMx}, v{vT}, v{vT+1}, v{vT+2}
        v_max3_f32 v{vMx}, v{vMx}, v{vT+3}, v{vM}
        v_mov_b32 v{vTmp}, v{vMx}
        v_permlane32_swap_b32 v{vMx}, v{vTmp}
        v_max_f32 v{vMx}, v{vMx}, v{vTmp}
        v_mov_b32 v{vTmp}, v{vMx}
        v_permlane16_swap_b32 v{vMx}, v{vTmp}
        v_max_f32 v{vMx}, v{vMx}, v{vTmp}
        """)

    def soft_b():
        k(f"""
        v_sub_f32 v{vAl}, v{vM}, v{vMx}
        v_mov_b32 v{vM}, v{vMx}
        v_exp_f32 v{vAl}, v{vAl}
        """)
        for i in range(4):
            k(f"v_sub_f32 v{vT+i}, v{vT+i}, v{vMx}")
        for i in range(4):
            k(f"v_exp_f32 v{vT+i}, v{vT+i}")
            k(f"v_mov_b32_dpp v{vAb}, v{vAl} row_newbcast:{4*i} row_mask:{hex(1<<i)} bank_mask:0xf")
            if i == 1:
                k(f"v_fma_f32 v{vL}, v{vL}, v{vAl}, v{vT}")
            if i == 2:
                k(f"v_cvt_pk_bf16_f32 v{vP}, v{vT}, v{vT+1}")
        k(f"""
        v_add_f32 v{vTmp}, v{vT+1}, v{vT+2}
        v_cvt_pk_bf16_f32 v{vP+1}, v{vT+2}, v{vT+3}
        v_add_f32 v{vL}, v{vL}, v{vT+3}
        v_add_f32 v{vL}, v{vL}, v{vTmp}
        """)
        for e in range(8):
            k(f"v_mul_f32 v{vAcc+4*e}, v{vAb}, v{vAcc+4*e}")

    def perm(e, half):
        j, hi = e >> 1, e & 1
        sel = sPhi if hi else sPlo
        k(f"v_perm_b32 v{vB+2*e+half}, v{vVA+8*half+4+j}, v{vVA+8*half+j}, s{sel}")

    def pv(e):
        k(f"v_mfma_f32_16x16x16_bf16 {vr(vAcc+4*e,4)}, {vr(vP,2)}, {vr(vB+2*e,2)}, {vr(vAcc+4*e,4)}")

    def perm_pv():
        perm(0, 1)
        perm(1, 1)
        for e in range(8):
            if e + 2 < 8:
                perm(e + 2, 1)
            pv(e)

    def lreduce(kk):
        kk(f"""
        v_mov_b32 v{vTmp}, v{vL}
        v_permlane32_swap_b32 v{vL}, v{vTmp}
        v_add_f32 v{vL}, v{vL}, v{vTmp}
        v_mov_b32 v{vTmp}, v{vL}
        v_permlane16_swap_b32 v{vL}, v{vTmp}
        v_add_f32 v{vL}, v{vL}, v{vTmp}
        """)

    U = [p + 1 + dv[p] for p in range(8)]
    prevU = [U[7] - 8] + U[:7]
    firstN = min(p for p in range(8) if U[p] > 8)
    assert all(U[p] >= prevU[p] for p in range(8)) and D <= 8 and firstN <= 3

    def issue(p):
        for t in range(prevU[p], U[p]):
            w, i = seq[t % 8]
            if t >= 8:
                need = {8: 0, 9: 1, 10: 2, 11: 3, 12: 5, 13: 5, 14: 7, 15: 7}[t]
                assert p >= need, (DV, p, t)
            ld(w, i, sOff if t < 8 else sNxt)

    def wait(p):
        if p == SIGP and p > firstN:
            signal()
        k(f"s_waitcnt vmcnt({prevU[p] - p - 1})")

    def signal():
        k(f"ds_write_b32 v{vPa}, v{vLi}")

    if TRACE:
        k(f"""
        v_mov_b32 v{vTr}, 0
        s_memrealtime s[96:97]
        """)
    k("L_loop:")
    if TRACE:
        k(f"""
        s_waitcnt lgkmcnt(0)
        s_add_u32 m0, s{sI}, 1
        s_nop 0
        v_writelane_b32 v{vTr}, s96, m0
        s_nop 4
        s_memrealtime s[96:97]
        """)
    k(f"""
    s_add_u32 s{sI}, s{sI}, 1
    """)
    for i in range(4):
        if i == min(SIGP, firstN) and i < firstN:
            k(f"""
            s_cmp_eq_u32 s{sI}, 1
            s_cbranch_scc1 L_nosig
            """)
            signal()
            k("L_nosig:")
        if i == firstN:
            k(f"""
            s_or_b32 s{sT0}, s{sI}, s{sFb}
            s_cmp_eq_u32 s{sT0}, 1
            s_cbranch_scc0 L_nobar
            s_barrier
            L_nobar:
            """)
            if SIGP <= firstN:
                signal()
            k(f"""
            L_get:
            ds_read2_b32 {vr(vEn,2)}, v{vLi} offset0:0 offset1:1
            """)
        wait(i)
        qk(i)
        if i == firstN:
            k(f"""
            s_waitcnt lgkmcnt(0)
            v_readfirstlane_b32 s{sT0}, v{vEn+1}
            v_readfirstlane_b32 s{sCnt}, v{vEn}
            s_cmp_eq_u32 s{sT0}, -1
            s_cbranch_scc1 L_retry
            L_got:
            s_and_b32 s{sNxt}, s{sT0}, 0xffff8000
            s_and_b32 s{sCnt}, s{sCnt}, 31
            v_add_u32 v{vLi}, 4, v{vLi}
            {f"s_cmp_eq_u32 s{sNxt}, {END}" if EBAR == 2 else ""}
            {"s_cbranch_scc0 L_nob2" if EBAR == 2 else ""}
            {"s_barrier                                  ; last page: let the combining waves start" if EBAR == 2 else ""}
            {"L_nob2:" if EBAR == 2 else ""}
            """)
        issue(i)
    soft_a()
    wait(4)
    issue(4)
    soft_b()
    k(f"""
    s_cmp_eq_u32 s{sNxt}, {END}
    s_cbranch_scc1 L_ml
    L_mld:
    """)
    wait(5)
    if U[5] > 12:
        for e in range(8):
            perm(e, 0)
        issue(5)
    else:
        issue(5)
        for e in range(8):
            perm(e, 0)
    wait(6)
    issue(6)
    if EBAR == 3:
        k(f"s_cmp_eq_u32 s{sNxt}, {END}")
    wait(7)
    if EBAR == 3:
        k(f"""
        s_cbranch_scc0 L_nob3
        s_barrier
        L_nob3:
        """)
    if U[7] > 14:
        for e in range(8):
            perm(e, 1)
        issue(7)
        for e in range(8):
            pv(e)
    else:
        issue(7)
        perm_pv()
    k(f"""
    s_mov_b32 s{sOff}, s{sNxt}
    s_cmp_eq_u32 s{sNxt}, {END}
    s_cbranch_scc0 L_loop
    s_cmp_lg_u32 s{sFb}, 0
    s_cbranch_scc1 L_fbnext
    L_done:
    """)
    for j in range(4):
        k(f"v_cvt_pk_bf16_f32 v{vD+j}, v{vAcc+8*j}, v{vAcc+8*j+4}")
        k(f"v_xor_b32 v{vD+j}, s{sR}, v{vD+j}")
    if DIAG:
        k(f"s_memrealtime {sr(sTS+4,2)}")
    k(f"buffer_store_dwordx4 {vr(vD,4)}, v{vRo}, {sr(SW,4)}, s{sRec} offen sc1")
    if MLLATE:
        k(f"""
        s_mov_b32 exec_lo, 0x1111
        s_mov_b32 exec_hi, 0
        buffer_store_dwordx4 {vr(vT,4)}, v{vMo_w}, {sr(SW,4)}, s{sMl} offen sc1
        """)
    if not EBAR:
        k("s_barrier")
    if DIAG:
        k("s_waitcnt vmcnt(0)")
        diag_store()
    if TRACE:
        k(f"""
        s_mov_b64 exec, -1
        s_lshl2_add_u32 s{sT0}, s2, s{sWv}
        s_lshl_b32 s{sT0}, s{sT0}, 8
        s_add_u32 s{sT0}, s{sT0}, {DIAG_OFF + 0x40000}
        v_lshlrev_b32 v{vTmp}, 2, v{vLane}
        buffer_store_dword v{vTr}, v{vTmp}, {sr(SW,4)}, s{sT0} offen
        """)
    k("s_endpgm")
    k(f"""
    L_retry:
    s_cmp_eq_u32 s{sCnt}, {END}
    s_cbranch_scc1 L_none
    s_add_u32 s{sBt0}, s{sBt0}, 1
    s_cmp_lt_u32 s{sBt0}, 0x400000
    s_cbranch_scc1 L_get
    s_mov_b32 s{sT0}, {END}
    s_branch L_got
    """)
    k(f"""
    L_ml:
    s_cmp_lg_u32 s{sFb}, 0
    s_cbranch_scc1 L_mld
    L_none:
    s_add_u32 s{sR}, s{sR}, s{sMl}
    s_mul_i32 s{sR}, s{sR}, 0x9e3779b1
    s_lshr_b32 s{sT0}, s{sR}, 15
    s_xor_b32 s{sR}, s{sR}, s{sT0}
    s_mul_i32 s{sR}, s{sR}, 0x85ebca6b
    """)
    lreduce(k)
    k(f"""
    v_xor_b32 v{vT}, s{sR}, v{vM}
    v_mov_b32 v{vT+2}, s{sR}
    v_mov_b32 v{vT+3}, s{sR}
    s_mov_b32 exec_lo, 0x1111
    s_mov_b32 exec_hi, 0
    v_xor_b32 v{vT+1}, s{sR}, v{vL}
    {"" if MLLATE else f"buffer_store_dwordx4 {vr(vT,4)}, v{vMo_w}, {sr(SW,4)}, s{sMl} offen sc1"}
    s_mov_b64 exec, -1
    {"s_barrier" if EBAR == 1 else ""}
    s_cmp_eq_u32 s{sCnt}, {END}
    s_cbranch_scc0 L_mld
    {"s_barrier" if EBAR >= 2 else ""}
    s_branch L_done
    """)

    vOf, vMo, vPw, vPm, vPr_, vOo = 2, 3, 4, 5, 6, 7
    vX, vY, vW, vZ = 8, 9, 10, 11
    vML = 12
    vMa = 16
    vSa = 20
    vA = 24
    vOr, vOs = 32, 34
    vU = 36
    vBt, vDyn, vCo, vPr = 42, 43, 44, 28
    sHq, sOct = 90, 91

    def stamp(n):
        if DIAG and n - STAMP in (1, 2):
            k(f"s_memrealtime {sr(sTS+2*(n-STAMP),2)}")

    def entry(kk, vpage, vbt, vdst, vt):
        kk(f"""
        v_lshlrev_b32 v{vt}, 4, v{vpage}
        v_sub_u32 v{vt}, s{sCtx}, v{vt}
        v_med3_i32 v{vt}, v{vt}, 0, 16
        v_cmp_gt_u32 vcc, s{sN}, v{vpage}
        v_lshl_or_b32 v{vdst}, v{vbt}, 15, v{vt}
        v_bfrev_b32 v{vt}, 1
        v_and_b32 v{vdst}, 0x7fffffff, v{vdst}
        v_cndmask_b32 v{vdst}, v{vt}, v{vdst}, vcc
        """)

    k(f"""
    L_service:
    s_mov_b64 {sr(sE,2)}, 0
    s_mov_b32 s{sMld}, 0
    s_mov_b32 s{SB+2}, 16384
    s_mov_b32 s{SB+3}, 0x20000
    s_cmp_eq_u32 s{sWv}, 4
    s_cbranch_scc0 {"L_pf" if PF else "L_cons"}
    v_lshlrev_b32 v{vBt}, 9, v{vLane}          ; (j + 128*lane)*4
    v_lshlrev_b32 v{vX}, 7, v{vLane}
    v_add_u32 v{vX}, s{sJ}, v{vX}
    v_lshlrev_b32 v{vCo}, 2, v{vLane}
    v_mov_b32 v{vZ}, -1
    v_mov_b32 v{vPr}, 0
    ds_write_b32 v{vCo}, v{vZ} offset:256
    ds_write_b32 v{vCo}, v{vPr} offset:{PROG}
    s_waitcnt lgkmcnt(0)
    s_load_dword s{sCtx}, {sr(sCTX,2)}, 0
    s_mov_b32 s{SB}, s{sBT}
    s_mov_b32 s{SB+1}, s{sBT+1}
    buffer_load_dword v{vBt}, v{vBt}, {sr(SB,4)}, s{sIdx} offen
    {"s_barrier" if SNAPB else ""}
    s_waitcnt lgkmcnt(0)
    s_min_i32 s{sT0}, s{sCtx}, 65536
    s_cmp_le_i32 s{sCtx}, 0
    s_cselect_b32 s{sT0}, 65536, s{sT0}
    s_add_u32 s{sT0}, s{sT0}, 15
    s_lshr_b32 s{sN}, s{sT0}, 4                ; npages
    s_min_i32 s{sCtx}, s{sCtx}, 65536
    s_max_i32 s{sCtx}, s{sCtx}, 0
    s_lshr_b32 s{sS}, s{sN}, 7
    s_sub_i32 s{sS}, s{sS}, {KD}
    s_max_i32 s{sS}, s{sS}, 1
    s_waitcnt vmcnt(0)
    """)
    entry(k, vX, vBt, vBt, vY)
    k(f"""
    v_cmp_gt_u32 vcc, s{sS}, v{vLane}
    s_lshl_b32 s{sT0}, s{sS}, 7
    s_add_u32 s{sT0}, s{sT0}, s{sSh}
    {"" if STATIC else f"v_cndmask_b32 v{vBt}, v{vZ}, v{vBt}, vcc"}
    ds_write_b32 v{vCo}, v{vBt}
    v_lshl_add_u32 v{vBt}, v{vLane}, 4, s{sT0}
    v_lshlrev_b32 v{vDyn}, 2, v{vBt}
    buffer_load_dword v{vDyn}, v{vDyn}, {sr(SB,4)}, 0 offen
    """)
    if PF:
        k(f"""
        s_branch L_cons
        L_pf:
        s_mul_i32 s{sT0}, s2, 7
        s_add_u32 s{sT0}, s{sT0}, s{sWv}
        s_sub_u32 s{sT0}, s{sT0}, 5
        s_mul_i32 s{sT0}, s{sT0}, {PF * 1024}
        v_lshlrev_b32 v{vX}, 4, v{vLane}
        s_mov_b32 s{SK+2}, {KV_BYTES}
        s_mov_b32 s{SK+3}, 0x20000
        s_mov_b32 s{SV+2}, {KV_BYTES}
        s_mov_b32 s{SV+3}, 0x20000
        s_waitcnt lgkmcnt(0)
        s_mov_b32 s{SK}, s{sKp}
        s_mov_b32 s{SK+1}, s{sKp+1}
        s_mov_b32 s{SV}, s{sVp}
        s_mov_b32 s{SV+1}, s{sVp+1}
        """)
        for i in range(PF):
            o = f" offset:{i*1024}" if i else ""
            k(f"buffer_load_dwordx4 {vr(48+8*i,4)}, v{vX}, {sr(SK,4)}, s{sT0} offen{o} {PFPOL.replace('+',' ')}")
            k(f"buffer_load_dwordx4 {vr(52+8*i,4)}, v{vX}, {sr(SV,4)}, s{sT0} offen{o} {PFPOL.replace('+',' ')}")
    k(f"""
    L_cons:
    s_and_b32 s{sT0}, s2, 7
    s_lshr_b32 s{sT1}, s2, 5
    s_lshl3_add_u32 s{sT0}, s{sT0}, s{sT1}     ; 6 bits
    s_lshr_b32 s{sHq}, s{sT0}, 1               ; hq
    s_and_b32 s{sT0}, s{sT0}, 1
    s_bfe_u32 s{sT1}, s2, 0x20003
    s_lshl2_add_u32 s{sOct}, s{sT0}, s{sT1}    ; oct 0..7
    s_sub_u32 s{sCnt}, s{sWv}, 4               ; c
    s_lshr_b32 s{sT0}, s{sHq}, 2
    s_lshl3_add_u32 s{sT0}, s{sT0}, s{sCnt}
    s_lshl_b32 s{sT0}, s{sT0}, 14
    s_and_b32 s{sT1}, s{sHq}, 3
    s_lshl_b32 s{sT1}, s{sT1}, 8
    s_add_u32 s{sT0}, s{sT0}, s{sT1}
    s_lshl_b32 s{sT1}, s{sOct}, 5
    s_add_u32 s{sT0}, s{sT0}, s{sT1}
    v_lshrrev_b32 v{vY}, 2, v{vLane}           ; pr
    v_and_b32 v{vW}, 3, v{vLane}               ; ql
    v_lshlrev_b32 v{vX}, 10, v{vY}
    v_lshl_add_u32 v{vX}, v{vW}, 3, v{vX}
    v_add_u32 v{vOf}, s{sT0}, v{vX}
    """)
    if MLB:
        k(f"""
        s_lshr_b32 s{sT0}, s{sHq}, 2
        s_lshl3_add_u32 s{sT0}, s{sT0}, s{sCnt}
        s_lshl_b32 s{sT0}, s{sT0}, {4+MLB}
        s_and_b32 s{sOff}, s{sHq}, 3
        s_lshl4_add_u32 s{sT0}, s{sOff}, s{sT0}
        s_add_u32 s{sT0}, s{sT0}, {ML_OFF}
        v_lshlrev_b32 v{vX}, {MLB}, v{vY}
        v_lshl_add_u32 v{vX}, v{vW}, 2, v{vX}
        v_add_u32 v{vMo}, s{sT0}, v{vX}
        """)
    else:
        k(f"""
        s_lshl3_add_u32 s{sT0}, s{sHq}, s{sCnt}
        s_lshl_b32 s{sT0}, s{sT0}, 8
        s_add_u32 s{sT0}, s{sT0}, {ML_OFF}
        v_lshl_add_u32 v{vMo}, v{vLane}, 2, s{sT0}
        """)
    k(f"""
    s_mov_b32 s{SW+2}, {0 if NOSNAP else wsz}
    s_mov_b32 s{SW+3}, 0x20000
    s_waitcnt lgkmcnt(0)
    {"s_barrier" if LATESNAP else ""}
    {f"s_cmp_eq_u32 s{sWv}, 4" if SNAPB else ""}
    {"s_cbranch_scc1 L_nb0" if SNAPB else ""}
    {"s_barrier" if SNAPB else ""}
    L_nb0:
    s_add_u32 s{SW}, s{sWS}, {WSOFF}
    s_addc_u32 s{SW+1}, s{sWS+1}, 0
    v_mov_b32 v{vSa}, 0
    {f"buffer_atomic_or v{vSa}, v{vMo}, {sr(SW,4)}, 0 offen sc0 sc1" if ASNAP else f"buffer_load_dword v{vSa}, v{vMo}, {sr(SW,4)}, 0 offen {snpol}"}
    buffer_load_dwordx2 {vr(vOs,2)}, v{vOf}, {sr(SW,4)}, 0 offen {snpol}
    {"" if LATESNAP else "s_barrier"}
    s_mov_b32 s{SW+2}, {wsz}
    s_lshl_b32 s{sT0}, s{sHq}, 8
    s_add_u32 s{sT0}, s{sT0}, s{sT1}
    v_lshrrev_b32 v{vX}, 3, v{vLane}
    v_lshl_add_u32 v{vOo}, v{vX}, 2, s{sT0}
    v_and_b32 v{vZ}, 7, v{vLane}
    v_lshlrev_b32 v{vX}, 4, v{vX}
    v_lshl_add_u32 v{vPr_}, v{vZ}, 7, v{vX}
    s_lshl_b32 s{sT0}, s{sCnt}, 7
    v_lshl_add_u32 v{vPm}, v{vZ}, 4, s{sT0}    ; (M,L) address - 8
    v_lshrrev_b32 v{vX}, 5, v{vLane}           ; row>>1
    v_lshl_add_u32 v{vX}, v{vW}, 1, v{vX}
    v_bfe_u32 v{vZ}, v{vLane}, 4, 1
    v_lshlrev_b32 v{vZ}, 2, v{vZ}
    v_lshl_add_u32 v{vX}, v{vX}, 4, v{vZ}
    v_add_u32 v{vPw}, s{sT0}, v{vX}
    s_mov_b32 s{SO}, s{sOUT}
    s_mov_b32 s{SO+1}, s{sOUT+1}
    s_mov_b32 s{SO+2}, 8192
    s_mov_b32 s{SO+3}, 0x20000
    s_mov_b32 s{sC}, 0xffff0000
    s_cmp_eq_u32 s{sWv}, {99 if STATIC else 4}
    s_cbranch_scc0 L_real
    s_mov_b32 s{SD}, s{sWS if CWS else sDBG}
    s_mov_b32 s{SD+1}, s{(sWS if CWS else sDBG)+1}
    s_mov_b32 s{SD+2}, {0x120000 if CWS else 256}
    s_mov_b32 s{SD+3}, 0x20000
    s_lshl1_add_u32 s{sT0}, s{sSh}, s{sHg}
    s_lshl_b32 s{sT0}, s{sT0}, {8 if CWS else 3}
    {f"s_add_u32 s{sT0}, s{sT0}, 0x110000" if CWS else ""}
    v_mov_b32 v{vCo}, s{sT0}
    v_mov_b32 v{vW}, {PROG}
    s_lshl_b32 s{sE}, s{sS}, 2
    s_add_u32 s{sS}, s{sE}, {4*(KD+1)}
    s_waitcnt vmcnt(2)
    """)
    entry(k, vBt, vDyn, vDyn, vY)
    k(f"""
    s_mov_b32 s{sI}, 0
    s_cmp_lt_u32 s{sJ}, s{sN}
    s_cbranch_scc0 L_real
    L_s0:
    ds_read_b128 {vr(vPr,4)}, v{vW}
    s_waitcnt lgkmcnt(0)
    v_max3_u32 v{vX}, v{vPr}, v{vPr+1}, v{vPr+2}
    v_max_u32 v{vX}, v{vX}, v{vPr+3}
    s_sub_i32 s{sT1}, s{sE}, {8 if SIGP <= firstN else 4}
    v_readfirstlane_b32 s{sT0}, v{vX}
    s_cmp_ge_i32 s{sT0}, s{sT1}
    s_cbranch_scc1 L_s1
    s_sleep {SSL}
    s_add_u32 s{sI}, s{sI}, 1
    s_cmp_lt_u32 s{sI}, 0x400000
    s_cbranch_scc1 L_s0
    L_s1:
    v_mov_b32 v{vX}, 1
    s_mov_b64 exec, 1
    buffer_atomic_add v{vX}, v{vCo}, {sr(SD,4)}, 0 offen sc0 sc1
    s_mov_b64 exec, -1
    v_mov_b32 v{vY}, s{sE}
    s_add_u32 s{sE}, s{sE}, 4
    s_waitcnt vmcnt(0)
    v_readfirstlane_b32 s{sT0}, v{vX}
    s_min_u32 s{sT1}, s{sT0}, {63-REM-1}
    v_readlane_b32 s{sT0}, v{vDyn}, s{sT1}
    s_cmp_ge_u32 s{sE}, s{sS}
    s_cselect_b32 s{sCnt}, {REM+1}, 1
    s_add_u32 s{sT1}, s{sT1}, s{sCnt}
    v_mov_b32 v{vX}, s{sT0}
    v_readlane_b32 s{sT1}, v{vDyn}, s{sT1}
    ds_write_b32 v{vY}, v{vX}
    s_cmp_eq_u32 s{sT1}, {END}
    s_cbranch_scc0 L_s0
    v_mov_b32 v{vX}, s{sT1}
    ds_write_b32 v{vY}, v{vX} offset:4
    L_real:
    s_mov_b32 s{sI}, {LIMIT if FORCEFB else 0}
    v_mov_b32 v{vCo}, {CTR}
    {f"s_mov_b32 s{sTS+4}, s{sTS}" if DIAG else ""}
    v_mov_b32 v{vBt}, 1
    s_waitcnt vmcnt(0) lgkmcnt(0)
    s_barrier
    """)
    stamp(1)
    if NOPOLL:
        k("s_branch L_arr")
    if WAIT0:
        k(f"s_sleep {WAIT0}")
    if PROGO:
        k(f"v_mov_b32 v{vOr}, v{vOs}")
    k(f"""
    s_branch L_m1
    L_m0:
    s_bcnt1_i32_b64 s{sT0}, vcc
    s_cmp_gt_u32 s{sT0}, {T2}
    s_cbranch_scc0 L_m2
    s_sleep {SLEEP2}
    L_m2:
    {f"s_sleep {SLEEP1}" if SLEEP1 else ""}
    {f"s_andn2_b64 exec, {sr(sMask,2)}, vcc       ; records whose (m,l) are there: fetch them now" if PROGO else ""}
    {"s_cbranch_execz L_m5" if PROGO else ""}
    {f"buffer_load_dwordx2 {vr(vOr,2)}, v{vOf}, {sr(SW,4)}, 0 offen sc1" if PROGO else ""}
    L_m5:
    {"s_mov_b64 exec, vcc" if MMASK else ""}
    L_m1:
    {f"buffer_atomic_or v{vMa}, v{vMo}, {sr(SW,4)}, 0 offen sc0 sc1" if APOLL else f"buffer_load_dword v{vMa}, v{vMo}, {sr(SW,4)}, 0 offen sc1"}
    s_mov_b64 exec, -1
    s_add_u32 s{sI}, s{sI}, 1
    s_cmp_ge_u32 s{sI}, {LIMIT}
    s_cbranch_scc1 L_fail
    s_waitcnt vmcnt(0)
    v_cmp_eq_u32 vcc, v{vMa}, v{vSa}
    {f"v_cmp_eq_u32 {sr(sMask,2)}, v{vOr}, v{vOs}" if PROGO else ""}
    s_cbranch_vccnz L_m0
    {f"s_mov_b64 exec, {sr(sMask,2)}" if PROGO else ""}
    {"s_cbranch_execz L_m4" if PROGO else ""}
    {f"buffer_atomic_or_x2 {vr(vOr,2)}, v{vOf}, {sr(SW,4)}, 0 offen sc0 sc1" if OAT else f"buffer_load_dwordx2 {vr(vOr,2)}, v{vOf}, {sr(SW,4)}, 0 offen sc1"}
    L_m4:
    {"s_mov_b64 exec, -1" if PROGO else ""}
    v_mov_b32_dpp v{vMa+2}, v{vMa} quad_perm:[2,2,2,2] row_mask:0xf bank_mask:0xf
    """)
    stamp(2)
    k(f"""
    v_xor_b32_dpp v{vW}, v{vMa}, v{vMa+2} quad_perm:[0,0,0,0] row_mask:0xf bank_mask:0xf   ; m
    v_xor_b32_dpp v{vZ}, v{vMa}, v{vMa+2} quad_perm:[1,1,1,1] row_mask:0xf bank_mask:0xf   ; l
    v_max_f32_dpp v{vML}, v{vW}, v{vW} row_ror:4 row_mask:0xf bank_mask:0xf
    v_max_f32_dpp v{vML}, v{vML}, v{vML} row_ror:8 row_mask:0xf bank_mask:0xf
    v_mov_b32 v{vY}, v{vML}
    v_permlane16_swap_b32 v{vML}, v{vY}
    v_max_f32 v{vML}, v{vML}, v{vY}
    v_mov_b32 v{vY}, v{vML}
    v_permlane32_swap_b32 v{vML}, v{vY}
    v_max_f32 v{vML}, v{vML}, v{vY}
    v_sub_f32 v{vW}, v{vW}, v{vML}
    v_exp_f32 v{vW}, v{vW}
    v_mul_f32 v{vZ}, v{vW}, v{vZ}
    v_add_f32_dpp v{vZ}, v{vZ}, v{vZ} row_ror:4 row_mask:0xf bank_mask:0xf
    v_add_f32_dpp v{vZ}, v{vZ}, v{vZ} row_ror:8 row_mask:0xf bank_mask:0xf
    v_mov_b32 v{vY}, v{vZ}
    v_permlane16_swap_b32 v{vZ}, v{vY}
    v_add_f32 v{vZ}, v{vZ}, v{vY}
    v_mov_b32 v{vY}, v{vZ}
    v_permlane32_swap_b32 v{vZ}, v{vY}
    v_add_f32 v{vML+1}, v{vZ}, v{vY}
    ds_write_b64 v{vPm}, {vr(vML,2)} offset:{PART+8}
    s_branch L_o1
    L_o0:
    {f"s_sleep {SLEEPO}" if SLEEPO else ""}
    s_mov_b64 exec, vcc
    {f"v_mov_b32 v{vOr}, 0" if OAT else ""}
    {f"v_mov_b32 v{vOr+1}, 0" if OAT else ""}
    {f"buffer_atomic_or_x2 {vr(vOr,2)}, v{vOf}, {sr(SW,4)}, 0 offen sc0 sc1" if OAT else f"buffer_load_dwordx2 {vr(vOr,2)}, v{vOf}, {sr(SW,4)}, 0 offen sc1"}
    s_mov_b64 exec, -1
    s_add_u32 s{sI}, s{sI}, 1
    s_cmp_ge_u32 s{sI}, {LIMIT}
    s_cbranch_scc1 L_fail
    L_o1:
    s_waitcnt vmcnt(0)
    v_xor_b32 v{vU}, v{vOr}, v{vOs}
    v_xor_b32 v{vU+1}, v{vOr+1}, v{vOs+1}
    v_xor_b32 v{vX}, v{vOr}, v{vMa+2}
    v_min_u32 v{vU}, v{vU}, v{vU+1}
    v_xor_b32 v{vY}, v{vOr+1}, v{vMa+2}
    v_cmp_eq_u32 vcc, 0, v{vU}
    v_lshlrev_b32 v{vA}, 16, v{vX}
    v_and_b32 v{vA+1}, s{sC}, v{vX}
    v_lshlrev_b32 v{vA+2}, 16, v{vY}
    v_and_b32 v{vA+3}, s{sC}, v{vY}
    s_cbranch_vccnz L_o0
    """)
    for j in range(4):
        k(f"v_mul_f32 v{vA+j}, v{vW}, v{vA+j}")
    for sh in (4, 8):
        for j in range(4):
            k(f"v_add_f32_dpp v{vA+j}, v{vA+j}, v{vA+j} row_ror:{sh} row_mask:0xf bank_mask:0xf")
    k(f"""
    v_permlane16_swap_b32 v{vA}, v{vA+1}
    v_permlane16_swap_b32 v{vA+2}, v{vA+3}
    v_add_f32 v{vA}, v{vA}, v{vA+1}
    v_add_f32 v{vA+2}, v{vA+2}, v{vA+3}
    v_permlane32_swap_b32 v{vA}, v{vA+2}
    v_add_f32 v{vA}, v{vA}, v{vA+2}
    ds_write_b32 v{vPw}, v{vA} offset:{PART}
    L_arr:
    s_mov_b64 exec, 1
    ds_add_rtn_u32 v{vBt}, v{vCo}, v{vBt}
    s_mov_b64 exec, -1
    ds_read_b128 {vr(vA,4)}, v{vPr_} offset:{PART}
    s_waitcnt lgkmcnt(1)
    v_readfirstlane_b32 s{sT0}, v{vBt}
    s_and_b32 s{sT1}, s{sT0}, 15
    s_cmp_eq_u32 s{sT1}, 7
    s_cbranch_scc0 {"L_sdiag" if DIAG else "L_end"}
    s_or_b32 s{sT0}, s{sT0}, s{sMld}
    s_cmp_gt_u32 s{sT0}, 15
    s_cbranch_scc1 L_fb
    """)
    stamp(3)
    dp = ["quad_perm:[1,0,3,2]", "quad_perm:[2,3,0,1]", "row_half_mirror"]
    k("s_waitcnt lgkmcnt(0)")
    k(f"v_max_f32_dpp v{vX}, v{vA+2}, v{vA+2} {dp[0]} row_mask:0xf bank_mask:0xf")
    k(f"s_mov_b32 vcc_lo, 0x01010101")
    k(f"s_mov_b32 vcc_hi, 0x01010101")
    k(f"v_max_f32_dpp v{vX}, v{vX}, v{vX} {dp[1]} row_mask:0xf bank_mask:0xf")
    k(f"v_max_f32_dpp v{vX}, v{vX}, v{vX} {dp[2]} row_mask:0xf bank_mask:0xf")
    k(f"""
    v_sub_f32 v{vX}, v{vA+2}, v{vX}
    v_exp_f32 v{vX}, v{vX}
    v_mul_f32 v{vA+3}, v{vX}, v{vA+3}
    v_mul_f32 v{vA}, v{vX}, v{vA}
    v_mul_f32 v{vA+1}, v{vX}, v{vA+1}
    """)
    for d in dp:
        for a_ in (vA + 3, vA, vA + 1):
            k(f"v_add_f32_dpp v{a_}, v{a_}, v{a_} {d} row_mask:0xf bank_mask:0xf")
    k(f"""
    v_rcp_f32 v{vX}, v{vA+3}
    s_mov_b64 exec, vcc
    v_mul_f32 v{vA}, v{vA}, v{vX}
    v_mul_f32 v{vA+1}, v{vA+1}, v{vX}
    v_cvt_pk_bf16_f32 v{vA}, v{vA}, v{vA+1}
    buffer_store_dword v{vA}, v{vOo}, {sr(SO,4)}, 0 offen
    """)
    if MUL:
        k(f"""
        s_waitcnt vmcnt(0)
        s_memrealtime {sr(sTS+2,2)}
        s_waitcnt lgkmcnt(0)
        s_sub_u32 s{sT1}, s{sTS+2}, s{sTS}
        s_mul_i32 s{sT1}, s{sT1}, {MUL}
        L_spinm:
        s_sleep 2
        s_memrealtime {sr(sTS+2,2)}
        s_waitcnt lgkmcnt(0)
        s_sub_u32 s{sT0}, s{sTS+2}, s{sTS}
        s_cmp_lt_u32 s{sT0}, s{sT1}
        s_cbranch_scc1 L_spinm
        """)
    if SPIN:
        if SPINX >= 0:
            k(f"""
            s_getreg_b32 s{sT1}, hwreg(HW_REG_XCC_ID)
            s_and_b32 s{sT1}, s{sT1}, 15
            s_cmp_eq_u32 s{sT1}, {SPINX}
            s_cbranch_scc0 L_end
            """)
        k(f"""
        L_spin:
        s_memrealtime {sr(sTS+2,2)}
        s_waitcnt lgkmcnt(0)
        s_sub_u32 s{sT0}, s{sTS+2}, s{sTS}
        s_cmp_lt_u32 s{sT0}, {SPIN}
        s_cbranch_scc1 L_spin
        """)
    if DIAG:
        k("L_sdiag:")
        k("s_waitcnt vmcnt(0)")
        diag_store()
    k("""
    L_end:
    s_endpgm
    """)
    cold(f"""
    L_fail:
    v_mov_b32 v{vBt}, 17
    s_mov_b32 s{sMld}, 16
    s_branch L_arr
    """)
    vFp, vFb = 126, 127
    cold(f"""
    L_fb:
    s_load_dword s{sCtx}, {sr(sCTX,2)}, 0
    s_waitcnt vmcnt(0) lgkmcnt(0)
    s_min_i32 s{sT0}, s{sCtx}, 65536
    s_cmp_le_i32 s{sCtx}, 0
    s_cselect_b32 s{sT0}, 65536, s{sT0}
    s_add_u32 s{sT0}, s{sT0}, 15
    s_lshr_b32 s{sN}, s{sT0}, 4                ; npages
    s_min_i32 s{sCtx}, s{sCtx}, 65536
    s_max_i32 s{sCtx}, s{sCtx}, 0
    s_mov_b32 s{sE}, 0
    s_lshr_b32 s{sH}, s{sHq}, 2
    L_fbfill:
    s_mov_b32 s{SB}, s{sBT}
    s_mov_b32 s{SB+1}, s{sBT+1}
    s_mov_b32 s{SB+2}, 16384
    s_mov_b32 s{SB+3}, 0x20000
    v_add_u32 v{vFp}, s{sE}, v{vLane}
    v_lshlrev_b32 v{vFb}, 2, v{vFp}
    buffer_load_dword v{vFb}, v{vFb}, {sr(SB,4)}, 0 offen
    s_lshl_b32 s{sIdx}, s{sE}, 2
    s_waitcnt vmcnt(0)
    """)
    entry(cold, vFp, vFb, vFb, vTmp)
    cold(f"""
    s_bitset1_b32 s{sFb}, 31
    v_lshlrev_b32 v{vFp}, 2, v{vLane}
    v_writelane_b32 v{vFb}, s{sFb}, 63
    ds_write_b32 v{vFp}, v{vFb}
    s_load_dword s{sBt0}, {sr(sBT,2)}, s{sIdx}
    s_cmp_eq_u32 s{sE}, 0
    s_cbranch_scc1 L_setup
    s_branch L_first
    L_fbnext:
    s_waitcnt vmcnt(0)
    s_add_u32 s{sE}, s{sE}, 63
    s_cmp_lt_u32 s{sE}, s{sN}
    s_cbranch_scc1 L_fbfill
    """)
    lreduce(cold)
    cold(f"v_rcp_f32 v{vAl}, v{vL}")
    for i in range(4):
        cold(f"v_mov_b32_dpp v{vAb}, v{vAl} row_newbcast:{4*i} row_mask:{hex(1<<i)} bank_mask:0xf")
    for e in range(8):
        cold(f"v_mul_f32 v{vAcc+4*e}, v{vAb}, v{vAcc+4*e}")
    for j in range(4):
        cold(f"v_cvt_pk_bf16_f32 v{vD+j}, v{vAcc+8*j}, v{vAcc+8*j+4}")
    cold(f"""
    s_mov_b32 s{SO}, s{sOUT}
    s_mov_b32 s{SO+1}, s{sOUT+1}
    s_mov_b32 s{SO+2}, 8192
    s_mov_b32 s{SO+3}, 0x20000
    s_and_b32 s{sT0}, s{sHq}, 3
    s_lshl_b32 s{sT0}, s{sT0}, 4
    s_lshl1_add_u32 s{sT0}, s{sOct}, s{sT0}
    s_lshl_b32 s{sT1}, s{sH}, 10
    v_lshlrev_b32 v{vTmp}, 4, v{vLane}
    s_lshl_b64 exec, 3, s{sT0}
    buffer_store_dwordx4 {vr(vD,4)}, v{vTmp}, {sr(SO,4)}, s{sT1} offen
    s_endpgm
    """)
    k.lines += cold.lines
    body = k.done()

    out = HEADER
    if DIAG:
        out += f"; nwaves=3072 diagoff={DIAG_OFF} trace={TRACE}\n"
    out += f"; @launch grid=(256,1,1) block=(768,1,1) lds=2048\n"
    out += '.amdgcn_target "amdgcn-amd-amdhsa--gfx950"\n.text\n'
    out += f".globl {NAME}_kernel\n.p2align 8\n.type {NAME}_kernel,@function\n{NAME}_kernel:\n"
    out += body
    out += f""".section .rodata,"a"
.p2align 6
.amdhsa_kernel {NAME}_kernel
  .amdhsa_next_free_vgpr {NV}
  .amdhsa_next_free_sgpr 98
  .amdhsa_accum_offset {(NV + 3) // 4 * 4}
  .amdhsa_group_segment_fixed_size 0
  .amdhsa_kernarg_size 64
  .amdhsa_user_sgpr_count 2
  .amdhsa_user_sgpr_kernarg_segment_ptr 1
  .amdhsa_system_sgpr_workgroup_id_x 1
.end_amdhsa_kernel
"""
    return out


if __name__ == "__main__":
    kw = {}
    for a in sys.argv[2:]:
        key, val = a.split("=")
        kw[key] = val if key in ("POL", "SNPOL", "DV", "PFPOL") else int(val, 0)
    open(sys.argv[1], "w").write(gen(**kw))
```

```python
import sys
import struct
from asmlib import K, vr, sr

NAME = "standalone__paged_block_table_kv_pagedattention__decode"
KV_BYTES = 4100 * 32768
HEADER = open("cdna_kernels/" + NAME + ".s.ref").read().split("; Override")[0]
ML_OFF = 0x100000
WS_USED = 0x120000
DIAG_OFF = 0x300000
END = 0x80000000
PROG = 512
CTR = PROG + 64
PART = 1024


def f32(x):
    return "0x%08x" % struct.unpack("<I", struct.pack("<f", x))[0]


def gen(POL="nt", DIAG=0, SLEEP=0, SLEEP1=2, SLEEP2=20, T=12, T2=12, DV="66666666", NOPOLL=0,
        SNPOL="sc1+nt", LIMIT=0x400, KD=0, SIGP=4, SSL=1, TRACE=0, STAMP=0, NOSNAP=0, FORCEFB=0, SLEEPO=0, CWS=0, REM=16, LATESNAP=0, EBAR=0, APOLL=0, ASNAP=0, OAT=0, FAST=1, CLK=0, PRIO=0, SPIN=0, SPINX=-1, STATIC=0, PF=0, PFPOL='', WSOFF=0, MLB=6, MMASK=1, MLLATE=0, WAIT0=0, SNAPB=0, PROGO=0, MUL=0, VBT=0, LG=2, EB1=1):
    assert (128 >> LG) * (KD + 1) + REM + 2 <= 63
    dv = [int(c) for c in DV]
    D = dv[7]
    k = K()
    cold = K()
    sQ, sKp, sVp, sBT, sCTX, sOUT, sDBG, sWS = 4, 6, 8, 10, 12, 14, 16, 18
    SK, SV, SB, SQ, SW, SD, SO = 20, 24, 28, 32, 36, 68, 72
    sH, sHg, sWv, sJ, sCtx, sN, sI, sCnt, sOff, sC, sPlo, sPhi, sT0, sT1, sNeg, sIdx = range(40, 56)
    sTS = 56
    sBt0, sRec, sMl, sNxt = 64, 65, 66, 67
    sMask, sR, sMA, sMB = 76, 78, 80, 82
    sCntN, sS, sE, sFb, sSh, sMld = 84, 85, 86, 87, 88, 89
    vLane, vKo0, vKo1, vVo0, vVo1, vLi, vG4, vM, vL, vMx, vTmp, vAl, vAb = range(1, 14)
    vP = 14
    vQ = 16
    vT = 20
    vD = 24
    vB = 40
    vAcc = 56
    vKA, vVA = 88, 104
    vRo, vMo_w, vEn, vPa, vTr = 120, 121, 122, 124, 125
    NV = 128
    wsz = 0x400000 if DIAG else WS_USED
    pol = (" " + POL.replace("+", " ")) if POL else ""
    snpol = SNPOL.replace("+", " ")

    def ld(which, i, so):
        vo = (vKo0, vKo1) if which == "K" else (vVo0, vVo1)
        S = SK if which == "K" else SV
        base = vKA if which == "K" else vVA
        off = " offset:2048" if i & 1 else ""
        k(f"buffer_load_dwordx4 {vr(base+4*i,4)}, v{vo[i>>1]}, {sr(S,4)}, s{so} offen{off}{pol}")

    def diag_store():
        k(f"""
        s_memrealtime {sr(sTS+6,2)}
        s_getreg_b32 s{sT1}, hwreg(HW_REG_XCC_ID)
        s_waitcnt lgkmcnt(0)
        s_mov_b64 exec, -1
        v_mov_b32 v{vD}, s{sTS}
        v_mov_b32 v{vD+1}, s{sTS+2}
        v_mov_b32 v{vD+2}, s{sTS+4}
        v_mov_b32 v{vD+3}, s{sTS+6}
        v_mov_b32 v{vD+4}, s{sT1}
        v_mov_b32 v{vD+5}, s{sWv}
        s_getreg_b32 s{sT1}, hwreg(HW_REG_HW_ID)
        v_mov_b32 v{vD+6}, s{sT1}
        v_mov_b32 v{vD+7}, s{sI}
        s_mul_i32 s{sT0}, s2, 12
        s_add_u32 s{sT0}, s{sT0}, s{sWv}
        s_lshl_b32 s{sT0}, s{sT0}, 5
        s_add_u32 s{sT0}, s{sT0}, {DIAG_OFF}
        v_mov_b32 v{vTmp}, 0
        s_mov_b64 exec, 1
        buffer_store_dwordx4 {vr(vD,4)}, v{vTmp}, {sr(SW,4)}, s{sT0} offen
        buffer_store_dwordx4 {vr(vD+4,4)}, v{vTmp}, {sr(SW,4)}, s{sT0} offen offset:16
        """)

    seq = [("K", i) for i in range(4)] + [("V", i) for i in range(4)]
    k(f"""
    s_load_dwordx16 s[4:19], s[0:1], 0
    s_lshr_b32 s{sSh}, s2, 4                   ; shard 0..15
    s_and_b32 s{sT1}, s2, 7
    s_lshl3_add_u32 s{sJ}, s{sSh}, s{sT1}      ; j = shard*8 + (b&7)
    s_lshl_b32 s{sIdx}, s{sJ}, 2               ; j*4
    s_cmp_ge_u32 s2, 256
    s_cbranch_scc1 L_end
    """)
    if DIAG or SPIN or MUL:
        k(f"s_memrealtime {sr(sTS,2)}")
    k(f"""
    v_lshrrev_b32 v{vTmp}, 6, v0
    v_and_b32 v{vLane}, 63, v0
    v_readfirstlane_b32 s{sWv}, v{vTmp}
    s_bfe_u32 s{sHg}, s2, 0x10003
    s_cmp_ge_u32 s{sWv}, 4
    s_cbranch_scc1 L_service
    {f"s_setprio {PRIO}" if PRIO else ""}
    {f"v_mov_b32 v{vEn}, s{sIdx}" if VBT else ""}
    s_waitcnt lgkmcnt(0)
    {f"global_load_dword v{vEn}, v{vEn}, {sr(sBT,2)}" if VBT else f"s_load_dword s{sBt0}, {sr(sBT,2)}, s{sIdx}"}
    s_mov_b64 {sr(sE,2)}, 0
    s_lshl2_add_u32 s{sH}, s{sHg}, s{sWv}
    L_setup:
    v_lshrrev_b32 v{vG4}, 4, v{vLane}
    v_lshlrev_b32 v{vG4}, 2, v{vG4}            ; 4*g
    v_and_b32 v{vTmp}, 3, v{vLane}
    v_add_lshl_u32 v{vTmp}, v{vTmp}, v{vG4}, 4 ; chunk*16
    v_bfe_u32 v{vMx}, v{vLane}, 2, 2           ; tau
    s_lshl_b32 s{sT1}, s{sH}, 8                ; h*256
    v_lshl_add_u32 v{vKo0}, v{vMx}, 13, v{vTmp}
    v_add_u32 v{vKo0}, s{sT1}, v{vKo0}
    v_add_u32 v{vKo1}, 0x1000, v{vKo0}
    v_lshl_add_u32 v{vAl}, v{vMx}, 8, v{vTmp}    ; q*256 + chunk*16
    v_and_b32 v{vTmp}, 15, v{vLane}
    v_lshlrev_b32 v{vTmp}, 4, v{vTmp}
    v_lshl_add_u32 v{vVo0}, v{vG4}, 11, v{vTmp}
    v_add_u32 v{vVo0}, s{sT1}, v{vVo0}
    v_add_u32 v{vVo1}, 0x1000, v{vVo0}
    s_mov_b32 s{SK+2}, {KV_BYTES}
    s_mov_b32 s{SK+3}, 0x20000
    s_mov_b32 s{SV+2}, {KV_BYTES}
    s_mov_b32 s{SV+3}, 0x20000
    s_mov_b32 s{SQ+2}, 8192
    s_mov_b32 s{SQ+3}, 0x20000
    s_lshl_b32 s{sT0}, s{sH}, 10
    s_mov_b32 s{SQ}, s{sQ}
    s_mov_b32 s{SQ+1}, s{sQ+1}
    buffer_load_dwordx4 {vr(vQ,4)}, v{vAl}, {sr(SQ,4)}, s{sT0} offen
    s_mov_b32 s{SK}, s{sKp}
    s_mov_b32 s{SK+1}, s{sKp+1}
    s_mov_b32 s{SV}, s{sVp}
    s_mov_b32 s{SV+1}, s{sVp+1}
    """)
    if VBT:
        k(f"""
        s_cmp_lg_u32 s{sFb}, 0
        s_cbranch_scc1 L_first
        s_waitcnt vmcnt(1)
        v_readfirstlane_b32 s{sBt0}, v{vEn}
        """)
    k(f"""
    L_first:
    s_waitcnt lgkmcnt(0)
    s_lshl_b32 s{sOff}, s{sBt0}, 15
    """)
    for w, i in seq[:D]:
        ld(w, i, sOff)
    if DIAG == 1:
        k(f"s_memrealtime {sr(sTS+2,2)}")
    k(f"""
    v_mov_b32 v{vLi}, 0
    s_add_u32 s{SW}, s{sWS}, {WSOFF}
    s_addc_u32 s{SW+1}, s{sWS+1}, 0
    s_mov_b32 s{SW+2}, {wsz}
    s_mov_b32 s{SW+3}, 0x20000
    v_lshlrev_b32 v{vRo}, 4, v{vLane}
    v_lshlrev_b32 v{vMo_w}, {2 if MLB else 9}, v{vLane}
    s_mov_b32 s{sI}, 0
    s_cmp_lg_u32 s{sE}, 0
    s_cbranch_scc1 L_go
    s_mov_b32 s{sC}, {f32(128 ** -0.5 * 1.4426950408889634)}
    s_mov_b32 s{sPlo}, 0x05040100
    s_mov_b32 s{sPhi}, 0x07060302
    s_mov_b32 s{sNeg}, {f32(-1e9 * 1.4426950408889634)}
    v_mov_b32 v{vM}, {f32(-3.0e38)}
    v_mov_b32 v{vL}, 0
    v_mov_b32 v{vAb}, 0
    """)
    for i in range(32):
        k(f"v_mov_b32 v{vAcc+i}, 0")
    k(f"""
    s_cmp_lg_u32 s{sFb}, 0
    s_cbranch_scc1 L_go
    {"s_barrier                                  ; first loads are out: the service waves may use the memory pipe" if SNAPB else ""}
    {"s_barrier                                  ; the list has been reset" if EB1 else ""}
    {f"s_memrealtime {sr(sR,2)}" if CLK else ""}
    s_lshl_b32 s{sRec}, s{sH}, 7
    s_add_u32 s{sRec}, s{sRec}, s{sJ}
    s_lshl_b32 s{sRec}, s{sRec}, 10
    {"" if CLK else f"s_load_dword s{sR}, {sr(SW,2)}, s{sRec}     ; salt source: what the record's first word holds on entry"}
    {f"s_lshr_b32 s{sMl}, s{sRec}, {10-MLB}" if MLB else f"s_lshl_b32 s{sMl}, s{sH}, 13"}
    {"" if MLB else f"s_lshl4_add_u32 s{sMl}, s{sJ}, s{sMl}"}
    s_add_u32 s{sMl}, s{sMl}, {ML_OFF}         ; ML + (h*4*128 + j)*16
    L_go:
    s_lshl2_add_u32 s{sT0}, s{sWv}, {PROG}
    v_mov_b32 v{vPa}, s{sT0}
    """)

    def qk(i):
        k(f"v_mfma_f32_16x16x32_bf16 {vr(vD+4*i,4)}, {vr(vKA+4*i,4)}, {vr(vQ,4)}, 0")

    def soft_a():
        for j in (1, 2, 3):
            for i in range(4):
                src1 = vD + 4 * i if j == 1 else vT + i
                k(f"v_add_f32_dpp v{vT+i}, v{vD+4*i+j}, v{src1} quad_perm:[{j},{j},{j},{j}] row_mask:0xf bank_mask:0xf")
        for i in range(4):
            k(f"v_mul_f32 v{vT+i}, s{sC}, v{vT+i}")
        k(f"""
        s_cmp_lt_u32 s{sCnt}, 16
        s_cbranch_scc1 L_mask
        L_nomask:
        """)
        cold(f"""
        L_mask:
        v_mov_b32 v{vTmp}, s{sNeg}
        """)
        for i in range(4):
            cold(f"""
            s_sub_i32 s{sT0}, s{sCnt}, {i}
            v_cmp_gt_i32 vcc, s{sT0}, v{vG4}
            v_cndmask_b32 v{vT+i}, v{vTmp}, v{vT+i}, vcc
            """)
        cold(f"s_branch L_nomask")
        k(f"""
        v_max3_f32 v{vMx}, v{vT}, v{vT+1}, v{vT+2}
        v_max3_f32 v{vMx}, v{vMx}, v{vT+3}, v{vM}
        v_mov_b32 v{vTmp}, v{vMx}
        v_permlane32_swap_b32 v{vMx}, v{vTmp}
        v_max_f32 v{vMx}, v{vMx}, v{vTmp}
        v_mov_b32 v{vTmp}, v{vMx}
        v_permlane16_swap_b32 v{vMx}, v{vTmp}
        v_max_f32 v{vMx}, v{vMx}, v{vTmp}
        """)

    def soft_b():
        k(f"""
        v_sub_f32 v{vAl}, v{vM}, v{vMx}
        v_mov_b32 v{vM}, v{vMx}
        v_exp_f32 v{vAl}, v{vAl}
        """)
        for i in range(4):
            k(f"v_sub_f32 v{vT+i}, v{vT+i}, v{vMx}")
        for i in range(4):
            k(f"v_exp_f32 v{vT+i}, v{vT+i}")
            k(f"v_mov_b32_dpp v{vAb}, v{vAl} row_newbcast:{4*i} row_mask:{hex(1<<i)} bank_mask:0xf")
            if i == 1:
                k(f"v_fma_f32 v{vL}, v{vL}, v{vAl}, v{vT}")
            if i == 2:
                k(f"v_cvt_pk_bf16_f32 v{vP}, v{vT}, v{vT+1}")
        k(f"""
        v_add_f32 v{vTmp}, v{vT+1}, v{vT+2}
        v_cvt_pk_bf16_f32 v{vP+1}, v{vT+2}, v{vT+3}
        v_add_f32 v{vL}, v{vL}, v{vT+3}
        v_add_f32 v{vL}, v{vL}, v{vTmp}
        """)
        for e in range(8):
            k(f"v_mul_f32 v{vAcc+4*e}, v{vAb}, v{vAcc+4*e}")

    def perm(e, half):
        j, hi = e >> 1, e & 1
        sel = sPhi if hi else sPlo
        k(f"v_perm_b32 v{vB+2*e+half}, v{vVA+8*half+4+j}, v{vVA+8*half+j}, s{sel}")

    def pv(e):
        k(f"v_mfma_f32_16x16x16_bf16 {vr(vAcc+4*e,4)}, {vr(vP,2)}, {vr(vB+2*e,2)}, {vr(vAcc+4*e,4)}")

    def perm_pv():
        perm(0, 1)
        perm(1, 1)
        for e in range(8):
            if e + 2 < 8:
                perm(e + 2, 1)
            pv(e)

    def lreduce(kk):
        kk(f"""
        v_mov_b32 v{vTmp}, v{vL}
        v_permlane32_swap_b32 v{vL}, v{vTmp}
        v_add_f32 v{vL}, v{vL}, v{vTmp}
        v_mov_b32 v{vTmp}, v{vL}
        v_permlane16_swap_b32 v{vL}, v{vTmp}
        v_add_f32 v{vL}, v{vL}, v{vTmp}
        """)

    U = [p + 1 + dv[p] for p in range(8)]
    prevU = [U[7] - 8] + U[:7]
    firstN = min(p for p in range(8) if U[p] > 8)
    assert all(U[p] >= prevU[p] for p in range(8)) and D <= 8 and firstN <= 3

    def issue(p):
        for t in range(prevU[p], U[p]):
            w, i = seq[t % 8]
            if t >= 8:
                need = {8: 0, 9: 1, 10: 2, 11: 3, 12: 5, 13: 5, 14: 7, 15: 7}[t]
                assert p >= need, (DV, p, t)
            ld(w, i, sOff if t < 8 else sNxt)

    def wait(p):
        if p == SIGP and p > firstN:
            signal()
        k(f"s_waitcnt vmcnt({prevU[p] - p - 1})")

    def signal():
        k(f"ds_write_b32 v{vPa}, v{vLi}")

    if TRACE:
        k(f"""
        v_mov_b32 v{vTr}, 0
        s_memrealtime s[96:97]
        """)
    k("L_loop:")
    if TRACE:
        k(f"""
        s_waitcnt lgkmcnt(0)
        s_add_u32 m0, s{sI}, 1
        s_nop 0
        v_writelane_b32 v{vTr}, s96, m0
        s_nop 4
        s_memrealtime s[96:97]
        """)
    k(f"""
    s_add_u32 s{sI}, s{sI}, 1
    """)
    for i in range(4):
        if i == min(SIGP, firstN) and i < firstN:
            k(f"""
            s_cmp_eq_u32 s{sI}, 1
            s_cbranch_scc1 L_nosig
            """)
            signal()
            k("L_nosig:")
        if i == firstN:
            if not EB1:
              k(f"""
            s_or_b32 s{sT0}, s{sI}, s{sFb}
            s_cmp_eq_u32 s{sT0}, 1
            s_cbranch_scc0 L_nobar
            {f"s_memrealtime {sr(sTS+2,2)}" if DIAG == 2 else ""}
            s_barrier
            {f"s_memrealtime {sr(sTS+4,2)}" if DIAG == 2 else ""}
            L_nobar:
            """)
            if SIGP <= firstN:
                signal()
            k(f"""
            L_get:
            ds_read2_b32 {vr(vEn,2)}, v{vLi} offset0:0 offset1:1
            """)
        wait(i)
        qk(i)
        if i == firstN:
            k(f"""
            s_waitcnt lgkmcnt(0)
            v_readfirstlane_b32 s{sT0}, v{vEn+1}
            v_readfirstlane_b32 s{sCnt}, v{vEn}
            s_max_u32 s{sT1}, s{sT0}, s{sCnt}
            s_cmp_eq_u32 s{sT1}, -1
            s_cbranch_scc1 L_retry
            L_got:
            s_and_b32 s{sNxt}, s{sT0}, 0xffff8000
            s_and_b32 s{sCnt}, s{sCnt}, 31
            v_add_u32 v{vLi}, 4, v{vLi}
            {f"s_cmp_eq_u32 s{sNxt}, {END}" if EBAR == 2 else ""}
            {"s_cbranch_scc0 L_nob2" if EBAR == 2 else ""}
            {"s_barrier                                  ; last page: let the combining waves start" if EBAR == 2 else ""}
            {"L_nob2:" if EBAR == 2 else ""}
            """)
        issue(i)
    soft_a()
    wait(4)
    issue(4)
    soft_b()
    k(f"""
    s_cmp_eq_u32 s{sNxt}, {END}
    s_cbranch_scc1 L_ml
    L_mld:
    """)
    wait(5)
    if U[5] > 12:
        for e in range(8):
            perm(e, 0)
        issue(5)
    else:
        issue(5)
        for e in range(8):
            perm(e, 0)
    wait(6)
    issue(6)
    if EBAR == 3:
        k(f"s_cmp_eq_u32 s{sNxt}, {END}")
    wait(7)
    if EBAR == 3:
        k(f"""
        s_cbranch_scc0 L_nob3
        s_barrier
        L_nob3:
        """)
    if U[7] > 14:
        for e in range(8):
            perm(e, 1)
        issue(7)
        for e in range(8):
            pv(e)
    else:
        issue(7)
        perm_pv()
    k(f"""
    s_mov_b32 s{sOff}, s{sNxt}
    s_cmp_eq_u32 s{sNxt}, {END}
    s_cbranch_scc0 L_loop
    s_cmp_lg_u32 s{sFb}, 0
    s_cbranch_scc1 L_fbnext
    L_done:
    """)
    for j in range(4):
        k(f"v_cvt_pk_bf16_f32 v{vD+j}, v{vAcc+8*j}, v{vAcc+8*j+4}")
        k(f"v_xor_b32 v{vD+j}, s{sR}, v{vD+j}")
    if DIAG == 1:
        k(f"s_memrealtime {sr(sTS+4,2)}")
    k(f"buffer_store_dwordx4 {vr(vD,4)}, v{vRo}, {sr(SW,4)}, s{sRec} offen sc1")
    if MLLATE:
        k(f"""
        s_mov_b32 exec_lo, 0x1111
        s_mov_b32 exec_hi, 0
        buffer_store_dwordx4 {vr(vT,4)}, v{vMo_w}, {sr(SW,4)}, s{sMl} offen sc1
        """)
    if not EBAR:
        k("s_barrier")
    if DIAG:
        k("s_waitcnt vmcnt(0)")
        diag_store()
    if TRACE:
        k(f"""
        s_mov_b64 exec, -1
        s_lshl2_add_u32 s{sT0}, s2, s{sWv}
        s_lshl_b32 s{sT0}, s{sT0}, 8
        s_add_u32 s{sT0}, s{sT0}, {DIAG_OFF + 0x40000}
        v_lshlrev_b32 v{vTmp}, 2, v{vLane}
        buffer_store_dword v{vTr}, v{vTmp}, {sr(SW,4)}, s{sT0} offen
        """)
    k("s_endpgm")
    k(f"""
    L_retry:
    s_cmp_eq_u32 s{sCnt}, {END}
    s_cbranch_scc1 L_none
    s_add_u32 s{sBt0}, s{sBt0}, 1
    s_cmp_lt_u32 s{sBt0}, 0x400000
    s_cbranch_scc1 L_get
    s_mov_b32 s{sT0}, {END}
    s_branch L_got
    """)
    k(f"""
    L_ml:
    s_cmp_lg_u32 s{sFb}, 0
    s_cbranch_scc1 L_mld
    L_none:
    s_add_u32 s{sR}, s{sR}, s{sMl}
    s_mul_i32 s{sR}, s{sR}, 0x9e3779b1
    s_lshr_b32 s{sT0}, s{sR}, 15
    s_xor_b32 s{sR}, s{sR}, s{sT0}
    s_mul_i32 s{sR}, s{sR}, 0x85ebca6b
    """)
    lreduce(k)
    k(f"""
    v_xor_b32 v{vT}, s{sR}, v{vM}
    v_mov_b32 v{vT+2}, s{sR}
    v_mov_b32 v{vT+3}, s{sR}
    s_mov_b32 exec_lo, 0x1111
    s_mov_b32 exec_hi, 0
    v_xor_b32 v{vT+1}, s{sR}, v{vL}
    {"" if MLLATE else f"buffer_store_dwordx4 {vr(vT,4)}, v{vMo_w}, {sr(SW,4)}, s{sMl} offen sc1"}
    s_mov_b64 exec, -1
    {"s_barrier" if EBAR == 1 else ""}
    s_cmp_eq_u32 s{sCnt}, {END}
    s_cbranch_scc0 L_mld
    {"s_barrier" if EBAR >= 2 else ""}
    s_branch L_done
    """)

    vOf, vMo, vPw, vPm, vPr_, vOo = 2, 3, 4, 5, 6, 7
    vX, vY, vW, vZ = 8, 9, 10, 11
    vML = 12
    vMa = 16
    vSa = 20
    vA = 24
    vOr, vOs = 32, 34
    vU = 36
    vBt, vDyn, vCo, vPr = 42, 43, 44, 28
    sHq, sOct = 90, 91

    def stamp(n):
        if DIAG and n - STAMP in (1, 2):
            k(f"s_memrealtime {sr(sTS+2*(n-STAMP),2)}")

    def entry(kk, vpage, vbt, vdst, vt):
        kk(f"""
        v_lshlrev_b32 v{vt}, 4, v{vpage}
        v_sub_u32 v{vt}, s{sCtx}, v{vt}
        v_med3_i32 v{vt}, v{vt}, 0, 16
        v_cmp_gt_u32 vcc, s{sN}, v{vpage}
        v_lshl_or_b32 v{vdst}, v{vbt}, 15, v{vt}
        v_bfrev_b32 v{vt}, 1
        v_and_b32 v{vdst}, 0x7fffffff, v{vdst}
        v_cndmask_b32 v{vdst}, v{vt}, v{vdst}, vcc
        """)

    k(f"""
    L_service:
    s_mov_b64 {sr(sE,2)}, 0
    s_mov_b32 s{sMld}, 0
    s_mov_b32 s{SB+2}, 16384
    s_mov_b32 s{SB+3}, 0x20000
    s_cmp_eq_u32 s{sWv}, 4
    s_cbranch_scc0 {"L_pf" if PF else "L_cons"}
    v_lshlrev_b32 v{vBt}, 9, v{vLane}          ; (j + 128*lane)*4
    v_lshlrev_b32 v{vX}, 7, v{vLane}
    v_add_u32 v{vX}, s{sJ}, v{vX}
    v_lshlrev_b32 v{vCo}, 2, v{vLane}
    v_mov_b32 v{vZ}, -1
    v_mov_b32 v{vPr}, 0
    {f"ds_write_b32 v{vCo}, v{vZ}" if EB1 else ""}
    ds_write_b32 v{vCo}, v{vZ} offset:256
    ds_write_b32 v{vCo}, v{vPr} offset:{PROG}
    s_waitcnt lgkmcnt(0)
    s_load_dword s{sCtx}, {sr(sCTX,2)}, 0
    s_mov_b32 s{SB}, s{sBT}
    s_mov_b32 s{SB+1}, s{sBT+1}
    buffer_load_dword v{vBt}, v{vBt}, {sr(SB,4)}, s{sIdx} offen
    {"s_barrier" if SNAPB or EB1 else ""}
    s_waitcnt lgkmcnt(0)
    s_min_i32 s{sT0}, s{sCtx}, 65536
    s_cmp_le_i32 s{sCtx}, 0
    s_cselect_b32 s{sT0}, 65536, s{sT0}
    s_add_u32 s{sT0}, s{sT0}, 15
    s_lshr_b32 s{sN}, s{sT0}, 4                ; npages
    s_min_i32 s{sCtx}, s{sCtx}, 65536
    s_max_i32 s{sCtx}, s{sCtx}, 0
    s_lshr_b32 s{sS}, s{sN}, 7
    s_sub_i32 s{sS}, s{sS}, {KD}
    s_max_i32 s{sS}, s{sS}, 1
    s_waitcnt vmcnt(0)
    """)
    entry(k, vX, vBt, vBt, vY)
    k(f"""
    v_cmp_gt_u32 vcc, s{sS}, v{vLane}
    s_and_b32 s{sSh}, s{sSh}, {(1 << LG) - 1}
    s_lshl_b32 s{sT0}, s{sS}, 7
    s_add_u32 s{sT0}, s{sT0}, s{sSh}
    {"" if STATIC else f"v_cndmask_b32 v{vBt}, v{vZ}, v{vBt}, vcc"}
    ds_write_b32 v{vCo}, v{vBt}
    v_lshl_add_u32 v{vBt}, v{vLane}, {LG}, s{sT0}
    v_lshlrev_b32 v{vDyn}, 2, v{vBt}
    buffer_load_dword v{vDyn}, v{vDyn}, {sr(SB,4)}, 0 offen
    """)
    if PF:
        k(f"""
        s_branch L_cons
        L_pf:
        s_mul_i32 s{sT0}, s2, 7
        s_add_u32 s{sT0}, s{sT0}, s{sWv}
        s_sub_u32 s{sT0}, s{sT0}, 5
        s_mul_i32 s{sT0}, s{sT0}, {PF * 1024}
        v_lshlrev_b32 v{vX}, 4, v{vLane}
        s_mov_b32 s{SK+2}, {KV_BYTES}
        s_mov_b32 s{SK+3}, 0x20000
        s_mov_b32 s{SV+2}, {KV_BYTES}
        s_mov_b32 s{SV+3}, 0x20000
        s_waitcnt lgkmcnt(0)
        s_mov_b32 s{SK}, s{sKp}
        s_mov_b32 s{SK+1}, s{sKp+1}
        s_mov_b32 s{SV}, s{sVp}
        s_mov_b32 s{SV+1}, s{sVp+1}
        """)
        for i in range(PF):
            o = f" offset:{i*1024}" if i else ""
            k(f"buffer_load_dwordx4 {vr(48+8*i,4)}, v{vX}, {sr(SK,4)}, s{sT0} offen{o} {PFPOL.replace('+',' ')}")
            k(f"buffer_load_dwordx4 {vr(52+8*i,4)}, v{vX}, {sr(SV,4)}, s{sT0} offen{o} {PFPOL.replace('+',' ')}")
    k(f"""
    L_cons:
    s_and_b32 s{sT0}, s2, 7
    s_lshr_b32 s{sT1}, s2, 5
    s_lshl3_add_u32 s{sT0}, s{sT0}, s{sT1}     ; 6 bits
    s_lshr_b32 s{sHq}, s{sT0}, 1               ; hq
    s_and_b32 s{sT0}, s{sT0}, 1
    s_bfe_u32 s{sT1}, s2, 0x20003
    s_lshl2_add_u32 s{sOct}, s{sT0}, s{sT1}    ; oct 0..7
    s_sub_u32 s{sCnt}, s{sWv}, 4               ; c
    s_lshr_b32 s{sT0}, s{sHq}, 2
    s_lshl3_add_u32 s{sT0}, s{sT0}, s{sCnt}
    s_lshl_b32 s{sT0}, s{sT0}, 14
    s_and_b32 s{sT1}, s{sHq}, 3
    s_lshl_b32 s{sT1}, s{sT1}, 8
    s_add_u32 s{sT0}, s{sT0}, s{sT1}
    s_lshl_b32 s{sT1}, s{sOct}, 5
    s_add_u32 s{sT0}, s{sT0}, s{sT1}
    v_lshrrev_b32 v{vY}, 2, v{vLane}           ; pr
    v_and_b32 v{vW}, 3, v{vLane}               ; ql
    v_lshlrev_b32 v{vX}, 10, v{vY}
    v_lshl_add_u32 v{vX}, v{vW}, 3, v{vX}
    v_add_u32 v{vOf}, s{sT0}, v{vX}
    """)
    if MLB:
        k(f"""
        s_lshr_b32 s{sT0}, s{sHq}, 2
        s_lshl3_add_u32 s{sT0}, s{sT0}, s{sCnt}
        s_lshl_b32 s{sT0}, s{sT0}, {4+MLB}
        s_and_b32 s{sOff}, s{sHq}, 3
        s_lshl4_add_u32 s{sT0}, s{sOff}, s{sT0}
        s_add_u32 s{sT0}, s{sT0}, {ML_OFF}
        v_lshlrev_b32 v{vX}, {MLB}, v{vY}
        v_lshl_add_u32 v{vX}, v{vW}, 2, v{vX}
        v_add_u32 v{vMo}, s{sT0}, v{vX}
        """)
    else:
        k(f"""
        s_lshl3_add_u32 s{sT0}, s{sHq}, s{sCnt}
        s_lshl_b32 s{sT0}, s{sT0}, 8
        s_add_u32 s{sT0}, s{sT0}, {ML_OFF}
        v_lshl_add_u32 v{vMo}, v{vLane}, 2, s{sT0}
        """)
    k(f"""
    s_mov_b32 s{SW+2}, {0 if NOSNAP else wsz}
    s_mov_b32 s{SW+3}, 0x20000
    s_waitcnt lgkmcnt(0)
    {"s_barrier" if LATESNAP else ""}
    {f"s_cmp_eq_u32 s{sWv}, 4" if SNAPB else ""}
    {"s_cbranch_scc1 L_nb0" if SNAPB else ""}
    {"s_barrier" if SNAPB else ""}
    L_nb0:
    s_add_u32 s{SW}, s{sWS}, {WSOFF}
    s_addc_u32 s{SW+1}, s{sWS+1}, 0
    v_mov_b32 v{vSa}, 0
    {f"buffer_atomic_or v{vSa}, v{vMo}, {sr(SW,4)}, 0 offen sc0 sc1" if ASNAP else f"buffer_load_dword v{vSa}, v{vMo}, {sr(SW,4)}, 0 offen {snpol}"}
    buffer_load_dwordx2 {vr(vOs,2)}, v{vOf}, {sr(SW,4)}, 0 offen {snpol}
    {f"s_cmp_eq_u32 s{sWv}, 4" if EB1 else ""}
    {"s_cbranch_scc1 L_nb1" if EB1 else ""}
    {"" if LATESNAP else "s_barrier"}
    L_nb1:
    s_mov_b32 s{SW+2}, {wsz}
    s_lshl_b32 s{sT0}, s{sHq}, 8
    s_add_u32 s{sT0}, s{sT0}, s{sT1}
    v_lshrrev_b32 v{vX}, 3, v{vLane}
    v_lshl_add_u32 v{vOo}, v{vX}, 2, s{sT0}
    v_and_b32 v{vZ}, 7, v{vLane}
    v_lshlrev_b32 v{vX}, 4, v{vX}
    v_lshl_add_u32 v{vPr_}, v{vZ}, 7, v{vX}
    s_lshl_b32 s{sT0}, s{sCnt}, 7
    v_lshl_add_u32 v{vPm}, v{vZ}, 4, s{sT0}    ; (M,L) address - 8
    v_lshrrev_b32 v{vX}, 5, v{vLane}           ; row>>1
    v_lshl_add_u32 v{vX}, v{vW}, 1, v{vX}
    v_bfe_u32 v{vZ}, v{vLane}, 4, 1
    v_lshlrev_b32 v{vZ}, 2, v{vZ}
    v_lshl_add_u32 v{vX}, v{vX}, 4, v{vZ}
    v_add_u32 v{vPw}, s{sT0}, v{vX}
    s_mov_b32 s{SO}, s{sOUT}
    s_mov_b32 s{SO+1}, s{sOUT+1}
    s_mov_b32 s{SO+2}, 8192
    s_mov_b32 s{SO+3}, 0x20000
    s_mov_b32 s{sC}, 0xffff0000
    s_cmp_eq_u32 s{sWv}, {99 if STATIC else 4}
    s_cbranch_scc0 L_real
    s_mov_b32 s{SD}, s{sWS if CWS else sDBG}
    s_mov_b32 s{SD+1}, s{(sWS if CWS else sDBG)+1}
    s_mov_b32 s{SD+2}, {0x120000 if CWS else 256}
    s_mov_b32 s{SD+3}, 0x20000
    s_lshl1_add_u32 s{sT0}, s{sSh}, s{sHg}
    s_lshl_b32 s{sT0}, s{sT0}, {8 if CWS else 7 - LG}
    {f"s_add_u32 s{sT0}, s{sT0}, 0x110000" if CWS else ""}
    v_mov_b32 v{vCo}, s{sT0}
    v_mov_b32 v{vW}, {PROG}
    s_lshl_b32 s{sE}, s{sS}, 2
    s_add_u32 s{sS}, s{sE}, {4*(KD+1)}
    s_waitcnt vmcnt(2)
    """)
    entry(k, vBt, vDyn, vDyn, vY)
    k(f"""
    s_mov_b32 s{sI}, 0
    s_cmp_lt_u32 s{sJ}, s{sN}
    s_cbranch_scc0 L_real
    L_s0:
    ds_read_b128 {vr(vPr,4)}, v{vW}
    s_waitcnt lgkmcnt(0)
    v_max3_u32 v{vX}, v{vPr}, v{vPr+1}, v{vPr+2}
    v_max_u32 v{vX}, v{vX}, v{vPr+3}
    s_sub_i32 s{sT1}, s{sE}, {8 if SIGP <= firstN else 4}
    v_readfirstlane_b32 s{sT0}, v{vX}
    s_cmp_ge_i32 s{sT0}, s{sT1}
    s_cbranch_scc1 L_s1
    s_sleep {SSL}
    s_add_u32 s{sI}, s{sI}, 1
    s_cmp_lt_u32 s{sI}, 0x400000
    s_cbranch_scc1 L_s0
    L_s1:
    v_mov_b32 v{vX}, 1
    s_mov_b64 exec, 1
    buffer_atomic_add v{vX}, v{vCo}, {sr(SD,4)}, 0 offen sc0 sc1
    s_mov_b64 exec, -1
    v_mov_b32 v{vY}, s{sE}
    s_add_u32 s{sE}, s{sE}, 4
    s_waitcnt vmcnt(0)
    v_readfirstlane_b32 s{sT0}, v{vX}
    s_min_u32 s{sT1}, s{sT0}, {63-REM-1}
    v_readlane_b32 s{sT0}, v{vDyn}, s{sT1}
    s_cmp_ge_u32 s{sE}, s{sS}
    s_cselect_b32 s{sCnt}, {REM+1}, 1
    s_add_u32 s{sT1}, s{sT1}, s{sCnt}
    v_mov_b32 v{vX}, s{sT0}
    v_readlane_b32 s{sT1}, v{vDyn}, s{sT1}
    ds_write_b32 v{vY}, v{vX}
    s_cmp_eq_u32 s{sT1}, {END}
    s_cbranch_scc0 L_s0
    v_mov_b32 v{vX}, s{sT1}
    ds_write_b32 v{vY}, v{vX} offset:4
    L_real:
    s_mov_b32 s{sI}, {LIMIT if FORCEFB else 0}
    v_mov_b32 v{vCo}, {CTR}
    {f"s_mov_b32 s{sTS+4}, s{sTS}" if DIAG else ""}
    v_mov_b32 v{vBt}, 1
    s_waitcnt vmcnt(0) lgkmcnt(0)
    s_barrier
    """)
    stamp(1)
    if NOPOLL:
        k("s_branch L_arr")
    if WAIT0:
        k(f"s_sleep {WAIT0}")
    if PROGO:
        k(f"v_mov_b32 v{vOr}, v{vOs}")
    k(f"""
    s_branch L_m1
    L_m0:
    s_bcnt1_i32_b64 s{sT0}, vcc
    s_cmp_gt_u32 s{sT0}, {T2}
    s_cbranch_scc0 L_m2
    s_sleep {SLEEP2}
    L_m2:
    {f"s_sleep {SLEEP1}" if SLEEP1 else ""}
    {f"s_andn2_b64 exec, {sr(sMask,2)}, vcc       ; records whose (m,l) are there: fetch them now" if PROGO else ""}
    {"s_cbranch_execz L_m5" if PROGO else ""}
    {f"buffer_load_dwordx2 {vr(vOr,2)}, v{vOf}, {sr(SW,4)}, 0 offen sc1" if PROGO else ""}
    L_m5:
    {"s_mov_b64 exec, vcc" if MMASK else ""}
    L_m1:
    {f"buffer_atomic_or v{vMa}, v{vMo}, {sr(SW,4)}, 0 offen sc0 sc1" if APOLL else f"buffer_load_dword v{vMa}, v{vMo}, {sr(SW,4)}, 0 offen sc1"}
    s_mov_b64 exec, -1
    s_add_u32 s{sI}, s{sI}, 1
    s_cmp_ge_u32 s{sI}, {LIMIT}
    s_cbranch_scc1 L_fail
    s_waitcnt vmcnt(0)
    v_cmp_eq_u32 vcc, v{vMa}, v{vSa}
    {f"v_cmp_eq_u32 {sr(sMask,2)}, v{vOr}, v{vOs}" if PROGO else ""}
    s_cbranch_vccnz L_m0
    {f"s_mov_b64 exec, {sr(sMask,2)}" if PROGO else ""}
    {"s_cbranch_execz L_m4" if PROGO else ""}
    {f"buffer_atomic_or_x2 {vr(vOr,2)}, v{vOf}, {sr(SW,4)}, 0 offen sc0 sc1" if OAT else f"buffer_load_dwordx2 {vr(vOr,2)}, v{vOf}, {sr(SW,4)}, 0 offen sc1"}
    L_m4:
    {"s_mov_b64 exec, -1" if PROGO else ""}
    v_mov_b32_dpp v{vMa+2}, v{vMa} quad_perm:[2,2,2,2] row_mask:0xf bank_mask:0xf
    """)
    stamp(2)
    k(f"""
    v_xor_b32_dpp v{vW}, v{vMa}, v{vMa+2} quad_perm:[0,0,0,0] row_mask:0xf bank_mask:0xf   ; m
    v_xor_b32_dpp v{vZ}, v{vMa}, v{vMa+2} quad_perm:[1,1,1,1] row_mask:0xf bank_mask:0xf   ; l
    v_max_f32_dpp v{vML}, v{vW}, v{vW} row_ror:4 row_mask:0xf bank_mask:0xf
    v_max_f32_dpp v{vML}, v{vML}, v{vML} row_ror:8 row_mask:0xf bank_mask:0xf
    v_mov_b32 v{vY}, v{vML}
    v_permlane16_swap_b32 v{vML}, v{vY}
    v_max_f32 v{vML}, v{vML}, v{vY}
    v_mov_b32 v{vY}, v{vML}
    v_permlane32_swap_b32 v{vML}, v{vY}
    v_max_f32 v{vML}, v{vML}, v{vY}
    v_sub_f32 v{vW}, v{vW}, v{vML}
    v_exp_f32 v{vW}, v{vW}
    v_mul_f32 v{vZ}, v{vW}, v{vZ}
    v_add_f32_dpp v{vZ}, v{vZ}, v{vZ} row_ror:4 row_mask:0xf bank_mask:0xf
    v_add_f32_dpp v{vZ}, v{vZ}, v{vZ} row_ror:8 row_mask:0xf bank_mask:0xf
    v_mov_b32 v{vY}, v{vZ}
    v_permlane16_swap_b32 v{vZ}, v{vY}
    v_add_f32 v{vZ}, v{vZ}, v{vY}
    v_mov_b32 v{vY}, v{vZ}
    v_permlane32_swap_b32 v{vZ}, v{vY}
    v_add_f32 v{vML+1}, v{vZ}, v{vY}
    ds_write_b64 v{vPm}, {vr(vML,2)} offset:{PART+8}
    s_branch L_o1
    L_o0:
    {f"s_sleep {SLEEPO}" if SLEEPO else ""}
    s_mov_b64 exec, vcc
    {f"v_mov_b32 v{vOr}, 0" if OAT else ""}
    {f"v_mov_b32 v{vOr+1}, 0" if OAT else ""}
    {f"buffer_atomic_or_x2 {vr(vOr,2)}, v{vOf}, {sr(SW,4)}, 0 offen sc0 sc1" if OAT else f"buffer_load_dwordx2 {vr(vOr,2)}, v{vOf}, {sr(SW,4)}, 0 offen sc1"}
    s_mov_b64 exec, -1
    s_add_u32 s{sI}, s{sI}, 1
    s_cmp_ge_u32 s{sI}, {LIMIT}
    s_cbranch_scc1 L_fail
    L_o1:
    s_waitcnt vmcnt(0)
    v_xor_b32 v{vU}, v{vOr}, v{vOs}
    v_xor_b32 v{vU+1}, v{vOr+1}, v{vOs+1}
    v_xor_b32 v{vX}, v{vOr}, v{vMa+2}
    v_min_u32 v{vU}, v{vU}, v{vU+1}
    v_xor_b32 v{vY}, v{vOr+1}, v{vMa+2}
    v_cmp_eq_u32 vcc, 0, v{vU}
    v_lshlrev_b32 v{vA}, 16, v{vX}
    v_and_b32 v{vA+1}, s{sC}, v{vX}
    v_lshlrev_b32 v{vA+2}, 16, v{vY}
    v_and_b32 v{vA+3}, s{sC}, v{vY}
    s_cbranch_vccnz L_o0
    """)
    for j in range(4):
        k(f"v_mul_f32 v{vA+j}, v{vW}, v{vA+j}")
    for sh in (4, 8):
        for j in range(4):
            k(f"v_add_f32_dpp v{vA+j}, v{vA+j}, v{vA+j} row_ror:{sh} row_mask:0xf bank_mask:0xf")
    k(f"""
    v_permlane16_swap_b32 v{vA}, v{vA+1}
    v_permlane16_swap_b32 v{vA+2}, v{vA+3}
    v_add_f32 v{vA}, v{vA}, v{vA+1}
    v_add_f32 v{vA+2}, v{vA+2}, v{vA+3}
    v_permlane32_swap_b32 v{vA}, v{vA+2}
    v_add_f32 v{vA}, v{vA}, v{vA+2}
    ds_write_b32 v{vPw}, v{vA} offset:{PART}
    L_arr:
    s_mov_b64 exec, 1
    ds_add_rtn_u32 v{vBt}, v{vCo}, v{vBt}
    s_mov_b64 exec, -1
    ds_read_b128 {vr(vA,4)}, v{vPr_} offset:{PART}
    s_waitcnt lgkmcnt(1)
    v_readfirstlane_b32 s{sT0}, v{vBt}
    s_and_b32 s{sT1}, s{sT0}, 15
    s_cmp_eq_u32 s{sT1}, 7
    s_cbranch_scc0 {"L_sdiag" if DIAG else "L_end"}
    s_or_b32 s{sT0}, s{sT0}, s{sMld}
    s_cmp_gt_u32 s{sT0}, 15
    s_cbranch_scc1 L_fb
    """)
    stamp(3)
    dp = ["quad_perm:[1,0,3,2]", "quad_perm:[2,3,0,1]", "row_half_mirror"]
    k("s_waitcnt lgkmcnt(0)")
    k(f"v_max_f32_dpp v{vX}, v{vA+2}, v{vA+2} {dp[0]} row_mask:0xf bank_mask:0xf")
    k(f"s_mov_b32 vcc_lo, 0x01010101")
    k(f"s_mov_b32 vcc_hi, 0x01010101")
    k(f"v_max_f32_dpp v{vX}, v{vX}, v{vX} {dp[1]} row_mask:0xf bank_mask:0xf")
    k(f"v_max_f32_dpp v{vX}, v{vX}, v{vX} {dp[2]} row_mask:0xf bank_mask:0xf")
    k(f"""
    v_sub_f32 v{vX}, v{vA+2}, v{vX}
    v_exp_f32 v{vX}, v{vX}
    v_mul_f32 v{vA+3}, v{vX}, v{vA+3}
    v_mul_f32 v{vA}, v{vX}, v{vA}
    v_mul_f32 v{vA+1}, v{vX}, v{vA+1}
    """)
    for d in dp:
        for a_ in (vA + 3, vA, vA + 1):
            k(f"v_add_f32_dpp v{a_}, v{a_}, v{a_} {d} row_mask:0xf bank_mask:0xf")
    k(f"""
    v_rcp_f32 v{vX}, v{vA+3}
    s_mov_b64 exec, vcc
    v_mul_f32 v{vA}, v{vA}, v{vX}
    v_mul_f32 v{vA+1}, v{vA+1}, v{vX}
    v_cvt_pk_bf16_f32 v{vA}, v{vA}, v{vA+1}
    buffer_store_dword v{vA}, v{vOo}, {sr(SO,4)}, 0 offen
    """)
    if MUL:
        k(f"""
        s_waitcnt vmcnt(0)
        s_memrealtime {sr(sTS+2,2)}
        s_waitcnt lgkmcnt(0)
        s_sub_u32 s{sT1}, s{sTS+2}, s{sTS}
        s_mul_i32 s{sT1}, s{sT1}, {MUL}
        L_spinm:
        s_sleep 2
        s_memrealtime {sr(sTS+2,2)}
        s_waitcnt lgkmcnt(0)
        s_sub_u32 s{sT0}, s{sTS+2}, s{sTS}
        s_cmp_lt_u32 s{sT0}, s{sT1}
        s_cbranch_scc1 L_spinm
        """)
    if SPIN:
        if SPINX >= 0:
            k(f"""
            s_getreg_b32 s{sT1}, hwreg(HW_REG_XCC_ID)
            s_and_b32 s{sT1}, s{sT1}, 15
            s_cmp_eq_u32 s{sT1}, {SPINX}
            s_cbranch_scc0 L_end
            """)
        k(f"""
        L_spin:
        s_memrealtime {sr(sTS+2,2)}
        s_waitcnt lgkmcnt(0)
        s_sub_u32 s{sT0}, s{sTS+2}, s{sTS}
        s_cmp_lt_u32 s{sT0}, {SPIN}
        s_cbranch_scc1 L_spin
        """)
    if DIAG:
        k("L_sdiag:")
        k("s_waitcnt vmcnt(0)")
        diag_store()
    k("""
    L_end:
    s_endpgm
    """)
    cold(f"""
    L_fail:
    v_mov_b32 v{vBt}, 17
    s_mov_b32 s{sMld}, 16
    s_branch L_arr
    """)
    vFp, vFb = 126, 127
    cold(f"""
    L_fb:
    s_load_dword s{sCtx}, {sr(sCTX,2)}, 0
    s_waitcnt vmcnt(0) lgkmcnt(0)
    s_min_i32 s{sT0}, s{sCtx}, 65536
    s_cmp_le_i32 s{sCtx}, 0
    s_cselect_b32 s{sT0}, 65536, s{sT0}
    s_add_u32 s{sT0}, s{sT0}, 15
    s_lshr_b32 s{sN}, s{sT0}, 4                ; npages
    s_min_i32 s{sCtx}, s{sCtx}, 65536
    s_max_i32 s{sCtx}, s{sCtx}, 0
    s_mov_b32 s{sE}, 0
    s_lshr_b32 s{sH}, s{sHq}, 2
    L_fbfill:
    s_mov_b32 s{SB}, s{sBT}
    s_mov_b32 s{SB+1}, s{sBT+1}
    s_mov_b32 s{SB+2}, 16384
    s_mov_b32 s{SB+3}, 0x20000
    v_add_u32 v{vFp}, s{sE}, v{vLane}
    v_lshlrev_b32 v{vFb}, 2, v{vFp}
    buffer_load_dword v{vFb}, v{vFb}, {sr(SB,4)}, 0 offen
    s_lshl_b32 s{sIdx}, s{sE}, 2
    s_waitcnt vmcnt(0)
    """)
    entry(cold, vFp, vFb, vFb, vTmp)
    cold(f"""
    s_bitset1_b32 s{sFb}, 31
    v_lshlrev_b32 v{vFp}, 2, v{vLane}
    v_writelane_b32 v{vFb}, s{sFb}, 63
    ds_write_b32 v{vFp}, v{vFb}
    s_load_dword s{sBt0}, {sr(sBT,2)}, s{sIdx}
    s_cmp_eq_u32 s{sE}, 0
    s_cbranch_scc1 L_setup
    s_branch L_first
    L_fbnext:
    s_waitcnt vmcnt(0)
    s_add_u32 s{sE}, s{sE}, 63
    s_cmp_lt_u32 s{sE}, s{sN}
    s_cbranch_scc1 L_fbfill
    """)
    lreduce(cold)
    cold(f"v_rcp_f32 v{vAl}, v{vL}")
    for i in range(4):
        cold(f"v_mov_b32_dpp v{vAb}, v{vAl} row_newbcast:{4*i} row_mask:{hex(1<<i)} bank_mask:0xf")
    for e in range(8):
        cold(f"v_mul_f32 v{vAcc+4*e}, v{vAb}, v{vAcc+4*e}")
    for j in range(4):
        cold(f"v_cvt_pk_bf16_f32 v{vD+j}, v{vAcc+8*j}, v{vAcc+8*j+4}")
    cold(f"""
    s_mov_b32 s{SO}, s{sOUT}
    s_mov_b32 s{SO+1}, s{sOUT+1}
    s_mov_b32 s{SO+2}, 8192
    s_mov_b32 s{SO+3}, 0x20000
    s_and_b32 s{sT0}, s{sHq}, 3
    s_lshl_b32 s{sT0}, s{sT0}, 4
    s_lshl1_add_u32 s{sT0}, s{sOct}, s{sT0}
    s_lshl_b32 s{sT1}, s{sH}, 10
    v_lshlrev_b32 v{vTmp}, 4, v{vLane}
    s_lshl_b64 exec, 3, s{sT0}
    buffer_store_dwordx4 {vr(vD,4)}, v{vTmp}, {sr(SO,4)}, s{sT1} offen
    s_endpgm
    """)
    k.lines += cold.lines
    body = k.done()

    out = HEADER
    if DIAG:
        out += f"; nwaves=3072 diagoff={DIAG_OFF} trace={TRACE}\n"
    out += f"; @launch grid=(256,1,1) block=(768,1,1) lds=2048\n"
    out += '.amdgcn_target "amdgcn-amd-amdhsa--gfx950"\n.text\n'
    out += f".globl {NAME}_kernel\n.p2align 8\n.type {NAME}_kernel,@function\n{NAME}_kernel:\n"
    out += body
    out += f""".section .rodata,"a"
.p2align 6
.amdhsa_kernel {NAME}_kernel
  .amdhsa_next_free_vgpr {NV}
  .amdhsa_next_free_sgpr 98
  .amdhsa_accum_offset {(NV + 3) // 4 * 4}
  .amdhsa_group_segment_fixed_size 0
  .amdhsa_kernarg_size 64
  .amdhsa_user_sgpr_count 2
  .amdhsa_user_sgpr_kernarg_segment_ptr 1
  .amdhsa_system_sgpr_workgroup_id_x 1
.end_amdhsa_kernel
"""
    return out


if __name__ == "__main__":
    kw = {}
    for a in sys.argv[2:]:
        key, val = a.split("=")
        kw[key] = val if key in ("POL", "SNPOL", "DV", "PFPOL") else int(val, 0)
    open(sys.argv[1], "w").write(gen(**kw))
```

```python
import sys
import struct
from asmlib import K, vr, sr

NAME = "standalone__paged_block_table_kv_pagedattention__decode"
KV_BYTES = 4100 * 32768
HEADER = open("cdna_kernels/" + NAME + ".s.ref").read().split("; Override")[0]
ML_OFF = 0x100000
WS_USED = 0x110000
END = 0x80000000
PROG = 512
CTR = PROG + 64
PART = 1024

DOC = """;
"""


def f32(x):
    return "0x%08x" % struct.unpack("<I", struct.pack("<f", x))[0]


def gen(DV="66677666", SLEEP1=2, SLEEP2=20, T2=12, LIMIT=1024, LIM0=48, SIGP=4, REM=16, LG=2, FORCEFB=0, MUL=0):
    dv = [int(c) for c in DV]
    D = dv[7]
    assert (128 >> LG) + REM + 2 <= 63
    k = K()
    cold = K()
    sQ, sKp, sVp, sBT, sCTX, sOUT, sDBG, sWS = 4, 6, 8, 10, 12, 14, 16, 18
    SK, SV, SB, SQ, SW, SD, SO = 20, 24, 28, 32, 36, 60, 64
    sH, sHg, sWv, sJ, sCtx, sN, sI, sCnt, sOff, sC, sPlo, sPhi, sT0, sT1, sNeg, sIdx = range(40, 56)
    sBt0, sRec, sMl, sNxt = 56, 57, 58, 59
    sE, sFb, sR, sS, sSh, sBad, sHq, sOct, sLim = 68, 69, 70, 71, 72, 73, 74, 75, 76
    sTS = 78
    NS = 82 if MUL else 77
    vLane, vKo0, vKo1, vVo0, vVo1, vLi, vG4, vM, vL, vMx, vTmp, vAl, vAb = range(1, 14)
    vP, vQ, vT, vD, vB, vAcc, vKA, vVA = 14, 16, 20, 24, 40, 56, 88, 104
    vRo, vMo_w, vEn, vPa = 120, 121, 122, 124
    vFp, vFb = 126, 127
    NV = 128
    ALL = "row_mask:0xf bank_mask:0xf"

    def srd(kk, S, ptr, size):
        kk(f"""
        s_mov_b32 s{S}, s{ptr}
        s_mov_b32 s{S+1}, s{ptr+1}
        s_mov_b32 s{S+2}, {size}
        s_mov_b32 s{S+3}, 0x20000
        """)

    def ld(which, i, so):
        vo = (vKo0, vKo1) if which == "K" else (vVo0, vVo1)
        S = SK if which == "K" else SV
        base = vKA if which == "K" else vVA
        off = " offset:2048" if i & 1 else ""
        k(f"buffer_load_dwordx4 {vr(base+4*i,4)}, v{vo[i>>1]}, {sr(S,4)}, s{so} offen{off} nt")

    seq = [("K", i) for i in range(4)] + [("V", i) for i in range(4)]
    k(f"""
    s_load_dwordx16 s[4:19], s[0:1], 0
    s_lshr_b32 s{sSh}, s2, 4
    s_and_b32 s{sT1}, s2, 7
    s_lshl3_add_u32 s{sJ}, s{sSh}, s{sT1}
    s_lshl_b32 s{sIdx}, s{sJ}, 2
    s_cmp_ge_u32 s2, 256
    s_cbranch_scc1 L_end
    {f"s_memrealtime {sr(sTS,2)}" if MUL else ""}
    v_lshrrev_b32 v{vTmp}, 6, v0
    v_and_b32 v{vLane}, 63, v0
    v_readfirstlane_b32 s{sWv}, v{vTmp}
    s_bfe_u32 s{sHg}, s2, 0x10003
    s_cmp_ge_u32 s{sWv}, 4
    s_cbranch_scc1 L_service
    ; ---------------------------------------------------------------- worker
    s_waitcnt lgkmcnt(0)
    s_load_dword s{sBt0}, {sr(sBT,2)}, s{sIdx}
    s_mov_b64 {sr(sE,2)}, 0
    s_lshl2_add_u32 s{sH}, s{sHg}, s{sWv}
    L_setup:
    v_lshrrev_b32 v{vG4}, 4, v{vLane}
    v_lshlrev_b32 v{vG4}, 2, v{vG4}            ; 4g
    v_and_b32 v{vTmp}, 3, v{vLane}
    v_add_lshl_u32 v{vTmp}, v{vTmp}, v{vG4}, 4
    v_bfe_u32 v{vMx}, v{vLane}, 2, 2
    s_lshl_b32 s{sT1}, s{sH}, 8
    v_lshl_add_u32 v{vKo0}, v{vMx}, 13, v{vTmp}
    v_add_u32 v{vKo0}, s{sT1}, v{vKo0}
    v_add_u32 v{vKo1}, 0x1000, v{vKo0}
    v_lshl_add_u32 v{vAl}, v{vMx}, 8, v{vTmp}
    v_and_b32 v{vTmp}, 15, v{vLane}
    v_lshlrev_b32 v{vTmp}, 4, v{vTmp}
    v_lshl_add_u32 v{vVo0}, v{vG4}, 11, v{vTmp}
    v_add_u32 v{vVo0}, s{sT1}, v{vVo0}
    v_add_u32 v{vVo1}, 0x1000, v{vVo0}
    s_lshl_b32 s{sT0}, s{sH}, 10
    """)
    srd(k, SQ, sQ, 8192)
    k(f"buffer_load_dwordx4 {vr(vQ,4)}, v{vAl}, {sr(SQ,4)}, s{sT0} offen")
    srd(k, SK, sKp, KV_BYTES)
    srd(k, SV, sVp, KV_BYTES)
    k(f"""
    L_first:
    s_waitcnt lgkmcnt(0)
    s_lshl_b32 s{sOff}, s{sBt0}, 15
    """)
    for w, i in seq[:D]:
        ld(w, i, sOff)
    k(f"v_mov_b32 v{vLi}, 0")
    srd(k, SW, sWS, WS_USED)
    k(f"""
    v_lshlrev_b32 v{vRo}, 4, v{vLane}
    v_lshlrev_b32 v{vMo_w}, 2, v{vLane}
    s_cmp_lg_u32 s{sE}, 0
    s_cbranch_scc1 L_loop
    s_mov_b32 s{sC}, {f32(128 ** -0.5 * 1.4426950408889634)}   ; D^-0.5 * log2(e)
    s_mov_b32 s{sPlo}, 0x05040100
    s_mov_b32 s{sPhi}, 0x07060302
    s_mov_b32 s{sNeg}, {f32(-1e9 * 1.4426950408889634)}
    s_lshl2_add_u32 s{sT0}, s{sWv}, {PROG}
    v_mov_b32 v{vM}, {f32(-3.0e38)}
    v_mov_b32 v{vL}, 0
    v_mov_b32 v{vAb}, 0
    v_mov_b32 v{vPa}, s{sT0}
    """)
    for i in range(32):
        k(f"v_mov_b32 v{vAcc+i}, 0")
    k(f"""
    s_cmp_lg_u32 s{sFb}, 0
    s_cbranch_scc1 L_loop
    s_barrier
    s_lshl_b32 s{sRec}, s{sH}, 7
    s_add_u32 s{sRec}, s{sRec}, s{sJ}
    s_lshl_b32 s{sRec}, s{sRec}, 10            ; record (h*128+j)*1024
    s_load_dword s{sR}, {sr(sWS,2)}, s{sRec}
    s_lshr_b32 s{sMl}, s{sRec}, 4
    s_add_u32 s{sMl}, s{sMl}, {ML_OFF}
    """)

    def qk(i):
        k(f"v_mfma_f32_16x16x32_bf16 {vr(vD+4*i,4)}, {vr(vKA+4*i,4)}, {vr(vQ,4)}, 0")

    def soft_a():
        k("; score of (token 4g+i, query t) = sum of the quad's diagonal; valid in lanes with s == 0")
        for j in (1, 2, 3):
            for i in range(4):
                src1 = vD + 4 * i if j == 1 else vT + i
                k(f"v_add_f32_dpp v{vT+i}, v{vD+4*i+j}, v{src1} quad_perm:[{j},{j},{j},{j}] {ALL}")
        for i in range(4):
            k(f"v_mul_f32 v{vT+i}, s{sC}, v{vT+i}")
        k(f"""
        s_cmp_lt_u32 s{sCnt}, 16
        s_cbranch_scc1 L_mask
        L_nomask:
        """)
        cold(f"""
        L_mask:                                    ; tokens at or past context_len
        v_mov_b32 v{vTmp}, s{sNeg}
        """)
        for i in range(4):
            cold(f"""
            s_sub_i32 s{sT0}, s{sCnt}, {i}
            v_cmp_gt_i32 vcc, s{sT0}, v{vG4}
            v_cndmask_b32 v{vT+i}, v{vTmp}, v{vT+i}, vcc
            """)
        cold("s_branch L_nomask")
        k(f"""
        v_max3_f32 v{vMx}, v{vT}, v{vT+1}, v{vT+2}
        v_max3_f32 v{vMx}, v{vMx}, v{vT+3}, v{vM}
        v_mov_b32 v{vTmp}, v{vMx}
        v_permlane32_swap_b32 v{vMx}, v{vTmp}
        v_max_f32 v{vMx}, v{vMx}, v{vTmp}
        v_mov_b32 v{vTmp}, v{vMx}
        v_permlane16_swap_b32 v{vMx}, v{vTmp}
        v_max_f32 v{vMx}, v{vMx}, v{vTmp}
        """)

    def soft_b():
        k(f"""
        v_sub_f32 v{vAl}, v{vM}, v{vMx}
        v_mov_b32 v{vM}, v{vMx}
        v_exp_f32 v{vAl}, v{vAl}
        """)
        for i in range(4):
            k(f"v_sub_f32 v{vT+i}, v{vT+i}, v{vMx}")
        for i in range(4):
            k(f"v_exp_f32 v{vT+i}, v{vT+i}")
            k(f"v_mov_b32_dpp v{vAb}, v{vAl} row_newbcast:{4*i} row_mask:{hex(1<<i)} bank_mask:0xf")
            if i == 1:
                k(f"v_fma_f32 v{vL}, v{vL}, v{vAl}, v{vT}")
            if i == 2:
                k(f"v_cvt_pk_bf16_f32 v{vP}, v{vT}, v{vT+1}")
        k(f"""
        v_add_f32 v{vTmp}, v{vT+1}, v{vT+2}
        v_cvt_pk_bf16_f32 v{vP+1}, v{vT+2}, v{vT+3}
        v_add_f32 v{vL}, v{vL}, v{vT+3}
        v_add_f32 v{vL}, v{vL}, v{vTmp}
        """)
        for e in range(8):
            k(f"v_mul_f32 v{vAcc+4*e}, v{vAb}, v{vAcc+4*e}")

    def perm(e, half):
        j, hi = e >> 1, e & 1
        sel = sPhi if hi else sPlo
        k(f"v_perm_b32 v{vB+2*e+half}, v{vVA+8*half+4+j}, v{vVA+8*half+j}, s{sel}")

    def pv(e):
        k(f"v_mfma_f32_16x16x16_bf16 {vr(vAcc+4*e,4)}, {vr(vP,2)}, {vr(vB+2*e,2)}, {vr(vAcc+4*e,4)}")

    def lreduce(kk):
        kk(f"""
        v_mov_b32 v{vTmp}, v{vL}
        v_permlane32_swap_b32 v{vL}, v{vTmp}
        v_add_f32 v{vL}, v{vL}, v{vTmp}
        v_mov_b32 v{vTmp}, v{vL}
        v_permlane16_swap_b32 v{vL}, v{vTmp}
        v_add_f32 v{vL}, v{vL}, v{vTmp}
        """)

    U = [p + 1 + dv[p] for p in range(8)]
    prevU = [U[7] - 8] + U[:7]
    firstN = min(p for p in range(8) if U[p] > 8)
    assert all(U[p] >= prevU[p] for p in range(8)) and D <= 8 and firstN <= 3 and SIGP > firstN

    def issue(p):
        for t in range(prevU[p], U[p]):
            w, i = seq[t % 8]
            if t >= 8:
                assert p >= {8: 0, 9: 1, 10: 2, 11: 3, 12: 5, 13: 5, 14: 7, 15: 7}[t], (DV, p, t)
            ld(w, i, sOff if t < 8 else sNxt)

    def wait(p):
        if p == SIGP:
            k(f"ds_write_b32 v{vPa}, v{vLi}")
        k(f"s_waitcnt vmcnt({prevU[p] - p - 1})")

    k("L_loop:")
    for i in range(4):
        if i == firstN:
            k(f"""
            L_get:
            ds_read2_b32 {vr(vEn,2)}, v{vLi} offset0:0 offset1:1
            """)
        wait(i)
        qk(i)
        if i == firstN:
            k(f"""
            s_waitcnt lgkmcnt(0)
            v_readfirstlane_b32 s{sT0}, v{vEn+1}
            v_readfirstlane_b32 s{sCnt}, v{vEn}
            s_max_u32 s{sT1}, s{sT0}, s{sCnt}
            s_cmp_eq_u32 s{sT1}, -1
            s_cbranch_scc1 L_retry
            s_and_b32 s{sNxt}, s{sT0}, 0xffff8000
            s_and_b32 s{sCnt}, s{sCnt}, 31
            v_add_u32 v{vLi}, 4, v{vLi}
            """)
        issue(i)
    soft_a()
    wait(4)
    issue(4)
    soft_b()
    k(f"""
    s_cmp_eq_u32 s{sNxt}, {hex(END)}
    s_cbranch_scc1 L_ml
    L_mld:
    """)
    wait(5)
    if U[5] > 12:
        for e in range(8):
            perm(e, 0)
        issue(5)
    else:
        issue(5)
        for e in range(8):
            perm(e, 0)
    wait(6)
    issue(6)
    wait(7)
    if U[7] > 14:
        for e in range(8):
            perm(e, 1)
        issue(7)
        for e in range(8):
            pv(e)
    else:
        issue(7)
        perm(0, 1)
        perm(1, 1)
        for e in range(8):
            if e + 2 < 8:
                perm(e + 2, 1)
            pv(e)
    k(f"""
    s_mov_b32 s{sOff}, s{sNxt}
    s_cmp_eq_u32 s{sNxt}, {hex(END)}
    s_cbranch_scc0 L_loop
    s_cmp_lg_u32 s{sFb}, 0
    s_cbranch_scc1 L_fbnext
    L_done:                                    ; lane (c, g): O[query g][8c .. 8c+7]
    """)
    for j in range(4):
        k(f"v_cvt_pk_bf16_f32 v{vD+j}, v{vAcc+8*j}, v{vAcc+8*j+4}")
        k(f"v_xor_b32 v{vD+j}, s{sR}, v{vD+j}")
    k(f"""
    buffer_store_dwordx4 {vr(vD,4)}, v{vRo}, {sr(SW,4)}, s{sRec} offen sc1
    s_barrier
    s_endpgm
    L_retry:
    s_cmp_eq_u32 s{sCnt}, {hex(END)}
    s_cbranch_scc0 L_get
    s_branch L_none
    L_ml:                                      ; last page: (m, l) are final before its V rows land
    s_cmp_lg_u32 s{sFb}, 0
    s_cbranch_scc1 L_mld
    L_none:
    s_add_u32 s{sR}, s{sR}, s{sMl}
    s_mul_i32 s{sR}, s{sR}, 0x9e3779b1
    s_lshr_b32 s{sT0}, s{sR}, 15
    s_xor_b32 s{sR}, s{sR}, s{sT0}
    s_mul_i32 s{sR}, s{sR}, 0x85ebca6b         ; salt
    """)
    lreduce(k)
    k(f"""
    v_xor_b32 v{vT}, s{sR}, v{vM}
    v_mov_b32 v{vT+2}, s{sR}
    v_mov_b32 v{vT+3}, s{sR}
    s_mov_b32 exec_lo, 0x1111
    s_mov_b32 exec_hi, 0
    v_xor_b32 v{vT+1}, s{sR}, v{vL}
    buffer_store_dwordx4 {vr(vT,4)}, v{vMo_w}, {sr(SW,4)}, s{sMl} offen sc1
    s_mov_b64 exec, -1
    s_cmp_eq_u32 s{sCnt}, {hex(END)}
    s_cbranch_scc0 L_mld
    s_branch L_done
    """)

    vOf, vMo, vPw, vPm, vPr_, vOo = 2, 3, 4, 5, 6, 7
    vX, vY, vW, vZ = 8, 9, 10, 11
    vML = 12
    vMa, vRr, vSa = 16, 18, 20
    vA, vPr = 24, 28
    vOr, vOs, vU = 32, 34, 36
    vBt, vDyn, vCo = 42, 43, 44

    def ctxcalc(kk):
        kk(f"""
        s_min_i32 s{sT0}, s{sCtx}, 65536
        s_cmp_le_i32 s{sCtx}, 0
        s_cselect_b32 s{sT0}, 65536, s{sT0}
        s_add_u32 s{sT0}, s{sT0}, 15
        s_lshr_b32 s{sN}, s{sT0}, 4
        s_min_i32 s{sCtx}, s{sCtx}, 65536
        s_max_i32 s{sCtx}, s{sCtx}, 0
        """)

    def entry(kk, vpage, vbt, vt):
        kk(f"""
        v_lshlrev_b32 v{vt}, 4, v{vpage}
        v_sub_u32 v{vt}, s{sCtx}, v{vt}
        v_med3_i32 v{vt}, v{vt}, 0, 16
        v_cmp_gt_u32 vcc, s{sN}, v{vpage}
        v_lshl_or_b32 v{vbt}, v{vbt}, 15, v{vt}
        v_bfrev_b32 v{vt}, 1
        v_and_b32 v{vbt}, 0x7fffffff, v{vbt}
        v_cndmask_b32 v{vbt}, v{vt}, v{vbt}, vcc
        """)

    k(f"""
    L_service:
    s_mov_b64 {sr(sE,2)}, 0
    s_mov_b32 s{sBad}, 0
    s_cmp_eq_u32 s{sWv}, 4
    s_cbranch_scc0 L_cons
    v_lshlrev_b32 v{vBt}, 9, v{vLane}
    v_lshlrev_b32 v{vX}, 7, v{vLane}
    v_add_u32 v{vX}, s{sJ}, v{vX}
    v_lshlrev_b32 v{vCo}, 2, v{vLane}
    v_mov_b32 v{vZ}, -1
    v_mov_b32 v{vPr}, 0
    ds_write_b32 v{vCo}, v{vZ}
    ds_write_b32 v{vCo}, v{vZ} offset:256
    ds_write_b32 v{vCo}, v{vPr} offset:{PROG}
    s_waitcnt lgkmcnt(0)
    s_load_dword s{sCtx}, {sr(sCTX,2)}, 0
    """)
    srd(k, SB, sBT, 16384)
    k(f"""
    buffer_load_dword v{vBt}, v{vBt}, {sr(SB,4)}, s{sIdx} offen
    s_barrier
    s_waitcnt lgkmcnt(0)
    """)
    ctxcalc(k)
    k(f"""
    s_lshr_b32 s{sS}, s{sN}, 7
    s_max_i32 s{sS}, s{sS}, 1
    s_waitcnt vmcnt(0)
    """)
    entry(k, vX, vBt, vY)
    k(f"""
    v_cmp_gt_u32 vcc, s{sS}, v{vLane}
    s_and_b32 s{sSh}, s{sSh}, {(1 << LG) - 1}
    s_lshl_b32 s{sT0}, s{sS}, 7
    s_add_u32 s{sT0}, s{sT0}, s{sSh}
    v_cndmask_b32 v{vBt}, v{vZ}, v{vBt}, vcc
    ds_write_b32 v{vCo}, v{vBt}
    v_lshl_add_u32 v{vBt}, v{vLane}, {LG}, s{sT0}
    v_lshlrev_b32 v{vDyn}, 2, v{vBt}
    buffer_load_dword v{vDyn}, v{vDyn}, {sr(SB,4)}, 0 offen
    L_cons:
    s_and_b32 s{sT0}, s2, 7
    s_lshr_b32 s{sT1}, s2, 5
    s_lshl3_add_u32 s{sT0}, s{sT0}, s{sT1}
    s_lshr_b32 s{sHq}, s{sT0}, 1
    s_and_b32 s{sT0}, s{sT0}, 1
    s_bfe_u32 s{sT1}, s2, 0x20003
    s_lshl2_add_u32 s{sOct}, s{sT0}, s{sT1}
    s_sub_u32 s{sCnt}, s{sWv}, 4               ; c
    s_lshr_b32 s{sT0}, s{sHq}, 2
    s_lshl3_add_u32 s{sOff}, s{sT0}, s{sCnt}   ; h*8 + c
    s_and_b32 s{sI}, s{sHq}, 3                 ; q
    s_lshl_b32 s{sT0}, s{sOff}, 14
    s_lshl_b32 s{sT1}, s{sI}, 8
    s_add_u32 s{sT0}, s{sT0}, s{sT1}
    s_lshl_b32 s{sT1}, s{sOct}, 5
    s_add_u32 s{sT0}, s{sT0}, s{sT1}
    v_lshrrev_b32 v{vY}, 2, v{vLane}
    v_and_b32 v{vW}, 3, v{vLane}
    v_lshlrev_b32 v{vX}, 10, v{vY}
    v_lshl_add_u32 v{vX}, v{vW}, 3, v{vX}
    v_add_u32 v{vOf}, s{sT0}, v{vX}
    s_lshl_b32 s{sT0}, s{sOff}, 10
    s_lshl4_add_u32 s{sT0}, s{sI}, s{sT0}
    s_add_u32 s{sT0}, s{sT0}, {ML_OFF}
    v_lshlrev_b32 v{vX}, 6, v{vY}
    v_lshl_add_u32 v{vX}, v{vW}, 2, v{vX}
    v_add_u32 v{vMo}, s{sT0}, v{vX}
    s_waitcnt lgkmcnt(0)
    """)
    srd(k, SW, sWS, WS_USED)
    k(f"""
    buffer_load_dword v{vSa}, v{vMo}, {sr(SW,4)}, 0 offen sc1 nt
    buffer_load_dwordx2 {vr(vOs,2)}, v{vOf}, {sr(SW,4)}, 0 offen sc1 nt
    s_cmp_eq_u32 s{sWv}, 4
    s_cbranch_scc1 L_nb1
    s_barrier
    L_nb1:
    s_lshl_b32 s{sT0}, s{sHq}, 8
    s_add_u32 s{sT0}, s{sT0}, s{sT1}
    v_lshrrev_b32 v{vX}, 3, v{vLane}
    v_lshl_add_u32 v{vOo}, v{vX}, 2, s{sT0}
    v_and_b32 v{vZ}, 7, v{vLane}
    v_lshlrev_b32 v{vX}, 4, v{vX}
    v_lshl_add_u32 v{vPr_}, v{vZ}, 7, v{vX}
    s_lshl_b32 s{sT0}, s{sCnt}, 7
    v_lshl_add_u32 v{vPm}, v{vZ}, 4, s{sT0}
    v_lshrrev_b32 v{vX}, 5, v{vLane}
    v_lshl_add_u32 v{vX}, v{vW}, 1, v{vX}
    v_bfe_u32 v{vZ}, v{vLane}, 4, 1
    v_lshlrev_b32 v{vZ}, 2, v{vZ}
    v_lshl_add_u32 v{vX}, v{vX}, 4, v{vZ}
    v_add_u32 v{vPw}, s{sT0}, v{vX}
    """)
    srd(k, SO, sOUT, 8192)
    k(f"""
    s_mov_b32 s{sC}, 0xffff0000
    s_cmp_eq_u32 s{sWv}, 4
    s_cbranch_scc0 L_real
    """)
    srd(k, SD, sDBG, 256)
    k(f"""
    s_lshl1_add_u32 s{sT0}, s{sSh}, s{sHg}
    s_lshl_b32 s{sT0}, s{sT0}, {7 - LG}
    v_mov_b32 v{vCo}, s{sT0}
    v_mov_b32 v{vW}, {PROG}
    s_lshl_b32 s{sE}, s{sS}, 2
    s_waitcnt vmcnt(2)
    """)
    entry(k, vBt, vDyn, vY)
    k(f"""
    s_cmp_lt_u32 s{sJ}, s{sN}
    s_cbranch_scc0 L_real
    L_s0:                                      ; wait until a worker fetches the entry before
    ds_read_b128 {vr(vPr,4)}, v{vW}
    s_waitcnt lgkmcnt(0)
    v_max3_u32 v{vX}, v{vPr}, v{vPr+1}, v{vPr+2}
    v_max_u32 v{vX}, v{vX}, v{vPr+3}
    s_sub_u32 s{sT1}, s{sE}, 4
    v_readfirstlane_b32 s{sT0}, v{vX}
    s_cmp_ge_u32 s{sT0}, s{sT1}
    s_cbranch_scc1 L_s1
    s_sleep 1
    s_branch L_s0
    L_s1:
    v_mov_b32 v{vX}, 1
    s_mov_b64 exec, 1
    buffer_atomic_add v{vX}, v{vCo}, {sr(SD,4)}, 0 offen sc0 sc1
    s_mov_b64 exec, -1
    v_mov_b32 v{vY}, s{sE}
    s_add_u32 s{sE}, s{sE}, 4
    s_waitcnt vmcnt(0)
    v_readfirstlane_b32 s{sT0}, v{vX}
    s_min_u32 s{sT1}, s{sT0}, {63-REM-1}
    v_readlane_b32 s{sT0}, v{vDyn}, s{sT1}
    s_add_u32 s{sT1}, s{sT1}, {REM+1}
    v_readlane_b32 s{sT1}, v{vDyn}, s{sT1}
    v_mov_b32 v{vX}, s{sT0}
    ds_write_b32 v{vY}, v{vX}
    s_cmp_eq_u32 s{sT1}, {hex(END)}
    s_cbranch_scc0 L_s0
    v_mov_b32 v{vX}, s{sT1}
    ds_write_b32 v{vY}, v{vX} offset:4
    L_real:
    s_mov_b32 s{sI}, {LIMIT if FORCEFB else 0}
    s_mov_b32 s{sLim}, {LIMIT if FORCEFB else LIM0}
    v_mov_b32 v{vCo}, {CTR}
    v_mov_b32 v{vBt}, 1
    s_waitcnt vmcnt(0) lgkmcnt(0)
    s_barrier
    s_branch L_m1
    L_m0:                                      ; wait for the (m, l, salt) entries
    s_bcnt1_i32_b64 s{sT0}, vcc
    s_cmp_gt_u32 s{sT0}, {T2}
    s_cbranch_scc0 L_m2
    s_sleep {SLEEP2}
    L_m2:
    s_sleep {SLEEP1}
    s_mov_b64 exec, vcc
    L_m1:
    buffer_load_dword v{vMa}, v{vMo}, {sr(SW,4)}, 0 offen sc1
    s_mov_b64 exec, -1
    s_add_u32 s{sI}, s{sI}, 1
    s_cmp_ge_u32 s{sI}, s{sLim}
    s_cbranch_scc1 L_chk1
    L_m3:
    s_waitcnt vmcnt(0)
    v_cmp_eq_u32 vcc, v{vMa}, v{vSa}
    s_cbranch_vccnz L_m0
    buffer_load_dwordx2 {vr(vOr,2)}, v{vOf}, {sr(SW,4)}, 0 offen sc1
    v_mov_b32_dpp v{vRr}, v{vMa} quad_perm:[2,2,2,2] {ALL}
    v_xor_b32_dpp v{vW}, v{vMa}, v{vRr} quad_perm:[0,0,0,0] {ALL}   ; m
    v_xor_b32_dpp v{vZ}, v{vMa}, v{vRr} quad_perm:[1,1,1,1] {ALL}   ; l
    v_max_f32_dpp v{vML}, v{vW}, v{vW} row_ror:4 {ALL}
    v_max_f32_dpp v{vML}, v{vML}, v{vML} row_ror:8 {ALL}
    v_mov_b32 v{vY}, v{vML}
    v_permlane16_swap_b32 v{vML}, v{vY}
    v_max_f32 v{vML}, v{vML}, v{vY}
    v_mov_b32 v{vY}, v{vML}
    v_permlane32_swap_b32 v{vML}, v{vY}
    v_max_f32 v{vML}, v{vML}, v{vY}
    v_sub_f32 v{vW}, v{vW}, v{vML}
    v_exp_f32 v{vW}, v{vW}
    v_mul_f32 v{vZ}, v{vW}, v{vZ}
    v_add_f32_dpp v{vZ}, v{vZ}, v{vZ} row_ror:4 {ALL}
    v_add_f32_dpp v{vZ}, v{vZ}, v{vZ} row_ror:8 {ALL}
    v_mov_b32 v{vY}, v{vZ}
    v_permlane16_swap_b32 v{vZ}, v{vY}
    v_add_f32 v{vZ}, v{vZ}, v{vY}
    v_mov_b32 v{vY}, v{vZ}
    v_permlane32_swap_b32 v{vZ}, v{vY}
    v_add_f32 v{vML+1}, v{vZ}, v{vY}
    ds_write_b64 v{vPm}, {vr(vML,2)} offset:{PART+8}
    s_branch L_o1
    L_o0:                                      ; wait for the record pieces
    s_mov_b64 exec, vcc
    buffer_load_dwordx2 {vr(vOr,2)}, v{vOf}, {sr(SW,4)}, 0 offen sc1
    s_mov_b64 exec, -1
    s_add_u32 s{sI}, s{sI}, 1
    s_cmp_ge_u32 s{sI}, s{sLim}
    s_cbranch_scc1 L_chk2
    L_o1:
    s_waitcnt vmcnt(0)
    v_xor_b32 v{vU}, v{vOr}, v{vOs}
    v_xor_b32 v{vU+1}, v{vOr+1}, v{vOs+1}
    v_xor_b32 v{vX}, v{vOr}, v{vRr}
    v_min_u32 v{vU}, v{vU}, v{vU+1}
    v_xor_b32 v{vY}, v{vOr+1}, v{vRr}
    v_cmp_eq_u32 vcc, 0, v{vU}
    v_lshlrev_b32 v{vA}, 16, v{vX}
    v_and_b32 v{vA+1}, s{sC}, v{vX}
    v_lshlrev_b32 v{vA+2}, 16, v{vY}
    v_and_b32 v{vA+3}, s{sC}, v{vY}
    s_cbranch_vccnz L_o0
    """)
    for j in range(4):
        k(f"v_mul_f32 v{vA+j}, v{vW}, v{vA+j}")
    for sh in (4, 8):
        for j in range(4):
            k(f"v_add_f32_dpp v{vA+j}, v{vA+j}, v{vA+j} row_ror:{sh} {ALL}")
    k(f"""
    v_permlane16_swap_b32 v{vA}, v{vA+1}
    v_permlane16_swap_b32 v{vA+2}, v{vA+3}
    v_add_f32 v{vA}, v{vA}, v{vA+1}
    v_add_f32 v{vA+2}, v{vA+2}, v{vA+3}
    v_permlane32_swap_b32 v{vA}, v{vA+2}
    v_add_f32 v{vA}, v{vA}, v{vA+2}
    ds_write_b32 v{vPw}, v{vA} offset:{PART}
    L_arr:
    s_mov_b64 exec, 1
    ds_add_rtn_u32 v{vBt}, v{vCo}, v{vBt}
    s_mov_b64 exec, -1
    ds_read_b128 {vr(vA,4)}, v{vPr_} offset:{PART}
    s_waitcnt lgkmcnt(1)
    v_readfirstlane_b32 s{sT0}, v{vBt}
    s_and_b32 s{sT1}, s{sT0}, 15
    s_cmp_eq_u32 s{sT1}, 7
    s_cbranch_scc0 L_end
    s_or_b32 s{sT0}, s{sT0}, s{sBad}
    s_cmp_gt_u32 s{sT0}, 15
    s_cbranch_scc1 L_fb
    s_waitcnt lgkmcnt(0)
    """)
    dp = ["quad_perm:[1,0,3,2]", "quad_perm:[2,3,0,1]", "row_half_mirror"]
    k(f"""
    v_max_f32_dpp v{vX}, v{vA+2}, v{vA+2} {dp[0]} {ALL}
    s_mov_b32 vcc_lo, 0x01010101
    s_mov_b32 vcc_hi, 0x01010101
    v_max_f32_dpp v{vX}, v{vX}, v{vX} {dp[1]} {ALL}
    v_max_f32_dpp v{vX}, v{vX}, v{vX} {dp[2]} {ALL}
    v_sub_f32 v{vX}, v{vA+2}, v{vX}
    v_exp_f32 v{vX}, v{vX}
    v_mul_f32 v{vA+3}, v{vX}, v{vA+3}
    v_mul_f32 v{vA}, v{vX}, v{vA}
    v_mul_f32 v{vA+1}, v{vX}, v{vA+1}
    """)
    for d in dp:
        for a_ in (vA + 3, vA, vA + 1):
            k(f"v_add_f32_dpp v{a_}, v{a_}, v{a_} {d} {ALL}")
    k(f"""
    v_rcp_f32 v{vX}, v{vA+3}
    s_mov_b64 exec, vcc
    v_mul_f32 v{vA}, v{vA}, v{vX}
    v_mul_f32 v{vA+1}, v{vA+1}, v{vX}
    v_cvt_pk_bf16_f32 v{vA}, v{vA}, v{vA+1}
    buffer_store_dword v{vA}, v{vOo}, {sr(SO,4)}, 0 offen
    """)
    if MUL:
        k(f"""
        s_waitcnt vmcnt(0)
        s_memrealtime {sr(sTS+2,2)}
        s_waitcnt lgkmcnt(0)
        s_sub_u32 s{sT1}, s{sTS+2}, s{sTS}
        s_mul_i32 s{sT1}, s{sT1}, {MUL}
        L_spinm:
        s_sleep 2
        s_memrealtime {sr(sTS+2,2)}
        s_waitcnt lgkmcnt(0)
        s_sub_u32 s{sT0}, s{sTS+2}, s{sTS}
        s_cmp_lt_u32 s{sT0}, s{sT1}
        s_cbranch_scc1 L_spinm
        """)
    k("""
    L_end:
    s_endpgm
    """)
    for n, back in ((1, "L_m3"), (2, "L_o1")):
        cold(f"""
        L_chk{n}:                                    ; many looks without success: give up early on a short context
        s_cmp_ge_u32 s{sI}, {LIMIT}
        s_cbranch_scc1 L_fail
        s_load_dword s{sT0}, {sr(sCTX,2)}, 0
        s_mov_b32 s{sLim}, {LIMIT}
        s_waitcnt lgkmcnt(0)
        s_sub_u32 s{sT0}, s{sT0}, 1
        s_cmp_lt_u32 s{sT0}, 8192
        s_cbranch_scc0 {back}
        {"s_branch L_fail" if n == 1 else ""}
        """)
    cold(f"""
    L_fail:
    v_mov_b32 v{vBt}, 17
    s_mov_b32 s{sBad}, 16
    s_branch L_arr
    L_fb:
    s_load_dword s{sCtx}, {sr(sCTX,2)}, 0
    s_waitcnt vmcnt(0) lgkmcnt(0)
    """)
    ctxcalc(cold)
    cold(f"""
    s_mov_b32 s{sE}, 0
    s_lshr_b32 s{sH}, s{sHq}, 2
    L_fbfill:
    """)
    srd(cold, SB, sBT, 16384)
    cold(f"""
    v_add_u32 v{vFp}, s{sE}, v{vLane}
    v_lshlrev_b32 v{vFb}, 2, v{vFp}
    buffer_load_dword v{vFb}, v{vFb}, {sr(SB,4)}, 0 offen
    s_lshl_b32 s{sIdx}, s{sE}, 2
    s_waitcnt vmcnt(0)
    """)
    entry(cold, vFp, vFb, vTmp)
    cold(f"""
    s_bitset1_b32 s{sFb}, 31
    v_lshlrev_b32 v{vFp}, 2, v{vLane}
    v_writelane_b32 v{vFb}, s{sFb}, 63
    ds_write_b32 v{vFp}, v{vFb}
    s_load_dword s{sBt0}, {sr(sBT,2)}, s{sIdx}
    s_cmp_eq_u32 s{sE}, 0
    s_cbranch_scc1 L_setup
    s_branch L_first
    L_fbnext:
    s_waitcnt vmcnt(0)
    s_add_u32 s{sE}, s{sE}, 63
    s_cmp_lt_u32 s{sE}, s{sN}
    s_cbranch_scc1 L_fbfill
    """)
    lreduce(cold)
    cold(f"v_rcp_f32 v{vAl}, v{vL}")
    for i in range(4):
        cold(f"v_mov_b32_dpp v{vAb}, v{vAl} row_newbcast:{4*i} row_mask:{hex(1<<i)} bank_mask:0xf")
    for e in range(8):
        cold(f"v_mul_f32 v{vAcc+4*e}, v{vAb}, v{vAcc+4*e}")
    for j in range(4):
        cold(f"v_cvt_pk_bf16_f32 v{vD+j}, v{vAcc+8*j}, v{vAcc+8*j+4}")
    srd(cold, SO, sOUT, 8192)
    cold(f"""
    s_and_b32 s{sT0}, s{sHq}, 3
    s_lshl_b32 s{sT0}, s{sT0}, 4
    s_lshl1_add_u32 s{sT0}, s{sOct}, s{sT0}
    s_lshl_b32 s{sT1}, s{sH}, 10
    v_lshlrev_b32 v{vTmp}, 4, v{vLane}
    s_lshl_b64 exec, 3, s{sT0}
    buffer_store_dwordx4 {vr(vD,4)}, v{vTmp}, {sr(SO,4)}, s{sT1} offen
    s_endpgm
    """)
    k.lines += cold.lines
    body = k.done()

    out = HEADER + "; @launch grid=(256,1,1) block=(768,1,1) lds=2048\n" + DOC
    out += '.amdgcn_target "amdgcn-amd-amdhsa--gfx950"\n.text\n'
    out += f".globl {NAME}_kernel\n.p2align 8\n.type {NAME}_kernel,@function\n{NAME}_kernel:\n"
    out += body
    out += f""".section .rodata,"a"
.p2align 6
.amdhsa_kernel {NAME}_kernel
  .amdhsa_next_free_vgpr {NV}
  .amdhsa_next_free_sgpr {NS}
  .amdhsa_accum_offset {NV}
  .amdhsa_group_segment_fixed_size 0
  .amdhsa_kernarg_size 64
  .amdhsa_user_sgpr_count 2
  .amdhsa_user_sgpr_kernarg_segment_ptr 1
  .amdhsa_system_sgpr_workgroup_id_x 1
.end_amdhsa_kernel
"""
    return out


if __name__ == "__main__":
    kw = {}
    for a in sys.argv[2:]:
        key, val = a.split("=")
        kw[key] = val if key in ("DV",) else int(val, 0)
    open(sys.argv[1], "w").write(gen(**kw))
```

```python
import sys
import struct
from asmlib import K, vr, sr

NAME = "standalone__paged_block_table_kv_pagedattention__decode"
KV_BYTES = 4100 * 32768
HEADER = open("cdna_kernels/" + NAME + ".s.ref").read().split("; Override")[0]
ML_OFF = 0x100000
WS_USED = 0x110000
END = 0x80000000
PROG = 1024
CTR = PROG + 64
DYN = 3072
PART = 2048
PML = PART + 512

DOC = """;
"""


def f32(x):
    return "0x%08x" % struct.unpack("<I", struct.pack("<f", x))[0]


def gen(DV="66666666", SLEEP1=2, SLEEP2=20, T2=12, LIMIT=1024, LIM0=48, SIGP=4, REM=16, LG=2, FORCEFB=0, MUL=0, GR=1, GSUB=4, HX=0, PPOL='', LPOL='sc1', SNP='sc1', WB=0, KD=0, FORCESC=0, CHK=24, DIAG=0, PERM=-1, FASTL=1, EBAR=1, PFM=0, PFO=0, TOUCH=0, DRY=0, SPD=0, THF=-1, THS=0, SLOWH=0x22):
    global WS_USED
    if DIAG:
        WS_USED = 0x400000
    ppol, lpol, snp = (x.replace('+', ' ') for x in (PPOL, LPOL, SNP))
    dv = [int(c) for c in DV]
    D = dv[7]
    assert 32 * (KD + 1) + REM + 2 <= 63 + 64 * 0 or True
    k = K()
    cold = K()
    sQ, sKp, sVp, sBT, sCTX, sOUT, sDBG, sWS = 4, 6, 8, 10, 12, 14, 16, 18
    SK, SV, SB, SQ, SW, SD, SO = 20, 24, 28, 32, 36, 60, 64
    sH, sHg, sWv, sJ, sCtx, sN, sI, sCnt, sOff, sC, sPlo, sPhi, sT0, sT1, sNeg, sIdx = range(40, 56)
    sBt0, sRec, sMl, sNxt = 56, 57, 58, 59
    sE, sFb, sR, sS, sSh, sBad, sHq, sOct, sLim = 68, 69, 70, 71, 72, 73, 74, 75, 76
    sPol, sXc = 77, 82
    sMA, sMB, sFast = 78, 80, 83
    sTS = 84
    s7a, s7f, sSp = 92, 93, 94
    NS = 95
    vLane, vKo0, vKo1, vVo0, vVo1, vLi, vG4, vM, vL, vMx, vTmp, vAl, vAb = range(1, 14)
    vP, vQ, vT, vD, vB, vAcc, vKA, vVA = 14, 16, 20, 24, 40, 56, 88, 104
    vRo, vMo_w, vEn, vPa = 120, 121, 122, 124
    vFp, vFb = 126, 127
    NV = 128
    ALL = "row_mask:0xf bank_mask:0xf"

    def srd(kk, S, ptr, size):
        kk(f"""
        s_mov_b32 s{S}, s{ptr}
        s_mov_b32 s{S+1}, s{ptr+1}
        s_mov_b32 s{S+2}, {size}
        s_mov_b32 s{S+3}, 0x20000
        """)

    def ld(which, i, so):
        vo = (vKo0, vKo1) if which == "K" else (vVo0, vVo1)
        S = SK if which == "K" else SV
        base = vKA if which == "K" else vVA
        off = " offset:2048" if i & 1 else ""
        k(f"buffer_load_dwordx4 {vr(base+4*i,4)}, v{vo[i>>1]}, {sr(S,4)}, s{so} offen{off} nt")

    def diag_store():
        k(f"""
        s_waitcnt vmcnt(0)
        s_memrealtime {sr(sTS+6,2)}
        s_getreg_b32 s{sT1}, hwreg(HW_REG_XCC_ID)
        s_waitcnt lgkmcnt(0)
        s_mov_b64 exec, -1
        v_mov_b32 v24, s{sTS}
        v_mov_b32 v25, s{sTS+2}
        v_mov_b32 v26, s{sTS+4}
        v_mov_b32 v27, s{sTS+6}
        v_mov_b32 v28, s{sT1}
        v_mov_b32 v29, s{sWv}
        v_mov_b32 v30, 0
        v_mov_b32 v31, s{sI}
        s_mul_i32 s{sT0}, s2, 12
        s_add_u32 s{sT0}, s{sT0}, s{sWv}
        s_lshl_b32 s{sT0}, s{sT0}, 5
        s_add_u32 s{sT0}, s{sT0}, 0x300000
        v_mov_b32 v11, 0
        s_mov_b64 exec, 1
        buffer_store_dwordx4 v[24:27], v11, {sr(SW,4)}, s{sT0} offen
        buffer_store_dwordx4 v[28:31], v11, {sr(SW,4)}, s{sT0} offen offset:16
        """)

    seq = [("K", i) for i in range(4)] + [("V", i) for i in range(4)]
    k(f"""
    s_load_dwordx16 s[4:19], s[0:1], 0
    s_cmp_ge_u32 s2, 256
    s_cbranch_scc1 L_end
    {f"s_memrealtime {sr(sTS,2)}" if MUL or DIAG else ""}
    v_lshrrev_b32 v{vTmp}, 6, v0
    v_and_b32 v{vLane}, 63, v0
    v_readfirstlane_b32 s{sWv}, v{vTmp}
    s_lshr_b32 s{sSh}, s2, 3
    s_and_b32 s{sH}, s2, 7
    {f"s_xor_b32 s{sH}, s{sH}, {HX}" if PERM < 0 else f"s_lshl_b32 s{sH}, s{sH}, 2"}               ; kv head of this workgroup
    {"" if PERM < 0 else f"s_lshr_b32 s{sH}, {hex(PERM)}, s{sH}"}
    {"" if PERM < 0 else f"s_and_b32 s{sH}, s{sH}, 7"}
    s_cmp_ge_u32 s{sWv}, 4
    s_cbranch_scc1 L_service
    s_lshl2_add_u32 s{sJ}, s{sSh}, s{sWv}
    s_lshl_b32 s{sIdx}, s{sJ}, 2
    s_waitcnt lgkmcnt(0)
    s_load_dword s{sBt0}, {sr(sBT,2)}, s{sIdx}
    s_mov_b64 {sr(sE,2)}, 0
    s_lshl_b32 s{sHg}, s{sWv}, 8
    L_setup:
    v_lshrrev_b32 v{vG4}, 4, v{vLane}
    v_lshlrev_b32 v{vG4}, 2, v{vG4}            ; 4g
    v_and_b32 v{vTmp}, 3, v{vLane}
    v_add_lshl_u32 v{vTmp}, v{vTmp}, v{vG4}, 4
    v_bfe_u32 v{vMx}, v{vLane}, 2, 2
    s_lshl_b32 s{sT1}, s{sH}, 8
    v_lshl_add_u32 v{vKo0}, v{vMx}, 13, v{vTmp}
    v_add_u32 v{vKo0}, s{sT1}, v{vKo0}
    v_add_u32 v{vKo1}, 0x1000, v{vKo0}
    v_lshl_add_u32 v{vAl}, v{vMx}, 8, v{vTmp}
    v_and_b32 v{vTmp}, 15, v{vLane}
    v_lshlrev_b32 v{vTmp}, 4, v{vTmp}
    v_lshl_add_u32 v{vVo0}, v{vG4}, 11, v{vTmp}
    v_add_u32 v{vVo0}, s{sT1}, v{vVo0}
    v_add_u32 v{vVo1}, 0x1000, v{vVo0}
    s_lshl_b32 s{sT0}, s{sH}, 2
    s_lshr_b32 s{sSp}, {hex(SPD)}, s{sT0}
    {f"s_lshr_b32 s{sT0}, {hex(SLOWH)}, s{sH}" if THF >= 0 else ""}
    {f"s_bitcmp1_b32 s{sT0}, 0" if THF >= 0 else ""}
    {f"s_movk_i32 s{sSp}, {THF}" if THF >= 0 else ""}
    {f"s_cmovk_i32 s{sSp}, {THS}" if THF >= 0 else ""}
    s_lshl_b32 s{sT0}, s{sH}, 10
    """)
    srd(k, SQ, sQ, 8192)
    k(f"buffer_load_dwordx4 {vr(vQ,4)}, v{vAl}, {sr(SQ,4)}, s{sT0} offen")
    srd(k, SK, sKp, KV_BYTES)
    srd(k, SV, sVp, KV_BYTES)
    k(f"""
    s_waitcnt lgkmcnt(0)
    s_lshl_b32 s{sOff}, s{sBt0}, 15
    """)
    for w, i in seq[:D]:
        ld(w, i, sOff)
    k(f"v_mov_b32 v{vLi}, s{sHg}")
    srd(k, SW, sWS, WS_USED)
    k(f"""
    v_lshlrev_b32 v{vRo}, 4, v{vLane}
    v_lshlrev_b32 v{vMo_w}, 2, v{vLane}
    s_cmp_lg_u32 s{sE}, 0
    s_cbranch_scc1 L_loop
    s_mov_b32 s{sC}, {f32(128 ** -0.5 * 1.4426950408889634)}   ; D^-0.5 * log2(e)
    s_mov_b32 s{sPlo}, 0x05040100
    s_mov_b32 s{sPhi}, 0x07060302
    s_mov_b32 s{sNeg}, {f32(-1e9 * 1.4426950408889634)}
    s_lshl2_add_u32 s{sT0}, s{sWv}, {PROG}
    v_mov_b32 v{vM}, {f32(-3.0e38)}
    v_mov_b32 v{vL}, 0
    v_mov_b32 v{vAb}, 0
    v_mov_b32 v{vPa}, s{sT0}
    """)
    for i in range(32):
        k(f"v_mov_b32 v{vAcc+i}, 0")
    k(f"""
    s_cmp_lg_u32 s{sFb}, 0
    s_cbranch_scc1 L_loop
    s_barrier
    s_lshl_b32 s{sRec}, s{sH}, 7
    s_add_u32 s{sRec}, s{sRec}, s{sJ}
    s_lshl_b32 s{sRec}, s{sRec}, 10            ; record (h*128+j)*1024
    s_load_dword s{sR}, {sr(sWS,2)}, s{sRec}
    s_lshr_b32 s{sMl}, s{sRec}, 4
    s_add_u32 s{sMl}, s{sMl}, {ML_OFF}
    """)

    def qk(i):
        k(f"v_mfma_f32_16x16x32_bf16 {vr(vD+4*i,4)}, {vr(vKA+4*i,4)}, {vr(vQ,4)}, 0")

    def soft_a():
        k("; score of (token 4g+i, query t) = sum of the quad's diagonal; valid in lanes with s == 0")
        for j in (1, 2, 3):
            for i in range(4):
                src1 = vD + 4 * i if j == 1 else vT + i
                k(f"v_add_f32_dpp v{vT+i}, v{vD+4*i+j}, v{src1} quad_perm:[{j},{j},{j},{j}] {ALL}")
        for i in range(4):
            k(f"v_mul_f32 v{vT+i}, s{sC}, v{vT+i}")
        k(f"""
        s_cmp_lt_u32 s{sCnt}, 16
        s_cbranch_scc1 L_mask
        L_nomask:
        """)
        cold(f"""
        L_mask:                                    ; tokens at or past context_len
        v_mov_b32 v{vTmp}, s{sNeg}
        """)
        for i in range(4):
            cold(f"""
            s_sub_i32 s{sT0}, s{sCnt}, {i}
            v_cmp_gt_i32 vcc, s{sT0}, v{vG4}
            v_cndmask_b32 v{vT+i}, v{vTmp}, v{vT+i}, vcc
            """)
        cold("s_branch L_nomask")
        k(f"""
        v_max3_f32 v{vMx}, v{vT}, v{vT+1}, v{vT+2}
        v_max3_f32 v{vMx}, v{vMx}, v{vT+3}, v{vM}
        v_mov_b32 v{vTmp}, v{vMx}
        v_permlane32_swap_b32 v{vMx}, v{vTmp}
        v_max_f32 v{vMx}, v{vMx}, v{vTmp}
        v_mov_b32 v{vTmp}, v{vMx}
        v_permlane16_swap_b32 v{vMx}, v{vTmp}
        v_max_f32 v{vMx}, v{vMx}, v{vTmp}
        """)

    def soft_b():
        k(f"""
        v_sub_f32 v{vAl}, v{vM}, v{vMx}
        v_mov_b32 v{vM}, v{vMx}
        v_exp_f32 v{vAl}, v{vAl}
        """)
        for i in range(4):
            k(f"v_sub_f32 v{vT+i}, v{vT+i}, v{vMx}")
        for i in range(4):
            k(f"v_exp_f32 v{vT+i}, v{vT+i}")
            k(f"v_mov_b32_dpp v{vAb}, v{vAl} row_newbcast:{4*i} row_mask:{hex(1<<i)} bank_mask:0xf")
            if i == 1:
                k(f"v_fma_f32 v{vL}, v{vL}, v{vAl}, v{vT}")
            if i == 2:
                k(f"v_cvt_pk_bf16_f32 v{vP}, v{vT}, v{vT+1}")
        k(f"""
        v_add_f32 v{vTmp}, v{vT+1}, v{vT+2}
        v_cvt_pk_bf16_f32 v{vP+1}, v{vT+2}, v{vT+3}
        v_add_f32 v{vL}, v{vL}, v{vT+3}
        v_add_f32 v{vL}, v{vL}, v{vTmp}
        """)
        for e in range(8):
            k(f"v_mul_f32 v{vAcc+4*e}, v{vAb}, v{vAcc+4*e}")

    def perm(e, half):
        j, hi = e >> 1, e & 1
        sel = sPhi if hi else sPlo
        k(f"v_perm_b32 v{vB+2*e+half}, v{vVA+8*half+4+j}, v{vVA+8*half+j}, s{sel}")

    def pv(e):
        k(f"v_mfma_f32_16x16x16_bf16 {vr(vAcc+4*e,4)}, {vr(vP,2)}, {vr(vB+2*e,2)}, {vr(vAcc+4*e,4)}")

    def lreduce(kk):
        kk(f"""
        v_mov_b32 v{vTmp}, v{vL}
        v_permlane32_swap_b32 v{vL}, v{vTmp}
        v_add_f32 v{vL}, v{vL}, v{vTmp}
        v_mov_b32 v{vTmp}, v{vL}
        v_permlane16_swap_b32 v{vL}, v{vTmp}
        v_add_f32 v{vL}, v{vL}, v{vTmp}
        """)

    U = [p + 1 + dv[p] for p in range(8)]
    prevU = [U[7] - 8] + U[:7]
    firstN = min(p for p in range(8) if U[p] > 8)
    assert all(U[p] >= prevU[p] for p in range(8)) and D <= 8 and firstN <= 3 and SIGP > firstN

    def issue(p):
        if THF >= 0:
            k(f"""
            s_bitcmp1_b32 s{sSp}, {p}
            s_cbranch_scc0 L_th{p}
            s_waitcnt vmcnt({prevU[p] - p - 2})
            L_th{p}:
            """)
        for t in range(prevU[p], U[p]):
            w, i = seq[t % 8]
            if t >= 8:
                assert p >= {8: 0, 9: 1, 10: 2, 11: 3, 12: 5, 13: 5, 14: 7, 15: 7}[t], (DV, p, t)
            ld(w, i, sOff if t < 8 else sNxt)

    def wait(p):
        if p == SIGP:
            k(f"ds_write_b32 v{vPa}, v{vLi}")
        if SPD and p in (4, 6):
            k(f"""
            s_bitcmp1_b32 s{sSp}, {(p - 4) // 2}
            s_cbranch_scc1 L_sk{p}
            s_waitcnt vmcnt({prevU[p] - p - 1})
            L_sk{p}:
            """)
        else:
            k(f"s_waitcnt vmcnt({prevU[p] - p - 1})")

    k("L_loop:")
    for i in range(4):
        if i == firstN:
            k(f"""
            L_get:
            ds_read2_b32 {vr(vEn,2)}, v{vLi} offset0:0 offset1:1
            """)
        wait(i)
        qk(i)
        if i == firstN:
            k(f"""
            s_waitcnt lgkmcnt(0)
            v_readfirstlane_b32 s{sT0}, v{vEn+1}
            v_readfirstlane_b32 s{sCnt}, v{vEn}
            s_max_u32 s{sT1}, s{sT0}, s{sCnt}
            s_cmp_eq_u32 s{sT1}, -1
            s_cbranch_scc1 L_retry
            s_and_b32 s{sNxt}, s{sT0}, 0xffff8000
            s_and_b32 s{sCnt}, s{sCnt}, 31
            s_and_b32 s{sPol}, s{sT0}, 32
            v_add_u32 v{vLi}, 4, v{vLi}
            {f"s_cmp_eq_u32 s{sNxt}, {hex(END)}" if EBAR == 2 else ""}
            {"s_cbranch_scc0 L_nob2" if EBAR == 2 else ""}
            {"s_barrier                                  ; last page: the combining waves may start" if EBAR == 2 else ""}
            {"L_nob2:" if EBAR == 2 else ""}
            """)
        issue(i)
    soft_a()
    wait(4)
    issue(4)
    soft_b()
    k(f"""
    s_cmp_eq_u32 s{sNxt}, {hex(END)}
    s_cbranch_scc1 L_ml
    L_mld:
    """)
    wait(5)
    if U[5] > 12:
        for e in range(8):
            perm(e, 0)
        issue(5)
    else:
        issue(5)
        for e in range(8):
            perm(e, 0)
    wait(6)
    issue(6)
    wait(7)
    if U[7] > 14:
        for e in range(8):
            perm(e, 1)
        issue(7)
        for e in range(8):
            pv(e)
    else:
        issue(7)
        perm(0, 1)
        perm(1, 1)
        for e in range(8):
            if e + 2 < 8:
                perm(e + 2, 1)
            pv(e)
    k(f"""
    s_mov_b32 s{sOff}, s{sNxt}
    s_cmp_eq_u32 s{sNxt}, {hex(END)}
    s_cbranch_scc0 L_loop
    s_cmp_lg_u32 s{sFb}, 0
    s_cbranch_scc1 L_fbnext
    L_done:                                    ; lane (c, g): O[query g][8c .. 8c+7]
    s_cmp_lg_u32 s{sPol}, 0
    """)
    for j in range(4):
        k(f"v_cvt_pk_bf16_f32 v{vD+j}, v{vAcc+8*j}, v{vAcc+8*j+4}")
        k(f"v_xor_b32 v{vD+j}, s{sR}, v{vD+j}")
    k(f"""
    {f"s_memrealtime {sr(sTS+4,2)}" if DIAG else ""}
    s_cbranch_scc1 L_dn1
    buffer_store_dwordx4 {vr(vD,4)}, v{vRo}, {sr(SW,4)}, s{sRec} offen
    {"" if EBAR else "s_barrier                                  ; the combining waves may start"}
    """)
    if DIAG:
        k(f"s_mov_b32 s{sTS+2}, s{sTS}")
        k(f"s_mov_b32 s{sI}, 0")
        diag_store()
    k(f"""
    s_endpgm
    L_dn1:
    buffer_store_dwordx4 {vr(vD,4)}, v{vRo}, {sr(SW,4)}, s{sRec} offen sc1
    {"" if EBAR else "s_barrier"}
    """)
    if DIAG:
        k(f"s_mov_b32 s{sTS+2}, s{sTS}")
        k(f"s_mov_b32 s{sI}, 1")
        diag_store()
    k(f"""
    s_endpgm
    L_retry:
    s_cmp_eq_u32 s{sCnt}, {hex(END)}
    s_cbranch_scc0 L_get
    s_mov_b32 s{sPol}, 32
    s_branch L_none
    L_ml:                                      ; last page: (m, l) are final before its V rows land
    s_cmp_lg_u32 s{sFb}, 0
    s_cbranch_scc1 L_mld
    L_none:
    s_add_u32 s{sR}, s{sR}, s{sMl}
    s_mul_i32 s{sR}, s{sR}, 0x9e3779b1
    s_lshr_b32 s{sT0}, s{sR}, 15
    s_xor_b32 s{sR}, s{sR}, s{sT0}
    s_mul_i32 s{sR}, s{sR}, 0x85ebca6b         ; salt
    """)
    lreduce(k)
    k(f"""
    v_xor_b32 v{vT}, s{sR}, v{vM}
    v_mov_b32 v{vT+2}, s{sR}
    v_mov_b32 v{vT+3}, s{sR}
    s_mov_b32 exec_lo, 0x1111
    s_mov_b32 exec_hi, 0
    s_cmp_lg_u32 s{sPol}, 0
    v_xor_b32 v{vT+1}, s{sR}, v{vL}
    s_cbranch_scc1 L_ml1
    buffer_store_dwordx4 {vr(vT,4)}, v{vMo_w}, {sr(SW,4)}, s{sMl} offen
    s_mov_b64 exec, -1
    {"s_barrier" if EBAR == 1 else ""}
    s_branch L_mld
    L_ml1:
    buffer_store_dwordx4 {vr(vT,4)}, v{vMo_w}, {sr(SW,4)}, s{sMl} offen sc1
    s_mov_b64 exec, -1
    {"s_barrier" if EBAR == 1 else ""}
    s_cmp_eq_u32 s{sCnt}, {hex(END)}
    s_cbranch_scc0 L_mld
    {"s_barrier" if EBAR == 2 else ""}
    s_branch L_done
    """)

    vOf, vMo, vPw, vPm, vPr_, vOo = 2, 3, 4, 5, 6, 7
    vX, vY, vW, vZ = 8, 9, 10, 11
    vML = 12
    vMa, vRr, vSa = 16, 18, 20
    vA, vPr = 24, 28
    vOr, vOs, vU = 32, 34, 36
    vBt, vDyn, vCo, vPq, vCt = 42, 43, 44, 45, 46
    vV2, vM4, vBase = 56, 60, 58

    def ctxcalc(kk):
        kk(f"""
        s_min_i32 s{sT0}, s{sCtx}, 65536
        s_cmp_le_i32 s{sCtx}, 0
        s_cselect_b32 s{sT0}, 65536, s{sT0}
        s_add_u32 s{sT0}, s{sT0}, 15
        s_lshr_b32 s{sN}, s{sT0}, 4
        s_min_i32 s{sCtx}, s{sCtx}, 65536
        s_max_i32 s{sCtx}, s{sCtx}, 0
        """)

    def entry(kk, vpage, vbt, vt):
        kk(f"""
        v_lshlrev_b32 v{vt}, 4, v{vpage}
        v_sub_u32 v{vt}, s{sCtx}, v{vt}
        v_med3_i32 v{vt}, v{vt}, 0, 16
        v_cmp_gt_u32 vcc, s{sN}, v{vpage}
        v_lshl_or_b32 v{vbt}, v{vbt}, 15, v{vt}
        v_bfrev_b32 v{vt}, 1
        v_and_b32 v{vbt}, 0x7fffffff, v{vbt}
        v_cndmask_b32 v{vbt}, v{vt}, v{vbt}, vcc
        """)

    k(f"""
    L_service:
    s_mov_b64 {sr(sE,2)}, 0
    s_mov_b32 s{sBad}, 0
    s_cmp_eq_u32 s{sWv}, 4
    s_cbranch_scc0 L_cons
    v_lshlrev_b32 v{vX}, 9, v{vLane}
    v_lshlrev_b32 v{vCo}, 2, v{vLane}
    v_mov_b32 v{vZ}, -1
    v_mov_b32 v{vPr}, 0
    ds_write_b32 v{vCo}, v{vZ}
    ds_write_b32 v{vCo}, v{vZ} offset:256
    ds_write_b32 v{vCo}, v{vZ} offset:512
    ds_write_b32 v{vCo}, v{vZ} offset:768
    ds_write_b32 v{vCo}, v{vPr} offset:{PROG}
    s_lshl_b32 s{sIdx}, s{sSh}, 4
    s_waitcnt lgkmcnt(0)
    s_load_dword s{sCtx}, {sr(sCTX,2)}, 0
    """)
    srd(k, SB, sBT, 16384)
    k(f"""
    buffer_load_dwordx4 v[48:51], v{vX}, {sr(SB,4)}, s{sIdx} offen
    s_barrier
    s_waitcnt lgkmcnt(0)
    """)
    ctxcalc(k)
    k(f"""
    s_lshr_b32 s{sS}, s{sN}, 7
    s_sub_i32 s{sS}, s{sS}, {KD}
    s_max_i32 s{sS}, s{sS}, 1
    s_lshl_b32 s{sT1}, s{sSh}, 2
    v_lshl_add_u32 v{vX}, v{vLane}, 7, s{sT1}
    s_lshl_b32 s{sT0}, s{sS}, 9
    v_lshlrev_b32 v{vY}, 4, v{vLane}
    buffer_load_dwordx4 v[52:55], v{vY}, {sr(SB,4)}, s{sT0} offen
    v_cmp_gt_u32 vcc, s{sS}, v{vLane}
    s_mov_b64 exec, vcc
    s_waitcnt vmcnt(1)
    """)
    for w in range(4):
        entry(k, vX, 48 + w, vY)
        k(f"""
        ds_write_b32 v{vCo}, v{48+w} offset:{256*w}
        v_add_u32 v{vX}, 1, v{vX}
        """)
    k(f"""
    s_mov_b64 exec, -1
    L_cons:
    s_lshr_b32 s{sT1}, s2, 5
    s_lshl3_add_u32 s{sT0}, s{sH}, s{sT1}
    s_lshr_b32 s{sHq}, s{sT0}, 1
    s_and_b32 s{sT0}, s{sT0}, 1
    s_bfe_u32 s{sT1}, s2, 0x20003
    s_lshl2_add_u32 s{sOct}, s{sT0}, s{sT1}
    s_sub_u32 s{sCnt}, s{sWv}, 4               ; c
    s_lshr_b32 s{sT0}, s{sHq}, 2
    s_lshl3_add_u32 s{sOff}, s{sT0}, s{sCnt}   ; h*8 + c
    s_and_b32 s{sI}, s{sHq}, 3                 ; q
    s_lshl_b32 s{sT0}, s{sOff}, 14
    s_lshl_b32 s{sT1}, s{sI}, 8
    s_add_u32 s{sT0}, s{sT0}, s{sT1}
    s_lshl_b32 s{sT1}, s{sOct}, 5
    s_add_u32 s{sT0}, s{sT0}, s{sT1}
    v_lshrrev_b32 v{vY}, 2, v{vLane}
    v_and_b32 v{vW}, 3, v{vLane}
    v_lshlrev_b32 v{vX}, 10, v{vY}
    v_lshl_add_u32 v{vX}, v{vW}, 3, v{vX}
    v_add_u32 v{vOf}, s{sT0}, v{vX}
    s_lshl_b32 s{sT0}, s{sOff}, 10
    s_lshl4_add_u32 s{sT0}, s{sI}, s{sT0}
    s_add_u32 s{sT0}, s{sT0}, {ML_OFF}
    v_lshlrev_b32 v{vX}, 6, v{vY}
    v_lshl_add_u32 v{vX}, v{vW}, 2, v{vX}
    v_add_u32 v{vMo}, s{sT0}, v{vX}
    s_waitcnt lgkmcnt(0)
    """)
    srd(k, SW, sWS, WS_USED)
    k(f"""
    buffer_load_dword v{vSa}, v{vMo}, {sr(SW,4)}, 0 offen {snp}
    buffer_load_dwordx2 {vr(vOs,2)}, v{vOf}, {sr(SW,4)}, 0 offen {snp}
    s_cmp_eq_u32 s{sWv}, 4
    s_cbranch_scc1 L_nb1
    s_barrier
    L_nb1:
    s_lshl_b32 s{sT0}, s{sHq}, 8
    s_add_u32 s{sT0}, s{sT0}, s{sT1}
    v_lshrrev_b32 v{vX}, 4, v{vLane}
    v_lshl_add_u32 v{vX}, v{vW}, 2, v{vX}      ; e
    v_lshl_add_u32 v{vOo}, v{vX}, 1, s{sT0}
    v_lshlrev_b32 v{vX}, 5, v{vX}
    s_lshl_b32 s{sT0}, s{sCnt}, 2
    v_add_u32 v{vPw}, s{sT0}, v{vX}            ; v[e][c]
    v_bfe_u32 v{vZ}, v{vLane}, 2, 2
    v_lshl_add_u32 v{vPr_}, v{vZ}, 3, v{vX}    ; v[e][2x]
    v_lshlrev_b32 v{vPq}, 4, v{vZ}             ; (M,L)[2x]
    s_lshl_b32 s{sT0}, s{sCnt}, 3
    v_mov_b32 v{vPm}, s{sT0}                   ; (M,L)[c]
    v_lshlrev_b32 v{vZ}, 1, v{vZ}
    v_cmp_eq_u32 {sr(sMA,2)}, s{sCnt}, v{vZ}
    v_add_u32 v{vZ}, 1, v{vZ}
    v_cmp_eq_u32 {sr(sMB,2)}, s{sCnt}, v{vZ}
    """)
    srd(k, SO, sOUT, 8192)
    k(f"""
    s_mov_b32 s{sC}, 0xffff0000
    s_cmp_eq_u32 s{sWv}, 4
    s_cbranch_scc0 {"L_dry" if DRY else "L_real"}
    """)
    cold(f"""
    L_dry:                                     ; walk once through the combining code (nothing is stored) so that it is cached
    s_mov_b32 s{SO+2}, 0
    s_mov_b32 s{s7a}, 0
    s_and_b32 s{s7f}, s{sWv}, 1
    v_mov_b32 v{vCo}, {CTR}
    v_mov_b32 v{vBt}, 0
    s_waitcnt vmcnt(0)
    v_not_b32 v{vOr}, v{vOs}
    v_not_b32 v{vOr+1}, v{vOs+1}
    s_branch L_w
    """)
    srd(k, SD, sDBG, 256)
    k(f"""
    s_getreg_b32 s{sXc}, hwreg(HW_REG_XCC_ID)
    s_and_b32 s{sT0}, s2, 7
    s_lshl_b32 s{sT0}, s{sT0}, 5
    v_mov_b32 v{vCo}, s{sT0}
    s_and_b32 s{sXc}, s{sXc}, 15
    s_add_u32 s{sXc}, s{sXc}, 1
    s_mov_b32 s{sPol}, {32 if FORCESC else 0}
    s_cmp_lt_u32 s2, 8
    s_cbranch_scc0 L_nl
    v_mov_b32 v{vX}, s{sXc}
    s_mov_b64 exec, 1
    buffer_store_dword v{vX}, v{vCo}, {sr(SD,4)}, 0 offen offset:4 sc1
    s_mov_b64 exec, -1
    L_nl:
    s_lshl_b32 s{sT0}, s{sS}, 7
    v_lshl_add_u32 v{vX}, v{vLane}, 2, s{sT0}
    s_waitcnt vmcnt(0)
    """)
    for w in range(4):
        entry(k, vX, 52 + w, vY)
        k(f"v_add_u32 v{vX}, 1, v{vX}")
    k(f"""
    v_lshlrev_b32 v{vX}, 4, v{vLane}
    ds_write_b128 v{vX}, v[52:55] offset:{DYN}
    v_mov_b32 v{vW}, {PROG}
    v_lshlrev_b32 v{vDyn}, 2, v{vLane}
    v_lshlrev_b32 v{vBt}, 8, v{vLane}
    s_lshl_b32 s{sE}, s{sS}, 2
    s_add_u32 s{sS}, s{sE}, {4*(KD+1)}
    s_lshl_b32 s{sT0}, s{sSh}, 2
    s_cmp_lt_u32 s{sT0}, s{sN}
    s_cbranch_scc0 L_real
    s_min_u32 s{sOff}, s{sE}, {CHK+4}
    s_mov_b32 s{sI}, 0
    L_s0:                                      ; wait until a worker fetches the entry before
    ds_read_b128 {vr(vPr,4)}, v{vW}
    s_waitcnt lgkmcnt(0)
    v_and_b32 v{vPr+1}, 255, v{vPr+1}
    v_and_b32 v{vPr+2}, 255, v{vPr+2}
    v_and_b32 v{vPr+3}, 255, v{vPr+3}
    v_max3_u32 v{vX}, v{vPr}, v{vPr+1}, v{vPr+2}
    v_max_u32 v{vX}, v{vX}, v{vPr+3}
    s_sub_u32 s{sT1}, s{sOff}, 4
    v_readfirstlane_b32 s{sT0}, v{vX}
    s_cmp_ge_u32 s{sT0}, s{sT1}
    s_cbranch_scc1 L_s2
    s_sleep 1
    s_branch L_s0
    L_s2:
    s_cmp_lg_u32 s{sI}, 0
    s_cbranch_scc1 L_s1
    s_mov_b32 s{sI}, 1
    s_mov_b32 s{sOff}, s{sE}
    buffer_load_dword v{vX}, v{vCo}, {sr(SD,4)}, 0 offen offset:4 sc1
    s_waitcnt vmcnt(0)
    v_readfirstlane_b32 s{sT0}, v{vX}
    s_cmp_eq_u32 s{sT0}, s{sXc}
    s_cbranch_scc1 L_s0
    s_mov_b32 s{sPol}, 32
    v_mov_b32 v{vX}, 0x200000
    s_mov_b64 exec, 1
    buffer_atomic_or v{vX}, v{vCo}, {sr(SD,4)}, 0 offen sc1
    s_mov_b64 exec, -1
    s_branch L_s0
    L_s1:
    """)
    if PFM or PFO:
        k(f"""
        s_lshl3_add_u32 s{sT0}, s{sH}, 0
        s_lshl2_add_u32 s{sT0}, s{sT0}, s{sSh}     ; h*32 + (b>>3)
        v_lshlrev_b32 v{vY}, 4, v{vLane}
        """)
    if PFM:
        k(f"""
        s_lshl_b32 s{sT1}, s{sT0}, 8
        s_add_u32 s{sT1}, s{sT1}, {ML_OFF}
        buffer_load_dword v64, v{vDyn}, {sr(SW,4)}, s{sT1} offen sc1
        """)
    if PFO:
        k(f"s_lshl_b32 s{sT1}, s{sT0}, 12")
        k(f"v_lshlrev_b32 v{vY}, 6, v{vLane}")
        k(f"buffer_load_dword v65, v{vY}, {sr(SW,4)}, s{sT1} offen sc1")
    if TOUCH:
        k(f"buffer_load_ushort v66, v{vOo}, {sr(SO,4)}, 0 offen")
    k(f"""
    v_mov_b32 v{vX}, 1
    s_mov_b64 exec, 1
    buffer_atomic_add v{vX}, v{vCo}, {sr(SD,4)}, 0 offen sc0 sc1
    s_mov_b64 exec, 15
    s_waitcnt vmcnt(0)
    v_readfirstlane_b32 s{sT0}, v{vX}
    s_lshr_b32 s{sT1}, s{sT0}, 16
    s_and_b32 s{sT1}, s{sT1}, 32
    s_and_b32 s{sT0}, s{sT0}, 0xffff
    s_min_u32 s{sT0}, s{sT0}, {63-REM-1}
    s_or_b32 s{sPol}, s{sPol}, s{sT1}
    s_lshl_b32 s{sT1}, s{sT0}, 4
    v_add_u32 v{vX}, s{sT1}, v{vDyn}
    ds_read_b32 v{vX}, v{vX} offset:{DYN}
    v_add_u32 v{vY}, s{sE}, v{vBt}
    s_add_u32 s{sE}, s{sE}, 4
    s_mov_b32 s{sOff}, s{sE}
    s_cmp_ge_u32 s{sE}, s{sS}
    s_cselect_b32 s{sT1}, {REM+1}, 1
    s_add_u32 s{sT0}, s{sT0}, s{sT1}
    v_readlane_b32 s{sT1}, v52, s{sT0}
    s_waitcnt lgkmcnt(0)
    v_or_b32 v{vX}, s{sPol}, v{vX}
    ds_write_b32 v{vY}, v{vX}
    s_mov_b64 exec, -1
    s_cmp_eq_u32 s{sT1}, {hex(END)}
    s_cbranch_scc0 L_s0
    s_or_b32 s{sT1}, s{sT1}, s{sPol}
    s_mov_b64 exec, 15
    v_mov_b32 v{vX}, s{sT1}
    ds_write_b32 v{vY}, v{vX} offset:4
    s_mov_b64 exec, -1
    L_real:
    s_mov_b64 exec, -1
    s_mov_b32 s{SO+2}, 8192
    s_mov_b32 s{s7a}, 7
    s_mov_b32 s{s7f}, {7 if FASTL else 99}
    s_mov_b32 s{sI}, {LIMIT if FORCEFB else 0}
    s_mov_b32 s{sLim}, {LIMIT if FORCEFB else LIM0}
    v_mov_b32 v{vCo}, {CTR}
    v_mov_b32 v{vBt}, 1
    s_waitcnt vmcnt(0) lgkmcnt(0)
    s_barrier
    {f"s_memrealtime {sr(sTS+2,2)}" if DIAG else ""}
    s_branch L_m1
    L_m0:                                      ; wait for the (m, l, salt) entries
    s_bcnt1_i32_b64 s{sT0}, vcc
    """)
    if GR:
        k(f"""
        L_m2:                                      ; back off in proportion to the number of missing producers
        s_sleep {GR}
        s_sub_i32 s{sT0}, s{sT0}, {GSUB}
        s_cmp_gt_i32 s{sT0}, 0
        s_cbranch_scc1 L_m2
        """)
    else:
        k(f"""
        s_cmp_gt_u32 s{sT0}, {T2}
        s_cbranch_scc0 L_m2
        s_sleep {SLEEP2}
        L_m2:
        s_sleep {SLEEP1}
        """)
    k(f"""
    s_mov_b64 exec, vcc
    L_m1:
    buffer_load_dword v{vMa}, v{vMo}, {sr(SW,4)}, 0 offen {lpol}
    s_mov_b64 exec, -1
    s_add_u32 s{sI}, s{sI}, 1
    s_cmp_ge_u32 s{sI}, s{sLim}
    s_cbranch_scc1 L_chk1
    L_m3:
    s_waitcnt vmcnt(0)
    v_cmp_eq_u32 vcc, v{vMa}, v{vSa}
    s_cbranch_vccnz L_m0
    buffer_load_dwordx2 {vr(vOr,2)}, v{vOf}, {sr(SW,4)}, 0 offen {lpol}
    {f"s_memrealtime {sr(sTS+4,2)}" if DIAG else ""}
    L_w:
    ds_read_b32 v{vCt}, v{vCo}
    ds_read_b64 {vr(vV2,2)}, v{vPr_} offset:{PART}
    ds_read_b128 {vr(vM4,4)}, v{vPq} offset:{PML}
    v_mov_b32_dpp v{vRr}, v{vMa} quad_perm:[2,2,2,2] {ALL}
    v_xor_b32_dpp v{vW}, v{vMa}, v{vRr} quad_perm:[0,0,0,0] {ALL}   ; m
    v_xor_b32_dpp v{vZ}, v{vMa}, v{vRr} quad_perm:[1,1,1,1] {ALL}   ; l
    v_max_f32_dpp v{vML}, v{vW}, v{vW} row_ror:4 {ALL}
    v_max_f32_dpp v{vML}, v{vML}, v{vML} row_ror:8 {ALL}
    v_mov_b32 v{vY}, v{vML}
    v_permlane16_swap_b32 v{vML}, v{vY}
    v_max_f32 v{vML}, v{vML}, v{vY}
    v_mov_b32 v{vY}, v{vML}
    v_permlane32_swap_b32 v{vML}, v{vY}
    v_max_f32 v{vML}, v{vML}, v{vY}
    v_sub_f32 v{vW}, v{vW}, v{vML}
    v_exp_f32 v{vW}, v{vW}
    v_mul_f32 v{vZ}, v{vW}, v{vZ}
    v_add_f32_dpp v{vZ}, v{vZ}, v{vZ} row_ror:4 {ALL}
    v_add_f32_dpp v{vZ}, v{vZ}, v{vZ} row_ror:8 {ALL}
    v_mov_b32 v{vY}, v{vZ}
    v_permlane16_swap_b32 v{vZ}, v{vY}
    v_add_f32 v{vZ}, v{vZ}, v{vY}
    v_mov_b32 v{vY}, v{vZ}
    v_permlane32_swap_b32 v{vZ}, v{vY}
    v_add_f32 v{vML+1}, v{vZ}, v{vY}
    """)

    def merge():
        k(f"""
        v_max_f32 v{vX}, v{vM4}, v{vM4+2}
        v_max_f32_dpp v{vX}, v{vX}, v{vX} row_ror:4 {ALL}
        v_max_f32_dpp v{vX}, v{vX}, v{vX} row_ror:8 {ALL}
        v_sub_f32 v{vM4}, v{vM4}, v{vX}
        v_sub_f32 v{vM4+2}, v{vM4+2}, v{vX}
        v_exp_f32 v{vM4}, v{vM4}
        v_exp_f32 v{vM4+2}, v{vM4+2}
        v_mul_f32 v{vY}, v{vM4}, v{vM4+1}
        v_mul_f32 v{vBase}, v{vM4}, v{vV2}
        v_fmac_f32 v{vY}, v{vM4+2}, v{vM4+3}
        v_fmac_f32 v{vBase}, v{vM4+2}, v{vV2+1}
        v_add_f32_dpp v{vY}, v{vY}, v{vY} row_ror:4 {ALL}
        v_add_f32_dpp v{vBase}, v{vBase}, v{vBase} row_ror:4 {ALL}
        v_add_f32_dpp v{vY}, v{vY}, v{vY} row_ror:8 {ALL}
        v_add_f32_dpp v{vBase}, v{vBase}, v{vBase} row_ror:8 {ALL}
        v_rcp_f32 v{vY}, v{vY}
        v_mul_f32 v{vBase}, v{vBase}, v{vY}
        """)

    k(f"""
    s_waitcnt lgkmcnt(0)
    v_readfirstlane_b32 s{sFast}, v{vCt}
    ds_write_b64 v{vPm}, {vr(vML,2)} offset:{PML}
    s_cmp_eq_u32 s{sFast}, s{s7f}
    s_cbranch_scc0 L_o1
    v_cndmask_b32 v{vM4}, v{vM4}, v{vML}, {sr(sMA,2)}
    v_cndmask_b32 v{vM4+2}, v{vM4+2}, v{vML}, {sr(sMB,2)}
    v_cndmask_b32 v{vM4+1}, v{vM4+1}, v{vML+1}, {sr(sMA,2)}
    v_cndmask_b32 v{vM4+3}, v{vM4+3}, v{vML+1}, {sr(sMB,2)}
    v_cndmask_b32 v{vV2}, v{vV2}, 0, {sr(sMA,2)}
    v_cndmask_b32 v{vV2+1}, v{vV2+1}, 0, {sr(sMB,2)}
    """)
    merge()
    k(f"""
    v_sub_f32 v{vX}, v{vML}, v{vX}
    v_exp_f32 v{vX}, v{vX}
    v_mul_f32 v{vW}, v{vW}, v{vY}
    v_mul_f32 v{vW}, v{vW}, v{vX}
    s_branch L_o1
    L_o0:                                      ; wait for the record pieces
    s_mov_b64 exec, vcc
    buffer_load_dwordx2 {vr(vOr,2)}, v{vOf}, {sr(SW,4)}, 0 offen {lpol}
    s_mov_b64 exec, -1
    s_add_u32 s{sI}, s{sI}, 1
    s_cmp_ge_u32 s{sI}, s{sLim}
    s_cbranch_scc1 L_chk2
    L_o1:
    s_waitcnt vmcnt(0)
    v_xor_b32 v{vU}, v{vOr}, v{vOs}
    v_xor_b32 v{vU+1}, v{vOr+1}, v{vOs+1}
    v_xor_b32 v{vX}, v{vOr}, v{vRr}
    v_min_u32 v{vU}, v{vU}, v{vU+1}
    v_xor_b32 v{vY}, v{vOr+1}, v{vRr}
    v_cmp_eq_u32 vcc, 0, v{vU}
    v_lshlrev_b32 v{vA}, 16, v{vX}
    v_and_b32 v{vA+1}, s{sC}, v{vX}
    v_lshlrev_b32 v{vA+2}, 16, v{vY}
    v_and_b32 v{vA+3}, s{sC}, v{vY}
    s_cbranch_vccnz L_o0
    """)
    for j in range(4):
        k(f"v_mul_f32 v{vA+j}, v{vW}, v{vA+j}")
    for sh in (4, 8):
        for j in range(4):
            k(f"v_add_f32_dpp v{vA+j}, v{vA+j}, v{vA+j} row_ror:{sh} {ALL}")
    k(f"""
    v_permlane16_swap_b32 v{vA}, v{vA+1}
    v_permlane16_swap_b32 v{vA+2}, v{vA+3}
    v_add_f32 v{vA}, v{vA}, v{vA+1}
    v_add_f32 v{vA+2}, v{vA+2}, v{vA+3}
    s_cmp_eq_u32 s{sFast}, s{s7f}
    v_permlane32_swap_b32 v{vA}, v{vA+2}
    s_cbranch_scc0 L_post
    v_add_f32 v{vBase}, v{vBase}, v{vA}
    v_add_f32 v{vBase}, v{vBase}, v{vA+2}
    s_branch L_out
    L_post:
    v_add_f32 v{vA}, v{vA}, v{vA+2}
    ds_write_b32 v{vPw}, v{vA} offset:{PART}
    L_arr:
    s_mov_b64 exec, 1
    ds_add_rtn_u32 v{vBt}, v{vCo}, v{vBt}
    s_mov_b64 exec, -1
    ds_read_b128 {vr(vM4,4)}, v{vPq} offset:{PML}
    ds_read_b64 {vr(vV2,2)}, v{vPr_} offset:{PART}
    s_waitcnt lgkmcnt(2)
    v_readfirstlane_b32 s{sT0}, v{vBt}
    s_and_b32 s{sT1}, s{sT0}, 15
    s_cmp_eq_u32 s{sT1}, s{s7a}
    s_cbranch_scc0 {'L_sd' if DIAG else 'L_end'}
    s_or_b32 s{sT0}, s{sT0}, s{sBad}
    s_cmp_gt_u32 s{sT0}, 15
    s_cbranch_scc1 L_fb
    s_waitcnt lgkmcnt(0)
    """)
    merge()
    k(f"""
    L_out:
    s_mov_b32 exec_lo, 0x000f000f
    s_mov_b32 exec_hi, 0x000f000f
    v_cvt_pk_bf16_f32 v{vBase}, v{vBase}, v{vBase}
    buffer_store_short v{vBase}, v{vOo}, {sr(SO,4)}, 0 offen
    s_cmp_eq_u32 s{s7a}, 0
    s_cbranch_scc1 L_real
    """)
    if MUL:
        k(f"""
        s_waitcnt vmcnt(0)
        s_memrealtime {sr(sTS+2,2)}
        s_waitcnt lgkmcnt(0)
        s_sub_u32 s{sT1}, s{sTS+2}, s{sTS}
        s_mul_i32 s{sT1}, s{sT1}, {MUL}
        L_spinm:
        s_sleep 2
        s_memrealtime {sr(sTS+2,2)}
        s_waitcnt lgkmcnt(0)
        s_sub_u32 s{sT0}, s{sTS+2}, s{sTS}
        s_cmp_lt_u32 s{sT0}, s{sT1}
        s_cbranch_scc1 L_spinm
        """)
    if DIAG:
        k("L_sd:")
        diag_store()
    k("""
    L_end:
    s_endpgm
    """)
    for n, back in ((1, "L_m3"), (2, "L_o1")):
        cold(f"""
        L_chk{n}:                                    ; many looks without success: give up early on a short context
        s_cmp_ge_u32 s{sI}, {LIMIT}
        s_cbranch_scc1 L_fail
        s_load_dword s{sT0}, {sr(sCTX,2)}, 0
        s_mov_b32 s{sLim}, {LIMIT}
        s_waitcnt lgkmcnt(0)
        s_sub_u32 s{sT0}, s{sT0}, 1
        s_cmp_lt_u32 s{sT0}, 8192
        s_cbranch_scc0 {back}
        {"s_branch L_fail" if n == 1 else ""}
        """)
    cold(f"""
    L_fail:
    v_mov_b32 v{vBt}, 17
    s_mov_b32 s{sBad}, 16
    s_branch L_arr
    L_fb:
    s_load_dword s{sCtx}, {sr(sCTX,2)}, 0
    s_waitcnt vmcnt(0) lgkmcnt(0)
    """)
    ctxcalc(cold)
    cold(f"""
    s_mov_b32 s{sE}, 0
    s_mov_b32 s{sHg}, 0
    s_lshr_b32 s{sH}, s{sHq}, 2
    L_fbfill:
    """)
    srd(cold, SB, sBT, 16384)
    cold(f"""
    v_add_u32 v{vFp}, s{sE}, v{vLane}
    v_lshlrev_b32 v{vFb}, 2, v{vFp}
    buffer_load_dword v{vFb}, v{vFb}, {sr(SB,4)}, 0 offen
    s_lshl_b32 s{sIdx}, s{sE}, 2
    s_waitcnt vmcnt(0)
    """)
    entry(cold, vFp, vFb, vTmp)
    cold(f"""
    s_bitset1_b32 s{sFb}, 31
    v_lshlrev_b32 v{vFp}, 2, v{vLane}
    v_writelane_b32 v{vFb}, s{sFb}, 63
    ds_write_b32 v{vFp}, v{vFb}
    s_load_dword s{sBt0}, {sr(sBT,2)}, s{sIdx}
    s_branch L_setup
    L_fbnext:
    s_waitcnt vmcnt(0)
    s_add_u32 s{sE}, s{sE}, 63
    s_cmp_lt_u32 s{sE}, s{sN}
    s_cbranch_scc1 L_fbfill
    """)
    lreduce(cold)
    cold(f"v_rcp_f32 v{vAl}, v{vL}")
    for i in range(4):
        cold(f"v_mov_b32_dpp v{vAb}, v{vAl} row_newbcast:{4*i} row_mask:{hex(1<<i)} bank_mask:0xf")
    for e in range(8):
        cold(f"v_mul_f32 v{vAcc+4*e}, v{vAb}, v{vAcc+4*e}")
    for j in range(4):
        cold(f"v_cvt_pk_bf16_f32 v{vD+j}, v{vAcc+8*j}, v{vAcc+8*j+4}")
    srd(cold, SO, sOUT, 8192)
    cold(f"""
    s_and_b32 s{sT0}, s{sHq}, 3
    s_lshl_b32 s{sT0}, s{sT0}, 4
    s_lshl1_add_u32 s{sT0}, s{sOct}, s{sT0}
    s_lshl_b32 s{sT1}, s{sH}, 10
    v_lshlrev_b32 v{vTmp}, 4, v{vLane}
    s_lshl_b64 exec, 3, s{sT0}
    buffer_store_dwordx4 {vr(vD,4)}, v{vTmp}, {sr(SO,4)}, s{sT1} offen
    s_endpgm
    """)
    k.lines += cold.lines
    body = k.done()

    out = HEADER + ("; nwaves=3072 diagoff=3145728 p0\n" if DIAG else "") + "; @launch grid=(256,1,1) block=(768,1,1) lds=4096\n" + DOC
    out += '.amdgcn_target "amdgcn-amd-amdhsa--gfx950"\n.text\n'
    out += f".globl {NAME}_kernel\n.p2align 8\n.type {NAME}_kernel,@function\n{NAME}_kernel:\n"
    out += body
    out += f""".section .rodata,"a"
.p2align 6
.amdhsa_kernel {NAME}_kernel
  .amdhsa_next_free_vgpr {NV}
  .amdhsa_next_free_sgpr {NS}
  .amdhsa_accum_offset {NV}
  .amdhsa_group_segment_fixed_size 0
  .amdhsa_kernarg_size 64
  .amdhsa_user_sgpr_count 2
  .amdhsa_user_sgpr_kernarg_segment_ptr 1
  .amdhsa_system_sgpr_workgroup_id_x 1
.end_amdhsa_kernel
"""
    return out


if __name__ == "__main__":
    kw = {}
    for a in sys.argv[2:]:
        key, val = a.split("=")
        kw[key] = val if key in ("DV", "PPOL", "LPOL", "SNP") else int(val, 0)
    open(sys.argv[1], "w").write(gen(**kw))
```

```python
import sys
import struct
from asmlib import K, vr, sr

NAME = "standalone__paged_block_table_kv_pagedattention__decode"
KV_BYTES = 4100 * 32768
HEADER = open("cdna_kernels/" + NAME + ".s.ref").read().split("; Override")[0]
ML_OFF = 0x100000
WS_USED = 0x110000
END = 0x80000000
POP = 1024
CTR = POP + 64
PART = 1536
PML = PART + 512
LDS = PML + 64

DOC = """;
"""


def f32(x):
    return "0x%08x" % struct.unpack("<I", struct.pack("<f", x))[0]


def gen(GR=1, LIMIT=2048, LIM0=64, CHK=24, LEADP=12, SLOWH=0x22, FASTL=1, FORCEFB=0, FORCESC=0, MUL=0, SCR=0):
    D = 6
    k = K()
    cold = K()
    sQ, sKp, sVp, sBT, sCTX, sOUT, sDBG, sWS = 4, 6, 8, 10, 12, 14, 16, 18
    SK, SV, SB, SQ, SW, SD, SO = 20, 24, 28, 32, 36, 60, 64
    sH, sL0, sWv, sJ, sCtx, sN, sI, sCnt, sOff, sC, sPlo, sPhi, sT0, sT1, sNeg, sIdx = range(40, 56)
    sBt0, sRec, sMl, sNxt = 56, 57, 58, 59
    sE, sFb, sR, sS, sSh, sBad, sHq, sOct, sLim, sPol = range(68, 78)
    sMA, sMB, sXc, sFast, sSp = 78, 80, 82, 83, 84
    sTS = 86
    NS = 90 if MUL else 85
    vLane, vKo0, vKo1, vVo0, vVo1, vLi, vG4, vM, vL, vMx, vTmp, vAl, vAb = range(1, 14)
    vP, vQ, vT, vD, vB, vAcc, vKA, vVA = 14, 16, 20, 24, 40, 56, 88, 104
    vRo, vMo_w, vEn, vPa, vNx, vFour = 120, 121, 122, 124, 125, 126
    vFp, vFb = vEn, vEn + 1
    NV = 128
    ALL = "row_mask:0xf bank_mask:0xf"

    def srd(kk, S, ptr, size):
        kk(f"""
        s_mov_b32 s{S}, s{ptr}
        s_mov_b32 s{S+1}, s{ptr+1}
        s_mov_b32 s{S+2}, {size}
        s_mov_b32 s{S+3}, 0x20000
        """)

    seq = [("K", i) for i in range(4)] + [("V", i) for i in range(4)]

    def ld(t, so):
        which, i = seq[t % 8]
        vo = (vKo0, vKo1) if which == "K" else (vVo0, vVo1)
        S = SK if which == "K" else SV
        base = vKA if which == "K" else vVA
        off = " offset:2048" if i & 1 else ""
        k(f"buffer_load_dwordx4 {vr(base+4*i,4)}, v{vo[i>>1]}, {sr(S,4)}, s{so} offen{off} nt")

    k(f"""
    s_load_dwordx16 s[4:19], s[0:1], 0
    s_cmp_ge_u32 s2, 256
    s_cbranch_scc1 L_end
    {f"s_memrealtime {sr(sTS,2)}" if MUL else ""}
    {"s_lshr_b32 s3, s2, 5" if SCR == 1 else ""}
    {"s_lshl3_add_u32 s2, s2, s3" if SCR == 1 else ""}
    {"s_and_b32 s2, s2, 255" if SCR == 1 else ""}
    {"s_and_b32 s3, s2, 0xf8" if SCR == 2 else ""}
    {"s_cmp_eq_u32 s3, 0x50" if SCR == 2 else ""}
    {"s_cselect_b32 s3, 1, 0" if SCR == 2 else ""}
    {"s_xor_b32 s2, s2, s3" if SCR == 2 else ""}
    v_lshrrev_b32 v{vTmp}, 6, v0
    v_and_b32 v{vLane}, 63, v0
    v_readfirstlane_b32 s{sWv}, v{vTmp}
    s_lshr_b32 s{sSh}, s2, 3
    s_and_b32 s{sH}, s2, 7
    s_cmp_ge_u32 s{sWv}, 4
    s_cbranch_scc1 L_service
    ; ---------------------------------------------------------------- worker
    s_lshl2_add_u32 s{sJ}, s{sSh}, s{sWv}
    s_lshl_b32 s{sIdx}, s{sJ}, 2
    s_waitcnt lgkmcnt(0)
    s_load_dword s{sBt0}, {sr(sBT,2)}, s{sIdx}
    s_mov_b64 {sr(sE,2)}, 0
    s_lshl_b32 s{sL0}, s{sWv}, 2
    L_setup:
    v_lshrrev_b32 v{vG4}, 4, v{vLane}
    v_lshlrev_b32 v{vG4}, 2, v{vG4}            ; 4g
    v_and_b32 v{vTmp}, 3, v{vLane}
    v_add_lshl_u32 v{vTmp}, v{vTmp}, v{vG4}, 4
    v_bfe_u32 v{vMx}, v{vLane}, 2, 2
    s_lshl_b32 s{sT1}, s{sH}, 8
    v_lshl_add_u32 v{vKo0}, v{vMx}, 13, v{vTmp}
    v_add_u32 v{vKo0}, s{sT1}, v{vKo0}
    v_add_u32 v{vKo1}, 0x1000, v{vKo0}
    v_lshl_add_u32 v{vAl}, v{vMx}, 8, v{vTmp}
    v_and_b32 v{vTmp}, 15, v{vLane}
    v_lshlrev_b32 v{vTmp}, 4, v{vTmp}
    v_lshl_add_u32 v{vVo0}, v{vG4}, 11, v{vTmp}
    v_add_u32 v{vVo0}, s{sT1}, v{vVo0}
    v_add_u32 v{vVo1}, 0x1000, v{vVo0}
    s_lshl_b32 s{sT0}, s{sH}, 10
    """)
    srd(k, SQ, sQ, 8192)
    k(f"buffer_load_dwordx4 {vr(vQ,4)}, v{vAl}, {sr(SQ,4)}, s{sT0} offen")
    srd(k, SK, sKp, KV_BYTES)
    srd(k, SV, sVp, KV_BYTES)
    k(f"""
    s_waitcnt lgkmcnt(0)
    s_lshl_b32 s{sOff}, s{sBt0}, 15
    """)
    for t in range(D):
        ld(t, sOff)
    k(f"v_mov_b32 v{vLi}, s{sL0}")
    srd(k, SW, sWS, WS_USED)
    k(f"""
    v_lshlrev_b32 v{vRo}, 4, v{vLane}
    v_lshlrev_b32 v{vMo_w}, 2, v{vLane}
    s_cmp_lg_u32 s{sE}, 0
    s_cbranch_scc1 L_loop
    s_mov_b32 s{sC}, {f32(128 ** -0.5 * 1.4426950408889634)}   ; D^-0.5 * log2(e)
    s_mov_b32 s{sPlo}, 0x05040100
    s_mov_b32 s{sPhi}, 0x07060302
    s_mov_b32 s{sNeg}, {f32(-1e9 * 1.4426950408889634)}
    s_lshr_b32 s{sSp}, {hex(SLOWH)}, s{sH}
    v_mov_b32 v{vM}, {f32(-3.0e38)}
    v_mov_b32 v{vL}, 0
    v_mov_b32 v{vAb}, 0
    v_mov_b32 v{vPa}, {POP}
    v_mov_b32 v{vFour}, 4
    """)
    for i in range(32):
        k(f"v_mov_b32 v{vAcc+i}, 0")
    k(f"""
    s_cmp_lg_u32 s{sFb}, 0
    s_cbranch_scc1 L_loop
    s_barrier
    s_lshl_b32 s{sRec}, s{sH}, 7
    s_add_u32 s{sRec}, s{sRec}, s{sJ}
    s_lshl_b32 s{sRec}, s{sRec}, 10            ; record (h*128+p)*1024
    s_load_dword s{sR}, {sr(sWS,2)}, s{sRec}
    s_lshr_b32 s{sMl}, s{sRec}, 4
    s_add_u32 s{sMl}, s{sMl}, {ML_OFF}
    """)

    def qk(i):
        k(f"v_mfma_f32_16x16x32_bf16 {vr(vD+4*i,4)}, {vr(vKA+4*i,4)}, {vr(vQ,4)}, 0")

    def perm(e, half):
        j, hi = e >> 1, e & 1
        sel = sPhi if hi else sPlo
        k(f"v_perm_b32 v{vB+2*e+half}, v{vVA+8*half+4+j}, v{vVA+8*half+j}, s{sel}")

    def pv(e):
        k(f"v_mfma_f32_16x16x16_bf16 {vr(vAcc+4*e,4)}, {vr(vP,2)}, {vr(vB+2*e,2)}, {vr(vAcc+4*e,4)}")

    def lreduce(kk):
        kk(f"""
        v_mov_b32 v{vTmp}, v{vL}
        v_permlane32_swap_b32 v{vL}, v{vTmp}
        v_add_f32 v{vL}, v{vL}, v{vTmp}
        v_mov_b32 v{vTmp}, v{vL}
        v_permlane16_swap_b32 v{vL}, v{vTmp}
        v_add_f32 v{vL}, v{vL}, v{vTmp}
        """)

    def issue(p):
        ld(p + D, sOff if p + D < 8 else sNxt)

    def wait(p):
        if p in (4, 6):
            k(f"""
            s_bitcmp1_b32 s{sSp}, 0
            s_cbranch_scc1 L_sk{p}
            s_waitcnt vmcnt({D-1})
            L_sk{p}:
            """)
        else:
            k(f"s_waitcnt vmcnt({D-1})")

    k(f"""
    L_loop:
    s_mov_b64 exec, 1
    ds_add_rtn_u32 v{vNx}, v{vPa}, v{vFour}
    s_mov_b64 exec, -1
    """)
    for i in range(4):
        if i == 2:
            k(f"""
            s_waitcnt lgkmcnt(0)
            L_get:
            s_mov_b64 exec, 1
            ds_read_b32 v{vEn}, v{vLi}
            ds_read_b32 v{vEn+1}, v{vNx}
            s_mov_b64 exec, -1
            """)
        wait(i)
        qk(i)
        if i == 2:
            k(f"""
            s_waitcnt lgkmcnt(0)
            v_readfirstlane_b32 s{sT0}, v{vEn+1}
            v_readfirstlane_b32 s{sCnt}, v{vEn}
            s_max_u32 s{sT1}, s{sT0}, s{sCnt}
            s_cmp_eq_u32 s{sT1}, -1
            s_cbranch_scc1 L_retry
            s_and_b32 s{sNxt}, s{sT0}, 0xffff8000
            s_and_b32 s{sCnt}, s{sCnt}, 31
            s_and_b32 s{sPol}, s{sT0}, 32
            v_mov_b32 v{vLi}, v{vNx}
            """)
        issue(i)
    for j in (1, 2, 3):
        for i in range(4):
            src1 = vD + 4 * i if j == 1 else vT + i
            k(f"v_add_f32_dpp v{vT+i}, v{vD+4*i+j}, v{src1} quad_perm:[{j},{j},{j},{j}] {ALL}")
    for i in range(4):
        k(f"v_mul_f32 v{vT+i}, s{sC}, v{vT+i}")
    k(f"""
    s_cmp_lt_u32 s{sCnt}, 16
    s_cbranch_scc1 L_mask
    L_nomask:
    v_max3_f32 v{vMx}, v{vT}, v{vT+1}, v{vT+2}
    v_max3_f32 v{vMx}, v{vMx}, v{vT+3}, v{vM}
    v_mov_b32 v{vTmp}, v{vMx}
    v_permlane32_swap_b32 v{vMx}, v{vTmp}
    v_max_f32 v{vMx}, v{vMx}, v{vTmp}
    v_mov_b32 v{vTmp}, v{vMx}
    v_permlane16_swap_b32 v{vMx}, v{vTmp}
    v_max_f32 v{vMx}, v{vMx}, v{vTmp}
    """)
    cold(f"""
    L_mask:                                    ; tokens at or past context_len
    v_mov_b32 v{vTmp}, s{sNeg}
    """)
    for i in range(4):
        cold(f"""
        s_sub_i32 s{sT0}, s{sCnt}, {i}
        v_cmp_gt_i32 vcc, s{sT0}, v{vG4}
        v_cndmask_b32 v{vT+i}, v{vTmp}, v{vT+i}, vcc
        """)
    cold("s_branch L_nomask")
    wait(4)
    issue(4)
    k(f"""
    v_sub_f32 v{vAl}, v{vM}, v{vMx}
    v_mov_b32 v{vM}, v{vMx}
    v_exp_f32 v{vAl}, v{vAl}
    """)
    for i in range(4):
        k(f"v_sub_f32 v{vT+i}, v{vT+i}, v{vMx}")
    for i in range(4):
        k(f"v_exp_f32 v{vT+i}, v{vT+i}")
        k(f"v_mov_b32_dpp v{vAb}, v{vAl} row_newbcast:{4*i} row_mask:{hex(1<<i)} bank_mask:0xf")
        if i == 1:
            k(f"v_fma_f32 v{vL}, v{vL}, v{vAl}, v{vT}")
        if i == 2:
            k(f"v_cvt_pk_bf16_f32 v{vP}, v{vT}, v{vT+1}")
    k(f"""
    v_add_f32 v{vTmp}, v{vT+1}, v{vT+2}
    v_cvt_pk_bf16_f32 v{vP+1}, v{vT+2}, v{vT+3}
    v_add_f32 v{vL}, v{vL}, v{vT+3}
    v_add_f32 v{vL}, v{vL}, v{vTmp}
    """)
    for e in range(8):
        k(f"v_mul_f32 v{vAcc+4*e}, v{vAb}, v{vAcc+4*e}")
    k(f"""
    s_cmp_eq_u32 s{sNxt}, {hex(END)}
    s_cbranch_scc1 L_ml
    L_mld:
    """)
    wait(5)
    issue(5)
    for e in range(8):
        perm(e, 0)
    wait(6)
    issue(6)
    wait(7)
    issue(7)
    perm(0, 1)
    perm(1, 1)
    for e in range(8):
        if e + 2 < 8:
            perm(e + 2, 1)
        pv(e)
    k(f"""
    s_mov_b32 s{sOff}, s{sNxt}
    s_cmp_eq_u32 s{sNxt}, {hex(END)}
    s_cbranch_scc0 L_loop
    s_cmp_lg_u32 s{sFb}, 0
    s_cbranch_scc1 L_fbnext
    L_done:                                    ; lane (c, g): O[query g][8c .. 8c+7]
    s_cmp_lg_u32 s{sPol}, 0
    """)
    for j in range(4):
        k(f"v_cvt_pk_bf16_f32 v{vD+j}, v{vAcc+8*j}, v{vAcc+8*j+4}")
        k(f"v_xor_b32 v{vD+j}, s{sR}, v{vD+j}")
    k(f"""
    s_cbranch_scc1 L_dn1
    buffer_store_dwordx4 {vr(vD,4)}, v{vRo}, {sr(SW,4)}, s{sRec} offen
    s_endpgm
    L_dn1:
    buffer_store_dwordx4 {vr(vD,4)}, v{vRo}, {sr(SW,4)}, s{sRec} offen sc1
    s_endpgm
    L_retry:
    s_cmp_eq_u32 s{sCnt}, {hex(END)}
    s_cbranch_scc0 L_get
    s_mov_b32 s{sPol}, 32
    s_branch L_none
    L_ml:                                      ; last page: (m, l) are final before its V rows land
    s_cmp_lg_u32 s{sFb}, 0
    s_cbranch_scc1 L_mld
    L_none:
    s_add_u32 s{sR}, s{sR}, s{sMl}
    s_mul_i32 s{sR}, s{sR}, 0x9e3779b1
    s_lshr_b32 s{sT0}, s{sR}, 15
    s_xor_b32 s{sR}, s{sR}, s{sT0}
    s_mul_i32 s{sR}, s{sR}, 0x85ebca6b         ; salt
    """)
    lreduce(k)
    k(f"""
    v_xor_b32 v{vT}, s{sR}, v{vM}
    v_mov_b32 v{vT+2}, s{sR}
    v_mov_b32 v{vT+3}, s{sR}
    s_mov_b32 exec_lo, 0x1111
    s_mov_b32 exec_hi, 0
    s_cmp_lg_u32 s{sPol}, 0
    v_xor_b32 v{vT+1}, s{sR}, v{vL}
    s_cbranch_scc1 L_ml1
    buffer_store_dwordx4 {vr(vT,4)}, v{vMo_w}, {sr(SW,4)}, s{sMl} offen
    s_mov_b64 exec, -1
    s_barrier
    s_branch L_mld
    L_ml1:
    buffer_store_dwordx4 {vr(vT,4)}, v{vMo_w}, {sr(SW,4)}, s{sMl} offen sc1
    s_mov_b64 exec, -1
    s_barrier
    s_cmp_eq_u32 s{sCnt}, {hex(END)}
    s_cbranch_scc0 L_mld
    s_branch L_done
    """)

    vOf, vMo, vPw, vPm, vPr_, vOo = 2, 3, 4, 5, 6, 7
    vX, vY, vW, vZ = 8, 9, 10, 11
    vML = 12
    vMa, vRr, vSa = 16, 18, 20
    vA, vPr = 24, 28
    vOr, vOs, vU = 32, 34, 36
    vBt, vDyn, vCo, vPq, vCt = 42, 43, 44, 45, 46
    vE4, vEl = 48, 52
    vV2, vBase, vM4 = 56, 58, 60

    def ctxcalc(kk):
        kk(f"""
        s_min_i32 s{sT0}, s{sCtx}, 65536
        s_cmp_le_i32 s{sCtx}, 0
        s_cselect_b32 s{sT0}, 65536, s{sT0}
        s_add_u32 s{sT0}, s{sT0}, 15
        s_lshr_b32 s{sN}, s{sT0}, 4
        s_min_i32 s{sCtx}, s{sCtx}, 65536
        s_max_i32 s{sCtx}, s{sCtx}, 0
        """)

    def entry(kk, vpage, vbt, vt):
        kk(f"""
        v_lshlrev_b32 v{vt}, 4, v{vpage}
        v_sub_u32 v{vt}, s{sCtx}, v{vt}
        v_med3_i32 v{vt}, v{vt}, 0, 16
        v_cmp_gt_u32 vcc, s{sN}, v{vpage}
        v_lshl_or_b32 v{vbt}, v{vbt}, 15, v{vt}
        v_bfrev_b32 v{vt}, 1
        v_and_b32 v{vbt}, 0x7fffffff, v{vbt}
        v_cndmask_b32 v{vbt}, v{vt}, v{vbt}, vcc
        """)

    k(f"""
    L_service:
    s_mov_b64 {sr(sE,2)}, 0
    s_mov_b32 s{sBad}, 0
    s_cmp_eq_u32 s{sWv}, 4
    s_cbranch_scc0 L_cons
    v_lshlrev_b32 v{vX}, 9, v{vLane}
    v_lshlrev_b32 v{vCo}, 2, v{vLane}
    v_lshlrev_b32 v{vDyn}, 4, v{vLane}
    v_mov_b32 v{vEl}, -1
    v_mov_b32 v{vEl+1}, -1
    v_mov_b32 v{vEl+2}, -1
    v_mov_b32 v{vEl+3}, -1
    v_mov_b32 v{vPr}, 0
    v_writelane_b32 v{vPr}, 16, 0
    ds_write_b128 v{vDyn}, {vr(vEl,4)}
    ds_write_b32 v{vCo}, v{vPr} offset:{POP}
    s_lshl_b32 s{sIdx}, s{sSh}, 4
    s_waitcnt lgkmcnt(0)
    s_load_dword s{sCtx}, {sr(sCTX,2)}, 0
    """)
    srd(k, SB, sBT, 16384)
    k(f"""
    buffer_load_dwordx4 {vr(vE4,4)}, v{vX}, {sr(SB,4)}, s{sIdx} offen
    s_barrier
    s_waitcnt lgkmcnt(0)
    """)
    ctxcalc(k)
    k(f"""
    s_lshr_b32 s{sS}, s{sN}, 7
    s_max_i32 s{sS}, s{sS}, 1
    s_lshl_b32 s{sT1}, s{sSh}, 2
    v_lshl_add_u32 v{vX}, v{vLane}, 7, s{sT1}
    s_lshl_b32 s{sT0}, s{sS}, 7
    s_add_u32 s{sT0}, s{sT0}, s{sSh}
    v_lshl_add_u32 v{vBt}, v{vLane}, 5, s{sT0}
    v_lshlrev_b32 v{vEl}, 2, v{vBt}
    v_cmp_gt_u32 vcc, s{sS}, v{vLane}
    s_mov_b64 exec, 15
    buffer_load_dword v{vEl}, v{vEl}, {sr(SB,4)}, 0 offen
    s_mov_b64 exec, vcc
    s_waitcnt vmcnt(1)
    """)
    for w in range(4):
        entry(k, vX, vE4 + w, vY)
        if w < 3:
            k(f"v_add_u32 v{vX}, 1, v{vX}")
    k(f"""
    ds_write_b128 v{vDyn}, {vr(vE4,4)}
    s_mov_b64 exec, -1
    L_cons:
    s_lshr_b32 s{sI}, s{sSh}, 3                ; q
    s_sub_u32 s{sCnt}, s{sWv}, 4               ; c
    s_lshl3_add_u32 s{sOff}, s{sH}, s{sCnt}    ; h*8 + c
    s_lshl_b32 s{sT0}, s{sOff}, 14
    s_lshl_b32 s{sT1}, s{sSh}, 5               ; q*256 + oct*32
    s_add_u32 s{sT0}, s{sT0}, s{sT1}
    v_lshrrev_b32 v{vY}, 2, v{vLane}
    v_and_b32 v{vW}, 3, v{vLane}
    v_lshlrev_b32 v{vX}, 10, v{vY}
    v_lshl_add_u32 v{vX}, v{vW}, 3, v{vX}
    v_add_u32 v{vOf}, s{sT0}, v{vX}
    s_lshl_b32 s{sT0}, s{sOff}, 10
    s_lshl4_add_u32 s{sT0}, s{sI}, s{sT0}
    s_add_u32 s{sT0}, s{sT0}, {ML_OFF}
    v_lshlrev_b32 v{vX}, 6, v{vY}
    v_lshl_add_u32 v{vX}, v{vW}, 2, v{vX}
    v_add_u32 v{vMo}, s{sT0}, v{vX}
    s_waitcnt lgkmcnt(0)
    """)
    srd(k, SW, sWS, WS_USED)
    k(f"""
    buffer_load_dword v{vSa}, v{vMo}, {sr(SW,4)}, 0 offen sc1
    buffer_load_dwordx2 {vr(vOs,2)}, v{vOf}, {sr(SW,4)}, 0 offen sc1
    s_cmp_eq_u32 s{sWv}, 4
    s_cbranch_scc1 L_nb1
    s_barrier
    L_nb1:
    s_lshl_b32 s{sT0}, s{sH}, 10
    s_add_u32 s{sT0}, s{sT0}, s{sT1}
    v_lshrrev_b32 v{vX}, 4, v{vLane}
    v_lshl_add_u32 v{vX}, v{vW}, 2, v{vX}      ; e
    v_lshl_add_u32 v{vOo}, v{vX}, 1, s{sT0}
    v_lshlrev_b32 v{vX}, 5, v{vX}
    s_lshl_b32 s{sT0}, s{sCnt}, 2
    v_add_u32 v{vPw}, s{sT0}, v{vX}            ; v[e][c]
    v_bfe_u32 v{vZ}, v{vLane}, 2, 2
    v_lshl_add_u32 v{vPr_}, v{vZ}, 3, v{vX}    ; v[e][2x]
    v_lshlrev_b32 v{vPq}, 4, v{vZ}             ; (M,L)[2x]
    s_lshl_b32 s{sT0}, s{sCnt}, 3
    v_mov_b32 v{vPm}, s{sT0}                   ; (M,L)[c]
    """)
    if FASTL:
        k(f"""
        v_lshlrev_b32 v{vZ}, 1, v{vZ}
        v_cmp_eq_u32 {sr(sMA,2)}, s{sCnt}, v{vZ}
        v_add_u32 v{vZ}, 1, v{vZ}
        v_cmp_eq_u32 {sr(sMB,2)}, s{sCnt}, v{vZ}
        """)
    srd(k, SO, sOUT, 8192)
    k(f"""
    s_mov_b32 s{sC}, 0xffff0000
    s_cmp_eq_u32 s{sWv}, 4
    s_cbranch_scc0 L_real
    """)
    srd(k, SD, sDBG, 256)
    k(f"""
    s_getreg_b32 s{sXc}, hwreg(HW_REG_XCC_ID)
    s_lshl_b32 s{sT0}, s{sH}, 5
    v_mov_b32 v{vCo}, s{sT0}
    s_and_b32 s{sXc}, s{sXc}, 15
    s_add_u32 s{sXc}, s{sXc}, 1
    s_mov_b32 s{sPol}, {32 if FORCESC else 0}
    s_cmp_eq_u32 s{sSh}, 0
    s_cbranch_scc0 L_nl
    v_mov_b32 v{vX}, s{sXc}
    s_mov_b64 exec, 1
    buffer_store_dword v{vX}, v{vCo}, {sr(SD,4)}, 0 offen offset:4 sc1
    s_mov_b64 exec, -1
    L_nl:
    s_waitcnt vmcnt(0)
    """)
    entry(k, vBt, vEl, vY)
    k(f"""
    v_mov_b32 v{vW}, {POP}
    s_lshl_b32 s{sE}, s{sS}, 4
    v_lshl_add_u32 v{vDyn}, v{vLane}, 2, s{sE}
    s_sub_i32 s{sE}, s{sE}, {4*LEADP}
    s_min_i32 s{sOff}, s{sE}, {4*CHK}
    s_mov_b32 s{sI}, 0
    L_s0:
    ds_read_b32 v{vX}, v{vW}
    s_waitcnt lgkmcnt(0)
    v_readfirstlane_b32 s{sT0}, v{vX}
    s_cmp_ge_i32 s{sT0}, s{sOff}
    s_cbranch_scc1 L_s2
    s_sleep 4
    s_branch L_s0
    L_s2:
    buffer_load_dwordx2 {vr(vPr,2)}, v{vCo}, {sr(SD,4)}, 0 offen sc1
    s_waitcnt vmcnt(0)
    v_readfirstlane_b32 s{sT1}, v{vPr}
    v_readfirstlane_b32 s{sT0}, v{vPr+1}
    s_or_b32 s{sPol}, s{sPol}, s{sT1}
    s_cmp_lg_u32 s{sI}, 0
    s_cbranch_scc1 L_s1
    s_mov_b32 s{sI}, 1
    s_mov_b32 s{sOff}, s{sE}
    s_cmp_eq_u32 s{sT0}, s{sXc}
    s_cbranch_scc1 L_s0
    s_mov_b32 s{sPol}, 32
    v_mov_b32 v{vX}, 32
    s_mov_b64 exec, 1
    buffer_store_dword v{vX}, v{vCo}, {sr(SD,4)}, 0 offen sc1
    s_mov_b64 exec, -1
    s_branch L_s0
    L_s1:
    s_and_b32 s{sPol}, s{sPol}, 32
    s_mov_b64 exec, 0xffff
    v_or_b32 v{vEl}, s{sPol}, v{vEl}
    ds_write_b32 v{vDyn}, v{vEl}
    s_mov_b64 exec, -1
    L_real:
    s_mov_b32 s{sI}, {LIMIT if FORCEFB else 0}
    s_mov_b32 s{sLim}, {LIMIT if FORCEFB else LIM0}
    v_mov_b32 v{vCo}, {CTR}
    v_mov_b32 v{vBt}, 1
    s_waitcnt vmcnt(0) lgkmcnt(0)
    s_barrier
    s_branch L_m1
    L_m0:                                      ; wait for the (m, l, salt) entries
    s_bcnt1_i32_b64 s{sT0}, vcc
    L_m2:                                      ; back off in proportion to the number of missing producers
    s_sleep {GR}
    s_sub_i32 s{sT0}, s{sT0}, 4
    s_cmp_gt_i32 s{sT0}, 0
    s_cbranch_scc1 L_m2
    s_mov_b64 exec, vcc
    L_m1:
    buffer_load_dword v{vMa}, v{vMo}, {sr(SW,4)}, 0 offen sc1
    s_mov_b64 exec, -1
    s_add_u32 s{sI}, s{sI}, 1
    s_cmp_ge_u32 s{sI}, s{sLim}
    s_cbranch_scc1 L_chk1
    L_m3:
    s_waitcnt vmcnt(0)
    v_cmp_eq_u32 vcc, v{vMa}, v{vSa}
    s_cbranch_vccnz L_m0
    buffer_load_dwordx2 {vr(vOr,2)}, v{vOf}, {sr(SW,4)}, 0 offen sc1
    """)
    if FASTL:
        k(f"""
        ds_read_b32 v{vCt}, v{vCo}
        ds_read_b64 {vr(vV2,2)}, v{vPr_} offset:{PART}
        ds_read_b128 {vr(vM4,4)}, v{vPq} offset:{PML}
        """)
    k(f"""
    v_mov_b32_dpp v{vRr}, v{vMa} quad_perm:[2,2,2,2] {ALL}
    v_xor_b32_dpp v{vW}, v{vMa}, v{vRr} quad_perm:[0,0,0,0] {ALL}   ; m
    v_xor_b32_dpp v{vZ}, v{vMa}, v{vRr} quad_perm:[1,1,1,1] {ALL}   ; l
    v_max_f32_dpp v{vML}, v{vW}, v{vW} row_ror:4 {ALL}
    v_max_f32_dpp v{vML}, v{vML}, v{vML} row_ror:8 {ALL}
    v_mov_b32 v{vY}, v{vML}
    v_permlane16_swap_b32 v{vML}, v{vY}
    v_max_f32 v{vML}, v{vML}, v{vY}
    v_mov_b32 v{vY}, v{vML}
    v_permlane32_swap_b32 v{vML}, v{vY}
    v_max_f32 v{vML}, v{vML}, v{vY}
    v_sub_f32 v{vW}, v{vW}, v{vML}
    v_exp_f32 v{vW}, v{vW}
    v_mul_f32 v{vZ}, v{vW}, v{vZ}
    v_add_f32_dpp v{vZ}, v{vZ}, v{vZ} row_ror:4 {ALL}
    v_add_f32_dpp v{vZ}, v{vZ}, v{vZ} row_ror:8 {ALL}
    v_mov_b32 v{vY}, v{vZ}
    v_permlane16_swap_b32 v{vZ}, v{vY}
    v_add_f32 v{vZ}, v{vZ}, v{vY}
    v_mov_b32 v{vY}, v{vZ}
    v_permlane32_swap_b32 v{vZ}, v{vY}
    v_add_f32 v{vML+1}, v{vZ}, v{vY}
    """)

    def merge():
        k(f"""
        v_max_f32 v{vX}, v{vM4}, v{vM4+2}
        v_max_f32_dpp v{vX}, v{vX}, v{vX} row_ror:4 {ALL}
        v_max_f32_dpp v{vX}, v{vX}, v{vX} row_ror:8 {ALL}
        v_sub_f32 v{vM4}, v{vM4}, v{vX}
        v_sub_f32 v{vM4+2}, v{vM4+2}, v{vX}
        v_exp_f32 v{vM4}, v{vM4}
        v_exp_f32 v{vM4+2}, v{vM4+2}
        v_mul_f32 v{vY}, v{vM4}, v{vM4+1}
        v_mul_f32 v{vBase}, v{vM4}, v{vV2}
        v_fmac_f32 v{vY}, v{vM4+2}, v{vM4+3}
        v_fmac_f32 v{vBase}, v{vM4+2}, v{vV2+1}
        v_add_f32_dpp v{vY}, v{vY}, v{vY} row_ror:4 {ALL}
        v_add_f32_dpp v{vBase}, v{vBase}, v{vBase} row_ror:4 {ALL}
        v_add_f32_dpp v{vY}, v{vY}, v{vY} row_ror:8 {ALL}
        v_add_f32_dpp v{vBase}, v{vBase}, v{vBase} row_ror:8 {ALL}
        v_rcp_f32 v{vY}, v{vY}
        v_mul_f32 v{vBase}, v{vBase}, v{vY}
        """)

    if FASTL:
        k(f"""
        s_waitcnt lgkmcnt(0)
        v_readfirstlane_b32 s{sFast}, v{vCt}
        ds_write_b64 v{vPm}, {vr(vML,2)} offset:{PML}
        s_cmp_eq_u32 s{sFast}, 7
        s_cbranch_scc0 L_o1
        v_cndmask_b32 v{vM4}, v{vM4}, v{vML}, {sr(sMA,2)}
        v_cndmask_b32 v{vM4+2}, v{vM4+2}, v{vML}, {sr(sMB,2)}
        v_cndmask_b32 v{vM4+1}, v{vM4+1}, v{vML+1}, {sr(sMA,2)}
        v_cndmask_b32 v{vM4+3}, v{vM4+3}, v{vML+1}, {sr(sMB,2)}
        v_cndmask_b32 v{vV2}, v{vV2}, 0, {sr(sMA,2)}
        v_cndmask_b32 v{vV2+1}, v{vV2+1}, 0, {sr(sMB,2)}
        """)
        merge()
        k(f"""
        v_sub_f32 v{vX}, v{vML}, v{vX}
        v_exp_f32 v{vX}, v{vX}
        v_mul_f32 v{vW}, v{vW}, v{vY}
        v_mul_f32 v{vW}, v{vW}, v{vX}
        """)
    else:
        k(f"ds_write_b64 v{vPm}, {vr(vML,2)} offset:{PML}")
    k(f"""
    s_branch L_o1
    L_o0:                                      ; wait for the record pieces
    s_mov_b64 exec, vcc
    buffer_load_dwordx2 {vr(vOr,2)}, v{vOf}, {sr(SW,4)}, 0 offen sc1
    s_mov_b64 exec, -1
    s_add_u32 s{sI}, s{sI}, 1
    s_cmp_ge_u32 s{sI}, s{sLim}
    s_cbranch_scc1 L_chk2
    L_o1:
    s_waitcnt vmcnt(0)
    v_xor_b32 v{vU}, v{vOr}, v{vOs}
    v_xor_b32 v{vU+1}, v{vOr+1}, v{vOs+1}
    v_xor_b32 v{vX}, v{vOr}, v{vRr}
    v_min_u32 v{vU}, v{vU}, v{vU+1}
    v_xor_b32 v{vY}, v{vOr+1}, v{vRr}
    v_cmp_eq_u32 vcc, 0, v{vU}
    v_lshlrev_b32 v{vA}, 16, v{vX}
    v_and_b32 v{vA+1}, s{sC}, v{vX}
    v_lshlrev_b32 v{vA+2}, 16, v{vY}
    v_and_b32 v{vA+3}, s{sC}, v{vY}
    s_cbranch_vccnz L_o0
    """)
    for j in range(4):
        k(f"v_mul_f32 v{vA+j}, v{vW}, v{vA+j}")
    for sh in (4, 8):
        for j in range(4):
            k(f"v_add_f32_dpp v{vA+j}, v{vA+j}, v{vA+j} row_ror:{sh} {ALL}")
    k(f"""
    v_permlane16_swap_b32 v{vA}, v{vA+1}
    v_permlane16_swap_b32 v{vA+2}, v{vA+3}
    v_add_f32 v{vA}, v{vA}, v{vA+1}
    v_add_f32 v{vA+2}, v{vA+2}, v{vA+3}
    {f"s_cmp_eq_u32 s{sFast}, 7" if FASTL else ""}
    v_permlane32_swap_b32 v{vA}, v{vA+2}
    """)
    if FASTL:
        k(f"""
        s_cbranch_scc0 L_post
        v_add_f32 v{vBase}, v{vBase}, v{vA}
        v_add_f32 v{vBase}, v{vBase}, v{vA+2}
        s_branch L_out
        L_post:
        """)
    k(f"""
    v_add_f32 v{vA}, v{vA}, v{vA+2}
    ds_write_b32 v{vPw}, v{vA} offset:{PART}
    L_arr:
    s_mov_b64 exec, 1
    ds_add_rtn_u32 v{vBt}, v{vCo}, v{vBt}
    s_mov_b64 exec, -1
    ds_read_b128 {vr(vM4,4)}, v{vPq} offset:{PML}
    ds_read_b64 {vr(vV2,2)}, v{vPr_} offset:{PART}
    s_waitcnt lgkmcnt(2)
    v_readfirstlane_b32 s{sT0}, v{vBt}
    s_and_b32 s{sT1}, s{sT0}, 15
    s_cmp_eq_u32 s{sT1}, 7
    s_cbranch_scc0 L_end
    s_or_b32 s{sT0}, s{sT0}, s{sBad}
    s_cmp_gt_u32 s{sT0}, 15
    s_cbranch_scc1 L_fb
    s_waitcnt lgkmcnt(0)
    """)
    merge()
    k(f"""
    L_out:
    s_mov_b32 exec_lo, 0x000f000f
    s_mov_b32 exec_hi, 0x000f000f
    v_cvt_pk_bf16_f32 v{vBase}, v{vBase}, v{vBase}
    buffer_store_short v{vBase}, v{vOo}, {sr(SO,4)}, 0 offen
    """)
    if MUL:
        k(f"""
        s_waitcnt vmcnt(0)
        s_memrealtime {sr(sTS+2,2)}
        s_waitcnt lgkmcnt(0)
        s_sub_u32 s{sT1}, s{sTS+2}, s{sTS}
        s_mul_i32 s{sT1}, s{sT1}, {MUL}
        L_spinm:
        s_sleep 2
        s_memrealtime {sr(sTS+2,2)}
        s_waitcnt lgkmcnt(0)
        s_sub_u32 s{sT0}, s{sTS+2}, s{sTS}
        s_cmp_lt_u32 s{sT0}, s{sT1}
        s_cbranch_scc1 L_spinm
        """)
    k("""
    L_end:
    s_endpgm
    """)
    for n, back in ((1, "L_m3"), (2, "L_o1")):
        cold(f"""
        L_chk{n}:                                    ; many looks without success: give up early on a short context
        s_cmp_ge_u32 s{sI}, {LIMIT}
        s_cbranch_scc1 L_fail
        s_load_dword s{sT0}, {sr(sCTX,2)}, 0
        s_mov_b32 s{sLim}, {LIMIT}
        s_waitcnt lgkmcnt(0)
        s_sub_u32 s{sT0}, s{sT0}, 1
        s_cmp_lt_u32 s{sT0}, 8192
        s_cbranch_scc0 {back}
        {"s_branch L_fail" if n == 1 else ""}
        """)
    cold(f"""
    L_fail:
    v_mov_b32 v{vBt}, 17
    s_mov_b32 s{sBad}, 16
    s_branch L_arr
    L_fb:
    s_load_dword s{sCtx}, {sr(sCTX,2)}, 0
    s_waitcnt vmcnt(0) lgkmcnt(0)
    """)
    ctxcalc(cold)
    cold(f"""
    s_mov_b32 s{sE}, 0
    s_mov_b32 s{sL0}, 0
    L_fbfill:
    """)
    srd(cold, SB, sBT, 16384)
    cold(f"""
    v_add_u32 v{vFp}, s{sE}, v{vLane}
    v_lshlrev_b32 v{vFb}, 2, v{vFp}
    buffer_load_dword v{vFb}, v{vFb}, {sr(SB,4)}, 0 offen
    s_lshl_b32 s{sIdx}, s{sE}, 2
    s_waitcnt vmcnt(0)
    """)
    entry(cold, vFp, vFb, vTmp)
    cold(f"""
    s_bitset1_b32 s{sFb}, 31
    v_lshlrev_b32 v{vFp}, 2, v{vLane}
    v_writelane_b32 v{vFb}, s{sFb}, 63
    v_mov_b32 v{vPa}, {POP}
    v_mov_b32 v{vFour}, 4
    ds_write_b32 v{vFp}, v{vFb}
    ds_write_b32 v{vPa}, v{vFour}
    s_load_dword s{sBt0}, {sr(sBT,2)}, s{sIdx}
    s_branch L_setup
    L_fbnext:
    s_waitcnt vmcnt(0)
    s_add_u32 s{sE}, s{sE}, 63
    s_cmp_lt_u32 s{sE}, s{sN}
    s_cbranch_scc1 L_fbfill
    """)
    lreduce(cold)
    cold(f"v_rcp_f32 v{vAl}, v{vL}")
    for i in range(4):
        cold(f"v_mov_b32_dpp v{vAb}, v{vAl} row_newbcast:{4*i} row_mask:{hex(1<<i)} bank_mask:0xf")
    for e in range(8):
        cold(f"v_mul_f32 v{vAcc+4*e}, v{vAb}, v{vAcc+4*e}")
    for j in range(4):
        cold(f"v_cvt_pk_bf16_f32 v{vD+j}, v{vAcc+8*j}, v{vAcc+8*j+4}")
    srd(cold, SO, sOUT, 8192)
    cold(f"""
    s_lshl_b32 s{sT0}, s{sSh}, 1
    s_lshl_b32 s{sT1}, s{sH}, 10
    v_lshlrev_b32 v{vTmp}, 4, v{vLane}
    s_lshl_b64 exec, 3, s{sT0}
    buffer_store_dwordx4 {vr(vD,4)}, v{vTmp}, {sr(SO,4)}, s{sT1} offen
    s_endpgm
    """)
    k.lines += cold.lines
    body = k.done()

    out = HEADER + f"; @launch grid=(256,1,1) block=(768,1,1) lds={LDS}\n" + DOC
    out += '.amdgcn_target "amdgcn-amd-amdhsa--gfx950"\n.text\n'
    out += f".globl {NAME}_kernel\n.p2align 8\n.type {NAME}_kernel,@function\n{NAME}_kernel:\n"
    out += body
    out += f""".section .rodata,"a"
.p2align 6
.amdhsa_kernel {NAME}_kernel
  .amdhsa_next_free_vgpr {NV}
  .amdhsa_next_free_sgpr {NS}
  .amdhsa_accum_offset {NV}
  .amdhsa_group_segment_fixed_size 0
  .amdhsa_kernarg_size 64
  .amdhsa_user_sgpr_count 2
  .amdhsa_user_sgpr_kernarg_segment_ptr 1
  .amdhsa_system_sgpr_workgroup_id_x 1
.end_amdhsa_kernel
"""
    return out


if __name__ == "__main__":
    kw = {}
    for a in sys.argv[2:]:
        key, val = a.split("=")
        kw[key] = int(val, 0)
    open(sys.argv[1], "w").write(gen(**kw))
```

```python
import sys
import struct
from asmlib import K, vr, sr

NAME = "standalone__paged_block_table_kv_pagedattention__decode"
KV_BYTES = 4100 * 32768
HEADER = open("cdna_kernels/" + NAME + ".s.ref").read().split("; Override")[0]
ML_OFF = 0x40000
WS_USED = 0x48000
END = 0x80000000
POP = 1024
CTR = POP + 64
MLW = POP + 128
ACC = 2048
LDS = ACC + 8192

DOC = """;
"""


def f32(x):
    return "0x%08x" % struct.unpack("<I", struct.pack("<f", x))[0]


def gen(GR=1, LIMIT=2048, LIM0=64, CHK=24, LEADP=12, SLOWH=0x22, FASTL=1, FORCEFB=0, FORCESC=0, MUL=0, SCR=0, XD=0, FO=0, GSUB=16, SVML=1, PRE=0, NOSL=0, GSL=1, HOOK=6, TRIM=1, WM=0, WMS=-1, PM=0xff, SKIP=1):
    global WS_USED
    if XD:
        WS_USED = 0x800000
    D = 6
    k = K()
    cold = K()
    sQ, sKp, sVp, sBT, sCTX, sOUT, sDBG, sWS = 4, 6, 8, 10, 12, 14, 16, 18
    SK, SV, SB, SQ, SW, SD, SO = 20, 24, 28, 32, 36, 60, 64
    sH, sL0, sWv, sJ, sCtx, sN, sI, sCnt, sOff, sC, sPlo, sPhi, sT0, sT1, sNeg, sIdx = range(40, 56)
    sBt0, sRec, sMl, sNxt = 56, 57, 58, 59
    sE, sFb, sR, sS, sSh, sBad, sHq, sOct, sLim, sPol = range(68, 78)
    sMA, sMB, sXc, sFast, sSp, sEnd = 78, 80, 82, 83, 84, 85
    sLast = sFast
    sTh = sMA
    if WMS < 0:
        WMS = WM
    sMk = 86
    sTS = 88
    NS = 92 if MUL else 88
    vLane, vKo0, vKo1, vVo0, vVo1, vLi, vG4, vM, vL, vMx, vTmp, vAl, vAb = range(1, 14)
    vP, vQ, vT, vD, vB, vAcc, vKA, vVA = 14, 16, 20, 24, 40, 56, 88, 104
    vRo, vMo_w, vEn, vPa, vNx, vFour = 120, 121, 122, 124, 125, 126
    vFp, vFb = vEn, vEn + 1
    vPre, vPc, vF4, vAd = 128, 152, 154, 162
    vSl, vMw = 169, 170
    NV = 172
    ALL = "row_mask:0xf bank_mask:0xf"

    def srd(kk, S, ptr, size):
        kk(f"""
        s_mov_b32 s{S}, s{ptr}
        s_mov_b32 s{S+1}, s{ptr+1}
        s_mov_b32 s{S+2}, {size}
        s_mov_b32 s{S+3}, 0x20000
        """)

    seq = [("K", i) for i in range(4)] + [("V", i) for i in range(4)]

    def ld(t, so):
        which, i = seq[t % 8]
        vo = (vKo0, vKo1) if which == "K" else (vVo0, vVo1)
        S = SK if which == "K" else SV
        base = vKA if which == "K" else vVA
        off = " offset:2048" if i & 1 else ""
        k(f"buffer_load_dwordx4 {vr(base+4*i,4)}, v{vo[i>>1]}, {sr(S,4)}, s{so} offen{off} nt")

    k(f"""
    s_load_dwordx16 s[4:19], s[0:1], 0
    s_cmp_ge_u32 s2, 256
    s_cbranch_scc1 L_end
    {f"s_memrealtime {sr(sTS,2)}" if MUL else ""}
    {"s_lshr_b32 s3, s2, 5" if SCR == 1 else ""}
    {"s_lshl3_add_u32 s2, s2, s3" if SCR == 1 else ""}
    {"s_and_b32 s2, s2, 255" if SCR == 1 else ""}
    {"s_and_b32 s3, s2, 0xf8" if SCR == 2 else ""}
    {"s_cmp_eq_u32 s3, 0x50" if SCR == 2 else ""}
    {"s_cselect_b32 s3, 1, 0" if SCR == 2 else ""}
    {"s_xor_b32 s2, s2, s3" if SCR == 2 else ""}
    v_lshrrev_b32 v{vTmp}, 6, v0
    v_and_b32 v{vLane}, 63, v0
    v_readfirstlane_b32 s{sWv}, v{vTmp}
    s_lshr_b32 s{sSh}, s2, 3
    s_and_b32 s{sH}, s2, 7
    s_cmp_ge_u32 s{sWv}, 4
    s_cbranch_scc1 L_service
    ; ---------------------------------------------------------------- worker
    s_lshl2_add_u32 s{sJ}, s{sSh}, s{sWv}
    s_lshl_b32 s{sIdx}, s{sJ}, 2
    s_waitcnt lgkmcnt(0)
    s_load_dword s{sBt0}, {sr(sBT,2)}, s{sIdx}
    s_mov_b64 {sr(sE,2)}, 0
    s_lshl_b32 s{sL0}, s{sWv}, 2
    L_setup:
    v_lshrrev_b32 v{vG4}, 4, v{vLane}
    v_lshlrev_b32 v{vG4}, 2, v{vG4}            ; 4g
    v_and_b32 v{vTmp}, 3, v{vLane}
    v_add_lshl_u32 v{vTmp}, v{vTmp}, v{vG4}, 4
    v_bfe_u32 v{vMx}, v{vLane}, 2, 2
    s_lshl_b32 s{sT1}, s{sH}, 8
    v_lshl_add_u32 v{vKo0}, v{vMx}, 13, v{vTmp}
    v_add_u32 v{vKo0}, s{sT1}, v{vKo0}
    v_add_u32 v{vKo1}, 0x1000, v{vKo0}
    v_lshl_add_u32 v{vAl}, v{vMx}, 8, v{vTmp}
    v_and_b32 v{vTmp}, 15, v{vLane}
    v_lshlrev_b32 v{vTmp}, 4, v{vTmp}
    v_lshl_add_u32 v{vVo0}, v{vG4}, 11, v{vTmp}
    v_add_u32 v{vVo0}, s{sT1}, v{vVo0}
    v_add_u32 v{vVo1}, 0x1000, v{vVo0}
    s_lshl_b32 s{sT0}, s{sH}, 10
    """)
    srd(k, SQ, sQ, 8192)
    k(f"buffer_load_dwordx4 {vr(vQ,4)}, v{vAl}, {sr(SQ,4)}, s{sT0} offen")
    srd(k, SK, sKp, KV_BYTES)
    srd(k, SV, sVp, KV_BYTES)
    k(f"""
    s_waitcnt lgkmcnt(0)
    s_lshl_b32 s{sOff}, s{sBt0}, 15
    """)
    for t in range(D):
        ld(t, sOff)
    k(f"v_mov_b32 v{vLi}, s{sL0}")
    srd(k, SW, sWS, WS_USED)
    k(f"""
    v_lshlrev_b32 v{vRo}, 4, v{vLane}
    s_cmp_lg_u32 s{sE}, 0
    s_cbranch_scc1 L_loop
    s_mov_b32 s{sC}, {f32(128 ** -0.5 * 1.4426950408889634)}   ; D^-0.5 * log2(e)
    s_mov_b32 s{sPlo}, 0x05040100
    s_mov_b32 s{sPhi}, 0x07060302
    s_mov_b32 s{sNeg}, {f32(-1e9 * 1.4426950408889634)}
    s_lshr_b32 s{sSp}, {hex(SLOWH)}, s{sH}
    v_mov_b32 v{vM}, {f32(-3.0e38)}
    v_mov_b32 v{vL}, 0
    v_mov_b32 v{vAb}, 0
    v_mov_b32 v{vPa}, {POP}
    v_mov_b32 v{vFour}, 4
    s_lshr_b32 s{sEnd}, s{sFb}, 31
    s_mov_b32 s{sLast}, 0
    s_bitset1_b32 s{sEnd}, 31
    """)
    for i in range(32):
        k(f"v_mov_b32 v{vAcc+i}, 0")
    k(f"""
    s_cmp_lg_u32 s{sFb}, 0
    s_cbranch_scc1 L_loop
    s_barrier
    s_lshl_b32 s{sT0}, s{sWv}, 3
    v_lshl_add_u32 v{vMw}, v{vMx}, 5, s{sT0}
    v_lshl_add_u32 v{vAd}, v{vG4}, 3, s{sT0}
    v_xor_b32 v{vAd+1}, 8, v{vAd}
    v_xor_b32 v{vAd+2}, 16, v{vAd}
    v_xor_b32 v{vAd+3}, 24, v{vAd}
    s_lshl_b32 s{sT0}, s{sWv}, 11
    v_add_u32 v{vSl}, s{sT0}, v{vRo}
    v_xor_b32 v{vAd+4}, 0x800, v{vSl}
    v_xor_b32 v{vAd+5}, 0x1000, v{vSl}
    v_xor_b32 v{vAd+6}, 0x1800, v{vSl}
    s_lshl_b32 s{sRec}, s{sH}, 5
    s_add_u32 s{sRec}, s{sRec}, s{sSh}
    s_lshl_b32 s{sRec}, s{sRec}, 10            ; record (h*32+s)*1024
    """)

    def qk(i):
        k(f"v_mfma_f32_16x16x32_bf16 {vr(vD+4*i,4)}, {vr(vKA+4*i,4)}, {vr(vQ,4)}, 0")

    def perm(e, half):
        j, hi = e >> 1, e & 1
        sel = sPhi if hi else sPlo
        k(f"v_perm_b32 v{vB+2*e+half}, v{vVA+8*half+4+j}, v{vVA+8*half+j}, s{sel}")

    def pv(e):
        k(f"v_mfma_f32_16x16x16_bf16 {vr(vAcc+4*e,4)}, {vr(vP,2)}, {vr(vB+2*e,2)}, {vr(vAcc+4*e,4)}")

    def lreduce(kk):
        kk(f"""
        v_mov_b32 v{vTmp}, v{vL}
        v_permlane32_swap_b32 v{vL}, v{vTmp}
        v_add_f32 v{vL}, v{vL}, v{vTmp}
        v_mov_b32 v{vTmp}, v{vL}
        v_permlane16_swap_b32 v{vL}, v{vTmp}
        v_add_f32 v{vL}, v{vL}, v{vTmp}
        """)

    def mlpub(d, mx, mo, tag):
        for w in range(4):
            k(f"v_sub_f32 v{d+2*w}, v{d+2*w}, v{mx}")
        for w in range(4):
            k(f"v_exp_f32 v{d+2*w}, v{d+2*w}")
        k(f"""
        v_xor_b32 v{d+8}, s{sR}, v{mx}
        v_mul_f32 v{d+9}, v{d}, v{d+1}
        v_fmac_f32 v{d+9}, v{d+2}, v{d+3}
        v_fmac_f32 v{d+9}, v{d+4}, v{d+5}
        v_fmac_f32 v{d+9}, v{d+6}, v{d+7}
        v_mov_b32 v{d+10}, s{sR}
        v_mov_b32 v{d+11}, s{sR}
        s_mov_b32 exec_lo, 0x1111
        s_mov_b32 exec_hi, 0
        s_cmp_lg_u32 s{sPol}, 0
        v_xor_b32 v{d+9}, s{sR}, v{d+9}
        s_cbranch_scc1 L_ml1{tag}
        buffer_store_dwordx4 {vr(d+8,4)}, v{mo}, {sr(SW,4)}, s{sMl} offen
        s_branch L_ml3{tag}
        L_ml1{tag}:
        buffer_store_dwordx4 {vr(d+8,4)}, v{mo}, {sr(SW,4)}, s{sMl} offen sc1
        L_ml3{tag}:
        s_mov_b64 exec, -1
        """)

    def mreads():
        k(f"""
        ds_read_b32 v{vPc}, v{vPa} offset:64
        ds_read_b32 v{vAl}, v{vPa} offset:72       ; salt
        """)
        for j in range(4):
            k(f"ds_read_b32 v{vF4+2*j}, v{vAd+j} offset:{MLW}")
        for j in range(3):
            k(f"ds_read_b128 {vr(vPre+8*j,4)}, v{vAd+4+j} offset:{ACC}")
            k(f"ds_read_b128 {vr(vPre+8*j+4,4)}, v{vAd+4+j} offset:{ACC+1024}")

    def hook():
        k(f"""
        s_cmp_eq_u32 s{sLast}, 12
        s_cbranch_scc0 L_nopre
        """)
        mreads()
        k("L_nopre:")

    def issue(p):
        if (WM or WMS) and (PM >> p) & 1:
            k(f"""
            s_bitcmp1_b32 s{sTh}, 0
            s_cbranch_scc0 L_th{p}
            s_waitcnt vmcnt({D-2})
            L_th{p}:
            """)
        ld(p + D, sOff if p + D < 8 else sNxt)

    def wait(p):
        if p in (4, 6) and SKIP:
            k(f"""
            s_bitcmp1_b32 s{sSp}, 0
            s_cbranch_scc1 L_sk{p}
            s_waitcnt vmcnt({D-1})
            L_sk{p}:
            """)
        else:
            k(f"s_waitcnt vmcnt({D-1})")

    k(f"""
    L_loop:
    s_mov_b64 exec, 1
    ds_add_rtn_u32 v{vNx}, v{vPa}, v{vFour}
    s_mov_b64 exec, -1
    """)
    for i in range(4):
        if i == 2:
            k(f"""
            s_waitcnt lgkmcnt(0)
            L_get:
            s_mov_b64 exec, 1
            ds_read_b32 v{vEn}, v{vLi}
            ds_read_b32 v{vEn+1}, v{vNx}
            s_mov_b64 exec, -1
            """)
        wait(i)
        qk(i)
        if i == 2:
            k(f"""
            s_waitcnt lgkmcnt(0)
            v_readfirstlane_b32 s{sT0}, v{vEn+1}
            v_readfirstlane_b32 s{sCnt}, v{vEn}
            s_max_u32 s{sT1}, s{sT0}, s{sCnt}
            s_cmp_eq_u32 s{sT1}, -1
            s_cbranch_scc1 L_retry
            s_and_b32 s{sNxt}, s{sT0}, 0xffff8000
            s_and_b32 s{sCnt}, s{sCnt}, 31
            s_and_b32 s{sPol}, s{sT0}, 32
            v_mov_b32 v{vLi}, v{vNx}
            """)
        issue(i)
    for j in (1, 2, 3):
        for i in range(4):
            src1 = vD + 4 * i if j == 1 else vT + i
            k(f"v_add_f32_dpp v{vT+i}, v{vD+4*i+j}, v{src1} quad_perm:[{j},{j},{j},{j}] {ALL}")
    for i in range(4):
        k(f"v_mul_f32 v{vT+i}, s{sC}, v{vT+i}")
    k(f"""
    s_cmp_lt_u32 s{sCnt}, 16
    s_cbranch_scc1 L_mask
    L_nomask:
    v_max3_f32 v{vMx}, v{vT}, v{vT+1}, v{vT+2}
    v_max3_f32 v{vMx}, v{vMx}, v{vT+3}, v{vM}
    v_mov_b32 v{vTmp}, v{vMx}
    v_permlane32_swap_b32 v{vMx}, v{vTmp}
    v_max_f32 v{vMx}, v{vMx}, v{vTmp}
    v_mov_b32 v{vTmp}, v{vMx}
    v_permlane16_swap_b32 v{vMx}, v{vTmp}
    v_max_f32 v{vMx}, v{vMx}, v{vTmp}
    """)
    cold(f"""
    L_mask:                                    ; tokens at or past context_len
    v_mov_b32 v{vTmp}, s{sNeg}
    """)
    for i in range(4):
        cold(f"""
        s_sub_i32 s{sT0}, s{sCnt}, {i}
        v_cmp_gt_i32 vcc, s{sT0}, v{vG4}
        v_cndmask_b32 v{vT+i}, v{vTmp}, v{vT+i}, vcc
        """)
    cold("s_branch L_nomask")
    wait(4)
    issue(4)
    if TRIM:
        k(f"""
        v_sub_f32 v{vAl}, v{vM}, v{vMx}
        v_sub_f32 v{vT}, v{vT}, v{vMx}
        v_exp_f32 v{vAl}, v{vAl}
        v_sub_f32 v{vT+1}, v{vT+1}, v{vMx}
        v_exp_f32 v{vT}, v{vT}
        v_sub_f32 v{vT+2}, v{vT+2}, v{vMx}
        v_exp_f32 v{vT+1}, v{vT+1}
        v_sub_f32 v{vT+3}, v{vT+3}, v{vMx}
        v_exp_f32 v{vT+2}, v{vT+2}
        v_fma_f32 v{vL}, v{vL}, v{vAl}, v{vT}
        v_exp_f32 v{vT+3}, v{vT+3}
        v_add_f32 v{vTmp}, v{vT+1}, v{vT+2}
        v_mov_b32 v{vM}, v{vMx}
        v_add_f32 v{vL}, v{vL}, v{vT+3}
        s_cmp_eq_u32 s{sNxt}, s{sEnd}
        v_add_f32 v{vL}, v{vL}, v{vTmp}
        s_cbranch_scc1 L_none                      ; last page: (m, l) are final before its V rows land
        L_mld:
        v_mov_b32_dpp v{vAb}, v{vAl} row_newbcast:0 row_mask:0x1 bank_mask:0xf
        v_cvt_pk_bf16_f32 v{vP}, v{vT}, v{vT+1}
        v_cvt_pk_bf16_f32 v{vP+1}, v{vT+2}, v{vT+3}
        v_mov_b32_dpp v{vAb}, v{vAl} row_newbcast:4 row_mask:0x2 bank_mask:0xf
        v_mov_b32_dpp v{vTmp}, v{vAl} row_newbcast:8 row_mask:0x4 bank_mask:0xf
        s_nop 0
        v_mov_b32_dpp v{vAb}, v{vAl} row_newbcast:12 row_mask:0x8 bank_mask:0xf
        v_mov_b32_dpp v{vAb}, v{vAl} row_newbcast:8 row_mask:0x4 bank_mask:0xf
        """.replace(f"        v_mov_b32_dpp v{vTmp}, v{vAl} row_newbcast:8 row_mask:0x4 bank_mask:0xf\n        s_nop 0\n", ""))
        for e in range(8):
            k(f"v_mul_f32 v{vAcc+4*e}, v{vAb}, v{vAcc+4*e}")
    else:
        k(f"""
        v_sub_f32 v{vAl}, v{vM}, v{vMx}
        v_mov_b32 v{vM}, v{vMx}
        v_exp_f32 v{vAl}, v{vAl}
        """)
        for i in range(4):
            k(f"v_sub_f32 v{vT+i}, v{vT+i}, v{vMx}")
        for i in range(4):
            k(f"v_exp_f32 v{vT+i}, v{vT+i}")
            k(f"v_mov_b32_dpp v{vAb}, v{vAl} row_newbcast:{4*i} row_mask:{hex(1<<i)} bank_mask:0xf")
            if i == 1:
                k(f"v_fma_f32 v{vL}, v{vL}, v{vAl}, v{vT}")
            if i == 2:
                k(f"v_cvt_pk_bf16_f32 v{vP}, v{vT}, v{vT+1}")
        k(f"""
        v_add_f32 v{vTmp}, v{vT+1}, v{vT+2}
        v_cvt_pk_bf16_f32 v{vP+1}, v{vT+2}, v{vT+3}
        v_add_f32 v{vL}, v{vL}, v{vT+3}
        v_add_f32 v{vL}, v{vL}, v{vTmp}
        """)
        for e in range(8):
            k(f"v_mul_f32 v{vAcc+4*e}, v{vAb}, v{vAcc+4*e}")
        k(f"""
        s_cmp_eq_u32 s{sNxt}, {hex(END)}
        s_cbranch_scc1 L_ml
        L_mld:
        """)
    wait(5)
    issue(5)
    for e in range(8):
        perm(e, 0)
    k(f"""
    s_cmp_eq_u32 s{sNxt}, s{sEnd}
    s_cbranch_scc0 L_nolast
    s_waitcnt lgkmcnt(0)
    v_readfirstlane_b32 s{sLast}, v{vNx}
    L_nolast:
    """)
    wait(6)
    issue(6)
    if HOOK == 6:
        hook()
    wait(7)
    if HOOK == 7:
        hook()
    issue(7)
    perm(0, 1)
    perm(1, 1)
    for e in range(8):
        if e + 2 < 8:
            perm(e + 2, 1)
        pv(e)
    k(f"""
    s_mov_b32 s{sOff}, s{sNxt}
    s_cmp_eq_u32 s{sNxt}, {hex(END)}
    s_cbranch_scc0 L_loop
    s_cmp_lg_u32 s{sFb}, 0
    s_cbranch_scc1 L_fbnext
    """)
    vS0 = vD
    k(f"""
    s_cmp_eq_u32 s{sLast}, 12
    s_cbranch_scc0 L_give
    L_mrg:                                     ; lane (c, g): O[query g][8c .. 8c+7]
    s_waitcnt lgkmcnt(6)
    v_readfirstlane_b32 s{sT0}, v{vPc}
    v_max3_f32 v{vMx}, v{vF4}, v{vF4+2}, v{vF4+4}
    v_max_f32 v{vMx}, v{vMx}, v{vF4+6}
    """)
    for w in (1, 2, 3, 0):
        k(f"v_sub_f32 v{vF4+2*w}, v{vF4+2*w}, v{vMx}")
    k(f"""
    s_cmp_eq_u32 s{sT0}, 12
    s_cbranch_scc0 L_again
    """)
    for w in (1, 2, 3, 0):
        k(f"v_exp_f32 v{vF4+2*w}, v{vF4+2*w}")
    k(f"s_cmp_lg_u32 s{sPol}, 0")
    for j in range(3):
        k(f"s_waitcnt lgkmcnt({4-2*j})")
        for e in range(0, 8, 2):
            if j == 0:
                k(f"v_pk_mul_f32 {vr(vS0+e,2)}, {vr(vF4+2,2)}, {vr(vPre+e,2)} op_sel_hi:[0,1]")
            else:
                k(f"v_pk_fma_f32 {vr(vS0+e,2)}, {vr(vF4+2*j+2,2)}, {vr(vPre+8*j+e,2)}, {vr(vS0+e,2)} op_sel_hi:[0,1,1]")
    for e in range(8):
        k(f"v_fmac_f32 v{vS0+e}, v{vF4}, v{vAcc+4*e}")
    for j in range(4):
        k(f"v_cvt_pk_bf16_f32 v{vD+j}, v{vS0+2*j}, v{vS0+2*j+1}")
        k(f"v_xor_b32 v{vD+j}, v{vAl}, v{vD+j}")
    k(f"""
    s_cbranch_scc1 L_dn1
    buffer_store_dwordx4 {vr(vD,4)}, v{vRo}, {sr(SW,4)}, s{sRec} offen
    s_endpgm
    L_dn1:
    buffer_store_dwordx4 {vr(vD,4)}, v{vRo}, {sr(SW,4)}, s{sRec} offen sc1
    s_endpgm
    L_again:
    s_waitcnt lgkmcnt(0)
    """)
    mreads()
    k(f"""
    s_branch L_mrg
    L_give:                                    ; hand the sums to the merging worker
    """)
    for e in range(8):
        k(f"v_mov_b32 v{vS0+e}, v{vAcc+4*e}")
    k(f"""
    ds_write_b128 v{vSl}, {vr(vS0,4)} offset:{ACC}
    ds_write_b128 v{vSl}, {vr(vS0+4,4)} offset:{ACC+1024}
    s_mov_b64 exec, 1
    ds_add_u32 v{vPa}, v{vFour} offset:64
    s_waitcnt lgkmcnt(0)
    s_endpgm
    L_retry:
    s_cmp_eq_u32 s{sCnt}, {hex(END)}
    s_cbranch_scc0 L_get
    s_mov_b32 s{sPol}, 32
    L_none:
    """)
    lreduce(k)
    k(f"""
    s_mov_b32 exec_lo, 0x1111
    s_mov_b32 exec_hi, 0
    ds_write_b64 v{vMw}, {vr(vM,2)} offset:{MLW}
    s_mov_b64 exec, 1
    ds_add_rtn_u32 v{vNx}, v{vPa}, v{vFour} offset:68
    s_mov_b64 exec, -1
    s_cmp_eq_u32 s{sCnt}, {hex(END)}
    s_cbranch_scc0 L_mld
    s_waitcnt lgkmcnt(0)
    v_readfirstlane_b32 s{sLast}, v{vNx}
    s_cmp_eq_u32 s{sLast}, 12
    s_cbranch_scc1 L_again
    s_branch L_give
    """)

    vOf, vMo, vPw, vPm, vPr_, vOo = 2, 3, 4, 5, 6, 7
    vX, vY, vW, vZ = 8, 9, 10, 11
    vML = 12
    vMa, vRr, vSa = 16, 18, 20
    vA, vPr = 24, 28
    vOr, vOs, vU = 32, 34, 36
    vBt, vDyn, vCo, vPq, vCt = 42, 43, 44, 45, 46
    vE4, vEl = 48, 52
    vV2, vBase, vM4 = 56, 58, 60

    def ctxcalc(kk):
        kk(f"""
        s_min_i32 s{sT0}, s{sCtx}, 65536
        s_cmp_le_i32 s{sCtx}, 0
        s_cselect_b32 s{sT0}, 65536, s{sT0}
        s_add_u32 s{sT0}, s{sT0}, 15
        s_lshr_b32 s{sN}, s{sT0}, 4
        s_min_i32 s{sCtx}, s{sCtx}, 65536
        s_max_i32 s{sCtx}, s{sCtx}, 0
        """)

    def entry(kk, vpage, vbt, vt):
        kk(f"""
        v_lshlrev_b32 v{vt}, 4, v{vpage}
        v_sub_u32 v{vt}, s{sCtx}, v{vt}
        v_med3_i32 v{vt}, v{vt}, 0, 16
        v_cmp_gt_u32 vcc, s{sN}, v{vpage}
        v_lshl_or_b32 v{vbt}, v{vbt}, 15, v{vt}
        v_bfrev_b32 v{vt}, 1
        v_and_b32 v{vbt}, 0x7fffffff, v{vbt}
        v_cndmask_b32 v{vbt}, v{vt}, v{vbt}, vcc
        """)

    vMb, vRs, vSb, vW2, vZ2 = 17, 19, 21, 14, 15
    vOr2, vOs2, vOf2 = 56, 58, 60
    k(f"""
    L_service:
    s_mov_b64 {sr(sE,2)}, 0
    v_lshlrev_b32 v{vX}, 9, v{vLane}
    v_lshlrev_b32 v{vCo}, 2, v{vLane}
    v_lshlrev_b32 v{vDyn}, 4, v{vLane}
    v_mov_b32 v{vEl}, -1
    v_mov_b32 v{vEl+1}, -1
    v_mov_b32 v{vEl+2}, -1
    v_mov_b32 v{vEl+3}, -1
    ds_write_b128 v{vDyn}, {vr(vEl,4)}
    v_mov_b32 v{vY}, 0
    v_writelane_b32 v{vY}, 16, 0
    ds_write_b32 v{vCo}, v{vY} offset:{POP}
    s_lshl_b32 s{sIdx}, s{sSh}, 4
    s_lshl_b32 s{sT0}, s{sH}, 15
    s_lshl_b32 s{sT1}, s{sSh}, 5               ; q*256 + oct*32
    s_add_u32 s{sT0}, s{sT0}, s{sT1}
    v_lshrrev_b32 v{vY}, 2, v{vLane}
    v_and_b32 v{vW}, 3, v{vLane}
    v_lshlrev_b32 v{vZ}, 10, v{vY}
    v_lshl_add_u32 v{vZ}, v{vW}, 3, v{vZ}
    v_add_u32 v{vOf}, s{sT0}, v{vZ}
    v_add_u32 v{vOf2}, 0x4000, v{vOf}
    s_lshr_b32 s{sI}, s{sSh}, 3
    s_lshl_b32 s{sT0}, s{sH}, 12
    s_lshl4_add_u32 s{sT0}, s{sI}, s{sT0}
    s_add_u32 s{sT0}, s{sT0}, {ML_OFF}
    v_lshlrev_b32 v{vZ}, 7, v{vY}
    v_lshl_add_u32 v{vZ}, v{vW}, 2, v{vZ}
    v_add_u32 v{vMo}, s{sT0}, v{vZ}
    s_lshl_b32 s{sRec}, s{sH}, 5
    s_add_u32 s{sRec}, s{sRec}, s{sSh}
    s_lshl_b32 s{sRec}, s{sRec}, 10
    s_lshr_b32 s{sMl}, s{sRec}, 3
    s_add_u32 s{sMl}, s{sMl}, {ML_OFF}
    s_waitcnt lgkmcnt(0)
    s_load_dword s{sCtx}, {sr(sCTX,2)}, 0
    s_load_dword s{sR}, {sr(sWS,2)}, s{sRec}
    """)
    srd(k, SB, sBT, 16384)
    k(f"buffer_load_dwordx4 {vr(vE4,4)}, v{vX}, {sr(SB,4)}, s{sIdx} offen")
    srd(k, SW, sWS, WS_USED)
    k(f"""
    buffer_load_dword v{vSa}, v{vMo}, {sr(SW,4)}, 0 offen sc1
    buffer_load_dword v{vSb}, v{vMo}, {sr(SW,4)}, 0 offen offset:2048 sc1
    buffer_load_dwordx2 {vr(vOs,2)}, v{vOf}, {sr(SW,4)}, 0 offen sc1
    buffer_load_dwordx2 {vr(vOs2,2)}, v{vOf2}, {sr(SW,4)}, 0 offen sc1
    s_lshl_b32 s{sT0}, s{sH}, 10
    s_add_u32 s{sT0}, s{sT0}, s{sT1}
    v_lshrrev_b32 v{vX}, 4, v{vLane}
    v_lshl_add_u32 v{vX}, v{vW}, 2, v{vX}
    v_lshl_add_u32 v{vOo}, v{vX}, 1, s{sT0}
    s_barrier
    s_waitcnt lgkmcnt(0)
    s_add_u32 s{sR}, s{sR}, s{sMl}
    s_mul_i32 s{sR}, s{sR}, 0x9e3779b1
    s_lshr_b32 s{sT0}, s{sR}, 15
    s_xor_b32 s{sR}, s{sR}, s{sT0}
    s_mul_i32 s{sR}, s{sR}, 0x85ebca6b         ; salt
    v_mov_b32 v{vW}, {POP}
    v_mov_b32 v{vY}, s{sR}
    ds_write_b32 v{vW}, v{vY} offset:72
    """)
    ctxcalc(k)
    k(f"""
    s_lshr_b32 s{sS}, s{sN}, 7
    s_max_i32 s{sS}, s{sS}, 1
    s_lshl_b32 s{sT1}, s{sSh}, 2
    v_lshl_add_u32 v{vX}, v{vLane}, 7, s{sT1}
    s_lshl_b32 s{sT0}, s{sS}, 7
    s_add_u32 s{sT0}, s{sT0}, s{sSh}
    v_lshl_add_u32 v{vBt}, v{vLane}, 5, s{sT0}
    v_lshlrev_b32 v{vEl}, 2, v{vBt}
    v_cmp_gt_u32 vcc, s{sS}, v{vLane}
    s_mov_b64 exec, 15
    buffer_load_dword v{vEl}, v{vEl}, {sr(SB,4)}, 0 offen
    s_mov_b64 exec, vcc
    s_waitcnt vmcnt(5)
    """)
    for w in range(4):
        entry(k, vX, vE4 + w, vY)
        if w < 3:
            k(f"v_add_u32 v{vX}, 1, v{vX}")
    k(f"""
    ds_write_b128 v{vDyn}, {vr(vE4,4)}
    s_mov_b64 exec, -1
    """)
    srd(k, SO, sOUT, 8192)
    k(f"""
    s_mov_b32 s{sC}, 0xffff0000
    """)
    srd(k, SD, sDBG, 256)
    k(f"""
    s_getreg_b32 s{sXc}, hwreg(HW_REG_XCC_ID)
    s_lshl_b32 s{sT0}, s{sH}, 5
    v_mov_b32 v{vCo}, s{sT0}
    s_and_b32 s{sXc}, s{sXc}, 15
    s_add_u32 s{sXc}, s{sXc}, 1
    s_mov_b32 s{sPol}, {32 if FORCESC else 0}
    s_cmp_eq_u32 s{sSh}, 0
    s_cbranch_scc0 L_nl
    v_mov_b32 v{vX}, s{sXc}
    s_mov_b64 exec, 1
    buffer_store_dword v{vX}, v{vCo}, {sr(SD,4)}, 0 offen offset:4 sc1
    s_mov_b64 exec, -1
    L_nl:
    s_waitcnt vmcnt(0)
    """)
    entry(k, vBt, vEl, vY)
    k(f"""
    s_lshl_b32 s{sE}, s{sS}, 4
    v_lshl_add_u32 v{vDyn}, v{vLane}, 2, s{sE}
    s_sub_i32 s{sE}, s{sE}, {4*LEADP}
    s_min_i32 s{sOff}, s{sE}, {4*CHK}
    s_mov_b32 s{sI}, 0
    L_s0:
    ds_read_b32 v{vX}, v{vW}
    s_waitcnt lgkmcnt(0)
    v_readfirstlane_b32 s{sT0}, v{vX}
    s_cmp_ge_i32 s{sT0}, s{sOff}
    s_cbranch_scc1 L_s2
    s_sleep 4
    s_branch L_s0
    L_s2:
    buffer_load_dwordx2 {vr(vPr,2)}, v{vCo}, {sr(SD,4)}, 0 offen sc1
    s_waitcnt vmcnt(0)
    v_readfirstlane_b32 s{sT1}, v{vPr}
    v_readfirstlane_b32 s{sT0}, v{vPr+1}
    s_or_b32 s{sPol}, s{sPol}, s{sT1}
    s_cmp_lg_u32 s{sI}, 0
    s_cbranch_scc1 L_s1
    s_mov_b32 s{sI}, 1
    s_mov_b32 s{sOff}, s{sE}
    s_cmp_eq_u32 s{sT0}, s{sXc}
    s_cbranch_scc1 L_s0
    s_mov_b32 s{sPol}, 32
    v_mov_b32 v{vX}, 32
    s_mov_b64 exec, 1
    buffer_store_dword v{vX}, v{vCo}, {sr(SD,4)}, 0 offen sc1
    s_mov_b64 exec, -1
    s_branch L_s0
    L_s1:
    s_and_b32 s{sPol}, s{sPol}, 32
    s_mov_b64 exec, 0xffff
    v_or_b32 v{vEl}, s{sPol}, v{vEl}
    ds_write_b32 v{vDyn}, v{vEl}
    s_mov_b64 exec, -1
    s_mov_b32 s{sI}, {LIMIT if FORCEFB else 0}
    s_mov_b32 s{sLim}, {LIMIT if FORCEFB else LIM0}
    v_bfe_u32 v{vX}, v{vLane}, 2, 2
    v_lshlrev_b32 v{vX}, 5, v{vX}
    v_lshlrev_b32 v{vCo}, 2, v{vLane}
    s_waitcnt vmcnt(0)
    L_gate:                                    ; until every worker's (m, l) is there
    {f"s_sleep {GSL}" if GSL else ""}
    ds_read_b32 v{vY}, v{vW} offset:68
    ds_read_b128 v[64:67], v{vX} offset:{MLW}
    ds_read_b128 v[68:71], v{vX} offset:{MLW+16}
    s_waitcnt lgkmcnt(2)
    v_cmp_ne_u32 vcc, 16, v{vY}
    s_cbranch_vccnz L_gate
    """)
    if SVML:
        k(f"""
        s_waitcnt lgkmcnt(0)
        v_max3_f32 v{vX}, v64, v66, v68
        v_max_f32 v{vX}, v{vX}, v70
        """)
        mlpub(64, vX, vCo, "b")
    k(f"""
    s_branch L_m1
    L_m0:                                      ; wait for the (m, l, salt) entries
    s_bcnt1_i32_b64 s{sT0}, vcc
    L_m2:                                      ; back off in proportion to the number of missing producers
    s_sleep {GR}
    s_sub_i32 s{sT0}, s{sT0}, {GSUB}
    s_cmp_gt_i32 s{sT0}, 0
    s_cbranch_scc1 L_m2
    s_mov_b64 exec, vcc
    L_m1:
    buffer_load_dword v{vMa}, v{vMo}, {sr(SW,4)}, 0 offen sc1
    buffer_load_dword v{vMb}, v{vMo}, {sr(SW,4)}, 0 offen offset:2048 sc1
    s_mov_b64 exec, -1
    s_add_u32 s{sI}, s{sI}, 1
    s_cmp_ge_u32 s{sI}, s{sLim}
    s_cbranch_scc1 L_chk1
    L_m3:
    s_waitcnt vmcnt(0)
    v_xor_b32 v{vU}, v{vMa}, v{vSa}
    v_xor_b32 v{vU+1}, v{vMb}, v{vSb}
    v_mov_b32_dpp v{vRr}, v{vMa} quad_perm:[2,2,2,2] {ALL}
    v_min_u32 v{vU}, v{vU}, v{vU+1}
    v_mov_b32_dpp v{vRs}, v{vMb} quad_perm:[2,2,2,2] {ALL}
    v_cmp_eq_u32 vcc, 0, v{vU}
    v_xor_b32_dpp v{vW}, v{vMa}, v{vRr} quad_perm:[0,0,0,0] {ALL}     ; m
    s_cbranch_vccnz L_m0
    buffer_load_dwordx2 {vr(vOr,2)}, v{vOf}, {sr(SW,4)}, 0 offen sc1
    buffer_load_dwordx2 {vr(vOr2,2)}, v{vOf2}, {sr(SW,4)}, 0 offen sc1
    v_xor_b32_dpp v{vW2}, v{vMb}, v{vRs} quad_perm:[0,0,0,0] {ALL}
    v_xor_b32_dpp v{vZ}, v{vMa}, v{vRr} quad_perm:[1,1,1,1] {ALL}     ; l
    v_max_f32 v{vML}, v{vW}, v{vW2}
    v_xor_b32_dpp v{vZ2}, v{vMb}, v{vRs} quad_perm:[1,1,1,1] {ALL}
    v_max_f32_dpp v{vML}, v{vML}, v{vML} row_ror:4 {ALL}
    v_max_f32_dpp v{vML}, v{vML}, v{vML} row_ror:8 {ALL}
    v_mov_b32 v{vY}, v{vML}
    v_permlane16_swap_b32 v{vML}, v{vY}
    v_max_f32 v{vML}, v{vML}, v{vY}
    v_mov_b32 v{vY}, v{vML}
    v_permlane32_swap_b32 v{vML}, v{vY}
    v_max_f32 v{vML}, v{vML}, v{vY}
    v_sub_f32 v{vW}, v{vW}, v{vML}
    v_sub_f32 v{vW2}, v{vW2}, v{vML}
    v_exp_f32 v{vW}, v{vW}
    v_exp_f32 v{vW2}, v{vW2}
    v_mul_f32 v{vZ}, v{vW}, v{vZ}
    v_fmac_f32 v{vZ}, v{vW2}, v{vZ2}
    v_add_f32_dpp v{vZ}, v{vZ}, v{vZ} row_ror:4 {ALL}
    v_add_f32_dpp v{vZ}, v{vZ}, v{vZ} row_ror:8 {ALL}
    v_mov_b32 v{vY}, v{vZ}
    v_permlane16_swap_b32 v{vZ}, v{vY}
    v_add_f32 v{vZ}, v{vZ}, v{vY}
    v_mov_b32 v{vY}, v{vZ}
    v_permlane32_swap_b32 v{vZ}, v{vY}
    v_add_f32 v{vZ}, v{vZ}, v{vY}
    v_rcp_f32 v{vZ}, v{vZ}
    {f"v_mul_f32 v{vW}, v{vW}, v{vZ}" if TRIM else ""}
    {f"v_mul_f32 v{vW2}, v{vW2}, v{vZ}" if TRIM else ""}
    s_branch L_o1
    L_o0:                                      ; wait for the record pieces
    s_mov_b64 exec, vcc
    buffer_load_dwordx2 {vr(vOr,2)}, v{vOf}, {sr(SW,4)}, 0 offen sc1
    buffer_load_dwordx2 {vr(vOr2,2)}, v{vOf2}, {sr(SW,4)}, 0 offen sc1
    s_mov_b64 exec, -1
    s_add_u32 s{sI}, s{sI}, 1
    s_cmp_ge_u32 s{sI}, s{sLim}
    s_cbranch_scc1 L_chk2
    L_o1:
    s_waitcnt vmcnt(0)
    v_xor_b32 v{vU}, v{vOr}, v{vOs}
    v_xor_b32 v{vU+1}, v{vOr+1}, v{vOs+1}
    v_xor_b32 v{vU+2}, v{vOr2}, v{vOs2}
    v_xor_b32 v{vU+3}, v{vOr2+1}, v{vOs2+1}
    v_min3_u32 v{vU}, v{vU}, v{vU+1}, v{vU+2}
    v_xor_b32 v{vX}, v{vOr}, v{vRr}
    v_min_u32 v{vU}, v{vU}, v{vU+3}
    v_xor_b32 v{vY}, v{vOr+1}, v{vRr}
    v_cmp_eq_u32 vcc, 0, v{vU}
    v_lshlrev_b32 v{vA}, 16, v{vX}
    v_and_b32 v{vA+1}, s{sC}, v{vX}
    v_lshlrev_b32 v{vA+2}, 16, v{vY}
    v_and_b32 v{vA+3}, s{sC}, v{vY}
    s_cbranch_vccnz L_o0
    v_xor_b32 v{vX}, v{vOr2}, v{vRs}
    v_xor_b32 v{vY}, v{vOr2+1}, v{vRs}
    v_mul_f32 v{vA}, v{vW}, v{vA}
    v_mul_f32 v{vA+1}, v{vW}, v{vA+1}
    v_mul_f32 v{vA+2}, v{vW}, v{vA+2}
    v_mul_f32 v{vA+3}, v{vW}, v{vA+3}
    v_lshlrev_b32 v{vU}, 16, v{vX}
    v_and_b32 v{vU+1}, s{sC}, v{vX}
    v_lshlrev_b32 v{vU+2}, 16, v{vY}
    v_and_b32 v{vU+3}, s{sC}, v{vY}
    v_fmac_f32 v{vA}, v{vW2}, v{vU}
    v_fmac_f32 v{vA+1}, v{vW2}, v{vU+1}
    v_fmac_f32 v{vA+2}, v{vW2}, v{vU+2}
    v_fmac_f32 v{vA+3}, v{vW2}, v{vU+3}
    """)
    for sh in (4, 8):
        for j in range(4):
            k(f"v_add_f32_dpp v{vA+j}, v{vA+j}, v{vA+j} row_ror:{sh} {ALL}")
    k(f"""
    v_permlane16_swap_b32 v{vA}, v{vA+1}
    s_mov_b32 vcc_lo, 0x000f000f
    v_permlane16_swap_b32 v{vA+2}, v{vA+3}
    v_add_f32 v{vA}, v{vA}, v{vA+1}
    v_add_f32 v{vA+2}, v{vA+2}, v{vA+3}
    s_mov_b32 vcc_hi, 0x000f000f
    v_permlane32_swap_b32 v{vA}, v{vA+2}
    v_add_f32 v{vA}, v{vA}, v{vA+2}
    s_mov_b64 exec, vcc
    {"" if TRIM else f"v_mul_f32 v{vA}, v{vA}, v{vZ}"}
    v_cvt_pk_bf16_f32 v{vA}, v{vA}, v{vA}
    buffer_store_short v{vA}, v{vOo}, {sr(SO,4)}, 0 offen
    """)
    if MUL:
        k(f"""
        s_waitcnt vmcnt(0)
        s_memrealtime {sr(sTS+2,2)}
        s_waitcnt lgkmcnt(0)
        s_sub_u32 s{sT1}, s{sTS+2}, s{sTS}
        s_mul_i32 s{sT1}, s{sT1}, {MUL}
        L_spinm:
        s_sleep 2
        s_memrealtime {sr(sTS+2,2)}
        s_waitcnt lgkmcnt(0)
        s_sub_u32 s{sT0}, s{sTS+2}, s{sTS}
        s_cmp_lt_u32 s{sT0}, s{sT1}
        s_cbranch_scc1 L_spinm
        """)
    k("""
    L_end:
    s_endpgm
    """)
    for n, back in ((1, "L_m3"), (2, "L_o1")):
        cold(f"""
        L_chk{n}:                                    ; many looks without success: give up early on a short context
        s_cmp_ge_u32 s{sI}, {LIMIT}
        s_cbranch_scc1 L_fb
        s_load_dword s{sT0}, {sr(sCTX,2)}, 0
        s_mov_b32 s{sLim}, {LIMIT}
        s_waitcnt lgkmcnt(0)
        s_sub_u32 s{sT0}, s{sT0}, 1
        s_cmp_lt_u32 s{sT0}, 8192
        s_cbranch_scc0 {back}
        {"s_branch L_fb" if n == 1 else ""}
        """)
    cold(f"""
    L_fb:
    s_load_dword s{sCtx}, {sr(sCTX,2)}, 0
    s_waitcnt vmcnt(0) lgkmcnt(0)
    """)
    ctxcalc(cold)
    cold(f"""
    s_mov_b32 s{sE}, 0
    s_mov_b32 s{sL0}, 0
    L_fbfill:
    """)
    srd(cold, SB, sBT, 16384)
    cold(f"""
    v_add_u32 v{vFp}, s{sE}, v{vLane}
    v_lshlrev_b32 v{vFb}, 2, v{vFp}
    buffer_load_dword v{vFb}, v{vFb}, {sr(SB,4)}, 0 offen
    s_lshl_b32 s{sIdx}, s{sE}, 2
    s_waitcnt vmcnt(0)
    """)
    entry(cold, vFp, vFb, vTmp)
    cold(f"""
    s_bitset1_b32 s{sFb}, 31
    v_lshlrev_b32 v{vFp}, 2, v{vLane}
    v_writelane_b32 v{vFb}, s{sFb}, 63
    v_mov_b32 v{vPa}, {POP}
    v_mov_b32 v{vFour}, 4
    ds_write_b32 v{vFp}, v{vFb}
    ds_write_b32 v{vPa}, v{vFour}
    s_load_dword s{sBt0}, {sr(sBT,2)}, s{sIdx}
    s_branch L_setup
    L_fbnext:
    s_waitcnt vmcnt(0)
    s_add_u32 s{sE}, s{sE}, 63
    s_cmp_lt_u32 s{sE}, s{sN}
    s_cbranch_scc1 L_fbfill
    """)
    lreduce(cold)
    cold(f"v_rcp_f32 v{vAl}, v{vL}")
    for i in range(4):
        cold(f"v_mov_b32_dpp v{vAb}, v{vAl} row_newbcast:{4*i} row_mask:{hex(1<<i)} bank_mask:0xf")
    for e in range(8):
        cold(f"v_mul_f32 v{vAcc+4*e}, v{vAb}, v{vAcc+4*e}")
    for j in range(4):
        cold(f"v_cvt_pk_bf16_f32 v{vD+j}, v{vAcc+8*j}, v{vAcc+8*j+4}")
    srd(cold, SO, sOUT, 8192)
    cold(f"""
    s_lshl_b32 s{sT0}, s{sSh}, 1
    s_lshl_b32 s{sT1}, s{sH}, 10
    v_lshlrev_b32 v{vTmp}, 4, v{vLane}
    s_lshl_b64 exec, 3, s{sT0}
    buffer_store_dwordx4 {vr(vD,4)}, v{vTmp}, {sr(SO,4)}, s{sT1} offen
    s_endpgm
    """)
    k.lines += cold.lines
    body = k.done()

    out = HEADER + f"; @launch grid=(256,1,1) block=(320,1,1) lds={LDS}\n" + DOC
    out += '.amdgcn_target "amdgcn-amd-amdhsa--gfx950"\n.text\n'
    out += f".globl {NAME}_kernel\n.p2align 8\n.type {NAME}_kernel,@function\n{NAME}_kernel:\n"
    out += body
    out += f""".section .rodata,"a"
.p2align 6
.amdhsa_kernel {NAME}_kernel
  .amdhsa_next_free_vgpr {NV}
  .amdhsa_next_free_sgpr {NS}
  .amdhsa_accum_offset {NV}
  .amdhsa_group_segment_fixed_size 0
  .amdhsa_kernarg_size 64
  .amdhsa_user_sgpr_count 2
  .amdhsa_user_sgpr_kernarg_segment_ptr 1
  .amdhsa_system_sgpr_workgroup_id_x 1
.end_amdhsa_kernel
"""
    return out


if __name__ == "__main__":
    kw = {}
    for a in sys.argv[2:]:
        key, val = a.split("=")
        kw[key] = int(val, 0)
    open(sys.argv[1], "w").write(gen(**kw))
```

```python
import sys
import struct
from asmlib import K, vr, sr

NAME = "standalone__paged_block_table_kv_pagedattention__decode"
KV_BYTES = 4100 * 32768
HEADER = open("cdna_kernels/" + NAME + ".s.ref").read().split("; Override")[0]
ML_OFF = 0x40000
WS_USED = 0x48000
END = 0x80000000
POP = 1024
CTR = POP + 64
MLW = POP + 128
ACC = 2048
LDS = ACC + 8192

DOC = """;
"""


def f32(x):
    return "0x%08x" % struct.unpack("<I", struct.pack("<f", x))[0]


def gen(GR=1, LIMIT=2048, LIM0=64, CHK=24, LEADP=12, SLOWH=0x22, FASTL=1, FORCEFB=0, FORCESC=0, MUL=0, SCR=0, XD=0, FO=0, GSUB=16, SVML=1, PRE=0, NOSL=0, GSL=1, HOOK=6, TRIM=1, WM=0, WMS=-1, PM=0xff, SKIP=0, ROT=0, PIPE=0, DIAG=0, EARLYM=0, LAZY=1, XW=0, XWF=0):
    global WS_USED
    if XD or DIAG:
        WS_USED = 0x800000
    D = 6
    k = K()
    cold = K()
    warm = K()
    sQ, sKp, sVp, sBT, sCTX, sOUT, sDBG, sWS = 4, 6, 8, 10, 12, 14, 16, 18
    SK, SV, SB, SQ, SW, SD, SO = 20, 24, 28, 32, 36, 60, 64
    sH, sL0, sWv, sJ, sCtx, sN, sI, sCnt, sOff, sC, sPlo, sPhi, sT0, sT1, sNeg, sIdx = range(40, 56)
    sBt0, sRec, sMl, sNxt = 56, 57, 58, 59
    sE, sFb, sR, sS, sSh, sBad, sHq, sOct, sLim, sPol = range(68, 78)
    sMA, sMB, sXc, sFast, sSp, sEnd = 78, 80, 82, 83, 84, 85
    sLast = sFast
    sTh = sMA
    if WMS < 0:
        WMS = WM
    sMk = 86
    sTS = 88
    NS = 96 if MUL or DIAG else 88
    vLane, vKo0, vKo1, vVo0, vVo1, vLi, vG4, vM, vL, vMx, vTmp, vAl, vAb = range(1, 14)
    vP, vQ, vT, vD, vB, vAcc, vKA, vVA = 14, 16, 20, 24, 40, 56, 88, 104
    vRo, vMo_w, vEn, vPa, vNx, vFour = 120, 121, 122, 124, 125, 126
    vFp, vFb = vEn, vEn + 1
    vPre, vPc, vF4, vAd = 128, 152, 154, 162
    vSl, vMw = 169, 170
    NV = 172
    ALL = "row_mask:0xf bank_mask:0xf"

    def srd(kk, S, ptr, size):
        kk(f"""
        s_mov_b32 s{S}, s{ptr}
        s_mov_b32 s{S+1}, s{ptr+1}
        s_mov_b32 s{S+2}, {size}
        s_mov_b32 s{S+3}, 0x20000
        """)

    def diag_store(flag):
        if not DIAG:
            return
        k(f"""
        s_waitcnt vmcnt(0)
        s_memrealtime {sr(sTS+6,2)}
        s_getreg_b32 s{sT1}, hwreg(HW_REG_XCC_ID)
        s_waitcnt lgkmcnt(0)
        s_mov_b64 exec, -1
        v_mov_b32 v24, s{sTS}
        v_mov_b32 v25, s{sTS+2}
        v_mov_b32 v26, s{sTS+4}
        v_mov_b32 v27, s{sTS+6}
        v_mov_b32 v28, s{sT1}
        v_mov_b32 v29, s{sWv}
        v_mov_b32 v30, 0
        v_mov_b32 v31, {flag}
        s_mul_i32 s{sT0}, s2, 5
        s_add_u32 s{sT0}, s{sT0}, s{sWv}
        s_lshl_b32 s{sT0}, s{sT0}, 5
        s_add_u32 s{sT0}, s{sT0}, 0x300000
        v_mov_b32 v11, 0
        s_mov_b64 exec, 1
        buffer_store_dwordx4 v[24:27], v11, {sr(SW,4)}, s{sT0} offen
        buffer_store_dwordx4 v[28:31], v11, {sr(SW,4)}, s{sT0} offen offset:16
        """)

    def st(n):
        return f"s_memrealtime {sr(sTS+2*n,2)}" if DIAG else ""

    seq = [("K", i) for i in range(4)] + [("V", i) for i in range(4)]

    def ld(t, so):
        which, i = seq[t % 8]
        vo = (vKo0, vKo1) if which == "K" else (vVo0, vVo1)
        S = SK if which == "K" else SV
        base = vKA if which == "K" else vVA
        off = " offset:2048" if i & 1 else ""
        k(f"buffer_load_dwordx4 {vr(base+4*i,4)}, v{vo[i>>1]}, {sr(S,4)}, s{so} offen{off} nt")

    k(f"""
    s_load_dwordx16 s[4:19], s[0:1], 0
    s_cmp_ge_u32 s2, 256
    s_cbranch_scc1 L_end
    {f"s_memrealtime {sr(sTS,2)}" if MUL or DIAG else ""}
    {"s_lshr_b32 s3, s2, 5" if SCR == 1 else ""}
    {"s_lshl3_add_u32 s2, s2, s3" if SCR == 1 else ""}
    {"s_and_b32 s2, s2, 255" if SCR == 1 else ""}
    {"s_and_b32 s3, s2, 0xf8" if SCR == 2 else ""}
    {"s_cmp_eq_u32 s3, 0x50" if SCR == 2 else ""}
    {"s_cselect_b32 s3, 1, 0" if SCR == 2 else ""}
    {"s_xor_b32 s2, s2, s3" if SCR == 2 else ""}
    v_lshrrev_b32 v{vTmp}, 6, v0
    v_and_b32 v{vLane}, 63, v0
    v_readfirstlane_b32 s{sWv}, v{vTmp}
    s_lshr_b32 s{sSh}, s2, 3
    {f"s_add_u32 s2, s2, {ROT}" if ROT else ""}
    s_and_b32 s{sH}, s2, 7
    s_cmp_ge_u32 s{sWv}, 4
    s_cbranch_scc1 L_service
    ; ---------------------------------------------------------------- worker
    s_lshl2_add_u32 s{sJ}, s{sSh}, s{sWv}
    s_lshl_b32 s{sIdx}, s{sJ}, 2
    s_waitcnt lgkmcnt(0)
    s_load_dword s{sBt0}, {sr(sBT,2)}, s{sIdx}
    s_mov_b64 {sr(sE,2)}, 0
    s_lshl_b32 s{sL0}, s{sWv}, 2
    L_setup:
    v_lshrrev_b32 v{vG4}, 4, v{vLane}
    v_lshlrev_b32 v{vG4}, 2, v{vG4}            ; 4g
    v_and_b32 v{vTmp}, 3, v{vLane}
    v_add_lshl_u32 v{vTmp}, v{vTmp}, v{vG4}, 4
    v_bfe_u32 v{vMx}, v{vLane}, 2, 2
    s_lshl_b32 s{sT1}, s{sH}, 8
    v_lshl_add_u32 v{vKo0}, v{vMx}, 13, v{vTmp}
    v_add_u32 v{vKo0}, s{sT1}, v{vKo0}
    v_add_u32 v{vKo1}, 0x1000, v{vKo0}
    v_lshl_add_u32 v{vAl}, v{vMx}, 8, v{vTmp}
    v_and_b32 v{vTmp}, 15, v{vLane}
    v_lshlrev_b32 v{vTmp}, 4, v{vTmp}
    v_lshl_add_u32 v{vVo0}, v{vG4}, 11, v{vTmp}
    v_add_u32 v{vVo0}, s{sT1}, v{vVo0}
    v_add_u32 v{vVo1}, 0x1000, v{vVo0}
    s_lshl_b32 s{sT0}, s{sH}, 10
    """)
    srd(k, SQ, sQ, 8192)
    k(f"buffer_load_dwordx4 {vr(vQ,4)}, v{vAl}, {sr(SQ,4)}, s{sT0} offen")
    srd(k, SK, sKp, KV_BYTES)
    srd(k, SV, sVp, KV_BYTES)
    k(f"""
    s_waitcnt lgkmcnt(0)
    s_lshl_b32 s{sOff}, s{sBt0}, 15
    """)
    for t in range(D):
        ld(t, sOff)
    k(f"v_mov_b32 v{vLi}, s{sL0}")
    srd(k, SW, sWS, WS_USED)
    k(f"""
    v_lshlrev_b32 v{vRo}, 4, v{vLane}
    s_cmp_lg_u32 s{sE}, 0
    s_cbranch_scc1 L_loop
    s_mov_b32 s{sC}, {f32(128 ** -0.5 * 1.4426950408889634)}   ; D^-0.5 * log2(e)
    s_mov_b32 s{sPlo}, 0x05040100
    s_mov_b32 s{sPhi}, 0x07060302
    s_mov_b32 s{sNeg}, {f32(-1e9 * 1.4426950408889634)}
    {f"s_lshr_b32 s{sSp}, {hex(SLOWH)}, s{sH}" if SKIP or XWF else ""}
    v_mov_b32 v{vM}, {f32(-3.0e38)}
    v_mov_b32 v{vL}, 0
    v_mov_b32 v{vAb}, 0
    v_mov_b32 v{vPa}, {POP}
    v_mov_b32 v{vFour}, 4
    s_lshr_b32 s{sEnd}, s{sFb}, 31
    s_mov_b32 s{sLast}, 0
    s_mov_b32 s{sMB}, 0x11111111
    s_mov_b32 s{sMB+1}, 0x11111111
    s_bitset1_b32 s{sEnd}, 31
    """)
    for i in range(32):
        k(f"v_mov_b32 v{vAcc+i}, 0")
    k(f"""
    s_cmp_lg_u32 s{sFb}, 0
    s_cbranch_scc1 L_loop
    s_barrier
    s_lshl_b32 s{sT0}, s{sWv}, 3
    v_lshl_add_u32 v{vMw}, v{vMx}, 5, s{sT0}
    v_lshl_add_u32 v{vAd}, v{vG4}, 3, s{sT0}
    v_xor_b32 v{vAd+1}, 8, v{vAd}
    v_xor_b32 v{vAd+2}, 16, v{vAd}
    v_xor_b32 v{vAd+3}, 24, v{vAd}
    s_lshl_b32 s{sT0}, s{sWv}, 11
    v_add_u32 v{vSl}, s{sT0}, v{vRo}
    v_xor_b32 v{vAd+4}, 0x800, v{vSl}
    v_xor_b32 v{vAd+5}, 0x1000, v{vSl}
    v_xor_b32 v{vAd+6}, 0x1800, v{vSl}
    s_lshl_b32 s{sRec}, s{sH}, 5
    s_add_u32 s{sRec}, s{sRec}, s{sSh}
    s_lshl_b32 s{sRec}, s{sRec}, 10            ; record (h*32+s)*1024
    """)

    def qk(i):
        k(f"v_mfma_f32_16x16x32_bf16 {vr(vD+4*i,4)}, {vr(vKA+4*i,4)}, {vr(vQ,4)}, 0")

    def perm(e, half):
        j, hi = e >> 1, e & 1
        sel = sPhi if hi else sPlo
        k(f"v_perm_b32 v{vB+2*e+half}, v{vVA+8*half+4+j}, v{vVA+8*half+j}, s{sel}")

    def pv(e):
        k(f"v_mfma_f32_16x16x16_bf16 {vr(vAcc+4*e,4)}, {vr(vP,2)}, {vr(vB+2*e,2)}, {vr(vAcc+4*e,4)}")

    def lreduce(kk):
        kk(f"""
        v_mov_b32 v{vTmp}, v{vL}
        v_permlane32_swap_b32 v{vL}, v{vTmp}
        v_add_f32 v{vL}, v{vL}, v{vTmp}
        v_mov_b32 v{vTmp}, v{vL}
        v_permlane16_swap_b32 v{vL}, v{vTmp}
        v_add_f32 v{vL}, v{vL}, v{vTmp}
        """)

    def mlpub(d, mx, mo, tag):
        for w in range(4):
            k(f"v_sub_f32 v{d+2*w}, v{d+2*w}, v{mx}")
        for w in range(4):
            k(f"v_exp_f32 v{d+2*w}, v{d+2*w}")
        k(f"""
        v_xor_b32 v{d+8}, s{sR}, v{mx}
        v_mul_f32 v{d+9}, v{d}, v{d+1}
        v_fmac_f32 v{d+9}, v{d+2}, v{d+3}
        v_fmac_f32 v{d+9}, v{d+4}, v{d+5}
        v_fmac_f32 v{d+9}, v{d+6}, v{d+7}
        v_mov_b32 v{d+10}, s{sR}
        v_mov_b32 v{d+11}, s{sR}
        s_mov_b32 exec_lo, 0x1111
        s_mov_b32 exec_hi, 0
        s_cmp_lg_u32 s{sPol}, 0
        v_xor_b32 v{d+9}, s{sR}, v{d+9}
        s_cbranch_scc1 L_ml1{tag}
        buffer_store_dwordx4 {vr(d+8,4)}, v{mo}, {sr(SW,4)}, s{sMl} offen
        s_branch L_ml3{tag}
        L_ml1{tag}:
        buffer_store_dwordx4 {vr(d+8,4)}, v{mo}, {sr(SW,4)}, s{sMl} offen sc1
        L_ml3{tag}:
        s_mov_b64 exec, -1
        """)

    def mreads():
        k(f"""
        ds_read_b32 v{vPc}, v{vPa} offset:64
        ds_read_b32 v{vAl}, v{vPa} offset:72       ; salt
        """)
        for j in range(4):
            k(f"ds_read_b32 v{vF4+2*j}, v{vAd+j} offset:{MLW}")
        for j in range(3):
            k(f"ds_read_b128 {vr(vPre+8*j,4)}, v{vAd+4+j} offset:{ACC}")
            k(f"ds_read_b128 {vr(vPre+8*j+4,4)}, v{vAd+4+j} offset:{ACC+1024}")

    def mbase(fail):
        k(f"""
        s_waitcnt lgkmcnt({0 if DIAG else 6})
        v_readfirstlane_b32 s{sT0}, v{vPc}
        v_max3_f32 v{vMx}, v{vF4}, v{vF4+2}, v{vF4+4}
        v_max_f32 v{vMx}, v{vMx}, v{vF4+6}
        """)
        for w in (1, 2, 3, 0):
            k(f"v_sub_f32 v{vF4+2*w}, v{vF4+2*w}, v{vMx}")
        k(f"""
        s_cmp_eq_u32 s{sT0}, 12
        s_cbranch_scc0 {fail}
        """)
        for w in (1, 2, 3, 0):
            k(f"v_exp_f32 v{vF4+2*w}, v{vF4+2*w}")
        for j in range(3):
            k(f"s_waitcnt lgkmcnt({4-2*j})")
            for e in range(0, 8, 2):
                if j == 0:
                    k(f"v_pk_mul_f32 {vr(vD+e,2)}, {vr(vF4+2,2)}, {vr(vPre+e,2)} op_sel_hi:[0,1]")
                else:
                    k(f"v_pk_fma_f32 {vr(vD+e,2)}, {vr(vF4+2*j+2,2)}, {vr(vPre+8*j+e,2)}, {vr(vD+e,2)} op_sel_hi:[0,1,1]")

    def hook():
        k(f"""
        s_cmp_eq_u32 s{sLast}, 12
        s_cbranch_scc0 L_nopre
        """)
        mreads()
        k("L_nopre:")

    def issue(p):
        if (XW >> p) & 1:
            k(f"s_waitcnt vmcnt({D-2})")
        if (XWF >> p) & 1:
            k(f"""
            s_bitcmp1_b32 s{sSp}, 0
            s_cbranch_scc1 L_xf{p}
            s_waitcnt vmcnt({D-2})
            L_xf{p}:
            """)
        if (WM or WMS) and (PM >> p) & 1:
            k(f"""
            s_bitcmp1_b32 s{sTh}, 0
            s_cbranch_scc0 L_th{p}
            s_waitcnt vmcnt({D-2})
            L_th{p}:
            """)
        ld(p + D, sOff if p + D < 8 else sNxt)

    def wait(p):
        if p in (4, 6) and SKIP:
            k(f"""
            s_bitcmp1_b32 s{sSp}, 0
            s_cbranch_scc1 L_sk{p}
            s_waitcnt vmcnt({D-1})
            L_sk{p}:
            """)
        else:
            k(f"s_waitcnt vmcnt({D-1})")

    k(f"""
    L_loop:
    s_mov_b64 exec, 1
    ds_add_rtn_u32 v{vNx}, v{vPa}, v{vFour}
    s_mov_b64 exec, -1
    """)
    for i in range(4):
        if i == 2:
            k(f"""
            s_waitcnt lgkmcnt(0)
            L_get:
            s_mov_b64 exec, 1
            ds_read_b32 v{vEn}, v{vLi}
            ds_read_b32 v{vEn+1}, v{vNx}
            s_mov_b64 exec, -1
            """)
        wait(i)
        qk(i)
        if i == 2:
            k(f"""
            s_waitcnt lgkmcnt(0)
            v_readfirstlane_b32 s{sT0}, v{vEn+1}
            v_readfirstlane_b32 s{sCnt}, v{vEn}
            s_max_u32 s{sT1}, s{sT0}, s{sCnt}
            s_cmp_eq_u32 s{sT1}, -1
            s_cbranch_scc1 L_retry
            s_and_b32 s{sNxt}, s{sT0}, 0xffff8000
            s_and_b32 s{sCnt}, s{sCnt}, 31
            s_and_b32 s{sPol}, s{sT0}, 32
            v_mov_b32 v{vLi}, v{vNx}
            """)
        issue(i)
    for j in (1, 2, 3):
        for i in range(4):
            src1 = vD + 4 * i if j == 1 else vT + i
            k(f"v_add_f32_dpp v{vT+i}, v{vD+4*i+j}, v{src1} quad_perm:[{j},{j},{j},{j}] {ALL}")
    for i in range(4):
        k(f"v_mul_f32 v{vT+i}, s{sC}, v{vT+i}")
    k(f"""
    s_cmp_lt_u32 s{sCnt}, 16
    s_cbranch_scc1 L_mask
    L_nomask:
    """)
    if LAZY:
        k(f"""
        v_max3_f32 v{vMx}, v{vT}, v{vT+1}, v{vT+2}
        v_max_f32 v{vMx}, v{vMx}, v{vT+3}
        v_cmp_gt_f32 vcc, v{vMx}, v{vM}
        s_and_b64 vcc, vcc, {sr(sMB,2)}
        s_cbranch_scc1 L_newmax
        L_maxok:
        """)
        warm(f"""
        L_newmax:
        v_max_f32 v{vMx}, v{vMx}, v{vM}
        v_mov_b32 v{vTmp}, v{vMx}
        v_permlane32_swap_b32 v{vMx}, v{vTmp}
        v_max_f32 v{vMx}, v{vMx}, v{vTmp}
        v_mov_b32 v{vTmp}, v{vMx}
        v_permlane16_swap_b32 v{vMx}, v{vTmp}
        v_max_f32 v{vMx}, v{vMx}, v{vTmp}
        v_sub_f32 v{vAl}, v{vM}, v{vMx}
        v_exp_f32 v{vAl}, v{vAl}
        v_mov_b32 v{vM}, v{vMx}
        v_mul_f32 v{vL}, v{vL}, v{vAl}
        """)
        for i in range(4):
            warm(f"v_mov_b32_dpp v{vAb}, v{vAl} row_newbcast:{4*i} row_mask:{hex(1<<i)} bank_mask:0xf")
        for e in range(8):
            warm(f"v_mul_f32 v{vAcc+4*e}, v{vAb}, v{vAcc+4*e}")
        warm("s_branch L_maxok")
    else:
        k(f"""
    v_max3_f32 v{vMx}, v{vT}, v{vT+1}, v{vT+2}
    v_max3_f32 v{vMx}, v{vMx}, v{vT+3}, v{vM}
    v_mov_b32 v{vTmp}, v{vMx}
    v_permlane32_swap_b32 v{vMx}, v{vTmp}
    v_max_f32 v{vMx}, v{vMx}, v{vTmp}
    v_mov_b32 v{vTmp}, v{vMx}
    v_permlane16_swap_b32 v{vMx}, v{vTmp}
    v_max_f32 v{vMx}, v{vMx}, v{vTmp}
    """)
    cold(f"""
    L_mask:                                    ; tokens at or past context_len
    v_mov_b32 v{vTmp}, s{sNeg}
    """)
    for i in range(4):
        cold(f"""
        s_sub_i32 s{sT0}, s{sCnt}, {i}
        v_cmp_gt_i32 vcc, s{sT0}, v{vG4}
        v_cndmask_b32 v{vT+i}, v{vTmp}, v{vT+i}, vcc
        """)
    cold("s_branch L_nomask")
    wait(4)
    issue(4)
    if LAZY:
        k(f"""
        v_sub_f32 v{vT}, v{vT}, v{vM}
        v_sub_f32 v{vT+1}, v{vT+1}, v{vM}
        v_exp_f32 v{vT}, v{vT}
        v_sub_f32 v{vT+2}, v{vT+2}, v{vM}
        v_exp_f32 v{vT+1}, v{vT+1}
        v_sub_f32 v{vT+3}, v{vT+3}, v{vM}
        v_exp_f32 v{vT+2}, v{vT+2}
        v_add_f32 v{vL}, v{vL}, v{vT}
        v_exp_f32 v{vT+3}, v{vT+3}
        v_add_f32 v{vTmp}, v{vT+1}, v{vT+2}
        v_cvt_pk_bf16_f32 v{vP}, v{vT}, v{vT+1}
        v_add_f32 v{vL}, v{vL}, v{vT+3}
        s_cmp_eq_u32 s{sNxt}, s{sEnd}
        v_cvt_pk_bf16_f32 v{vP+1}, v{vT+2}, v{vT+3}
        v_add_f32 v{vL}, v{vL}, v{vTmp}
        s_cbranch_scc1 L_none
        L_mld:
        """)
    elif TRIM:
        k(f"""
        v_sub_f32 v{vAl}, v{vM}, v{vMx}
        v_sub_f32 v{vT}, v{vT}, v{vMx}
        v_exp_f32 v{vAl}, v{vAl}
        v_sub_f32 v{vT+1}, v{vT+1}, v{vMx}
        v_exp_f32 v{vT}, v{vT}
        v_sub_f32 v{vT+2}, v{vT+2}, v{vMx}
        v_exp_f32 v{vT+1}, v{vT+1}
        v_sub_f32 v{vT+3}, v{vT+3}, v{vMx}
        v_exp_f32 v{vT+2}, v{vT+2}
        v_fma_f32 v{vL}, v{vL}, v{vAl}, v{vT}
        v_exp_f32 v{vT+3}, v{vT+3}
        v_add_f32 v{vTmp}, v{vT+1}, v{vT+2}
        v_mov_b32 v{vM}, v{vMx}
        v_add_f32 v{vL}, v{vL}, v{vT+3}
        s_cmp_eq_u32 s{sNxt}, s{sEnd}
        v_add_f32 v{vL}, v{vL}, v{vTmp}
        s_cbranch_scc1 L_none                      ; last page: (m, l) are final before its V rows land
        L_mld:
        v_mov_b32_dpp v{vAb}, v{vAl} row_newbcast:0 row_mask:0x1 bank_mask:0xf
        v_cvt_pk_bf16_f32 v{vP}, v{vT}, v{vT+1}
        v_cvt_pk_bf16_f32 v{vP+1}, v{vT+2}, v{vT+3}
        v_mov_b32_dpp v{vAb}, v{vAl} row_newbcast:4 row_mask:0x2 bank_mask:0xf
        v_mov_b32_dpp v{vTmp}, v{vAl} row_newbcast:8 row_mask:0x4 bank_mask:0xf
        s_nop 0
        v_mov_b32_dpp v{vAb}, v{vAl} row_newbcast:12 row_mask:0x8 bank_mask:0xf
        v_mov_b32_dpp v{vAb}, v{vAl} row_newbcast:8 row_mask:0x4 bank_mask:0xf
        """.replace(f"        v_mov_b32_dpp v{vTmp}, v{vAl} row_newbcast:8 row_mask:0x4 bank_mask:0xf\n        s_nop 0\n", ""))
        for e in range(8):
            k(f"v_mul_f32 v{vAcc+4*e}, v{vAb}, v{vAcc+4*e}")
    else:
        k(f"""
        v_sub_f32 v{vAl}, v{vM}, v{vMx}
        v_mov_b32 v{vM}, v{vMx}
        v_exp_f32 v{vAl}, v{vAl}
        """)
        for i in range(4):
            k(f"v_sub_f32 v{vT+i}, v{vT+i}, v{vMx}")
        for i in range(4):
            k(f"v_exp_f32 v{vT+i}, v{vT+i}")
            k(f"v_mov_b32_dpp v{vAb}, v{vAl} row_newbcast:{4*i} row_mask:{hex(1<<i)} bank_mask:0xf")
            if i == 1:
                k(f"v_fma_f32 v{vL}, v{vL}, v{vAl}, v{vT}")
            if i == 2:
                k(f"v_cvt_pk_bf16_f32 v{vP}, v{vT}, v{vT+1}")
        k(f"""
        v_add_f32 v{vTmp}, v{vT+1}, v{vT+2}
        v_cvt_pk_bf16_f32 v{vP+1}, v{vT+2}, v{vT+3}
        v_add_f32 v{vL}, v{vL}, v{vT+3}
        v_add_f32 v{vL}, v{vL}, v{vTmp}
        """)
        for e in range(8):
            k(f"v_mul_f32 v{vAcc+4*e}, v{vAb}, v{vAcc+4*e}")
        k(f"""
        s_cmp_eq_u32 s{sNxt}, {hex(END)}
        s_cbranch_scc1 L_ml
        L_mld:
        """)
    wait(5)
    issue(5)
    for e in range(8):
        perm(e, 0)
    if EARLYM:
        k(f"""
        s_cmp_eq_u32 s{sNxt}, s{sEnd}
        s_cbranch_scc1 L_lastp
        """)
        wait(6)
        k("L_lastd:")
        issue(6)
    else:
        k(f"""
        s_cmp_eq_u32 s{sNxt}, s{sEnd}
        s_cbranch_scc0 L_nolast
        s_waitcnt lgkmcnt(0)
        v_readfirstlane_b32 s{sLast}, v{vNx}
        L_nolast:
        """)
        wait(6)
        issue(6)
        if HOOK == 6:
            hook()
    wait(7)
    if DIAG == 2:
        k(st(1))
    if HOOK == 7:
        hook()
    issue(7)
    perm(0, 1)
    perm(1, 1)
    for e in range(8):
        if e + 2 < 8:
            perm(e + 2, 1)
        pv(e)
    k(f"""
    s_mov_b32 s{sOff}, s{sNxt}
    s_cmp_eq_u32 s{sNxt}, {hex(END)}
    s_cbranch_scc0 L_loop
    s_cmp_lg_u32 s{sFb}, 0
    s_cbranch_scc1 L_fbnext
    """)
    vS0 = vD
    k(f"""
    {f"s_cmp_eq_u32 s{sLast}, 13" if EARLYM else ""}
    {"s_cbranch_scc1 L_own" if EARLYM else ""}
    s_cmp_eq_u32 s{sLast}, 12
    s_cbranch_scc0 L_give
    L_mrg:                                     ; lane (c, g): O[query g][8c .. 8c+7]
    """)
    mbase("L_again")
    k(f"""
    {"L_own:" if EARLYM else ""}
    s_cmp_lg_u32 s{sPol}, 0
    """)
    for e in range(8):
        k(f"v_fmac_f32 v{vS0+e}, v{vF4}, v{vAcc+4*e}")
    for j in range(4):
        k(f"v_cvt_pk_bf16_f32 v{vD+j}, v{vS0+2*j}, v{vS0+2*j+1}")
        k(f"v_xor_b32 v{vD+j}, v{vAl}, v{vD+j}")
    k(f"""
    {st(2)}
    s_cbranch_scc1 L_dn1
    buffer_store_dwordx4 {vr(vD,4)}, v{vRo}, {sr(SW,4)}, s{sRec} offen
    """)
    diag_store(1)
    k(f"""
    s_endpgm
    L_dn1:
    buffer_store_dwordx4 {vr(vD,4)}, v{vRo}, {sr(SW,4)}, s{sRec} offen sc1
    s_endpgm
    L_again:
    s_waitcnt lgkmcnt(0)
    """)
    mreads()
    k(f"""
    s_branch L_mrg
    L_give:                                    ; hand the sums to the merging worker
    """)
    for e in range(8):
        k(f"v_mov_b32 v{vS0+e}, v{vAcc+4*e}")
    k(f"""
    ds_write_b128 v{vSl}, {vr(vS0,4)} offset:{ACC}
    ds_write_b128 v{vSl}, {vr(vS0+4,4)} offset:{ACC+1024}
    s_mov_b64 exec, 1
    ds_add_u32 v{vPa}, v{vFour} offset:64
    {st(2)}
    s_waitcnt lgkmcnt(0)
    """)
    diag_store(0)
    k(f"""
    s_endpgm
    """)
    if EARLYM:
        k(f"""
        L_lastp:                                   ; last page, V rows 2 and 3 still to come
        s_waitcnt lgkmcnt(0)
        v_readfirstlane_b32 s{sLast}, v{vNx}
        s_cmp_eq_u32 s{sLast}, 12
        s_cbranch_scc0 L_lastd
        """)
        mreads()
        mbase("L_lastr")
        k(f"""
        s_mov_b32 s{sLast}, 13
        s_branch L_lastd
        L_lastr:
        s_waitcnt vmcnt({D-1}) lgkmcnt(0)
        """)
        mreads()
        k("s_branch L_lastd")
    k(f"""
    L_retry:
    s_cmp_eq_u32 s{sCnt}, {hex(END)}
    s_cbranch_scc0 L_get
    s_mov_b32 s{sPol}, 32
    L_none:
    {st(1) if DIAG == 1 else ""}
    """)
    lreduce(k)
    k(f"""
    s_mov_b32 exec_lo, 0x1111
    s_mov_b32 exec_hi, 0
    ds_write_b64 v{vMw}, {vr(vM,2)} offset:{MLW}
    s_mov_b64 exec, 1
    ds_add_rtn_u32 v{vNx}, v{vPa}, v{vFour} offset:68
    s_mov_b64 exec, -1
    s_cmp_eq_u32 s{sCnt}, {hex(END)}
    s_cbranch_scc0 L_mld
    s_waitcnt lgkmcnt(0)
    v_readfirstlane_b32 s{sLast}, v{vNx}
    s_cmp_eq_u32 s{sLast}, 12
    s_cbranch_scc1 L_again
    s_branch L_give
    """)

    k.lines += warm.lines
    vOf, vMo, vPw, vPm, vPr_, vOo = 2, 3, 4, 5, 6, 7
    vX, vY, vW, vZ = 8, 9, 10, 11
    vML = 12
    vMa, vRr, vSa = 16, 18, 20
    vA, vPr = 24, 28
    vOr, vOs, vU = 32, 34, 36
    vBt, vDyn, vCo, vPq, vCt = 42, 43, 44, 45, 46
    vE4, vEl = 48, 52
    vV2, vBase, vM4 = 56, 58, 60

    def ctxcalc(kk):
        kk(f"""
        s_min_i32 s{sT0}, s{sCtx}, 65536
        s_cmp_le_i32 s{sCtx}, 0
        s_cselect_b32 s{sT0}, 65536, s{sT0}
        s_add_u32 s{sT0}, s{sT0}, 15
        s_lshr_b32 s{sN}, s{sT0}, 4
        s_min_i32 s{sCtx}, s{sCtx}, 65536
        s_max_i32 s{sCtx}, s{sCtx}, 0
        """)

    def entry(kk, vpage, vbt, vt):
        kk(f"""
        v_lshlrev_b32 v{vt}, 4, v{vpage}
        v_sub_u32 v{vt}, s{sCtx}, v{vt}
        v_med3_i32 v{vt}, v{vt}, 0, 16
        v_cmp_gt_u32 vcc, s{sN}, v{vpage}
        v_lshl_or_b32 v{vbt}, v{vbt}, 15, v{vt}
        v_bfrev_b32 v{vt}, 1
        v_and_b32 v{vbt}, 0x7fffffff, v{vbt}
        v_cndmask_b32 v{vbt}, v{vt}, v{vbt}, vcc
        """)

    vMb, vRs, vSb, vW2, vZ2 = 17, 19, 21, 14, 15
    vOr2, vOs2, vOf2 = 56, 58, 60
    k(f"""
    L_service:
    s_mov_b64 {sr(sE,2)}, 0
    v_lshlrev_b32 v{vX}, 9, v{vLane}
    v_lshlrev_b32 v{vCo}, 2, v{vLane}
    v_lshlrev_b32 v{vDyn}, 4, v{vLane}
    v_mov_b32 v{vEl}, -1
    v_mov_b32 v{vEl+1}, -1
    v_mov_b32 v{vEl+2}, -1
    v_mov_b32 v{vEl+3}, -1
    ds_write_b128 v{vDyn}, {vr(vEl,4)}
    v_mov_b32 v{vY}, 0
    v_writelane_b32 v{vY}, 16, 0
    ds_write_b32 v{vCo}, v{vY} offset:{POP}
    s_lshl_b32 s{sIdx}, s{sSh}, 4
    s_lshl_b32 s{sT0}, s{sH}, 15
    s_lshl_b32 s{sT1}, s{sSh}, 5               ; q*256 + oct*32
    s_add_u32 s{sT0}, s{sT0}, s{sT1}
    v_lshrrev_b32 v{vY}, 2, v{vLane}
    v_and_b32 v{vW}, 3, v{vLane}
    v_lshlrev_b32 v{vZ}, 10, v{vY}
    v_lshl_add_u32 v{vZ}, v{vW}, 3, v{vZ}
    v_add_u32 v{vOf}, s{sT0}, v{vZ}
    v_add_u32 v{vOf2}, 0x4000, v{vOf}
    s_lshr_b32 s{sI}, s{sSh}, 3
    s_lshl_b32 s{sT0}, s{sH}, 12
    s_lshl4_add_u32 s{sT0}, s{sI}, s{sT0}
    s_add_u32 s{sT0}, s{sT0}, {ML_OFF}
    v_lshlrev_b32 v{vZ}, 7, v{vY}
    v_lshl_add_u32 v{vZ}, v{vW}, 2, v{vZ}
    v_add_u32 v{vMo}, s{sT0}, v{vZ}
    s_lshl_b32 s{sRec}, s{sH}, 5
    s_add_u32 s{sRec}, s{sRec}, s{sSh}
    s_lshl_b32 s{sRec}, s{sRec}, 10
    s_lshr_b32 s{sMl}, s{sRec}, 3
    s_add_u32 s{sMl}, s{sMl}, {ML_OFF}
    s_waitcnt lgkmcnt(0)
    s_load_dword s{sCtx}, {sr(sCTX,2)}, 0
    s_load_dword s{sR}, {sr(sWS,2)}, s{sRec}
    """)
    srd(k, SB, sBT, 16384)
    k(f"buffer_load_dwordx4 {vr(vE4,4)}, v{vX}, {sr(SB,4)}, s{sIdx} offen")
    srd(k, SW, sWS, WS_USED)
    k(f"""
    buffer_load_dword v{vSa}, v{vMo}, {sr(SW,4)}, 0 offen sc1
    buffer_load_dword v{vSb}, v{vMo}, {sr(SW,4)}, 0 offen offset:2048 sc1
    buffer_load_dwordx2 {vr(vOs,2)}, v{vOf}, {sr(SW,4)}, 0 offen sc1
    buffer_load_dwordx2 {vr(vOs2,2)}, v{vOf2}, {sr(SW,4)}, 0 offen sc1
    s_lshl_b32 s{sT0}, s{sH}, 10
    s_add_u32 s{sT0}, s{sT0}, s{sT1}
    v_lshrrev_b32 v{vX}, 4, v{vLane}
    v_lshl_add_u32 v{vX}, v{vW}, 2, v{vX}
    v_lshl_add_u32 v{vOo}, v{vX}, 1, s{sT0}
    s_barrier
    s_waitcnt lgkmcnt(0)
    s_add_u32 s{sR}, s{sR}, s{sMl}
    s_mul_i32 s{sR}, s{sR}, 0x9e3779b1
    s_lshr_b32 s{sT0}, s{sR}, 15
    s_xor_b32 s{sR}, s{sR}, s{sT0}
    s_mul_i32 s{sR}, s{sR}, 0x85ebca6b         ; salt
    v_mov_b32 v{vW}, {POP}
    v_mov_b32 v{vY}, s{sR}
    ds_write_b32 v{vW}, v{vY} offset:72
    """)
    ctxcalc(k)
    k(f"""
    s_lshr_b32 s{sS}, s{sN}, 7
    s_max_i32 s{sS}, s{sS}, 1
    s_lshl_b32 s{sT1}, s{sSh}, 2
    v_lshl_add_u32 v{vX}, v{vLane}, 7, s{sT1}
    s_lshl_b32 s{sT0}, s{sS}, 7
    s_add_u32 s{sT0}, s{sT0}, s{sSh}
    v_lshl_add_u32 v{vBt}, v{vLane}, 5, s{sT0}
    v_lshlrev_b32 v{vEl}, 2, v{vBt}
    v_cmp_gt_u32 vcc, s{sS}, v{vLane}
    s_mov_b64 exec, 15
    buffer_load_dword v{vEl}, v{vEl}, {sr(SB,4)}, 0 offen
    s_mov_b64 exec, vcc
    s_waitcnt vmcnt(5)
    """)
    for w in range(4):
        entry(k, vX, vE4 + w, vY)
        if w < 3:
            k(f"v_add_u32 v{vX}, 1, v{vX}")
    k(f"""
    ds_write_b128 v{vDyn}, {vr(vE4,4)}
    s_mov_b64 exec, -1
    """)
    srd(k, SO, sOUT, 8192)
    k(f"""
    s_mov_b32 s{sC}, 0xffff0000
    """)
    srd(k, SD, sDBG, 256)
    k(f"""
    s_getreg_b32 s{sXc}, hwreg(HW_REG_XCC_ID)
    s_lshl_b32 s{sT0}, s{sH}, 5
    v_mov_b32 v{vCo}, s{sT0}
    s_and_b32 s{sXc}, s{sXc}, 15
    s_add_u32 s{sXc}, s{sXc}, 1
    s_mov_b32 s{sPol}, {32 if FORCESC else 0}
    s_cmp_eq_u32 s{sSh}, 0
    s_cbranch_scc0 L_nl
    v_mov_b32 v{vX}, s{sXc}
    s_mov_b64 exec, 1
    buffer_store_dword v{vX}, v{vCo}, {sr(SD,4)}, 0 offen offset:4 sc1
    s_mov_b64 exec, -1
    L_nl:
    s_waitcnt vmcnt(0)
    """)
    entry(k, vBt, vEl, vY)
    k(f"""
    s_lshl_b32 s{sE}, s{sS}, 4
    v_lshl_add_u32 v{vDyn}, v{vLane}, 2, s{sE}
    s_sub_i32 s{sE}, s{sE}, {4*LEADP}
    s_min_i32 s{sOff}, s{sE}, {4*CHK}
    s_mov_b32 s{sI}, 0
    L_s0:
    ds_read_b32 v{vX}, v{vW}
    s_waitcnt lgkmcnt(0)
    v_readfirstlane_b32 s{sT0}, v{vX}
    s_cmp_ge_i32 s{sT0}, s{sOff}
    s_cbranch_scc1 L_s2
    s_sleep 4
    s_branch L_s0
    L_s2:
    buffer_load_dwordx2 {vr(vPr,2)}, v{vCo}, {sr(SD,4)}, 0 offen sc1
    s_waitcnt vmcnt(0)
    v_readfirstlane_b32 s{sT1}, v{vPr}
    v_readfirstlane_b32 s{sT0}, v{vPr+1}
    s_or_b32 s{sPol}, s{sPol}, s{sT1}
    s_cmp_lg_u32 s{sI}, 0
    s_cbranch_scc1 L_s1
    s_mov_b32 s{sI}, 1
    s_mov_b32 s{sOff}, s{sE}
    s_cmp_eq_u32 s{sT0}, s{sXc}
    s_cbranch_scc1 L_s0
    s_mov_b32 s{sPol}, 32
    v_mov_b32 v{vX}, 32
    s_mov_b64 exec, 1
    buffer_store_dword v{vX}, v{vCo}, {sr(SD,4)}, 0 offen sc1
    s_mov_b64 exec, -1
    s_branch L_s0
    L_s1:
    s_and_b32 s{sPol}, s{sPol}, 32
    s_mov_b64 exec, 0xffff
    v_or_b32 v{vEl}, s{sPol}, v{vEl}
    ds_write_b32 v{vDyn}, v{vEl}
    s_mov_b64 exec, -1
    s_mov_b32 s{sI}, {LIMIT if FORCEFB else 0}
    s_mov_b32 s{sLim}, {LIMIT if FORCEFB else LIM0}
    v_bfe_u32 v{vX}, v{vLane}, 2, 2
    v_lshlrev_b32 v{vX}, 5, v{vX}
    v_lshlrev_b32 v{vCo}, 2, v{vLane}
    s_waitcnt vmcnt(0)
    L_gate:                                    ; until every worker's (m, l) is there
    {f"s_sleep {GSL}" if GSL else ""}
    ds_read_b32 v{vY}, v{vW} offset:68
    ds_read_b128 v[64:67], v{vX} offset:{MLW}
    ds_read_b128 v[68:71], v{vX} offset:{MLW+16}
    s_waitcnt lgkmcnt(2)
    v_cmp_ne_u32 vcc, 16, v{vY}
    s_cbranch_vccnz L_gate
    {st(1) if DIAG == 1 else ""}
    """)
    if SVML:
        k(f"""
        s_waitcnt lgkmcnt(0)
        v_max3_f32 v{vX}, v64, v66, v68
        v_max_f32 v{vX}, v{vX}, v70
        """)
        mlpub(64, vX, vCo, "b")
    k(f"""
    s_branch L_m1
    L_m0:                                      ; wait for the (m, l, salt) entries
    s_bcnt1_i32_b64 s{sT0}, vcc
    L_m2:                                      ; back off in proportion to the number of missing producers
    s_sleep {GR}
    s_sub_i32 s{sT0}, s{sT0}, {GSUB}
    s_cmp_gt_i32 s{sT0}, 0
    s_cbranch_scc1 L_m2
    s_mov_b64 exec, vcc
    L_m1:
    buffer_load_dword v{vMa}, v{vMo}, {sr(SW,4)}, 0 offen sc1
    buffer_load_dword v{vMb}, v{vMo}, {sr(SW,4)}, 0 offen offset:2048 sc1
    s_mov_b64 exec, -1
    s_add_u32 s{sI}, s{sI}, 1
    s_cmp_ge_u32 s{sI}, s{sLim}
    s_cbranch_scc1 L_chk1
    L_m3:
    s_waitcnt vmcnt(0)
    v_xor_b32 v{vU}, v{vMa}, v{vSa}
    v_xor_b32 v{vU+1}, v{vMb}, v{vSb}
    v_mov_b32_dpp v{vRr}, v{vMa} quad_perm:[2,2,2,2] {ALL}
    v_min_u32 v{vU}, v{vU}, v{vU+1}
    v_mov_b32_dpp v{vRs}, v{vMb} quad_perm:[2,2,2,2] {ALL}
    v_cmp_eq_u32 vcc, 0, v{vU}
    v_xor_b32_dpp v{vW}, v{vMa}, v{vRr} quad_perm:[0,0,0,0] {ALL}     ; m
    s_cbranch_vccnz L_m0
    {st(2) if DIAG == 1 else st(1)}
    buffer_load_dwordx2 {vr(vOr,2)}, v{vOf}, {sr(SW,4)}, 0 offen sc1
    buffer_load_dwordx2 {vr(vOr2,2)}, v{vOf2}, {sr(SW,4)}, 0 offen sc1
    v_xor_b32_dpp v{vW2}, v{vMb}, v{vRs} quad_perm:[0,0,0,0] {ALL}
    v_xor_b32_dpp v{vZ}, v{vMa}, v{vRr} quad_perm:[1,1,1,1] {ALL}     ; l
    v_max_f32 v{vML}, v{vW}, v{vW2}
    v_xor_b32_dpp v{vZ2}, v{vMb}, v{vRs} quad_perm:[1,1,1,1] {ALL}
    v_max_f32_dpp v{vML}, v{vML}, v{vML} row_ror:4 {ALL}
    v_max_f32_dpp v{vML}, v{vML}, v{vML} row_ror:8 {ALL}
    v_mov_b32 v{vY}, v{vML}
    v_permlane16_swap_b32 v{vML}, v{vY}
    v_max_f32 v{vML}, v{vML}, v{vY}
    v_mov_b32 v{vY}, v{vML}
    v_permlane32_swap_b32 v{vML}, v{vY}
    v_max_f32 v{vML}, v{vML}, v{vY}
    v_sub_f32 v{vW}, v{vW}, v{vML}
    v_sub_f32 v{vW2}, v{vW2}, v{vML}
    v_exp_f32 v{vW}, v{vW}
    v_exp_f32 v{vW2}, v{vW2}
    v_mul_f32 v{vZ}, v{vW}, v{vZ}
    v_fmac_f32 v{vZ}, v{vW2}, v{vZ2}
    v_add_f32_dpp v{vZ}, v{vZ}, v{vZ} row_ror:4 {ALL}
    v_add_f32_dpp v{vZ}, v{vZ}, v{vZ} row_ror:8 {ALL}
    v_mov_b32 v{vY}, v{vZ}
    v_permlane16_swap_b32 v{vZ}, v{vY}
    v_add_f32 v{vZ}, v{vZ}, v{vY}
    v_mov_b32 v{vY}, v{vZ}
    v_permlane32_swap_b32 v{vZ}, v{vY}
    v_add_f32 v{vZ}, v{vZ}, v{vY}
    v_rcp_f32 v{vZ}, v{vZ}
    {f"v_mul_f32 v{vW}, v{vW}, v{vZ}" if TRIM else ""}
    {f"v_mul_f32 v{vW2}, v{vW2}, v{vZ}" if TRIM else ""}
    {"s_waitcnt vmcnt(0)" if PIPE else ""}
    s_branch L_o1
    L_o0:                                      ; wait for the record pieces
    s_mov_b64 exec, vcc
    buffer_load_dwordx2 {vr(vOr,2)}, v{vOf}, {sr(SW,4)}, 0 offen sc1
    buffer_load_dwordx2 {vr(vOr2,2)}, v{vOf2}, {sr(SW,4)}, 0 offen sc1
    s_mov_b64 exec, -1
    s_add_u32 s{sI}, s{sI}, 1
    s_cmp_ge_u32 s{sI}, s{sLim}
    s_cbranch_scc1 L_chk2
    L_o1:
    s_waitcnt vmcnt({2*PIPE})
    v_xor_b32 v{vU}, v{vOr}, v{vOs}
    v_xor_b32 v{vU+1}, v{vOr+1}, v{vOs+1}
    v_xor_b32 v{vU+2}, v{vOr2}, v{vOs2}
    v_xor_b32 v{vU+3}, v{vOr2+1}, v{vOs2+1}
    v_min3_u32 v{vU}, v{vU}, v{vU+1}, v{vU+2}
    v_xor_b32 v{vX}, v{vOr}, v{vRr}
    v_min_u32 v{vU}, v{vU}, v{vU+3}
    v_xor_b32 v{vY}, v{vOr+1}, v{vRr}
    v_cmp_eq_u32 vcc, 0, v{vU}
    v_lshlrev_b32 v{vA}, 16, v{vX}
    v_and_b32 v{vA+1}, s{sC}, v{vX}
    v_lshlrev_b32 v{vA+2}, 16, v{vY}
    v_and_b32 v{vA+3}, s{sC}, v{vY}
    s_cbranch_vccnz L_o0
    {st(2) if DIAG == 2 else ""}
    v_xor_b32 v{vX}, v{vOr2}, v{vRs}
    v_xor_b32 v{vY}, v{vOr2+1}, v{vRs}
    v_mul_f32 v{vA}, v{vW}, v{vA}
    v_mul_f32 v{vA+1}, v{vW}, v{vA+1}
    v_mul_f32 v{vA+2}, v{vW}, v{vA+2}
    v_mul_f32 v{vA+3}, v{vW}, v{vA+3}
    v_lshlrev_b32 v{vU}, 16, v{vX}
    v_and_b32 v{vU+1}, s{sC}, v{vX}
    v_lshlrev_b32 v{vU+2}, 16, v{vY}
    v_and_b32 v{vU+3}, s{sC}, v{vY}
    v_fmac_f32 v{vA}, v{vW2}, v{vU}
    v_fmac_f32 v{vA+1}, v{vW2}, v{vU+1}
    v_fmac_f32 v{vA+2}, v{vW2}, v{vU+2}
    v_fmac_f32 v{vA+3}, v{vW2}, v{vU+3}
    """)
    for sh in (4, 8):
        for j in range(4):
            k(f"v_add_f32_dpp v{vA+j}, v{vA+j}, v{vA+j} row_ror:{sh} {ALL}")
    k(f"""
    v_permlane16_swap_b32 v{vA}, v{vA+1}
    s_mov_b32 vcc_lo, 0x000f000f
    v_permlane16_swap_b32 v{vA+2}, v{vA+3}
    v_add_f32 v{vA}, v{vA}, v{vA+1}
    v_add_f32 v{vA+2}, v{vA+2}, v{vA+3}
    s_mov_b32 vcc_hi, 0x000f000f
    v_permlane32_swap_b32 v{vA}, v{vA+2}
    v_add_f32 v{vA}, v{vA}, v{vA+2}
    s_mov_b64 exec, vcc
    {"" if TRIM else f"v_mul_f32 v{vA}, v{vA}, v{vZ}"}
    v_cvt_pk_bf16_f32 v{vA}, v{vA}, v{vA}
    buffer_store_short v{vA}, v{vOo}, {sr(SO,4)}, 0 offen
    """)
    diag_store(f"s{sI}")
    if MUL:
        k(f"""
        s_waitcnt vmcnt(0)
        s_memrealtime {sr(sTS+2,2)}
        s_waitcnt lgkmcnt(0)
        s_sub_u32 s{sT1}, s{sTS+2}, s{sTS}
        s_mul_i32 s{sT1}, s{sT1}, {MUL}
        L_spinm:
        s_sleep 2
        s_memrealtime {sr(sTS+2,2)}
        s_waitcnt lgkmcnt(0)
        s_sub_u32 s{sT0}, s{sTS+2}, s{sTS}
        s_cmp_lt_u32 s{sT0}, s{sT1}
        s_cbranch_scc1 L_spinm
        """)
    k("""
    L_end:
    s_endpgm
    """)
    for n, back in ((1, "L_m3"), (2, "L_o1")):
        cold(f"""
        L_chk{n}:                                    ; many looks without success: give up early on a short context
        s_cmp_ge_u32 s{sI}, {LIMIT}
        s_cbranch_scc1 L_fb
        s_load_dword s{sT0}, {sr(sCTX,2)}, 0
        s_mov_b32 s{sLim}, {LIMIT}
        s_waitcnt lgkmcnt(0)
        s_sub_u32 s{sT0}, s{sT0}, 1
        s_cmp_lt_u32 s{sT0}, 8192
        s_cbranch_scc0 {back}
        {"s_branch L_fb" if n == 1 else ""}
        """)
    cold(f"""
    L_fb:
    s_load_dword s{sCtx}, {sr(sCTX,2)}, 0
    s_waitcnt vmcnt(0) lgkmcnt(0)
    """)
    ctxcalc(cold)
    cold(f"""
    s_mov_b32 s{sE}, 0
    s_mov_b32 s{sL0}, 0
    L_fbfill:
    """)
    srd(cold, SB, sBT, 16384)
    cold(f"""
    v_add_u32 v{vFp}, s{sE}, v{vLane}
    v_lshlrev_b32 v{vFb}, 2, v{vFp}
    buffer_load_dword v{vFb}, v{vFb}, {sr(SB,4)}, 0 offen
    s_lshl_b32 s{sIdx}, s{sE}, 2
    s_waitcnt vmcnt(0)
    """)
    entry(cold, vFp, vFb, vTmp)
    cold(f"""
    s_bitset1_b32 s{sFb}, 31
    v_lshlrev_b32 v{vFp}, 2, v{vLane}
    v_writelane_b32 v{vFb}, s{sFb}, 63
    v_mov_b32 v{vPa}, {POP}
    v_mov_b32 v{vFour}, 4
    ds_write_b32 v{vFp}, v{vFb}
    ds_write_b32 v{vPa}, v{vFour}
    s_load_dword s{sBt0}, {sr(sBT,2)}, s{sIdx}
    s_branch L_setup
    L_fbnext:
    s_waitcnt vmcnt(0)
    s_add_u32 s{sE}, s{sE}, 63
    s_cmp_lt_u32 s{sE}, s{sN}
    s_cbranch_scc1 L_fbfill
    """)
    lreduce(cold)
    cold(f"v_rcp_f32 v{vAl}, v{vL}")
    for i in range(4):
        cold(f"v_mov_b32_dpp v{vAb}, v{vAl} row_newbcast:{4*i} row_mask:{hex(1<<i)} bank_mask:0xf")
    for e in range(8):
        cold(f"v_mul_f32 v{vAcc+4*e}, v{vAb}, v{vAcc+4*e}")
    for j in range(4):
        cold(f"v_cvt_pk_bf16_f32 v{vD+j}, v{vAcc+8*j}, v{vAcc+8*j+4}")
    srd(cold, SO, sOUT, 8192)
    cold(f"""
    s_lshl_b32 s{sT0}, s{sSh}, 1
    s_lshl_b32 s{sT1}, s{sH}, 10
    v_lshlrev_b32 v{vTmp}, 4, v{vLane}
    s_lshl_b64 exec, 3, s{sT0}
    buffer_store_dwordx4 {vr(vD,4)}, v{vTmp}, {sr(SO,4)}, s{sT1} offen
    s_endpgm
    """)
    k.lines += cold.lines
    body = k.done()

    out = HEADER + ("; nwaves=1280 diagoff=3145728 p0 w5\n" if DIAG else "") + f"; @launch grid=(256,1,1) block=(320,1,1) lds={LDS}\n" + DOC
    out += '.amdgcn_target "amdgcn-amd-amdhsa--gfx950"\n.text\n'
    out += f".globl {NAME}_kernel\n.p2align 8\n.type {NAME}_kernel,@function\n{NAME}_kernel:\n"
    out += body
    out += f""".section .rodata,"a"
.p2align 6
.amdhsa_kernel {NAME}_kernel
  .amdhsa_next_free_vgpr {NV}
  .amdhsa_next_free_sgpr {NS}
  .amdhsa_accum_offset {NV}
  .amdhsa_group_segment_fixed_size 0
  .amdhsa_kernarg_size 64
  .amdhsa_user_sgpr_count 2
  .amdhsa_user_sgpr_kernarg_segment_ptr 1
  .amdhsa_system_sgpr_workgroup_id_x 1
.end_amdhsa_kernel
"""
    return out


if __name__ == "__main__":
    kw = {}
    for a in sys.argv[2:]:
        key, val = a.split("=")
        kw[key] = int(val, 0)
    open(sys.argv[1], "w").write(gen(**kw))
```

```python
import sys
import struct
from asmlib import K, vr, sr

NAME = "standalone__paged_block_table_kv_pagedattention__decode"
KV_BYTES = 4100 * 32768
HEADER = open("cdna_kernels/" + NAME + ".s.ref").read().split("; Override")[0]
ML_OFF = 0x40000
WS_USED = 0x48000
END = 0x80000000
POP = 1024
CTR = POP + 64
MLW = POP + 128
ACC = 2048
LDS = ACC + 8192

DOC = """;
"""


def f32(x):
    return "0x%08x" % struct.unpack("<I", struct.pack("<f", x))[0]


def gen(GR=1, LIMIT=2048, LIM0=64, CHK=24, LEADP=12, SLOWH=0x22, FASTL=1, FORCEFB=0, FORCESC=0, MUL=0, SCR=0, XD=0, FO=0, GSUB=16, SVML=1, PRE=0, NOSL=0, GSL=1, HOOK=6, TRIM=1, WM=0, WMS=-1, PM=0xff, SKIP=0, ROT=0, PIPE=0, DIAG=0, EARLYM=0, LAZY=1, XW=0, XWF=0, MX=0):
    global WS_USED
    if XD or DIAG:
        WS_USED = 0x800000
    D = 6
    k = K()
    cold = K()
    warm = K()
    sQ, sKp, sVp, sBT, sCTX, sOUT, sDBG, sWS = 4, 6, 8, 10, 12, 14, 16, 18
    SK, SV, SB, SQ, SW, SD, SO = 20, 24, 28, 32, 36, 60, 64
    sH, sL0, sWv, sJ, sCtx, sN, sI, sCnt, sOff, sC, sPlo, sPhi, sT0, sT1, sNeg, sIdx = range(40, 56)
    sBt0, sRec, sMl, sNxt = 56, 57, 58, 59
    sE, sFb, sR, sS, sSh, sBad, sHq, sOct, sLim, sPol = range(68, 78)
    sMA, sMB, sXc, sFast, sSp, sEnd = 78, 80, 82, 83, 84, 85
    sLast = sFast
    sTh = sMA
    if WMS < 0:
        WMS = WM
    sMk = 86
    sTS = 88
    NS = 96 if MUL or DIAG or MX else 88
    vLane, vKo0, vKo1, vVo0, vVo1, vLi, vG4, vM, vL, vMx, vTmp, vAl, vAb = range(1, 14)
    vP, vQ, vT, vD, vB, vAcc, vKA, vVA = 14, 16, 20, 24, 40, 56, 88, 104
    vRo, vMo_w, vEn, vPa, vNx, vFour = 120, 121, 122, 124, 125, 126
    vFp, vFb = vEn, vEn + 1
    vPre, vPc, vF4, vAd = 128, 152, 154, 162
    vSl, vMw = 169, 170
    NV = 172
    ALL = "row_mask:0xf bank_mask:0xf"

    def srd(kk, S, ptr, size):
        kk(f"""
        s_mov_b32 s{S}, s{ptr}
        s_mov_b32 s{S+1}, s{ptr+1}
        s_mov_b32 s{S+2}, {size}
        s_mov_b32 s{S+3}, 0x20000
        """)

    def diag_store(flag):
        if not DIAG:
            return
        k(f"""
        s_waitcnt vmcnt(0)
        s_memrealtime {sr(sTS+6,2)}
        s_getreg_b32 s{sT1}, hwreg(HW_REG_XCC_ID)
        s_waitcnt lgkmcnt(0)
        s_mov_b64 exec, -1
        v_mov_b32 v24, s{sTS}
        v_mov_b32 v25, s{sTS+2}
        v_mov_b32 v26, s{sTS+4}
        v_mov_b32 v27, s{sTS+6}
        v_mov_b32 v28, s{sT1}
        v_mov_b32 v29, s{sWv}
        v_mov_b32 v30, 0
        v_mov_b32 v31, {flag}
        s_mul_i32 s{sT0}, s2, 5
        s_add_u32 s{sT0}, s{sT0}, s{sWv}
        s_lshl_b32 s{sT0}, s{sT0}, 5
        s_add_u32 s{sT0}, s{sT0}, 0x300000
        v_mov_b32 v11, 0
        s_mov_b64 exec, 1
        buffer_store_dwordx4 v[24:27], v11, {sr(SW,4)}, s{sT0} offen
        buffer_store_dwordx4 v[28:31], v11, {sr(SW,4)}, s{sT0} offen offset:16
        """)

    def st(n):
        return f"s_memrealtime {sr(sTS+2*n,2)}" if DIAG else ""

    seq = [("K", i) for i in range(4)] + [("V", i) for i in range(4)]

    def ld(t, so):
        which, i = seq[t % 8]
        vo = (vKo0, vKo1) if which == "K" else (vVo0, vVo1)
        S = SK if which == "K" else SV
        base = vKA if which == "K" else vVA
        off = " offset:2048" if i & 1 else ""
        k(f"buffer_load_dwordx4 {vr(base+4*i,4)}, v{vo[i>>1]}, {sr(S,4)}, s{so} offen{off} nt")

    k(f"""
    s_load_dwordx16 s[4:19], s[0:1], 0
    s_cmp_ge_u32 s2, 256
    s_cbranch_scc1 L_end
    {f"s_memrealtime {sr(sTS,2)}" if MUL or DIAG or MX else ""}
    {"s_lshr_b32 s3, s2, 5" if SCR == 1 else ""}
    {"s_lshl3_add_u32 s2, s2, s3" if SCR == 1 else ""}
    {"s_and_b32 s2, s2, 255" if SCR == 1 else ""}
    {"s_and_b32 s3, s2, 0xf8" if SCR == 2 else ""}
    {"s_cmp_eq_u32 s3, 0x50" if SCR == 2 else ""}
    {"s_cselect_b32 s3, 1, 0" if SCR == 2 else ""}
    {"s_xor_b32 s2, s2, s3" if SCR == 2 else ""}
    v_lshrrev_b32 v{vTmp}, 6, v0
    v_and_b32 v{vLane}, 63, v0
    v_readfirstlane_b32 s{sWv}, v{vTmp}
    s_lshr_b32 s{sSh}, s2, 3
    {f"s_add_u32 s2, s2, {ROT}" if ROT else ""}
    s_and_b32 s{sH}, s2, 7
    s_cmp_ge_u32 s{sWv}, 4
    s_cbranch_scc1 L_service
    ; ---------------------------------------------------------------- worker
    s_lshl2_add_u32 s{sJ}, s{sSh}, s{sWv}
    s_lshl_b32 s{sIdx}, s{sJ}, 2
    s_waitcnt lgkmcnt(0)
    {f"s_memrealtime {sr(sTS+2,2)}" if MX == 1 else ""}
    s_load_dword s{sBt0}, {sr(sBT,2)}, s{sIdx}
    s_mov_b64 {sr(sE,2)}, 0
    s_lshl_b32 s{sL0}, s{sWv}, 2
    L_setup:
    v_lshrrev_b32 v{vG4}, 4, v{vLane}
    v_lshlrev_b32 v{vG4}, 2, v{vG4}            ; 4g
    v_and_b32 v{vTmp}, 3, v{vLane}
    v_add_lshl_u32 v{vTmp}, v{vTmp}, v{vG4}, 4
    v_bfe_u32 v{vMx}, v{vLane}, 2, 2
    s_lshl_b32 s{sT1}, s{sH}, 8
    v_lshl_add_u32 v{vKo0}, v{vMx}, 13, v{vTmp}
    v_add_u32 v{vKo0}, s{sT1}, v{vKo0}
    v_add_u32 v{vKo1}, 0x1000, v{vKo0}
    v_lshl_add_u32 v{vAl}, v{vMx}, 8, v{vTmp}
    v_and_b32 v{vTmp}, 15, v{vLane}
    v_lshlrev_b32 v{vTmp}, 4, v{vTmp}
    v_lshl_add_u32 v{vVo0}, v{vG4}, 11, v{vTmp}
    v_add_u32 v{vVo0}, s{sT1}, v{vVo0}
    v_add_u32 v{vVo1}, 0x1000, v{vVo0}
    s_lshl_b32 s{sT0}, s{sH}, 10
    """)
    srd(k, SQ, sQ, 8192)
    k(f"buffer_load_dwordx4 {vr(vQ,4)}, v{vAl}, {sr(SQ,4)}, s{sT0} offen")
    srd(k, SK, sKp, KV_BYTES)
    srd(k, SV, sVp, KV_BYTES)
    k(f"""
    s_waitcnt lgkmcnt(0)
    s_lshl_b32 s{sOff}, s{sBt0}, 15
    """)
    for t in range(D):
        ld(t, sOff)
    if MX == 2:
        k(f"s_memrealtime {sr(sTS+2,2)}")
    k(f"v_mov_b32 v{vLi}, s{sL0}")
    srd(k, SW, sWS, WS_USED)
    k(f"""
    v_lshlrev_b32 v{vRo}, 4, v{vLane}
    s_cmp_lg_u32 s{sE}, 0
    s_cbranch_scc1 L_loop
    s_mov_b32 s{sC}, {f32(128 ** -0.5 * 1.4426950408889634)}   ; D^-0.5 * log2(e)
    s_mov_b32 s{sPlo}, 0x05040100
    s_mov_b32 s{sPhi}, 0x07060302
    s_mov_b32 s{sNeg}, {f32(-1e9 * 1.4426950408889634)}
    {f"s_lshr_b32 s{sSp}, {hex(SLOWH)}, s{sH}" if SKIP or XWF else ""}
    v_mov_b32 v{vM}, {f32(-3.0e38)}
    v_mov_b32 v{vL}, 0
    v_mov_b32 v{vAb}, 0
    v_mov_b32 v{vPa}, {POP}
    v_mov_b32 v{vFour}, 4
    s_lshr_b32 s{sEnd}, s{sFb}, 31
    s_mov_b32 s{sLast}, 0
    s_mov_b32 s{sMB}, 0x11111111
    s_mov_b32 s{sMB+1}, 0x11111111
    s_bitset1_b32 s{sEnd}, 31
    """)
    for i in range(32):
        k(f"v_mov_b32 v{vAcc+i}, 0")
    k(f"""
    s_cmp_lg_u32 s{sFb}, 0
    s_cbranch_scc1 L_loop
    s_barrier
    s_lshl_b32 s{sT0}, s{sWv}, 3
    v_lshl_add_u32 v{vMw}, v{vMx}, 5, s{sT0}
    v_lshl_add_u32 v{vAd}, v{vG4}, 3, s{sT0}
    v_xor_b32 v{vAd+1}, 8, v{vAd}
    v_xor_b32 v{vAd+2}, 16, v{vAd}
    v_xor_b32 v{vAd+3}, 24, v{vAd}
    s_lshl_b32 s{sT0}, s{sWv}, 11
    v_add_u32 v{vSl}, s{sT0}, v{vRo}
    v_xor_b32 v{vAd+4}, 0x800, v{vSl}
    v_xor_b32 v{vAd+5}, 0x1000, v{vSl}
    v_xor_b32 v{vAd+6}, 0x1800, v{vSl}
    s_lshl_b32 s{sRec}, s{sH}, 5
    s_add_u32 s{sRec}, s{sRec}, s{sSh}
    s_lshl_b32 s{sRec}, s{sRec}, 10            ; record (h*32+s)*1024
    """)
    if MX:
        k(f"""
        {"s_waitcnt vmcnt(5)" if MX == 3 else ""}
        {"s_waitcnt vmcnt(0)" if MX == 4 else ""}
        {f"s_memrealtime {sr(sTS+2,2)}" if MX >= 3 else ""}
        s_waitcnt lgkmcnt(0)
        s_sub_u32 s{sT0}, s{sTS+2}, s{sTS}
        v_mov_b32 v{vTmp}, s{sT0}
        s_mov_b64 exec, 1
        ds_add_u32 v{vPa}, v{vTmp} offset:80
        s_mov_b64 exec, -1
        """)
    k(f"""
    """)

    def qk(i):
        k(f"v_mfma_f32_16x16x32_bf16 {vr(vD+4*i,4)}, {vr(vKA+4*i,4)}, {vr(vQ,4)}, 0")

    def perm(e, half):
        j, hi = e >> 1, e & 1
        sel = sPhi if hi else sPlo
        k(f"v_perm_b32 v{vB+2*e+half}, v{vVA+8*half+4+j}, v{vVA+8*half+j}, s{sel}")

    def pv(e):
        k(f"v_mfma_f32_16x16x16_bf16 {vr(vAcc+4*e,4)}, {vr(vP,2)}, {vr(vB+2*e,2)}, {vr(vAcc+4*e,4)}")

    def lreduce(kk):
        kk(f"""
        v_mov_b32 v{vTmp}, v{vL}
        v_permlane32_swap_b32 v{vL}, v{vTmp}
        v_add_f32 v{vL}, v{vL}, v{vTmp}
        v_mov_b32 v{vTmp}, v{vL}
        v_permlane16_swap_b32 v{vL}, v{vTmp}
        v_add_f32 v{vL}, v{vL}, v{vTmp}
        """)

    def mlpub(d, mx, mo, tag):
        for w in range(4):
            k(f"v_sub_f32 v{d+2*w}, v{d+2*w}, v{mx}")
        for w in range(4):
            k(f"v_exp_f32 v{d+2*w}, v{d+2*w}")
        k(f"""
        v_xor_b32 v{d+8}, s{sR}, v{mx}
        v_mul_f32 v{d+9}, v{d}, v{d+1}
        v_fmac_f32 v{d+9}, v{d+2}, v{d+3}
        v_fmac_f32 v{d+9}, v{d+4}, v{d+5}
        v_fmac_f32 v{d+9}, v{d+6}, v{d+7}
        v_mov_b32 v{d+10}, s{sR}
        v_mov_b32 v{d+11}, s{sR}
        s_mov_b32 exec_lo, 0x1111
        s_mov_b32 exec_hi, 0
        s_cmp_lg_u32 s{sPol}, 0
        v_xor_b32 v{d+9}, s{sR}, v{d+9}
        s_cbranch_scc1 L_ml1{tag}
        buffer_store_dwordx4 {vr(d+8,4)}, v{mo}, {sr(SW,4)}, s{sMl} offen
        s_branch L_ml3{tag}
        L_ml1{tag}:
        buffer_store_dwordx4 {vr(d+8,4)}, v{mo}, {sr(SW,4)}, s{sMl} offen sc1
        L_ml3{tag}:
        s_mov_b64 exec, -1
        """)

    def mreads():
        k(f"""
        ds_read_b32 v{vPc}, v{vPa} offset:64
        ds_read_b32 v{vAl}, v{vPa} offset:72       ; salt
        """)
        for j in range(4):
            k(f"ds_read_b32 v{vF4+2*j}, v{vAd+j} offset:{MLW}")
        for j in range(3):
            k(f"ds_read_b128 {vr(vPre+8*j,4)}, v{vAd+4+j} offset:{ACC}")
            k(f"ds_read_b128 {vr(vPre+8*j+4,4)}, v{vAd+4+j} offset:{ACC+1024}")

    def mbase(fail):
        k(f"""
        s_waitcnt lgkmcnt({0 if DIAG else 6})
        v_readfirstlane_b32 s{sT0}, v{vPc}
        v_max3_f32 v{vMx}, v{vF4}, v{vF4+2}, v{vF4+4}
        v_max_f32 v{vMx}, v{vMx}, v{vF4+6}
        """)
        for w in (1, 2, 3, 0):
            k(f"v_sub_f32 v{vF4+2*w}, v{vF4+2*w}, v{vMx}")
        k(f"""
        s_cmp_eq_u32 s{sT0}, 12
        s_cbranch_scc0 {fail}
        """)
        for w in (1, 2, 3, 0):
            k(f"v_exp_f32 v{vF4+2*w}, v{vF4+2*w}")
        for j in range(3):
            k(f"s_waitcnt lgkmcnt({4-2*j})")
            for e in range(0, 8, 2):
                if j == 0:
                    k(f"v_pk_mul_f32 {vr(vD+e,2)}, {vr(vF4+2,2)}, {vr(vPre+e,2)} op_sel_hi:[0,1]")
                else:
                    k(f"v_pk_fma_f32 {vr(vD+e,2)}, {vr(vF4+2*j+2,2)}, {vr(vPre+8*j+e,2)}, {vr(vD+e,2)} op_sel_hi:[0,1,1]")

    def hook():
        k(f"""
        s_cmp_eq_u32 s{sLast}, 12
        s_cbranch_scc0 L_nopre
        """)
        mreads()
        k("L_nopre:")

    def issue(p):
        if (XW >> p) & 1:
            k(f"s_waitcnt vmcnt({D-2})")
        if (XWF >> p) & 1:
            k(f"""
            s_bitcmp1_b32 s{sSp}, 0
            s_cbranch_scc1 L_xf{p}
            s_waitcnt vmcnt({D-2})
            L_xf{p}:
            """)
        if (WM or WMS) and (PM >> p) & 1:
            k(f"""
            s_bitcmp1_b32 s{sTh}, 0
            s_cbranch_scc0 L_th{p}
            s_waitcnt vmcnt({D-2})
            L_th{p}:
            """)
        ld(p + D, sOff if p + D < 8 else sNxt)

    def wait(p):
        if p in (4, 6) and SKIP:
            k(f"""
            s_bitcmp1_b32 s{sSp}, 0
            s_cbranch_scc1 L_sk{p}
            s_waitcnt vmcnt({D-1})
            L_sk{p}:
            """)
        else:
            k(f"s_waitcnt vmcnt({D-1})")

    k(f"""
    L_loop:
    s_mov_b64 exec, 1
    ds_add_rtn_u32 v{vNx}, v{vPa}, v{vFour}
    s_mov_b64 exec, -1
    """)
    for i in range(4):
        if i == 2:
            k(f"""
            s_waitcnt lgkmcnt(0)
            L_get:
            s_mov_b64 exec, 1
            ds_read_b32 v{vEn}, v{vLi}
            ds_read_b32 v{vEn+1}, v{vNx}
            s_mov_b64 exec, -1
            """)
        wait(i)
        qk(i)
        if i == 2:
            k(f"""
            s_waitcnt lgkmcnt(0)
            v_readfirstlane_b32 s{sT0}, v{vEn+1}
            v_readfirstlane_b32 s{sCnt}, v{vEn}
            s_max_u32 s{sT1}, s{sT0}, s{sCnt}
            s_cmp_eq_u32 s{sT1}, -1
            s_cbranch_scc1 L_retry
            s_and_b32 s{sNxt}, s{sT0}, 0xffff8000
            s_and_b32 s{sCnt}, s{sCnt}, 31
            s_and_b32 s{sPol}, s{sT0}, 32
            v_mov_b32 v{vLi}, v{vNx}
            """)
        issue(i)
    for j in (1, 2, 3):
        for i in range(4):
            src1 = vD + 4 * i if j == 1 else vT + i
            k(f"v_add_f32_dpp v{vT+i}, v{vD+4*i+j}, v{src1} quad_perm:[{j},{j},{j},{j}] {ALL}")
    for i in range(4):
        k(f"v_mul_f32 v{vT+i}, s{sC}, v{vT+i}")
    k(f"""
    s_cmp_lt_u32 s{sCnt}, 16
    s_cbranch_scc1 L_mask
    L_nomask:
    """)
    if LAZY:
        k(f"""
        v_max3_f32 v{vMx}, v{vT}, v{vT+1}, v{vT+2}
        v_max_f32 v{vMx}, v{vMx}, v{vT+3}
        v_cmp_gt_f32 vcc, v{vMx}, v{vM}
        s_and_b64 vcc, vcc, {sr(sMB,2)}
        s_cbranch_scc1 L_newmax
        L_maxok:
        """)
        warm(f"""
        L_newmax:
        v_max_f32 v{vMx}, v{vMx}, v{vM}
        v_mov_b32 v{vTmp}, v{vMx}
        v_permlane32_swap_b32 v{vMx}, v{vTmp}
        v_max_f32 v{vMx}, v{vMx}, v{vTmp}
        v_mov_b32 v{vTmp}, v{vMx}
        v_permlane16_swap_b32 v{vMx}, v{vTmp}
        v_max_f32 v{vMx}, v{vMx}, v{vTmp}
        v_sub_f32 v{vAl}, v{vM}, v{vMx}
        v_exp_f32 v{vAl}, v{vAl}
        v_mov_b32 v{vM}, v{vMx}
        v_mul_f32 v{vL}, v{vL}, v{vAl}
        """)
        for i in range(4):
            warm(f"v_mov_b32_dpp v{vAb}, v{vAl} row_newbcast:{4*i} row_mask:{hex(1<<i)} bank_mask:0xf")
        for e in range(8):
            warm(f"v_mul_f32 v{vAcc+4*e}, v{vAb}, v{vAcc+4*e}")
        warm("s_branch L_maxok")
    else:
        k(f"""
    v_max3_f32 v{vMx}, v{vT}, v{vT+1}, v{vT+2}
    v_max3_f32 v{vMx}, v{vMx}, v{vT+3}, v{vM}
    v_mov_b32 v{vTmp}, v{vMx}
    v_permlane32_swap_b32 v{vMx}, v{vTmp}
    v_max_f32 v{vMx}, v{vMx}, v{vTmp}
    v_mov_b32 v{vTmp}, v{vMx}
    v_permlane16_swap_b32 v{vMx}, v{vTmp}
    v_max_f32 v{vMx}, v{vMx}, v{vTmp}
    """)
    cold(f"""
    L_mask:                                    ; tokens at or past context_len
    v_mov_b32 v{vTmp}, s{sNeg}
    """)
    for i in range(4):
        cold(f"""
        s_sub_i32 s{sT0}, s{sCnt}, {i}
        v_cmp_gt_i32 vcc, s{sT0}, v{vG4}
        v_cndmask_b32 v{vT+i}, v{vTmp}, v{vT+i}, vcc
        """)
    cold("s_branch L_nomask")
    wait(4)
    issue(4)
    if LAZY:
        k(f"""
        v_sub_f32 v{vT}, v{vT}, v{vM}
        v_sub_f32 v{vT+1}, v{vT+1}, v{vM}
        v_exp_f32 v{vT}, v{vT}
        v_sub_f32 v{vT+2}, v{vT+2}, v{vM}
        v_exp_f32 v{vT+1}, v{vT+1}
        v_sub_f32 v{vT+3}, v{vT+3}, v{vM}
        v_exp_f32 v{vT+2}, v{vT+2}
        v_add_f32 v{vL}, v{vL}, v{vT}
        v_exp_f32 v{vT+3}, v{vT+3}
        v_add_f32 v{vTmp}, v{vT+1}, v{vT+2}
        v_cvt_pk_bf16_f32 v{vP}, v{vT}, v{vT+1}
        v_add_f32 v{vL}, v{vL}, v{vT+3}
        s_cmp_eq_u32 s{sNxt}, s{sEnd}
        v_cvt_pk_bf16_f32 v{vP+1}, v{vT+2}, v{vT+3}
        v_add_f32 v{vL}, v{vL}, v{vTmp}
        s_cbranch_scc1 L_none
        L_mld:
        """)
    elif TRIM:
        k(f"""
        v_sub_f32 v{vAl}, v{vM}, v{vMx}
        v_sub_f32 v{vT}, v{vT}, v{vMx}
        v_exp_f32 v{vAl}, v{vAl}
        v_sub_f32 v{vT+1}, v{vT+1}, v{vMx}
        v_exp_f32 v{vT}, v{vT}
        v_sub_f32 v{vT+2}, v{vT+2}, v{vMx}
        v_exp_f32 v{vT+1}, v{vT+1}
        v_sub_f32 v{vT+3}, v{vT+3}, v{vMx}
        v_exp_f32 v{vT+2}, v{vT+2}
        v_fma_f32 v{vL}, v{vL}, v{vAl}, v{vT}
        v_exp_f32 v{vT+3}, v{vT+3}
        v_add_f32 v{vTmp}, v{vT+1}, v{vT+2}
        v_mov_b32 v{vM}, v{vMx}
        v_add_f32 v{vL}, v{vL}, v{vT+3}
        s_cmp_eq_u32 s{sNxt}, s{sEnd}
        v_add_f32 v{vL}, v{vL}, v{vTmp}
        s_cbranch_scc1 L_none                      ; last page: (m, l) are final before its V rows land
        L_mld:
        v_mov_b32_dpp v{vAb}, v{vAl} row_newbcast:0 row_mask:0x1 bank_mask:0xf
        v_cvt_pk_bf16_f32 v{vP}, v{vT}, v{vT+1}
        v_cvt_pk_bf16_f32 v{vP+1}, v{vT+2}, v{vT+3}
        v_mov_b32_dpp v{vAb}, v{vAl} row_newbcast:4 row_mask:0x2 bank_mask:0xf
        v_mov_b32_dpp v{vTmp}, v{vAl} row_newbcast:8 row_mask:0x4 bank_mask:0xf
        s_nop 0
        v_mov_b32_dpp v{vAb}, v{vAl} row_newbcast:12 row_mask:0x8 bank_mask:0xf
        v_mov_b32_dpp v{vAb}, v{vAl} row_newbcast:8 row_mask:0x4 bank_mask:0xf
        """.replace(f"        v_mov_b32_dpp v{vTmp}, v{vAl} row_newbcast:8 row_mask:0x4 bank_mask:0xf\n        s_nop 0\n", ""))
        for e in range(8):
            k(f"v_mul_f32 v{vAcc+4*e}, v{vAb}, v{vAcc+4*e}")
    else:
        k(f"""
        v_sub_f32 v{vAl}, v{vM}, v{vMx}
        v_mov_b32 v{vM}, v{vMx}
        v_exp_f32 v{vAl}, v{vAl}
        """)
        for i in range(4):
            k(f"v_sub_f32 v{vT+i}, v{vT+i}, v{vMx}")
        for i in range(4):
            k(f"v_exp_f32 v{vT+i}, v{vT+i}")
            k(f"v_mov_b32_dpp v{vAb}, v{vAl} row_newbcast:{4*i} row_mask:{hex(1<<i)} bank_mask:0xf")
            if i == 1:
                k(f"v_fma_f32 v{vL}, v{vL}, v{vAl}, v{vT}")
            if i == 2:
                k(f"v_cvt_pk_bf16_f32 v{vP}, v{vT}, v{vT+1}")
        k(f"""
        v_add_f32 v{vTmp}, v{vT+1}, v{vT+2}
        v_cvt_pk_bf16_f32 v{vP+1}, v{vT+2}, v{vT+3}
        v_add_f32 v{vL}, v{vL}, v{vT+3}
        v_add_f32 v{vL}, v{vL}, v{vTmp}
        """)
        for e in range(8):
            k(f"v_mul_f32 v{vAcc+4*e}, v{vAb}, v{vAcc+4*e}")
        k(f"""
        s_cmp_eq_u32 s{sNxt}, {hex(END)}
        s_cbranch_scc1 L_ml
        L_mld:
        """)
    wait(5)
    issue(5)
    for e in range(8):
        perm(e, 0)
    if EARLYM:
        k(f"""
        s_cmp_eq_u32 s{sNxt}, s{sEnd}
        s_cbranch_scc1 L_lastp
        """)
        wait(6)
        k("L_lastd:")
        issue(6)
    else:
        k(f"""
        s_cmp_eq_u32 s{sNxt}, s{sEnd}
        s_cbranch_scc0 L_nolast
        s_waitcnt lgkmcnt(0)
        v_readfirstlane_b32 s{sLast}, v{vNx}
        L_nolast:
        """)
        wait(6)
        issue(6)
        if HOOK == 6:
            hook()
    wait(7)
    if DIAG == 2:
        k(st(1))
    if HOOK == 7:
        hook()
    issue(7)
    perm(0, 1)
    perm(1, 1)
    for e in range(8):
        if e + 2 < 8:
            perm(e + 2, 1)
        pv(e)
    k(f"""
    s_mov_b32 s{sOff}, s{sNxt}
    s_cmp_eq_u32 s{sNxt}, {hex(END)}
    s_cbranch_scc0 L_loop
    s_cmp_lg_u32 s{sFb}, 0
    s_cbranch_scc1 L_fbnext
    """)
    vS0 = vD
    k(f"""
    {f"s_cmp_eq_u32 s{sLast}, 13" if EARLYM else ""}
    {"s_cbranch_scc1 L_own" if EARLYM else ""}
    s_cmp_eq_u32 s{sLast}, 12
    s_cbranch_scc0 L_give
    L_mrg:                                     ; lane (c, g): O[query g][8c .. 8c+7]
    """)
    mbase("L_again")
    k(f"""
    {"L_own:" if EARLYM else ""}
    s_cmp_lg_u32 s{sPol}, 0
    """)
    for e in range(8):
        k(f"v_fmac_f32 v{vS0+e}, v{vF4}, v{vAcc+4*e}")
    for j in range(4):
        k(f"v_cvt_pk_bf16_f32 v{vD+j}, v{vS0+2*j}, v{vS0+2*j+1}")
        k(f"v_xor_b32 v{vD+j}, v{vAl}, v{vD+j}")
    k(f"""
    {st(2)}
    s_cbranch_scc1 L_dn1
    buffer_store_dwordx4 {vr(vD,4)}, v{vRo}, {sr(SW,4)}, s{sRec} offen
    """)
    diag_store(1)
    k(f"""
    s_endpgm
    L_dn1:
    buffer_store_dwordx4 {vr(vD,4)}, v{vRo}, {sr(SW,4)}, s{sRec} offen sc1
    s_endpgm
    L_again:
    s_waitcnt lgkmcnt(0)
    """)
    mreads()
    k(f"""
    s_branch L_mrg
    L_give:                                    ; hand the sums to the merging worker
    """)
    for e in range(8):
        k(f"v_mov_b32 v{vS0+e}, v{vAcc+4*e}")
    k(f"""
    ds_write_b128 v{vSl}, {vr(vS0,4)} offset:{ACC}
    ds_write_b128 v{vSl}, {vr(vS0+4,4)} offset:{ACC+1024}
    s_mov_b64 exec, 1
    ds_add_u32 v{vPa}, v{vFour} offset:64
    {st(2)}
    s_waitcnt lgkmcnt(0)
    """)
    diag_store(0)
    k(f"""
    s_endpgm
    """)
    if EARLYM:
        k(f"""
        L_lastp:                                   ; last page, V rows 2 and 3 still to come
        s_waitcnt lgkmcnt(0)
        v_readfirstlane_b32 s{sLast}, v{vNx}
        s_cmp_eq_u32 s{sLast}, 12
        s_cbranch_scc0 L_lastd
        """)
        mreads()
        mbase("L_lastr")
        k(f"""
        s_mov_b32 s{sLast}, 13
        s_branch L_lastd
        L_lastr:
        s_waitcnt vmcnt({D-1}) lgkmcnt(0)
        """)
        mreads()
        k("s_branch L_lastd")
    k(f"""
    L_retry:
    s_cmp_eq_u32 s{sCnt}, {hex(END)}
    s_cbranch_scc0 L_get
    s_mov_b32 s{sPol}, 32
    L_none:
    {st(1) if DIAG == 1 else ""}
    """)
    lreduce(k)
    k(f"""
    s_mov_b32 exec_lo, 0x1111
    s_mov_b32 exec_hi, 0
    ds_write_b64 v{vMw}, {vr(vM,2)} offset:{MLW}
    s_mov_b64 exec, 1
    ds_add_rtn_u32 v{vNx}, v{vPa}, v{vFour} offset:68
    s_mov_b64 exec, -1
    s_cmp_eq_u32 s{sCnt}, {hex(END)}
    s_cbranch_scc0 L_mld
    s_waitcnt lgkmcnt(0)
    v_readfirstlane_b32 s{sLast}, v{vNx}
    s_cmp_eq_u32 s{sLast}, 12
    s_cbranch_scc1 L_again
    s_branch L_give
    """)

    k.lines += warm.lines
    vOf, vMo, vPw, vPm, vPr_, vOo = 2, 3, 4, 5, 6, 7
    vX, vY, vW, vZ = 8, 9, 10, 11
    vML = 12
    vMa, vRr, vSa = 16, 18, 20
    vA, vPr = 24, 28
    vOr, vOs, vU = 32, 34, 36
    vBt, vDyn, vCo, vPq, vCt = 42, 43, 44, 45, 46
    vE4, vEl = 48, 52
    vV2, vBase, vM4 = 56, 58, 60

    def ctxcalc(kk):
        kk(f"""
        s_min_i32 s{sT0}, s{sCtx}, 65536
        s_cmp_le_i32 s{sCtx}, 0
        s_cselect_b32 s{sT0}, 65536, s{sT0}
        s_add_u32 s{sT0}, s{sT0}, 15
        s_lshr_b32 s{sN}, s{sT0}, 4
        s_min_i32 s{sCtx}, s{sCtx}, 65536
        s_max_i32 s{sCtx}, s{sCtx}, 0
        """)

    def entry(kk, vpage, vbt, vt):
        kk(f"""
        v_lshlrev_b32 v{vt}, 4, v{vpage}
        v_sub_u32 v{vt}, s{sCtx}, v{vt}
        v_med3_i32 v{vt}, v{vt}, 0, 16
        v_cmp_gt_u32 vcc, s{sN}, v{vpage}
        v_lshl_or_b32 v{vbt}, v{vbt}, 15, v{vt}
        v_bfrev_b32 v{vt}, 1
        v_and_b32 v{vbt}, 0x7fffffff, v{vbt}
        v_cndmask_b32 v{vbt}, v{vt}, v{vbt}, vcc
        """)

    vMb, vRs, vSb, vW2, vZ2 = 17, 19, 21, 14, 15
    vOr2, vOs2, vOf2 = 56, 58, 60
    k(f"""
    L_service:
    s_mov_b64 {sr(sE,2)}, 0
    v_lshlrev_b32 v{vX}, 9, v{vLane}
    v_lshlrev_b32 v{vCo}, 2, v{vLane}
    v_lshlrev_b32 v{vDyn}, 4, v{vLane}
    v_mov_b32 v{vEl}, -1
    v_mov_b32 v{vEl+1}, -1
    v_mov_b32 v{vEl+2}, -1
    v_mov_b32 v{vEl+3}, -1
    ds_write_b128 v{vDyn}, {vr(vEl,4)}
    v_mov_b32 v{vY}, 0
    v_writelane_b32 v{vY}, 16, 0
    ds_write_b32 v{vCo}, v{vY} offset:{POP}
    s_lshl_b32 s{sIdx}, s{sSh}, 4
    s_lshl_b32 s{sT0}, s{sH}, 15
    s_lshl_b32 s{sT1}, s{sSh}, 5               ; q*256 + oct*32
    s_add_u32 s{sT0}, s{sT0}, s{sT1}
    v_lshrrev_b32 v{vY}, 2, v{vLane}
    v_and_b32 v{vW}, 3, v{vLane}
    v_lshlrev_b32 v{vZ}, 10, v{vY}
    v_lshl_add_u32 v{vZ}, v{vW}, 3, v{vZ}
    v_add_u32 v{vOf}, s{sT0}, v{vZ}
    v_add_u32 v{vOf2}, 0x4000, v{vOf}
    s_lshr_b32 s{sI}, s{sSh}, 3
    s_lshl_b32 s{sT0}, s{sH}, 12
    s_lshl4_add_u32 s{sT0}, s{sI}, s{sT0}
    s_add_u32 s{sT0}, s{sT0}, {ML_OFF}
    v_lshlrev_b32 v{vZ}, 7, v{vY}
    v_lshl_add_u32 v{vZ}, v{vW}, 2, v{vZ}
    v_add_u32 v{vMo}, s{sT0}, v{vZ}
    s_lshl_b32 s{sRec}, s{sH}, 5
    s_add_u32 s{sRec}, s{sRec}, s{sSh}
    s_lshl_b32 s{sRec}, s{sRec}, 10
    s_lshr_b32 s{sMl}, s{sRec}, 3
    s_add_u32 s{sMl}, s{sMl}, {ML_OFF}
    s_waitcnt lgkmcnt(0)
    s_load_dword s{sCtx}, {sr(sCTX,2)}, 0
    s_load_dword s{sR}, {sr(sWS,2)}, s{sRec}
    """)
    srd(k, SB, sBT, 16384)
    k(f"buffer_load_dwordx4 {vr(vE4,4)}, v{vX}, {sr(SB,4)}, s{sIdx} offen")
    srd(k, SW, sWS, WS_USED)
    k(f"""
    buffer_load_dword v{vSa}, v{vMo}, {sr(SW,4)}, 0 offen sc1
    buffer_load_dword v{vSb}, v{vMo}, {sr(SW,4)}, 0 offen offset:2048 sc1
    buffer_load_dwordx2 {vr(vOs,2)}, v{vOf}, {sr(SW,4)}, 0 offen sc1
    buffer_load_dwordx2 {vr(vOs2,2)}, v{vOf2}, {sr(SW,4)}, 0 offen sc1
    s_lshl_b32 s{sT0}, s{sH}, 10
    s_add_u32 s{sT0}, s{sT0}, s{sT1}
    v_lshrrev_b32 v{vX}, 4, v{vLane}
    v_lshl_add_u32 v{vX}, v{vW}, 2, v{vX}
    v_lshl_add_u32 v{vOo}, v{vX}, 1, s{sT0}
    s_barrier
    s_waitcnt lgkmcnt(0)
    s_add_u32 s{sR}, s{sR}, s{sMl}
    s_mul_i32 s{sR}, s{sR}, 0x9e3779b1
    s_lshr_b32 s{sT0}, s{sR}, 15
    s_xor_b32 s{sR}, s{sR}, s{sT0}
    s_mul_i32 s{sR}, s{sR}, 0x85ebca6b         ; salt
    v_mov_b32 v{vW}, {POP}
    v_mov_b32 v{vY}, s{sR}
    ds_write_b32 v{vW}, v{vY} offset:72
    """)
    ctxcalc(k)
    k(f"""
    s_lshr_b32 s{sS}, s{sN}, 7
    s_max_i32 s{sS}, s{sS}, 1
    s_lshl_b32 s{sT1}, s{sSh}, 2
    v_lshl_add_u32 v{vX}, v{vLane}, 7, s{sT1}
    s_lshl_b32 s{sT0}, s{sS}, 7
    s_add_u32 s{sT0}, s{sT0}, s{sSh}
    v_lshl_add_u32 v{vBt}, v{vLane}, 5, s{sT0}
    v_lshlrev_b32 v{vEl}, 2, v{vBt}
    v_cmp_gt_u32 vcc, s{sS}, v{vLane}
    s_mov_b64 exec, 15
    buffer_load_dword v{vEl}, v{vEl}, {sr(SB,4)}, 0 offen
    s_mov_b64 exec, vcc
    s_waitcnt vmcnt(5)
    """)
    for w in range(4):
        entry(k, vX, vE4 + w, vY)
        if w < 3:
            k(f"v_add_u32 v{vX}, 1, v{vX}")
    k(f"""
    ds_write_b128 v{vDyn}, {vr(vE4,4)}
    s_mov_b64 exec, -1
    """)
    srd(k, SO, sOUT, 8192)
    k(f"""
    s_mov_b32 s{sC}, 0xffff0000
    """)
    srd(k, SD, sDBG, 256)
    k(f"""
    s_getreg_b32 s{sXc}, hwreg(HW_REG_XCC_ID)
    s_lshl_b32 s{sT0}, s{sH}, 5
    v_mov_b32 v{vCo}, s{sT0}
    s_and_b32 s{sXc}, s{sXc}, 15
    s_add_u32 s{sXc}, s{sXc}, 1
    s_mov_b32 s{sPol}, {32 if FORCESC else 0}
    s_cmp_eq_u32 s{sSh}, 0
    s_cbranch_scc0 L_nl
    v_mov_b32 v{vX}, s{sXc}
    s_mov_b64 exec, 1
    buffer_store_dword v{vX}, v{vCo}, {sr(SD,4)}, 0 offen offset:4 sc1
    s_mov_b64 exec, -1
    L_nl:
    s_waitcnt vmcnt(0)
    """)
    entry(k, vBt, vEl, vY)
    k(f"""
    s_lshl_b32 s{sE}, s{sS}, 4
    v_lshl_add_u32 v{vDyn}, v{vLane}, 2, s{sE}
    s_sub_i32 s{sE}, s{sE}, {4*LEADP}
    s_min_i32 s{sOff}, s{sE}, {4*CHK}
    s_mov_b32 s{sI}, 0
    L_s0:
    ds_read_b32 v{vX}, v{vW}
    s_waitcnt lgkmcnt(0)
    v_readfirstlane_b32 s{sT0}, v{vX}
    s_cmp_ge_i32 s{sT0}, s{sOff}
    s_cbranch_scc1 L_s2
    s_sleep 4
    s_branch L_s0
    L_s2:
    buffer_load_dwordx2 {vr(vPr,2)}, v{vCo}, {sr(SD,4)}, 0 offen sc1
    s_waitcnt vmcnt(0)
    v_readfirstlane_b32 s{sT1}, v{vPr}
    v_readfirstlane_b32 s{sT0}, v{vPr+1}
    s_or_b32 s{sPol}, s{sPol}, s{sT1}
    s_cmp_lg_u32 s{sI}, 0
    s_cbranch_scc1 L_s1
    s_mov_b32 s{sI}, 1
    s_mov_b32 s{sOff}, s{sE}
    s_cmp_eq_u32 s{sT0}, s{sXc}
    s_cbranch_scc1 L_s0
    s_mov_b32 s{sPol}, 32
    v_mov_b32 v{vX}, 32
    s_mov_b64 exec, 1
    buffer_store_dword v{vX}, v{vCo}, {sr(SD,4)}, 0 offen sc1
    s_mov_b64 exec, -1
    s_branch L_s0
    L_s1:
    s_and_b32 s{sPol}, s{sPol}, 32
    s_mov_b64 exec, 0xffff
    v_or_b32 v{vEl}, s{sPol}, v{vEl}
    ds_write_b32 v{vDyn}, v{vEl}
    s_mov_b64 exec, -1
    s_mov_b32 s{sI}, {LIMIT if FORCEFB else 0}
    s_mov_b32 s{sLim}, {LIMIT if FORCEFB else LIM0}
    v_bfe_u32 v{vX}, v{vLane}, 2, 2
    v_lshlrev_b32 v{vX}, 5, v{vX}
    v_lshlrev_b32 v{vCo}, 2, v{vLane}
    s_waitcnt vmcnt(0)
    L_gate:                                    ; until every worker's (m, l) is there
    {f"s_sleep {GSL}" if GSL else ""}
    ds_read_b32 v{vY}, v{vW} offset:68
    ds_read_b128 v[64:67], v{vX} offset:{MLW}
    ds_read_b128 v[68:71], v{vX} offset:{MLW+16}
    s_waitcnt lgkmcnt(2)
    v_cmp_ne_u32 vcc, 16, v{vY}
    s_cbranch_vccnz L_gate
    {st(1) if DIAG == 1 else ""}
    """)
    if SVML:
        k(f"""
        s_waitcnt lgkmcnt(0)
        v_max3_f32 v{vX}, v64, v66, v68
        v_max_f32 v{vX}, v{vX}, v70
        """)
        mlpub(64, vX, vCo, "b")
    k(f"""
    s_branch L_m1
    L_m0:                                      ; wait for the (m, l, salt) entries
    s_bcnt1_i32_b64 s{sT0}, vcc
    L_m2:                                      ; back off in proportion to the number of missing producers
    s_sleep {GR}
    s_sub_i32 s{sT0}, s{sT0}, {GSUB}
    s_cmp_gt_i32 s{sT0}, 0
    s_cbranch_scc1 L_m2
    s_mov_b64 exec, vcc
    L_m1:
    buffer_load_dword v{vMa}, v{vMo}, {sr(SW,4)}, 0 offen sc1
    buffer_load_dword v{vMb}, v{vMo}, {sr(SW,4)}, 0 offen offset:2048 sc1
    s_mov_b64 exec, -1
    s_add_u32 s{sI}, s{sI}, 1
    s_cmp_ge_u32 s{sI}, s{sLim}
    s_cbranch_scc1 L_chk1
    L_m3:
    s_waitcnt vmcnt(0)
    v_xor_b32 v{vU}, v{vMa}, v{vSa}
    v_xor_b32 v{vU+1}, v{vMb}, v{vSb}
    v_mov_b32_dpp v{vRr}, v{vMa} quad_perm:[2,2,2,2] {ALL}
    v_min_u32 v{vU}, v{vU}, v{vU+1}
    v_mov_b32_dpp v{vRs}, v{vMb} quad_perm:[2,2,2,2] {ALL}
    v_cmp_eq_u32 vcc, 0, v{vU}
    v_xor_b32_dpp v{vW}, v{vMa}, v{vRr} quad_perm:[0,0,0,0] {ALL}     ; m
    s_cbranch_vccnz L_m0
    {st(2) if DIAG == 1 else st(1)}
    buffer_load_dwordx2 {vr(vOr,2)}, v{vOf}, {sr(SW,4)}, 0 offen sc1
    buffer_load_dwordx2 {vr(vOr2,2)}, v{vOf2}, {sr(SW,4)}, 0 offen sc1
    v_xor_b32_dpp v{vW2}, v{vMb}, v{vRs} quad_perm:[0,0,0,0] {ALL}
    v_xor_b32_dpp v{vZ}, v{vMa}, v{vRr} quad_perm:[1,1,1,1] {ALL}     ; l
    v_max_f32 v{vML}, v{vW}, v{vW2}
    v_xor_b32_dpp v{vZ2}, v{vMb}, v{vRs} quad_perm:[1,1,1,1] {ALL}
    v_max_f32_dpp v{vML}, v{vML}, v{vML} row_ror:4 {ALL}
    v_max_f32_dpp v{vML}, v{vML}, v{vML} row_ror:8 {ALL}
    v_mov_b32 v{vY}, v{vML}
    v_permlane16_swap_b32 v{vML}, v{vY}
    v_max_f32 v{vML}, v{vML}, v{vY}
    v_mov_b32 v{vY}, v{vML}
    v_permlane32_swap_b32 v{vML}, v{vY}
    v_max_f32 v{vML}, v{vML}, v{vY}
    v_sub_f32 v{vW}, v{vW}, v{vML}
    v_sub_f32 v{vW2}, v{vW2}, v{vML}
    v_exp_f32 v{vW}, v{vW}
    v_exp_f32 v{vW2}, v{vW2}
    v_mul_f32 v{vZ}, v{vW}, v{vZ}
    v_fmac_f32 v{vZ}, v{vW2}, v{vZ2}
    v_add_f32_dpp v{vZ}, v{vZ}, v{vZ} row_ror:4 {ALL}
    v_add_f32_dpp v{vZ}, v{vZ}, v{vZ} row_ror:8 {ALL}
    v_mov_b32 v{vY}, v{vZ}
    v_permlane16_swap_b32 v{vZ}, v{vY}
    v_add_f32 v{vZ}, v{vZ}, v{vY}
    v_mov_b32 v{vY}, v{vZ}
    v_permlane32_swap_b32 v{vZ}, v{vY}
    v_add_f32 v{vZ}, v{vZ}, v{vY}
    v_rcp_f32 v{vZ}, v{vZ}
    {f"v_mul_f32 v{vW}, v{vW}, v{vZ}" if TRIM else ""}
    {f"v_mul_f32 v{vW2}, v{vW2}, v{vZ}" if TRIM else ""}
    {"s_waitcnt vmcnt(0)" if PIPE else ""}
    s_branch L_o1
    L_o0:                                      ; wait for the record pieces
    s_mov_b64 exec, vcc
    buffer_load_dwordx2 {vr(vOr,2)}, v{vOf}, {sr(SW,4)}, 0 offen sc1
    buffer_load_dwordx2 {vr(vOr2,2)}, v{vOf2}, {sr(SW,4)}, 0 offen sc1
    s_mov_b64 exec, -1
    s_add_u32 s{sI}, s{sI}, 1
    s_cmp_ge_u32 s{sI}, s{sLim}
    s_cbranch_scc1 L_chk2
    L_o1:
    s_waitcnt vmcnt({2*PIPE})
    v_xor_b32 v{vU}, v{vOr}, v{vOs}
    v_xor_b32 v{vU+1}, v{vOr+1}, v{vOs+1}
    v_xor_b32 v{vU+2}, v{vOr2}, v{vOs2}
    v_xor_b32 v{vU+3}, v{vOr2+1}, v{vOs2+1}
    v_min3_u32 v{vU}, v{vU}, v{vU+1}, v{vU+2}
    v_xor_b32 v{vX}, v{vOr}, v{vRr}
    v_min_u32 v{vU}, v{vU}, v{vU+3}
    v_xor_b32 v{vY}, v{vOr+1}, v{vRr}
    v_cmp_eq_u32 vcc, 0, v{vU}
    v_lshlrev_b32 v{vA}, 16, v{vX}
    v_and_b32 v{vA+1}, s{sC}, v{vX}
    v_lshlrev_b32 v{vA+2}, 16, v{vY}
    v_and_b32 v{vA+3}, s{sC}, v{vY}
    s_cbranch_vccnz L_o0
    {st(2) if DIAG == 2 else ""}
    v_xor_b32 v{vX}, v{vOr2}, v{vRs}
    v_xor_b32 v{vY}, v{vOr2+1}, v{vRs}
    v_mul_f32 v{vA}, v{vW}, v{vA}
    v_mul_f32 v{vA+1}, v{vW}, v{vA+1}
    v_mul_f32 v{vA+2}, v{vW}, v{vA+2}
    v_mul_f32 v{vA+3}, v{vW}, v{vA+3}
    v_lshlrev_b32 v{vU}, 16, v{vX}
    v_and_b32 v{vU+1}, s{sC}, v{vX}
    v_lshlrev_b32 v{vU+2}, 16, v{vY}
    v_and_b32 v{vU+3}, s{sC}, v{vY}
    v_fmac_f32 v{vA}, v{vW2}, v{vU}
    v_fmac_f32 v{vA+1}, v{vW2}, v{vU+1}
    v_fmac_f32 v{vA+2}, v{vW2}, v{vU+2}
    v_fmac_f32 v{vA+3}, v{vW2}, v{vU+3}
    """)
    for sh in (4, 8):
        for j in range(4):
            k(f"v_add_f32_dpp v{vA+j}, v{vA+j}, v{vA+j} row_ror:{sh} {ALL}")
    k(f"""
    v_permlane16_swap_b32 v{vA}, v{vA+1}
    s_mov_b32 vcc_lo, 0x000f000f
    v_permlane16_swap_b32 v{vA+2}, v{vA+3}
    v_add_f32 v{vA}, v{vA}, v{vA+1}
    v_add_f32 v{vA+2}, v{vA+2}, v{vA+3}
    s_mov_b32 vcc_hi, 0x000f000f
    v_permlane32_swap_b32 v{vA}, v{vA+2}
    v_add_f32 v{vA}, v{vA}, v{vA+2}
    s_mov_b64 exec, vcc
    {"" if TRIM else f"v_mul_f32 v{vA}, v{vA}, v{vZ}"}
    v_cvt_pk_bf16_f32 v{vA}, v{vA}, v{vA}
    buffer_store_short v{vA}, v{vOo}, {sr(SO,4)}, 0 offen
    """)
    diag_store(f"s{sI}")
    if MX:
        k(f"""
        s_mov_b64 exec, -1
        v_mov_b32 v{vX}, {POP}
        ds_read_b32 v{vX}, v{vX} offset:80
        s_waitcnt lgkmcnt(0)
        v_readfirstlane_b32 s{sT1}, v{vX}
        s_mul_i32 s{sT1}, s{sT1}, 25
        s_add_u32 s{sT1}, s{sT1}, 3000
        s_and_b32 s{sT0}, s2, 0xf8
        s_cmp_eq_u32 s{sT0}, 0x40
        s_cbranch_scc0 L_end
        L_spinx:
        s_sleep 2
        s_memrealtime {sr(sTS+2,2)}
        s_waitcnt lgkmcnt(0)
        s_sub_u32 s{sT0}, s{sTS+2}, s{sTS}
        s_cmp_lt_u32 s{sT0}, s{sT1}
        s_cbranch_scc1 L_spinx
        """)
    if MUL:
        k(f"""
        s_waitcnt vmcnt(0)
        s_memrealtime {sr(sTS+2,2)}
        s_waitcnt lgkmcnt(0)
        s_sub_u32 s{sT1}, s{sTS+2}, s{sTS}
        s_mul_i32 s{sT1}, s{sT1}, {MUL}
        L_spinm:
        s_sleep 2
        s_memrealtime {sr(sTS+2,2)}
        s_waitcnt lgkmcnt(0)
        s_sub_u32 s{sT0}, s{sTS+2}, s{sTS}
        s_cmp_lt_u32 s{sT0}, s{sT1}
        s_cbranch_scc1 L_spinm
        """)
    k("""
    L_end:
    s_endpgm
    """)
    for n, back in ((1, "L_m3"), (2, "L_o1")):
        cold(f"""
        L_chk{n}:                                    ; many looks without success: give up early on a short context
        s_cmp_ge_u32 s{sI}, {LIMIT}
        s_cbranch_scc1 L_fb
        s_load_dword s{sT0}, {sr(sCTX,2)}, 0
        s_mov_b32 s{sLim}, {LIMIT}
        s_waitcnt lgkmcnt(0)
        s_sub_u32 s{sT0}, s{sT0}, 1
        s_cmp_lt_u32 s{sT0}, 8192
        s_cbranch_scc0 {back}
        {"s_branch L_fb" if n == 1 else ""}
        """)
    cold(f"""
    L_fb:
    s_load_dword s{sCtx}, {sr(sCTX,2)}, 0
    s_waitcnt vmcnt(0) lgkmcnt(0)
    """)
    ctxcalc(cold)
    cold(f"""
    s_mov_b32 s{sE}, 0
    s_mov_b32 s{sL0}, 0
    L_fbfill:
    """)
    srd(cold, SB, sBT, 16384)
    cold(f"""
    v_add_u32 v{vFp}, s{sE}, v{vLane}
    v_lshlrev_b32 v{vFb}, 2, v{vFp}
    buffer_load_dword v{vFb}, v{vFb}, {sr(SB,4)}, 0 offen
    s_lshl_b32 s{sIdx}, s{sE}, 2
    s_waitcnt vmcnt(0)
    """)
    entry(cold, vFp, vFb, vTmp)
    cold(f"""
    s_bitset1_b32 s{sFb}, 31
    v_lshlrev_b32 v{vFp}, 2, v{vLane}
    v_writelane_b32 v{vFb}, s{sFb}, 63
    v_mov_b32 v{vPa}, {POP}
    v_mov_b32 v{vFour}, 4
    ds_write_b32 v{vFp}, v{vFb}
    ds_write_b32 v{vPa}, v{vFour}
    s_load_dword s{sBt0}, {sr(sBT,2)}, s{sIdx}
    s_branch L_setup
    L_fbnext:
    s_waitcnt vmcnt(0)
    s_add_u32 s{sE}, s{sE}, 63
    s_cmp_lt_u32 s{sE}, s{sN}
    s_cbranch_scc1 L_fbfill
    """)
    lreduce(cold)
    cold(f"v_rcp_f32 v{vAl}, v{vL}")
    for i in range(4):
        cold(f"v_mov_b32_dpp v{vAb}, v{vAl} row_newbcast:{4*i} row_mask:{hex(1<<i)} bank_mask:0xf")
    for e in range(8):
        cold(f"v_mul_f32 v{vAcc+4*e}, v{vAb}, v{vAcc+4*e}")
    for j in range(4):
        cold(f"v_cvt_pk_bf16_f32 v{vD+j}, v{vAcc+8*j}, v{vAcc+8*j+4}")
    srd(cold, SO, sOUT, 8192)
    cold(f"""
    s_lshl_b32 s{sT0}, s{sSh}, 1
    s_lshl_b32 s{sT1}, s{sH}, 10
    v_lshlrev_b32 v{vTmp}, 4, v{vLane}
    s_lshl_b64 exec, 3, s{sT0}
    buffer_store_dwordx4 {vr(vD,4)}, v{vTmp}, {sr(SO,4)}, s{sT1} offen
    s_endpgm
    """)
    k.lines += cold.lines
    body = k.done()

    out = HEADER + ("; nwaves=1280 diagoff=3145728 p0 w5\n" if DIAG else "") + f"; @launch grid=(256,1,1) block=(320,1,1) lds={LDS}\n" + DOC
    out += '.amdgcn_target "amdgcn-amd-amdhsa--gfx950"\n.text\n'
    out += f".globl {NAME}_kernel\n.p2align 8\n.type {NAME}_kernel,@function\n{NAME}_kernel:\n"
    out += body
    out += f""".section .rodata,"a"
.p2align 6
.amdhsa_kernel {NAME}_kernel
  .amdhsa_next_free_vgpr {NV}
  .amdhsa_next_free_sgpr {NS}
  .amdhsa_accum_offset {NV}
  .amdhsa_group_segment_fixed_size 0
  .amdhsa_kernarg_size 64
  .amdhsa_user_sgpr_count 2
  .amdhsa_user_sgpr_kernarg_segment_ptr 1
  .amdhsa_system_sgpr_workgroup_id_x 1
.end_amdhsa_kernel
"""
    return out


if __name__ == "__main__":
    kw = {}
    for a in sys.argv[2:]:
        key, val = a.split("=")
        kw[key] = int(val, 0)
    open(sys.argv[1], "w").write(gen(**kw))
```

```python
import sys
import struct
from asmlib import K, vr, sr

NAME = "standalone__paged_block_table_kv_pagedattention__decode"
KV_BYTES = 4100 * 32768
HEADER = open("cdna_kernels/" + NAME + ".s.ref").read().split("; Override")[0]
ML_OFF = 0x40000
WS_USED = 0x48000
END = 0x80000000
POP = 1024
CTR = POP + 64
MLW = POP + 128
ACC = 2048
LDS = ACC + 8192

DOC = """;
"""


def f32(x):
    return "0x%08x" % struct.unpack("<I", struct.pack("<f", x))[0]


def gen(GR=1, LIMIT=2048, LIM0=64, CHK=24, LEADP=12, SLOWH=0x22, FASTL=1, FORCEFB=0, FORCESC=0, MUL=0, SCR=0, XD=0, FO=0, GSUB=16, SVML=1, PRE=0, NOSL=0, GSL=1, HOOK=6, TRIM=1, WM=0, WMS=-1, PM=0xff, SKIP=0, ROT=0, PIPE=0, DIAG=0, EARLYM=0, LAZY=1, XW=0, XWF=0, MX=0, ORD=0):
    global WS_USED
    if XD or DIAG:
        WS_USED = 0x800000
    D = 6
    k = K()
    cold = K()
    warm = K()
    sQ, sKp, sVp, sBT, sCTX, sOUT, sDBG, sWS = 4, 6, 8, 10, 12, 14, 16, 18
    SK, SV, SB, SQ, SW, SD, SO = 20, 24, 28, 32, 36, 60, 64
    sH, sL0, sWv, sJ, sCtx, sN, sI, sCnt, sOff, sC, sPlo, sPhi, sT0, sT1, sNeg, sIdx = range(40, 56)
    sBt0, sRec, sMl, sNxt = 56, 57, 58, 59
    sE, sFb, sR, sS, sSh, sBad, sHq, sOct, sLim, sPol = range(68, 78)
    sMA, sMB, sXc, sFast, sSp, sEnd = 78, 80, 82, 83, 84, 85
    sLast = sFast
    sTh = sMA
    if WMS < 0:
        WMS = WM
    sMk = 86
    sTS = 88
    NS = 96 if MUL or DIAG or MX else 88
    vLane, vKo0, vKo1, vVo0, vVo1, vLi, vG4, vM, vL, vMx, vTmp, vAl, vAb = range(1, 14)
    vP, vQ, vT, vD, vB, vAcc, vKA, vVA = 14, 16, 20, 24, 40, 56, 88, 104
    vRo, vMo_w, vEn, vPa, vNx, vFour = 120, 121, 122, 124, 125, 126
    vFp, vFb = vEn, vEn + 1
    vPre, vPc, vF4, vAd = 128, 152, 154, 162
    vSl, vMw = 169, 170
    NV = 172
    ALL = "row_mask:0xf bank_mask:0xf"

    def srd(kk, S, ptr, size):
        kk(f"""
        s_mov_b32 s{S}, s{ptr}
        s_mov_b32 s{S+1}, s{ptr+1}
        s_mov_b32 s{S+2}, {size}
        s_mov_b32 s{S+3}, 0x20000
        """)

    def diag_store(flag):
        if not DIAG:
            return
        k(f"""
        s_waitcnt vmcnt(0)
        s_memrealtime {sr(sTS+6,2)}
        s_getreg_b32 s{sT1}, hwreg(HW_REG_XCC_ID)
        s_waitcnt lgkmcnt(0)
        s_mov_b64 exec, -1
        v_mov_b32 v24, s{sTS}
        v_mov_b32 v25, s{sTS+2}
        v_mov_b32 v26, s{sTS+4}
        v_mov_b32 v27, s{sTS+6}
        v_mov_b32 v28, s{sT1}
        v_mov_b32 v29, s{sWv}
        v_mov_b32 v30, 0
        v_mov_b32 v31, {flag}
        s_mul_i32 s{sT0}, s2, 5
        s_add_u32 s{sT0}, s{sT0}, s{sWv}
        s_lshl_b32 s{sT0}, s{sT0}, 5
        s_add_u32 s{sT0}, s{sT0}, 0x300000
        v_mov_b32 v11, 0
        s_mov_b64 exec, 1
        buffer_store_dwordx4 v[24:27], v11, {sr(SW,4)}, s{sT0} offen
        buffer_store_dwordx4 v[28:31], v11, {sr(SW,4)}, s{sT0} offen offset:16
        """)

    def st(n):
        return f"s_memrealtime {sr(sTS+2*n,2)}" if DIAG else ""

    seq = [("K", i) for i in range(4)] + [("V", i) for i in range(4)]

    def ld(t, so):
        which, i = seq[t % 8]
        vo = (vKo0, vKo1) if which == "K" else (vVo0, vVo1)
        S = SK if which == "K" else SV
        base = vKA if which == "K" else vVA
        off = " offset:2048" if i & 1 else ""
        k(f"buffer_load_dwordx4 {vr(base+4*i,4)}, v{vo[i>>1]}, {sr(S,4)}, s{so} offen{off} nt")

    k(f"""
    s_load_dwordx16 s[4:19], s[0:1], 0
    s_cmp_ge_u32 s2, 256
    s_cbranch_scc1 L_end
    {f"s_memrealtime {sr(sTS,2)}" if MUL or DIAG or MX else ""}
    {"s_lshr_b32 s3, s2, 5" if SCR == 1 else ""}
    {"s_lshl3_add_u32 s2, s2, s3" if SCR == 1 else ""}
    {"s_and_b32 s2, s2, 255" if SCR == 1 else ""}
    {"s_and_b32 s3, s2, 0xf8" if SCR == 2 else ""}
    {"s_cmp_eq_u32 s3, 0x50" if SCR == 2 else ""}
    {"s_cselect_b32 s3, 1, 0" if SCR == 2 else ""}
    {"s_xor_b32 s2, s2, s3" if SCR == 2 else ""}
    v_lshrrev_b32 v{vTmp}, 6, v0
    v_and_b32 v{vLane}, 63, v0
    v_readfirstlane_b32 s{sWv}, v{vTmp}
    s_lshr_b32 s{sSh}, s2, 3
    {f"s_add_u32 s2, s2, {ROT}" if ROT else ""}
    s_and_b32 s{sH}, s2, 7
    s_cmp_ge_u32 s{sWv}, 4
    s_cbranch_scc1 L_service
    ; ---------------------------------------------------------------- worker
    s_lshl2_add_u32 s{sJ}, s{sSh}, s{sWv}
    s_lshl_b32 s{sIdx}, s{sJ}, 2
    """)
    first = f"""
    s_waitcnt lgkmcnt(0)
    {f"s_memrealtime {sr(sTS+2,2)}" if MX == 1 else ""}
    s_load_dword s{sBt0}, {sr(sBT,2)}, s{sIdx}
    """
    if ORD == 0:
        k(first)
    k(f"""
    s_mov_b64 {sr(sE,2)}, 0
    s_lshl_b32 s{sL0}, s{sWv}, 2
    L_setup:
    v_lshrrev_b32 v{vG4}, 4, v{vLane}
    v_lshlrev_b32 v{vG4}, 2, v{vG4}            ; 4g
    v_and_b32 v{vTmp}, 3, v{vLane}
    v_add_lshl_u32 v{vTmp}, v{vTmp}, v{vG4}, 4
    v_bfe_u32 v{vMx}, v{vLane}, 2, 2
    s_lshl_b32 s{sT1}, s{sH}, 8
    v_lshl_add_u32 v{vKo0}, v{vMx}, 13, v{vTmp}
    v_add_u32 v{vKo0}, s{sT1}, v{vKo0}
    v_add_u32 v{vKo1}, 0x1000, v{vKo0}
    v_lshl_add_u32 v{vAl}, v{vMx}, 8, v{vTmp}
    v_and_b32 v{vTmp}, 15, v{vLane}
    v_lshlrev_b32 v{vTmp}, 4, v{vTmp}
    v_lshl_add_u32 v{vVo0}, v{vG4}, 11, v{vTmp}
    v_add_u32 v{vVo0}, s{sT1}, v{vVo0}
    v_add_u32 v{vVo1}, 0x1000, v{vVo0}
    s_lshl_b32 s{sT0}, s{sH}, 10
    """)
    if ORD == 1:
        k(first)
    srd(k, SQ, sQ, 8192)
    k(f"buffer_load_dwordx4 {vr(vQ,4)}, v{vAl}, {sr(SQ,4)}, s{sT0} offen")
    srd(k, SK, sKp, KV_BYTES)
    srd(k, SV, sVp, KV_BYTES)
    k(f"""
    {f"s_memrealtime {sr(sTS+2,2)}" if MX == 5 else ""}
    s_waitcnt lgkmcnt(0)
    {f"s_memrealtime {sr(sTS+2,2)}" if MX == 6 else ""}
    s_lshl_b32 s{sOff}, s{sBt0}, 15
    """)
    for t in range(D):
        ld(t, sOff)
    if MX == 2:
        k(f"s_memrealtime {sr(sTS+2,2)}")
    k(f"v_mov_b32 v{vLi}, s{sL0}")
    srd(k, SW, sWS, WS_USED)
    k(f"""
    v_lshlrev_b32 v{vRo}, 4, v{vLane}
    s_cmp_lg_u32 s{sE}, 0
    s_cbranch_scc1 L_loop
    s_mov_b32 s{sC}, {f32(128 ** -0.5 * 1.4426950408889634)}   ; D^-0.5 * log2(e)
    s_mov_b32 s{sPlo}, 0x05040100
    s_mov_b32 s{sPhi}, 0x07060302
    s_mov_b32 s{sNeg}, {f32(-1e9 * 1.4426950408889634)}
    {f"s_lshr_b32 s{sSp}, {hex(SLOWH)}, s{sH}" if SKIP or XWF else ""}
    v_mov_b32 v{vM}, {f32(-3.0e38)}
    v_mov_b32 v{vL}, 0
    v_mov_b32 v{vAb}, 0
    v_mov_b32 v{vPa}, {POP}
    v_mov_b32 v{vFour}, 4
    s_lshr_b32 s{sEnd}, s{sFb}, 31
    s_mov_b32 s{sLast}, 0
    s_mov_b32 s{sMB}, 0x11111111
    s_mov_b32 s{sMB+1}, 0x11111111
    s_bitset1_b32 s{sEnd}, 31
    """)
    for i in range(32):
        k(f"v_mov_b32 v{vAcc+i}, 0")
    k(f"""
    s_cmp_lg_u32 s{sFb}, 0
    s_cbranch_scc1 L_loop
    s_barrier
    s_lshl_b32 s{sT0}, s{sWv}, 3
    v_lshl_add_u32 v{vMw}, v{vMx}, 5, s{sT0}
    v_lshl_add_u32 v{vAd}, v{vG4}, 3, s{sT0}
    v_xor_b32 v{vAd+1}, 8, v{vAd}
    v_xor_b32 v{vAd+2}, 16, v{vAd}
    v_xor_b32 v{vAd+3}, 24, v{vAd}
    s_lshl_b32 s{sT0}, s{sWv}, 11
    v_add_u32 v{vSl}, s{sT0}, v{vRo}
    v_xor_b32 v{vAd+4}, 0x800, v{vSl}
    v_xor_b32 v{vAd+5}, 0x1000, v{vSl}
    v_xor_b32 v{vAd+6}, 0x1800, v{vSl}
    s_lshl_b32 s{sRec}, s{sH}, 5
    s_add_u32 s{sRec}, s{sRec}, s{sSh}
    s_lshl_b32 s{sRec}, s{sRec}, 10            ; record (h*32+s)*1024
    """)
    if MX:
        k(f"""
        {"s_waitcnt vmcnt(5)" if MX == 3 else ""}
        {"s_waitcnt vmcnt(0)" if MX == 4 else ""}
        {f"s_memrealtime {sr(sTS+2,2)}" if MX in (3, 4) else ""}
        s_waitcnt lgkmcnt(0)
        s_sub_u32 s{sT0}, s{sTS+2}, s{sTS}
        v_mov_b32 v{vTmp}, s{sT0}
        s_mov_b64 exec, 1
        ds_add_u32 v{vPa}, v{vTmp} offset:80
        s_mov_b64 exec, -1
        """)
    k(f"""
    """)

    def qk(i):
        k(f"v_mfma_f32_16x16x32_bf16 {vr(vD+4*i,4)}, {vr(vKA+4*i,4)}, {vr(vQ,4)}, 0")

    def perm(e, half):
        j, hi = e >> 1, e & 1
        sel = sPhi if hi else sPlo
        k(f"v_perm_b32 v{vB+2*e+half}, v{vVA+8*half+4+j}, v{vVA+8*half+j}, s{sel}")

    def pv(e):
        k(f"v_mfma_f32_16x16x16_bf16 {vr(vAcc+4*e,4)}, {vr(vP,2)}, {vr(vB+2*e,2)}, {vr(vAcc+4*e,4)}")

    def lreduce(kk):
        kk(f"""
        v_mov_b32 v{vTmp}, v{vL}
        v_permlane32_swap_b32 v{vL}, v{vTmp}
        v_add_f32 v{vL}, v{vL}, v{vTmp}
        v_mov_b32 v{vTmp}, v{vL}
        v_permlane16_swap_b32 v{vL}, v{vTmp}
        v_add_f32 v{vL}, v{vL}, v{vTmp}
        """)

    def mlpub(d, mx, mo, tag):
        for w in range(4):
            k(f"v_sub_f32 v{d+2*w}, v{d+2*w}, v{mx}")
        for w in range(4):
            k(f"v_exp_f32 v{d+2*w}, v{d+2*w}")
        k(f"""
        v_xor_b32 v{d+8}, s{sR}, v{mx}
        v_mul_f32 v{d+9}, v{d}, v{d+1}
        v_fmac_f32 v{d+9}, v{d+2}, v{d+3}
        v_fmac_f32 v{d+9}, v{d+4}, v{d+5}
        v_fmac_f32 v{d+9}, v{d+6}, v{d+7}
        v_mov_b32 v{d+10}, s{sR}
        v_mov_b32 v{d+11}, s{sR}
        s_mov_b32 exec_lo, 0x1111
        s_mov_b32 exec_hi, 0
        s_cmp_lg_u32 s{sPol}, 0
        v_xor_b32 v{d+9}, s{sR}, v{d+9}
        s_cbranch_scc1 L_ml1{tag}
        buffer_store_dwordx4 {vr(d+8,4)}, v{mo}, {sr(SW,4)}, s{sMl} offen
        s_branch L_ml3{tag}
        L_ml1{tag}:
        buffer_store_dwordx4 {vr(d+8,4)}, v{mo}, {sr(SW,4)}, s{sMl} offen sc1
        L_ml3{tag}:
        s_mov_b64 exec, -1
        """)

    def mreads():
        k(f"""
        ds_read_b32 v{vPc}, v{vPa} offset:64
        ds_read_b32 v{vAl}, v{vPa} offset:72       ; salt
        """)
        for j in range(4):
            k(f"ds_read_b32 v{vF4+2*j}, v{vAd+j} offset:{MLW}")
        for j in range(3):
            k(f"ds_read_b128 {vr(vPre+8*j,4)}, v{vAd+4+j} offset:{ACC}")
            k(f"ds_read_b128 {vr(vPre+8*j+4,4)}, v{vAd+4+j} offset:{ACC+1024}")

    def mbase(fail):
        k(f"""
        s_waitcnt lgkmcnt({0 if DIAG else 6})
        v_readfirstlane_b32 s{sT0}, v{vPc}
        v_max3_f32 v{vMx}, v{vF4}, v{vF4+2}, v{vF4+4}
        v_max_f32 v{vMx}, v{vMx}, v{vF4+6}
        """)
        for w in (1, 2, 3, 0):
            k(f"v_sub_f32 v{vF4+2*w}, v{vF4+2*w}, v{vMx}")
        k(f"""
        s_cmp_eq_u32 s{sT0}, 12
        s_cbranch_scc0 {fail}
        """)
        for w in (1, 2, 3, 0):
            k(f"v_exp_f32 v{vF4+2*w}, v{vF4+2*w}")
        for j in range(3):
            k(f"s_waitcnt lgkmcnt({4-2*j})")
            for e in range(0, 8, 2):
                if j == 0:
                    k(f"v_pk_mul_f32 {vr(vD+e,2)}, {vr(vF4+2,2)}, {vr(vPre+e,2)} op_sel_hi:[0,1]")
                else:
                    k(f"v_pk_fma_f32 {vr(vD+e,2)}, {vr(vF4+2*j+2,2)}, {vr(vPre+8*j+e,2)}, {vr(vD+e,2)} op_sel_hi:[0,1,1]")

    def hook():
        k(f"""
        s_cmp_eq_u32 s{sLast}, 12
        s_cbranch_scc0 L_nopre
        """)
        mreads()
        k("L_nopre:")

    def issue(p):
        if (XW >> p) & 1:
            k(f"s_waitcnt vmcnt({D-2})")
        if (XWF >> p) & 1:
            k(f"""
            s_bitcmp1_b32 s{sSp}, 0
            s_cbranch_scc1 L_xf{p}
            s_waitcnt vmcnt({D-2})
            L_xf{p}:
            """)
        if (WM or WMS) and (PM >> p) & 1:
            k(f"""
            s_bitcmp1_b32 s{sTh}, 0
            s_cbranch_scc0 L_th{p}
            s_waitcnt vmcnt({D-2})
            L_th{p}:
            """)
        ld(p + D, sOff if p + D < 8 else sNxt)

    def wait(p):
        if p in (4, 6) and SKIP:
            k(f"""
            s_bitcmp1_b32 s{sSp}, 0
            s_cbranch_scc1 L_sk{p}
            s_waitcnt vmcnt({D-1})
            L_sk{p}:
            """)
        else:
            k(f"s_waitcnt vmcnt({D-1})")

    k(f"""
    L_loop:
    s_mov_b64 exec, 1
    ds_add_rtn_u32 v{vNx}, v{vPa}, v{vFour}
    s_mov_b64 exec, -1
    """)
    for i in range(4):
        if i == 2:
            k(f"""
            s_waitcnt lgkmcnt(0)
            L_get:
            s_mov_b64 exec, 1
            ds_read_b32 v{vEn}, v{vLi}
            ds_read_b32 v{vEn+1}, v{vNx}
            s_mov_b64 exec, -1
            """)
        wait(i)
        qk(i)
        if i == 2:
            k(f"""
            s_waitcnt lgkmcnt(0)
            v_readfirstlane_b32 s{sT0}, v{vEn+1}
            v_readfirstlane_b32 s{sCnt}, v{vEn}
            s_max_u32 s{sT1}, s{sT0}, s{sCnt}
            s_cmp_eq_u32 s{sT1}, -1
            s_cbranch_scc1 L_retry
            s_and_b32 s{sNxt}, s{sT0}, 0xffff8000
            s_and_b32 s{sCnt}, s{sCnt}, 31
            s_and_b32 s{sPol}, s{sT0}, 32
            v_mov_b32 v{vLi}, v{vNx}
            """)
        issue(i)
    for j in (1, 2, 3):
        for i in range(4):
            src1 = vD + 4 * i if j == 1 else vT + i
            k(f"v_add_f32_dpp v{vT+i}, v{vD+4*i+j}, v{src1} quad_perm:[{j},{j},{j},{j}] {ALL}")
    for i in range(4):
        k(f"v_mul_f32 v{vT+i}, s{sC}, v{vT+i}")
    k(f"""
    s_cmp_lt_u32 s{sCnt}, 16
    s_cbranch_scc1 L_mask
    L_nomask:
    """)
    if LAZY:
        k(f"""
        v_max3_f32 v{vMx}, v{vT}, v{vT+1}, v{vT+2}
        v_max_f32 v{vMx}, v{vMx}, v{vT+3}
        v_cmp_gt_f32 vcc, v{vMx}, v{vM}
        s_and_b64 vcc, vcc, {sr(sMB,2)}
        s_cbranch_scc1 L_newmax
        L_maxok:
        """)
        warm(f"""
        L_newmax:
        v_max_f32 v{vMx}, v{vMx}, v{vM}
        v_mov_b32 v{vTmp}, v{vMx}
        v_permlane32_swap_b32 v{vMx}, v{vTmp}
        v_max_f32 v{vMx}, v{vMx}, v{vTmp}
        v_mov_b32 v{vTmp}, v{vMx}
        v_permlane16_swap_b32 v{vMx}, v{vTmp}
        v_max_f32 v{vMx}, v{vMx}, v{vTmp}
        v_sub_f32 v{vAl}, v{vM}, v{vMx}
        v_exp_f32 v{vAl}, v{vAl}
        v_mov_b32 v{vM}, v{vMx}
        v_mul_f32 v{vL}, v{vL}, v{vAl}
        """)
        for i in range(4):
            warm(f"v_mov_b32_dpp v{vAb}, v{vAl} row_newbcast:{4*i} row_mask:{hex(1<<i)} bank_mask:0xf")
        for e in range(8):
            warm(f"v_mul_f32 v{vAcc+4*e}, v{vAb}, v{vAcc+4*e}")
        warm("s_branch L_maxok")
    else:
        k(f"""
    v_max3_f32 v{vMx}, v{vT}, v{vT+1}, v{vT+2}
    v_max3_f32 v{vMx}, v{vMx}, v{vT+3}, v{vM}
    v_mov_b32 v{vTmp}, v{vMx}
    v_permlane32_swap_b32 v{vMx}, v{vTmp}
    v_max_f32 v{vMx}, v{vMx}, v{vTmp}
    v_mov_b32 v{vTmp}, v{vMx}
    v_permlane16_swap_b32 v{vMx}, v{vTmp}
    v_max_f32 v{vMx}, v{vMx}, v{vTmp}
    """)
    cold(f"""
    L_mask:                                    ; tokens at or past context_len
    v_mov_b32 v{vTmp}, s{sNeg}
    """)
    for i in range(4):
        cold(f"""
        s_sub_i32 s{sT0}, s{sCnt}, {i}
        v_cmp_gt_i32 vcc, s{sT0}, v{vG4}
        v_cndmask_b32 v{vT+i}, v{vTmp}, v{vT+i}, vcc
        """)
    cold("s_branch L_nomask")
    wait(4)
    issue(4)
    if LAZY:
        k(f"""
        v_sub_f32 v{vT}, v{vT}, v{vM}
        v_sub_f32 v{vT+1}, v{vT+1}, v{vM}
        v_exp_f32 v{vT}, v{vT}
        v_sub_f32 v{vT+2}, v{vT+2}, v{vM}
        v_exp_f32 v{vT+1}, v{vT+1}
        v_sub_f32 v{vT+3}, v{vT+3}, v{vM}
        v_exp_f32 v{vT+2}, v{vT+2}
        v_add_f32 v{vL}, v{vL}, v{vT}
        v_exp_f32 v{vT+3}, v{vT+3}
        v_add_f32 v{vTmp}, v{vT+1}, v{vT+2}
        v_cvt_pk_bf16_f32 v{vP}, v{vT}, v{vT+1}
        v_add_f32 v{vL}, v{vL}, v{vT+3}
        s_cmp_eq_u32 s{sNxt}, s{sEnd}
        v_cvt_pk_bf16_f32 v{vP+1}, v{vT+2}, v{vT+3}
        v_add_f32 v{vL}, v{vL}, v{vTmp}
        s_cbranch_scc1 L_none
        L_mld:
        """)
    elif TRIM:
        k(f"""
        v_sub_f32 v{vAl}, v{vM}, v{vMx}
        v_sub_f32 v{vT}, v{vT}, v{vMx}
        v_exp_f32 v{vAl}, v{vAl}
        v_sub_f32 v{vT+1}, v{vT+1}, v{vMx}
        v_exp_f32 v{vT}, v{vT}
        v_sub_f32 v{vT+2}, v{vT+2}, v{vMx}
        v_exp_f32 v{vT+1}, v{vT+1}
        v_sub_f32 v{vT+3}, v{vT+3}, v{vMx}
        v_exp_f32 v{vT+2}, v{vT+2}
        v_fma_f32 v{vL}, v{vL}, v{vAl}, v{vT}
        v_exp_f32 v{vT+3}, v{vT+3}
        v_add_f32 v{vTmp}, v{vT+1}, v{vT+2}
        v_mov_b32 v{vM}, v{vMx}
        v_add_f32 v{vL}, v{vL}, v{vT+3}
        s_cmp_eq_u32 s{sNxt}, s{sEnd}
        v_add_f32 v{vL}, v{vL}, v{vTmp}
        s_cbranch_scc1 L_none                      ; last page: (m, l) are final before its V rows land
        L_mld:
        v_mov_b32_dpp v{vAb}, v{vAl} row_newbcast:0 row_mask:0x1 bank_mask:0xf
        v_cvt_pk_bf16_f32 v{vP}, v{vT}, v{vT+1}
        v_cvt_pk_bf16_f32 v{vP+1}, v{vT+2}, v{vT+3}
        v_mov_b32_dpp v{vAb}, v{vAl} row_newbcast:4 row_mask:0x2 bank_mask:0xf
        v_mov_b32_dpp v{vTmp}, v{vAl} row_newbcast:8 row_mask:0x4 bank_mask:0xf
        s_nop 0
        v_mov_b32_dpp v{vAb}, v{vAl} row_newbcast:12 row_mask:0x8 bank_mask:0xf
        v_mov_b32_dpp v{vAb}, v{vAl} row_newbcast:8 row_mask:0x4 bank_mask:0xf
        """.replace(f"        v_mov_b32_dpp v{vTmp}, v{vAl} row_newbcast:8 row_mask:0x4 bank_mask:0xf\n        s_nop 0\n", ""))
        for e in range(8):
            k(f"v_mul_f32 v{vAcc+4*e}, v{vAb}, v{vAcc+4*e}")
    else:
        k(f"""
        v_sub_f32 v{vAl}, v{vM}, v{vMx}
        v_mov_b32 v{vM}, v{vMx}
        v_exp_f32 v{vAl}, v{vAl}
        """)
        for i in range(4):
            k(f"v_sub_f32 v{vT+i}, v{vT+i}, v{vMx}")
        for i in range(4):
            k(f"v_exp_f32 v{vT+i}, v{vT+i}")
            k(f"v_mov_b32_dpp v{vAb}, v{vAl} row_newbcast:{4*i} row_mask:{hex(1<<i)} bank_mask:0xf")
            if i == 1:
                k(f"v_fma_f32 v{vL}, v{vL}, v{vAl}, v{vT}")
            if i == 2:
                k(f"v_cvt_pk_bf16_f32 v{vP}, v{vT}, v{vT+1}")
        k(f"""
        v_add_f32 v{vTmp}, v{vT+1}, v{vT+2}
        v_cvt_pk_bf16_f32 v{vP+1}, v{vT+2}, v{vT+3}
        v_add_f32 v{vL}, v{vL}, v{vT+3}
        v_add_f32 v{vL}, v{vL}, v{vTmp}
        """)
        for e in range(8):
            k(f"v_mul_f32 v{vAcc+4*e}, v{vAb}, v{vAcc+4*e}")
        k(f"""
        s_cmp_eq_u32 s{sNxt}, {hex(END)}
        s_cbranch_scc1 L_ml
        L_mld:
        """)
    wait(5)
    issue(5)
    for e in range(8):
        perm(e, 0)
    if EARLYM:
        k(f"""
        s_cmp_eq_u32 s{sNxt}, s{sEnd}
        s_cbranch_scc1 L_lastp
        """)
        wait(6)
        k("L_lastd:")
        issue(6)
    else:
        k(f"""
        s_cmp_eq_u32 s{sNxt}, s{sEnd}
        s_cbranch_scc0 L_nolast
        s_waitcnt lgkmcnt(0)
        v_readfirstlane_b32 s{sLast}, v{vNx}
        L_nolast:
        """)
        wait(6)
        issue(6)
        if HOOK == 6:
            hook()
    wait(7)
    if DIAG == 2:
        k(st(1))
    if HOOK == 7:
        hook()
    issue(7)
    perm(0, 1)
    perm(1, 1)
    for e in range(8):
        if e + 2 < 8:
            perm(e + 2, 1)
        pv(e)
    k(f"""
    s_mov_b32 s{sOff}, s{sNxt}
    s_cmp_eq_u32 s{sNxt}, {hex(END)}
    s_cbranch_scc0 L_loop
    s_cmp_lg_u32 s{sFb}, 0
    s_cbranch_scc1 L_fbnext
    """)
    vS0 = vD
    k(f"""
    {f"s_cmp_eq_u32 s{sLast}, 13" if EARLYM else ""}
    {"s_cbranch_scc1 L_own" if EARLYM else ""}
    s_cmp_eq_u32 s{sLast}, 12
    s_cbranch_scc0 L_give
    L_mrg:                                     ; lane (c, g): O[query g][8c .. 8c+7]
    """)
    mbase("L_again")
    k(f"""
    {"L_own:" if EARLYM else ""}
    s_cmp_lg_u32 s{sPol}, 0
    """)
    for e in range(8):
        k(f"v_fmac_f32 v{vS0+e}, v{vF4}, v{vAcc+4*e}")
    for j in range(4):
        k(f"v_cvt_pk_bf16_f32 v{vD+j}, v{vS0+2*j}, v{vS0+2*j+1}")
        k(f"v_xor_b32 v{vD+j}, v{vAl}, v{vD+j}")
    k(f"""
    {st(2)}
    s_cbranch_scc1 L_dn1
    buffer_store_dwordx4 {vr(vD,4)}, v{vRo}, {sr(SW,4)}, s{sRec} offen
    """)
    diag_store(1)
    k(f"""
    s_endpgm
    L_dn1:
    buffer_store_dwordx4 {vr(vD,4)}, v{vRo}, {sr(SW,4)}, s{sRec} offen sc1
    s_endpgm
    L_again:
    s_waitcnt lgkmcnt(0)
    """)
    mreads()
    k(f"""
    s_branch L_mrg
    L_give:                                    ; hand the sums to the merging worker
    """)
    for e in range(8):
        k(f"v_mov_b32 v{vS0+e}, v{vAcc+4*e}")
    k(f"""
    ds_write_b128 v{vSl}, {vr(vS0,4)} offset:{ACC}
    ds_write_b128 v{vSl}, {vr(vS0+4,4)} offset:{ACC+1024}
    s_mov_b64 exec, 1
    ds_add_u32 v{vPa}, v{vFour} offset:64
    {st(2)}
    s_waitcnt lgkmcnt(0)
    """)
    diag_store(0)
    k(f"""
    s_endpgm
    """)
    if EARLYM:
        k(f"""
        L_lastp:                                   ; last page, V rows 2 and 3 still to come
        s_waitcnt lgkmcnt(0)
        v_readfirstlane_b32 s{sLast}, v{vNx}
        s_cmp_eq_u32 s{sLast}, 12
        s_cbranch_scc0 L_lastd
        """)
        mreads()
        mbase("L_lastr")
        k(f"""
        s_mov_b32 s{sLast}, 13
        s_branch L_lastd
        L_lastr:
        s_waitcnt vmcnt({D-1}) lgkmcnt(0)
        """)
        mreads()
        k("s_branch L_lastd")
    k(f"""
    L_retry:
    s_cmp_eq_u32 s{sCnt}, {hex(END)}
    s_cbranch_scc0 L_get
    s_mov_b32 s{sPol}, 32
    L_none:
    {st(1) if DIAG == 1 else ""}
    """)
    lreduce(k)
    k(f"""
    s_mov_b32 exec_lo, 0x1111
    s_mov_b32 exec_hi, 0
    ds_write_b64 v{vMw}, {vr(vM,2)} offset:{MLW}
    s_mov_b64 exec, 1
    ds_add_rtn_u32 v{vNx}, v{vPa}, v{vFour} offset:68
    s_mov_b64 exec, -1
    s_cmp_eq_u32 s{sCnt}, {hex(END)}
    s_cbranch_scc0 L_mld
    s_waitcnt lgkmcnt(0)
    v_readfirstlane_b32 s{sLast}, v{vNx}
    s_cmp_eq_u32 s{sLast}, 12
    s_cbranch_scc1 L_again
    s_branch L_give
    """)

    k.lines += warm.lines
    vOf, vMo, vPw, vPm, vPr_, vOo = 2, 3, 4, 5, 6, 7
    vX, vY, vW, vZ = 8, 9, 10, 11
    vML = 12
    vMa, vRr, vSa = 16, 18, 20
    vA, vPr = 24, 28
    vOr, vOs, vU = 32, 34, 36
    vBt, vDyn, vCo, vPq, vCt = 42, 43, 44, 45, 46
    vE4, vEl = 48, 52
    vV2, vBase, vM4 = 56, 58, 60

    def ctxcalc(kk):
        kk(f"""
        s_min_i32 s{sT0}, s{sCtx}, 65536
        s_cmp_le_i32 s{sCtx}, 0
        s_cselect_b32 s{sT0}, 65536, s{sT0}
        s_add_u32 s{sT0}, s{sT0}, 15
        s_lshr_b32 s{sN}, s{sT0}, 4
        s_min_i32 s{sCtx}, s{sCtx}, 65536
        s_max_i32 s{sCtx}, s{sCtx}, 0
        """)

    def entry(kk, vpage, vbt, vt):
        kk(f"""
        v_lshlrev_b32 v{vt}, 4, v{vpage}
        v_sub_u32 v{vt}, s{sCtx}, v{vt}
        v_med3_i32 v{vt}, v{vt}, 0, 16
        v_cmp_gt_u32 vcc, s{sN}, v{vpage}
        v_lshl_or_b32 v{vbt}, v{vbt}, 15, v{vt}
        v_bfrev_b32 v{vt}, 1
        v_and_b32 v{vbt}, 0x7fffffff, v{vbt}
        v_cndmask_b32 v{vbt}, v{vt}, v{vbt}, vcc
        """)

    vMb, vRs, vSb, vW2, vZ2 = 17, 19, 21, 14, 15
    vOr2, vOs2, vOf2 = 56, 58, 60
    k(f"""
    L_service:
    s_mov_b64 {sr(sE,2)}, 0
    v_lshlrev_b32 v{vX}, 9, v{vLane}
    v_lshlrev_b32 v{vCo}, 2, v{vLane}
    v_lshlrev_b32 v{vDyn}, 4, v{vLane}
    v_mov_b32 v{vEl}, -1
    v_mov_b32 v{vEl+1}, -1
    v_mov_b32 v{vEl+2}, -1
    v_mov_b32 v{vEl+3}, -1
    ds_write_b128 v{vDyn}, {vr(vEl,4)}
    v_mov_b32 v{vY}, 0
    v_writelane_b32 v{vY}, 16, 0
    ds_write_b32 v{vCo}, v{vY} offset:{POP}
    s_lshl_b32 s{sIdx}, s{sSh}, 4
    s_lshl_b32 s{sT0}, s{sH}, 15
    s_lshl_b32 s{sT1}, s{sSh}, 5               ; q*256 + oct*32
    s_add_u32 s{sT0}, s{sT0}, s{sT1}
    v_lshrrev_b32 v{vY}, 2, v{vLane}
    v_and_b32 v{vW}, 3, v{vLane}
    v_lshlrev_b32 v{vZ}, 10, v{vY}
    v_lshl_add_u32 v{vZ}, v{vW}, 3, v{vZ}
    v_add_u32 v{vOf}, s{sT0}, v{vZ}
    v_add_u32 v{vOf2}, 0x4000, v{vOf}
    s_lshr_b32 s{sI}, s{sSh}, 3
    s_lshl_b32 s{sT0}, s{sH}, 12
    s_lshl4_add_u32 s{sT0}, s{sI}, s{sT0}
    s_add_u32 s{sT0}, s{sT0}, {ML_OFF}
    v_lshlrev_b32 v{vZ}, 7, v{vY}
    v_lshl_add_u32 v{vZ}, v{vW}, 2, v{vZ}
    v_add_u32 v{vMo}, s{sT0}, v{vZ}
    s_lshl_b32 s{sRec}, s{sH}, 5
    s_add_u32 s{sRec}, s{sRec}, s{sSh}
    s_lshl_b32 s{sRec}, s{sRec}, 10
    s_lshr_b32 s{sMl}, s{sRec}, 3
    s_add_u32 s{sMl}, s{sMl}, {ML_OFF}
    s_waitcnt lgkmcnt(0)
    s_load_dword s{sCtx}, {sr(sCTX,2)}, 0
    s_load_dword s{sR}, {sr(sWS,2)}, s{sRec}
    """)
    srd(k, SB, sBT, 16384)
    k(f"buffer_load_dwordx4 {vr(vE4,4)}, v{vX}, {sr(SB,4)}, s{sIdx} offen")
    srd(k, SW, sWS, WS_USED)
    k(f"""
    buffer_load_dword v{vSa}, v{vMo}, {sr(SW,4)}, 0 offen sc1
    buffer_load_dword v{vSb}, v{vMo}, {sr(SW,4)}, 0 offen offset:2048 sc1
    buffer_load_dwordx2 {vr(vOs,2)}, v{vOf}, {sr(SW,4)}, 0 offen sc1
    buffer_load_dwordx2 {vr(vOs2,2)}, v{vOf2}, {sr(SW,4)}, 0 offen sc1
    s_lshl_b32 s{sT0}, s{sH}, 10
    s_add_u32 s{sT0}, s{sT0}, s{sT1}
    v_lshrrev_b32 v{vX}, 4, v{vLane}
    v_lshl_add_u32 v{vX}, v{vW}, 2, v{vX}
    v_lshl_add_u32 v{vOo}, v{vX}, 1, s{sT0}
    s_barrier
    s_waitcnt lgkmcnt(0)
    s_add_u32 s{sR}, s{sR}, s{sMl}
    s_mul_i32 s{sR}, s{sR}, 0x9e3779b1
    s_lshr_b32 s{sT0}, s{sR}, 15
    s_xor_b32 s{sR}, s{sR}, s{sT0}
    s_mul_i32 s{sR}, s{sR}, 0x85ebca6b         ; salt
    v_mov_b32 v{vW}, {POP}
    v_mov_b32 v{vY}, s{sR}
    ds_write_b32 v{vW}, v{vY} offset:72
    """)
    ctxcalc(k)
    k(f"""
    s_lshr_b32 s{sS}, s{sN}, 7
    s_max_i32 s{sS}, s{sS}, 1
    s_lshl_b32 s{sT1}, s{sSh}, 2
    v_lshl_add_u32 v{vX}, v{vLane}, 7, s{sT1}
    s_lshl_b32 s{sT0}, s{sS}, 7
    s_add_u32 s{sT0}, s{sT0}, s{sSh}
    v_lshl_add_u32 v{vBt}, v{vLane}, 5, s{sT0}
    v_lshlrev_b32 v{vEl}, 2, v{vBt}
    v_cmp_gt_u32 vcc, s{sS}, v{vLane}
    s_mov_b64 exec, 15
    buffer_load_dword v{vEl}, v{vEl}, {sr(SB,4)}, 0 offen
    s_mov_b64 exec, vcc
    s_waitcnt vmcnt(5)
    """)
    for w in range(4):
        entry(k, vX, vE4 + w, vY)
        if w < 3:
            k(f"v_add_u32 v{vX}, 1, v{vX}")
    k(f"""
    ds_write_b128 v{vDyn}, {vr(vE4,4)}
    s_mov_b64 exec, -1
    """)
    srd(k, SO, sOUT, 8192)
    k(f"""
    s_mov_b32 s{sC}, 0xffff0000
    """)
    srd(k, SD, sDBG, 256)
    k(f"""
    s_getreg_b32 s{sXc}, hwreg(HW_REG_XCC_ID)
    s_lshl_b32 s{sT0}, s{sH}, 5
    v_mov_b32 v{vCo}, s{sT0}
    s_and_b32 s{sXc}, s{sXc}, 15
    s_add_u32 s{sXc}, s{sXc}, 1
    s_mov_b32 s{sPol}, {32 if FORCESC else 0}
    s_cmp_eq_u32 s{sSh}, 0
    s_cbranch_scc0 L_nl
    v_mov_b32 v{vX}, s{sXc}
    s_mov_b64 exec, 1
    buffer_store_dword v{vX}, v{vCo}, {sr(SD,4)}, 0 offen offset:4 sc1
    s_mov_b64 exec, -1
    L_nl:
    s_waitcnt vmcnt(0)
    """)
    entry(k, vBt, vEl, vY)
    k(f"""
    s_lshl_b32 s{sE}, s{sS}, 4
    v_lshl_add_u32 v{vDyn}, v{vLane}, 2, s{sE}
    s_sub_i32 s{sE}, s{sE}, {4*LEADP}
    s_min_i32 s{sOff}, s{sE}, {4*CHK}
    s_mov_b32 s{sI}, 0
    L_s0:
    ds_read_b32 v{vX}, v{vW}
    s_waitcnt lgkmcnt(0)
    v_readfirstlane_b32 s{sT0}, v{vX}
    s_cmp_ge_i32 s{sT0}, s{sOff}
    s_cbranch_scc1 L_s2
    s_sleep 4
    s_branch L_s0
    L_s2:
    buffer_load_dwordx2 {vr(vPr,2)}, v{vCo}, {sr(SD,4)}, 0 offen sc1
    s_waitcnt vmcnt(0)
    v_readfirstlane_b32 s{sT1}, v{vPr}
    v_readfirstlane_b32 s{sT0}, v{vPr+1}
    s_or_b32 s{sPol}, s{sPol}, s{sT1}
    s_cmp_lg_u32 s{sI}, 0
    s_cbranch_scc1 L_s1
    s_mov_b32 s{sI}, 1
    s_mov_b32 s{sOff}, s{sE}
    s_cmp_eq_u32 s{sT0}, s{sXc}
    s_cbranch_scc1 L_s0
    s_mov_b32 s{sPol}, 32
    v_mov_b32 v{vX}, 32
    s_mov_b64 exec, 1
    buffer_store_dword v{vX}, v{vCo}, {sr(SD,4)}, 0 offen sc1
    s_mov_b64 exec, -1
    s_branch L_s0
    L_s1:
    s_and_b32 s{sPol}, s{sPol}, 32
    s_mov_b64 exec, 0xffff
    v_or_b32 v{vEl}, s{sPol}, v{vEl}
    ds_write_b32 v{vDyn}, v{vEl}
    s_mov_b64 exec, -1
    s_mov_b32 s{sI}, {LIMIT if FORCEFB else 0}
    s_mov_b32 s{sLim}, {LIMIT if FORCEFB else LIM0}
    v_bfe_u32 v{vX}, v{vLane}, 2, 2
    v_lshlrev_b32 v{vX}, 5, v{vX}
    v_lshlrev_b32 v{vCo}, 2, v{vLane}
    s_waitcnt vmcnt(0)
    L_gate:                                    ; until every worker's (m, l) is there
    {f"s_sleep {GSL}" if GSL else ""}
    ds_read_b32 v{vY}, v{vW} offset:68
    ds_read_b128 v[64:67], v{vX} offset:{MLW}
    ds_read_b128 v[68:71], v{vX} offset:{MLW+16}
    s_waitcnt lgkmcnt(2)
    v_cmp_ne_u32 vcc, 16, v{vY}
    s_cbranch_vccnz L_gate
    {st(1) if DIAG == 1 else ""}
    """)
    if SVML:
        k(f"""
        s_waitcnt lgkmcnt(0)
        v_max3_f32 v{vX}, v64, v66, v68
        v_max_f32 v{vX}, v{vX}, v70
        """)
        mlpub(64, vX, vCo, "b")
    k(f"""
    s_branch L_m1
    L_m0:                                      ; wait for the (m, l, salt) entries
    s_bcnt1_i32_b64 s{sT0}, vcc
    L_m2:                                      ; back off in proportion to the number of missing producers
    s_sleep {GR}
    s_sub_i32 s{sT0}, s{sT0}, {GSUB}
    s_cmp_gt_i32 s{sT0}, 0
    s_cbranch_scc1 L_m2
    s_mov_b64 exec, vcc
    L_m1:
    buffer_load_dword v{vMa}, v{vMo}, {sr(SW,4)}, 0 offen sc1
    buffer_load_dword v{vMb}, v{vMo}, {sr(SW,4)}, 0 offen offset:2048 sc1
    s_mov_b64 exec, -1
    s_add_u32 s{sI}, s{sI}, 1
    s_cmp_ge_u32 s{sI}, s{sLim}
    s_cbranch_scc1 L_chk1
    L_m3:
    s_waitcnt vmcnt(0)
    v_xor_b32 v{vU}, v{vMa}, v{vSa}
    v_xor_b32 v{vU+1}, v{vMb}, v{vSb}
    v_mov_b32_dpp v{vRr}, v{vMa} quad_perm:[2,2,2,2] {ALL}
    v_min_u32 v{vU}, v{vU}, v{vU+1}
    v_mov_b32_dpp v{vRs}, v{vMb} quad_perm:[2,2,2,2] {ALL}
    v_cmp_eq_u32 vcc, 0, v{vU}
    v_xor_b32_dpp v{vW}, v{vMa}, v{vRr} quad_perm:[0,0,0,0] {ALL}     ; m
    s_cbranch_vccnz L_m0
    {st(2) if DIAG == 1 else st(1)}
    buffer_load_dwordx2 {vr(vOr,2)}, v{vOf}, {sr(SW,4)}, 0 offen sc1
    buffer_load_dwordx2 {vr(vOr2,2)}, v{vOf2}, {sr(SW,4)}, 0 offen sc1
    v_xor_b32_dpp v{vW2}, v{vMb}, v{vRs} quad_perm:[0,0,0,0] {ALL}
    v_xor_b32_dpp v{vZ}, v{vMa}, v{vRr} quad_perm:[1,1,1,1] {ALL}     ; l
    v_max_f32 v{vML}, v{vW}, v{vW2}
    v_xor_b32_dpp v{vZ2}, v{vMb}, v{vRs} quad_perm:[1,1,1,1] {ALL}
    v_max_f32_dpp v{vML}, v{vML}, v{vML} row_ror:4 {ALL}
    v_max_f32_dpp v{vML}, v{vML}, v{vML} row_ror:8 {ALL}
    v_mov_b32 v{vY}, v{vML}
    v_permlane16_swap_b32 v{vML}, v{vY}
    v_max_f32 v{vML}, v{vML}, v{vY}
    v_mov_b32 v{vY}, v{vML}
    v_permlane32_swap_b32 v{vML}, v{vY}
    v_max_f32 v{vML}, v{vML}, v{vY}
    v_sub_f32 v{vW}, v{vW}, v{vML}
    v_sub_f32 v{vW2}, v{vW2}, v{vML}
    v_exp_f32 v{vW}, v{vW}
    v_exp_f32 v{vW2}, v{vW2}
    v_mul_f32 v{vZ}, v{vW}, v{vZ}
    v_fmac_f32 v{vZ}, v{vW2}, v{vZ2}
    v_add_f32_dpp v{vZ}, v{vZ}, v{vZ} row_ror:4 {ALL}
    v_add_f32_dpp v{vZ}, v{vZ}, v{vZ} row_ror:8 {ALL}
    v_mov_b32 v{vY}, v{vZ}
    v_permlane16_swap_b32 v{vZ}, v{vY}
    v_add_f32 v{vZ}, v{vZ}, v{vY}
    v_mov_b32 v{vY}, v{vZ}
    v_permlane32_swap_b32 v{vZ}, v{vY}
    v_add_f32 v{vZ}, v{vZ}, v{vY}
    v_rcp_f32 v{vZ}, v{vZ}
    {f"v_mul_f32 v{vW}, v{vW}, v{vZ}" if TRIM else ""}
    {f"v_mul_f32 v{vW2}, v{vW2}, v{vZ}" if TRIM else ""}
    {"s_waitcnt vmcnt(0)" if PIPE else ""}
    s_branch L_o1
    L_o0:                                      ; wait for the record pieces
    s_mov_b64 exec, vcc
    buffer_load_dwordx2 {vr(vOr,2)}, v{vOf}, {sr(SW,4)}, 0 offen sc1
    buffer_load_dwordx2 {vr(vOr2,2)}, v{vOf2}, {sr(SW,4)}, 0 offen sc1
    s_mov_b64 exec, -1
    s_add_u32 s{sI}, s{sI}, 1
    s_cmp_ge_u32 s{sI}, s{sLim}
    s_cbranch_scc1 L_chk2
    L_o1:
    s_waitcnt vmcnt({2*PIPE})
    v_xor_b32 v{vU}, v{vOr}, v{vOs}
    v_xor_b32 v{vU+1}, v{vOr+1}, v{vOs+1}
    v_xor_b32 v{vU+2}, v{vOr2}, v{vOs2}
    v_xor_b32 v{vU+3}, v{vOr2+1}, v{vOs2+1}
    v_min3_u32 v{vU}, v{vU}, v{vU+1}, v{vU+2}
    v_xor_b32 v{vX}, v{vOr}, v{vRr}
    v_min_u32 v{vU}, v{vU}, v{vU+3}
    v_xor_b32 v{vY}, v{vOr+1}, v{vRr}
    v_cmp_eq_u32 vcc, 0, v{vU}
    v_lshlrev_b32 v{vA}, 16, v{vX}
    v_and_b32 v{vA+1}, s{sC}, v{vX}
    v_lshlrev_b32 v{vA+2}, 16, v{vY}
    v_and_b32 v{vA+3}, s{sC}, v{vY}
    s_cbranch_vccnz L_o0
    {st(2) if DIAG == 2 else ""}
    v_xor_b32 v{vX}, v{vOr2}, v{vRs}
    v_xor_b32 v{vY}, v{vOr2+1}, v{vRs}
    v_mul_f32 v{vA}, v{vW}, v{vA}
    v_mul_f32 v{vA+1}, v{vW}, v{vA+1}
    v_mul_f32 v{vA+2}, v{vW}, v{vA+2}
    v_mul_f32 v{vA+3}, v{vW}, v{vA+3}
    v_lshlrev_b32 v{vU}, 16, v{vX}
    v_and_b32 v{vU+1}, s{sC}, v{vX}
    v_lshlrev_b32 v{vU+2}, 16, v{vY}
    v_and_b32 v{vU+3}, s{sC}, v{vY}
    v_fmac_f32 v{vA}, v{vW2}, v{vU}
    v_fmac_f32 v{vA+1}, v{vW2}, v{vU+1}
    v_fmac_f32 v{vA+2}, v{vW2}, v{vU+2}
    v_fmac_f32 v{vA+3}, v{vW2}, v{vU+3}
    """)
    for sh in (4, 8):
        for j in range(4):
            k(f"v_add_f32_dpp v{vA+j}, v{vA+j}, v{vA+j} row_ror:{sh} {ALL}")
    k(f"""
    v_permlane16_swap_b32 v{vA}, v{vA+1}
    s_mov_b32 vcc_lo, 0x000f000f
    v_permlane16_swap_b32 v{vA+2}, v{vA+3}
    v_add_f32 v{vA}, v{vA}, v{vA+1}
    v_add_f32 v{vA+2}, v{vA+2}, v{vA+3}
    s_mov_b32 vcc_hi, 0x000f000f
    v_permlane32_swap_b32 v{vA}, v{vA+2}
    v_add_f32 v{vA}, v{vA}, v{vA+2}
    s_mov_b64 exec, vcc
    {"" if TRIM else f"v_mul_f32 v{vA}, v{vA}, v{vZ}"}
    v_cvt_pk_bf16_f32 v{vA}, v{vA}, v{vA}
    buffer_store_short v{vA}, v{vOo}, {sr(SO,4)}, 0 offen
    """)
    diag_store(f"s{sI}")
    if MX:
        k(f"""
        s_mov_b64 exec, -1
        v_mov_b32 v{vX}, {POP}
        ds_read_b32 v{vX}, v{vX} offset:80
        s_waitcnt lgkmcnt(0)
        v_readfirstlane_b32 s{sT1}, v{vX}
        s_mul_i32 s{sT1}, s{sT1}, 25
        s_add_u32 s{sT1}, s{sT1}, 3000
        s_and_b32 s{sT0}, s2, 0xf8
        s_cmp_eq_u32 s{sT0}, 0x40
        s_cbranch_scc0 L_end
        L_spinx:
        s_sleep 2
        s_memrealtime {sr(sTS+2,2)}
        s_waitcnt lgkmcnt(0)
        s_sub_u32 s{sT0}, s{sTS+2}, s{sTS}
        s_cmp_lt_u32 s{sT0}, s{sT1}
        s_cbranch_scc1 L_spinx
        """)
    if MUL:
        k(f"""
        s_waitcnt vmcnt(0)
        s_memrealtime {sr(sTS+2,2)}
        s_waitcnt lgkmcnt(0)
        s_sub_u32 s{sT1}, s{sTS+2}, s{sTS}
        s_mul_i32 s{sT1}, s{sT1}, {MUL}
        L_spinm:
        s_sleep 2
        s_memrealtime {sr(sTS+2,2)}
        s_waitcnt lgkmcnt(0)
        s_sub_u32 s{sT0}, s{sTS+2}, s{sTS}
        s_cmp_lt_u32 s{sT0}, s{sT1}
        s_cbranch_scc1 L_spinm
        """)
    k("""
    L_end:
    s_endpgm
    """)
    for n, back in ((1, "L_m3"), (2, "L_o1")):
        cold(f"""
        L_chk{n}:                                    ; many looks without success: give up early on a short context
        s_cmp_ge_u32 s{sI}, {LIMIT}
        s_cbranch_scc1 L_fb
        s_load_dword s{sT0}, {sr(sCTX,2)}, 0
        s_mov_b32 s{sLim}, {LIMIT}
        s_waitcnt lgkmcnt(0)
        s_sub_u32 s{sT0}, s{sT0}, 1
        s_cmp_lt_u32 s{sT0}, 8192
        s_cbranch_scc0 {back}
        {"s_branch L_fb" if n == 1 else ""}
        """)
    cold(f"""
    L_fb:
    s_load_dword s{sCtx}, {sr(sCTX,2)}, 0
    s_waitcnt vmcnt(0) lgkmcnt(0)
    """)
    ctxcalc(cold)
    cold(f"""
    s_mov_b32 s{sE}, 0
    s_mov_b32 s{sL0}, 0
    L_fbfill:
    """)
    srd(cold, SB, sBT, 16384)
    cold(f"""
    v_add_u32 v{vFp}, s{sE}, v{vLane}
    v_lshlrev_b32 v{vFb}, 2, v{vFp}
    buffer_load_dword v{vFb}, v{vFb}, {sr(SB,4)}, 0 offen
    s_lshl_b32 s{sIdx}, s{sE}, 2
    s_waitcnt vmcnt(0)
    """)
    entry(cold, vFp, vFb, vTmp)
    cold(f"""
    s_bitset1_b32 s{sFb}, 31
    v_lshlrev_b32 v{vFp}, 2, v{vLane}
    v_writelane_b32 v{vFb}, s{sFb}, 63
    v_mov_b32 v{vPa}, {POP}
    v_mov_b32 v{vFour}, 4
    ds_write_b32 v{vFp}, v{vFb}
    ds_write_b32 v{vPa}, v{vFour}
    {"" if ORD else f"s_load_dword s{sBt0}, {sr(sBT,2)}, s{sIdx}"}
    s_branch L_setup
    L_fbnext:
    s_waitcnt vmcnt(0)
    s_add_u32 s{sE}, s{sE}, 63
    s_cmp_lt_u32 s{sE}, s{sN}
    s_cbranch_scc1 L_fbfill
    """)
    lreduce(cold)
    cold(f"v_rcp_f32 v{vAl}, v{vL}")
    for i in range(4):
        cold(f"v_mov_b32_dpp v{vAb}, v{vAl} row_newbcast:{4*i} row_mask:{hex(1<<i)} bank_mask:0xf")
    for e in range(8):
        cold(f"v_mul_f32 v{vAcc+4*e}, v{vAb}, v{vAcc+4*e}")
    for j in range(4):
        cold(f"v_cvt_pk_bf16_f32 v{vD+j}, v{vAcc+8*j}, v{vAcc+8*j+4}")
    srd(cold, SO, sOUT, 8192)
    cold(f"""
    s_lshl_b32 s{sT0}, s{sSh}, 1
    s_lshl_b32 s{sT1}, s{sH}, 10
    v_lshlrev_b32 v{vTmp}, 4, v{vLane}
    s_lshl_b64 exec, 3, s{sT0}
    buffer_store_dwordx4 {vr(vD,4)}, v{vTmp}, {sr(SO,4)}, s{sT1} offen
    s_endpgm
    """)
    k.lines += cold.lines
    body = k.done()

    out = HEADER + ("; nwaves=1280 diagoff=3145728 p0 w5\n" if DIAG else "") + f"; @launch grid=(256,1,1) block=(320,1,1) lds={LDS}\n" + DOC
    out += '.amdgcn_target "amdgcn-amd-amdhsa--gfx950"\n.text\n'
    out += f".globl {NAME}_kernel\n.p2align 8\n.type {NAME}_kernel,@function\n{NAME}_kernel:\n"
    out += body
    out += f""".section .rodata,"a"
.p2align 6
.amdhsa_kernel {NAME}_kernel
  .amdhsa_next_free_vgpr {NV}
  .amdhsa_next_free_sgpr {NS}
  .amdhsa_accum_offset {NV}
  .amdhsa_group_segment_fixed_size 0
  .amdhsa_kernarg_size 64
  .amdhsa_user_sgpr_count 2
  .amdhsa_user_sgpr_kernarg_segment_ptr 1
  .amdhsa_system_sgpr_workgroup_id_x 1
.end_amdhsa_kernel
"""
    return out


if __name__ == "__main__":
    kw = {}
    for a in sys.argv[2:]:
        key, val = a.split("=")
        kw[key] = int(val, 0)
    open(sys.argv[1], "w").write(gen(**kw))
```

```python
import sys
import struct
from asmlib import K, vr, sr

NAME = "standalone__paged_block_table_kv_pagedattention__decode"
KV_BYTES = 4100 * 32768
HEADER = open("cdna_kernels/" + NAME + ".s.ref").read().split("; Override")[0]
ML_OFF = 0x40000
WS_USED = 0x48000
END = 0x80000000
POP = 1024
CTR = POP + 64
MLW = POP + 128
ACC = 2048
LDS = ACC + 8192

DOC = """;
"""


def f32(x):
    return "0x%08x" % struct.unpack("<I", struct.pack("<f", x))[0]


def gen(GR=1, LIMIT=2048, LIM0=64, CHK=24, LEADP=12, SLOWH=0x22, FASTL=1, FORCEFB=0, FORCESC=0, MUL=0, SCR=0, XD=0, FO=0, GSUB=16, SVML=1, PRE=0, NOSL=0, GSL=1, HOOK=6, TRIM=1, WM=0, WMS=-1, PM=0xff, SKIP=0, ROT=0, PIPE=0, DIAG=0, EARLYM=0, LAZY=1, XW=0, XWF=0, MX=0, ORD=1, PFC=1, TIGHT=1, NLINES=30):
    global WS_USED
    if XD or DIAG:
        WS_USED = 0x800000
    D = 6
    k = K()
    cold = K()
    warm = K()
    sQ, sKp, sVp, sBT, sCTX, sOUT, sDBG, sWS = 4, 6, 8, 10, 12, 14, 16, 18
    SK, SV, SB, SQ, SW, SD, SO = 20, 24, 28, 32, 36, 60, 64
    sH, sL0, sWv, sJ, sCtx, sN, sI, sCnt, sOff, sC, sPlo, sPhi, sT0, sT1, sNeg, sIdx = range(40, 56)
    sBt0, sRec, sMl, sNxt = 56, 57, 58, 59
    sE, sFb, sR, sS, sSh, sBad, sHq, sOct, sLim, sPol = range(68, 78)
    sMA, sMB, sXc, sFast, sSp, sEnd = 78, 80, 82, 83, 84, 85
    sLast = sFast
    sTh = sMA
    if WMS < 0:
        WMS = WM
    sMk = 86
    sTS = 88
    NS = 96 if MUL or DIAG or MX else 88
    vLane, vKo0, vKo1, vVo0, vVo1, vLi, vG4, vM, vL, vMx, vTmp, vAl, vAb = range(1, 14)
    vP, vQ, vT, vD, vB, vAcc, vKA, vVA = 14, 16, 20, 24, 40, 56, 88, 104
    vRo, vMo_w, vEn, vPa, vNx, vFour = 120, 121, 122, 124, 125, 126
    vFp, vFb = vEn, vEn + 1
    vPre, vPc, vF4, vAd = 128, 152, 154, 162
    vSl, vMw = 169, 170
    NV = 172
    ALL = "row_mask:0xf bank_mask:0xf"

    def srd(kk, S, ptr, size):
        kk(f"""
        s_mov_b32 s{S}, s{ptr}
        s_mov_b32 s{S+1}, s{ptr+1}
        s_mov_b32 s{S+2}, {size}
        s_mov_b32 s{S+3}, 0x20000
        """)

    def diag_store(flag):
        if not DIAG:
            return
        k(f"""
        s_waitcnt vmcnt(0)
        s_memrealtime {sr(sTS+6,2)}
        s_getreg_b32 s{sT1}, hwreg(HW_REG_XCC_ID)
        s_waitcnt lgkmcnt(0)
        s_mov_b64 exec, -1
        v_mov_b32 v24, s{sTS}
        v_mov_b32 v25, s{sTS+2}
        v_mov_b32 v26, s{sTS+4}
        v_mov_b32 v27, s{sTS+6}
        v_mov_b32 v28, s{sT1}
        v_mov_b32 v29, s{sWv}
        v_mov_b32 v30, 0
        v_mov_b32 v31, {flag}
        s_mul_i32 s{sT0}, s2, 5
        s_add_u32 s{sT0}, s{sT0}, s{sWv}
        s_lshl_b32 s{sT0}, s{sT0}, 5
        s_add_u32 s{sT0}, s{sT0}, 0x300000
        v_mov_b32 v11, 0
        s_mov_b64 exec, 1
        buffer_store_dwordx4 v[24:27], v11, {sr(SW,4)}, s{sT0} offen
        buffer_store_dwordx4 v[28:31], v11, {sr(SW,4)}, s{sT0} offen offset:16
        """)

    def st(n):
        return f"s_memrealtime {sr(sTS+2*n,2)}" if DIAG else ""

    seq = [("K", i) for i in range(4)] + [("V", i) for i in range(4)]

    def ld(t, so):
        which, i = seq[t % 8]
        vo = (vKo0, vKo1) if which == "K" else (vVo0, vVo1)
        S = SK if which == "K" else SV
        base = vKA if which == "K" else vVA
        off = " offset:2048" if i & 1 else ""
        k(f"buffer_load_dwordx4 {vr(base+4*i,4)}, v{vo[i>>1]}, {sr(S,4)}, s{so} offen{off} nt")

    k(f"""
    s_load_dwordx16 s[4:19], s[0:1], 0
    s_cmp_ge_u32 s2, 256
    s_cbranch_scc1 L_end
    {f"s_memrealtime {sr(sTS,2)}" if MUL or DIAG or MX else ""}
    {"s_lshr_b32 s3, s2, 5" if SCR == 1 else ""}
    {"s_lshl3_add_u32 s2, s2, s3" if SCR == 1 else ""}
    {"s_and_b32 s2, s2, 255" if SCR == 1 else ""}
    {"s_and_b32 s3, s2, 0xf8" if SCR == 2 else ""}
    {"s_cmp_eq_u32 s3, 0x50" if SCR == 2 else ""}
    {"s_cselect_b32 s3, 1, 0" if SCR == 2 else ""}
    {"s_xor_b32 s2, s2, s3" if SCR == 2 else ""}
    v_lshrrev_b32 v{vTmp}, 6, v0
    v_and_b32 v{vLane}, 63, v0
    v_readfirstlane_b32 s{sWv}, v{vTmp}
    s_lshr_b32 s{sSh}, s2, 3
    {f"s_add_u32 s2, s2, {ROT}" if ROT else ""}
    s_and_b32 s{sH}, s2, 7
    s_cmp_ge_u32 s{sWv}, 4
    {"s_cbranch_scc0 L_worker" if PFC == 1 else "s_cbranch_scc1 L_service"}
    """)
    if PFC == 1:
        k(f"""
        s_getpc_b64 s[20:21]
        v_min_u32 v2, NLINES, v{vLane}
        v_lshlrev_b32 v2, 7, v2
        global_load_dword v127, v2, s[20:21]
        s_branch L_service
        L_worker:
        """)
    k(f"""
    ; ---------------------------------------------------------------- worker
    s_lshl2_add_u32 s{sJ}, s{sSh}, s{sWv}
    s_lshl_b32 s{sIdx}, s{sJ}, 2
    """)
    first = f"""
    s_waitcnt lgkmcnt(0)
    {f"s_memrealtime {sr(sTS+2,2)}" if MX == 1 else ""}
    s_load_dword s{sBt0}, {sr(sBT,2)}, s{sIdx}
    """
    if ORD == 0:
        k(first)
    k(f"""
    s_mov_b64 {sr(sE,2)}, 0
    s_lshl_b32 s{sL0}, s{sWv}, 2
    L_setup:
    v_lshrrev_b32 v{vG4}, 4, v{vLane}
    v_lshlrev_b32 v{vG4}, 2, v{vG4}            ; 4g
    v_and_b32 v{vTmp}, 3, v{vLane}
    v_add_lshl_u32 v{vTmp}, v{vTmp}, v{vG4}, 4
    v_bfe_u32 v{vMx}, v{vLane}, 2, 2
    s_lshl_b32 s{sT1}, s{sH}, 8
    v_lshl_add_u32 v{vKo0}, v{vMx}, 13, v{vTmp}
    v_add_u32 v{vKo0}, s{sT1}, v{vKo0}
    v_add_u32 v{vKo1}, 0x1000, v{vKo0}
    v_lshl_add_u32 v{vAl}, v{vMx}, 8, v{vTmp}
    v_and_b32 v{vTmp}, 15, v{vLane}
    v_lshlrev_b32 v{vTmp}, 4, v{vTmp}
    v_lshl_add_u32 v{vVo0}, v{vG4}, 11, v{vTmp}
    v_add_u32 v{vVo0}, s{sT1}, v{vVo0}
    {"" if TIGHT else f"v_add_u32 v{vVo1}, 0x1000, v{vVo0}"}
    {f"v_lshl_add_u32 v{vAl}, s{sH}, 10, v{vAl}" if TIGHT else f"s_lshl_b32 s{sT0}, s{sH}, 10"}
    {f"s_mov_b32 s{SK+2}, {KV_BYTES}" if TIGHT else ""}
    {f"s_mov_b32 s{SK+3}, 0x20000" if TIGHT else ""}
    {f"s_mov_b64 {sr(SV+2,2)}, {sr(SK+2,2)}" if TIGHT else ""}
    """)
    if ORD == 1:
        k(first)
    if TIGHT:
        k(f"""
        global_load_dwordx4 {vr(vQ,4)}, v{vAl}, {sr(sQ,2)}
        s_mov_b64 {sr(SK,2)}, {sr(sKp,2)}
        s_mov_b64 {sr(SV,2)}, {sr(sVp,2)}
        """)
    else:
        srd(k, SQ, sQ, 8192)
        k(f"buffer_load_dwordx4 {vr(vQ,4)}, v{vAl}, {sr(SQ,4)}, s{sT0} offen")
        srd(k, SK, sKp, KV_BYTES)
        srd(k, SV, sVp, KV_BYTES)
    k(f"""
    {f"s_memrealtime {sr(sTS+2,2)}" if MX == 5 else ""}
    s_waitcnt lgkmcnt(0)
    {f"s_memrealtime {sr(sTS+2,2)}" if MX == 6 else ""}
    s_lshl_b32 s{sOff}, s{sBt0}, 15
    """)
    for t in range(D):
        ld(t, sOff)
    if MX == 2:
        k(f"s_memrealtime {sr(sTS+2,2)}")
    if TIGHT:
        k(f"v_add_u32 v{vVo1}, 0x1000, v{vVo0}")
    k(f"v_mov_b32 v{vLi}, s{sL0}")
    srd(k, SW, sWS, WS_USED)
    k(f"""
    v_lshlrev_b32 v{vRo}, 4, v{vLane}
    s_cmp_lg_u32 s{sE}, 0
    s_cbranch_scc1 L_loop
    s_mov_b32 s{sC}, {f32(128 ** -0.5 * 1.4426950408889634)}   ; D^-0.5 * log2(e)
    s_mov_b32 s{sPlo}, 0x05040100
    s_mov_b32 s{sPhi}, 0x07060302
    s_mov_b32 s{sNeg}, {f32(-1e9 * 1.4426950408889634)}
    {f"s_lshr_b32 s{sSp}, {hex(SLOWH)}, s{sH}" if SKIP or XWF else ""}
    v_mov_b32 v{vM}, {f32(-3.0e38)}
    v_mov_b32 v{vL}, 0
    v_mov_b32 v{vAb}, 0
    v_mov_b32 v{vPa}, {POP}
    v_mov_b32 v{vFour}, 4
    s_lshr_b32 s{sEnd}, s{sFb}, 31
    s_mov_b32 s{sLast}, 0
    s_mov_b32 s{sMB}, 0x11111111
    s_mov_b32 s{sMB+1}, 0x11111111
    s_bitset1_b32 s{sEnd}, 31
    """)
    for i in range(32):
        k(f"v_mov_b32 v{vAcc+i}, 0")
    k(f"""
    s_cmp_lg_u32 s{sFb}, 0
    s_cbranch_scc1 L_loop
    s_barrier
    s_lshl_b32 s{sT0}, s{sWv}, 3
    v_lshl_add_u32 v{vMw}, v{vMx}, 5, s{sT0}
    v_lshl_add_u32 v{vAd}, v{vG4}, 3, s{sT0}
    v_xor_b32 v{vAd+1}, 8, v{vAd}
    v_xor_b32 v{vAd+2}, 16, v{vAd}
    v_xor_b32 v{vAd+3}, 24, v{vAd}
    s_lshl_b32 s{sT0}, s{sWv}, 11
    v_add_u32 v{vSl}, s{sT0}, v{vRo}
    v_xor_b32 v{vAd+4}, 0x800, v{vSl}
    v_xor_b32 v{vAd+5}, 0x1000, v{vSl}
    v_xor_b32 v{vAd+6}, 0x1800, v{vSl}
    s_lshl_b32 s{sRec}, s{sH}, 5
    s_add_u32 s{sRec}, s{sRec}, s{sSh}
    s_lshl_b32 s{sRec}, s{sRec}, 10            ; record (h*32+s)*1024
    """)
    if MX:
        k(f"""
        {"s_waitcnt vmcnt(5)" if MX == 3 else ""}
        {"s_waitcnt vmcnt(0)" if MX == 4 else ""}
        {f"s_memrealtime {sr(sTS+2,2)}" if MX in (3, 4) else ""}
        s_waitcnt lgkmcnt(0)
        s_sub_u32 s{sT0}, s{sTS+2}, s{sTS}
        v_mov_b32 v{vTmp}, s{sT0}
        s_mov_b64 exec, 1
        ds_add_u32 v{vPa}, v{vTmp} offset:80
        s_mov_b64 exec, -1
        """)
    k(f"""
    """)

    def qk(i):
        k(f"v_mfma_f32_16x16x32_bf16 {vr(vD+4*i,4)}, {vr(vKA+4*i,4)}, {vr(vQ,4)}, 0")

    def perm(e, half):
        j, hi = e >> 1, e & 1
        sel = sPhi if hi else sPlo
        k(f"v_perm_b32 v{vB+2*e+half}, v{vVA+8*half+4+j}, v{vVA+8*half+j}, s{sel}")

    def pv(e):
        k(f"v_mfma_f32_16x16x16_bf16 {vr(vAcc+4*e,4)}, {vr(vP,2)}, {vr(vB+2*e,2)}, {vr(vAcc+4*e,4)}")

    def lreduce(kk):
        kk(f"""
        v_mov_b32 v{vTmp}, v{vL}
        v_permlane32_swap_b32 v{vL}, v{vTmp}
        v_add_f32 v{vL}, v{vL}, v{vTmp}
        v_mov_b32 v{vTmp}, v{vL}
        v_permlane16_swap_b32 v{vL}, v{vTmp}
        v_add_f32 v{vL}, v{vL}, v{vTmp}
        """)

    def mlpub(d, mx, mo, tag):
        for w in range(4):
            k(f"v_sub_f32 v{d+2*w}, v{d+2*w}, v{mx}")
        for w in range(4):
            k(f"v_exp_f32 v{d+2*w}, v{d+2*w}")
        k(f"""
        v_xor_b32 v{d+8}, s{sR}, v{mx}
        v_mul_f32 v{d+9}, v{d}, v{d+1}
        v_fmac_f32 v{d+9}, v{d+2}, v{d+3}
        v_fmac_f32 v{d+9}, v{d+4}, v{d+5}
        v_fmac_f32 v{d+9}, v{d+6}, v{d+7}
        v_mov_b32 v{d+10}, s{sR}
        v_mov_b32 v{d+11}, s{sR}
        s_mov_b32 exec_lo, 0x1111
        s_mov_b32 exec_hi, 0
        s_cmp_lg_u32 s{sPol}, 0
        v_xor_b32 v{d+9}, s{sR}, v{d+9}
        s_cbranch_scc1 L_ml1{tag}
        buffer_store_dwordx4 {vr(d+8,4)}, v{mo}, {sr(SW,4)}, s{sMl} offen
        s_branch L_ml3{tag}
        L_ml1{tag}:
        buffer_store_dwordx4 {vr(d+8,4)}, v{mo}, {sr(SW,4)}, s{sMl} offen sc1
        L_ml3{tag}:
        s_mov_b64 exec, -1
        """)

    def mreads():
        k(f"""
        ds_read_b32 v{vPc}, v{vPa} offset:64
        ds_read_b32 v{vAl}, v{vPa} offset:72       ; salt
        """)
        for j in range(4):
            k(f"ds_read_b32 v{vF4+2*j}, v{vAd+j} offset:{MLW}")
        for j in range(3):
            k(f"ds_read_b128 {vr(vPre+8*j,4)}, v{vAd+4+j} offset:{ACC}")
            k(f"ds_read_b128 {vr(vPre+8*j+4,4)}, v{vAd+4+j} offset:{ACC+1024}")

    def mbase(fail):
        k(f"""
        s_waitcnt lgkmcnt({0 if DIAG else 6})
        v_readfirstlane_b32 s{sT0}, v{vPc}
        v_max3_f32 v{vMx}, v{vF4}, v{vF4+2}, v{vF4+4}
        v_max_f32 v{vMx}, v{vMx}, v{vF4+6}
        """)
        for w in (1, 2, 3, 0):
            k(f"v_sub_f32 v{vF4+2*w}, v{vF4+2*w}, v{vMx}")
        k(f"""
        s_cmp_eq_u32 s{sT0}, 12
        s_cbranch_scc0 {fail}
        """)
        for w in (1, 2, 3, 0):
            k(f"v_exp_f32 v{vF4+2*w}, v{vF4+2*w}")
        for j in range(3):
            k(f"s_waitcnt lgkmcnt({4-2*j})")
            for e in range(0, 8, 2):
                if j == 0:
                    k(f"v_pk_mul_f32 {vr(vD+e,2)}, {vr(vF4+2,2)}, {vr(vPre+e,2)} op_sel_hi:[0,1]")
                else:
                    k(f"v_pk_fma_f32 {vr(vD+e,2)}, {vr(vF4+2*j+2,2)}, {vr(vPre+8*j+e,2)}, {vr(vD+e,2)} op_sel_hi:[0,1,1]")

    def hook():
        k(f"""
        s_cmp_eq_u32 s{sLast}, 12
        s_cbranch_scc0 L_nopre
        """)
        mreads()
        k("L_nopre:")

    def issue(p):
        if (XW >> p) & 1:
            k(f"s_waitcnt vmcnt({D-2})")
        if (XWF >> p) & 1:
            k(f"""
            s_bitcmp1_b32 s{sSp}, 0
            s_cbranch_scc1 L_xf{p}
            s_waitcnt vmcnt({D-2})
            L_xf{p}:
            """)
        if (WM or WMS) and (PM >> p) & 1:
            k(f"""
            s_bitcmp1_b32 s{sTh}, 0
            s_cbranch_scc0 L_th{p}
            s_waitcnt vmcnt({D-2})
            L_th{p}:
            """)
        ld(p + D, sOff if p + D < 8 else sNxt)

    def wait(p):
        if p in (4, 6) and SKIP:
            k(f"""
            s_bitcmp1_b32 s{sSp}, 0
            s_cbranch_scc1 L_sk{p}
            s_waitcnt vmcnt({D-1})
            L_sk{p}:
            """)
        else:
            k(f"s_waitcnt vmcnt({D-1})")

    k(f"""
    L_loop:
    s_mov_b64 exec, 1
    ds_add_rtn_u32 v{vNx}, v{vPa}, v{vFour}
    s_mov_b64 exec, -1
    """)
    for i in range(4):
        if i == 2:
            k(f"""
            s_waitcnt lgkmcnt(0)
            L_get:
            s_mov_b64 exec, 1
            ds_read_b32 v{vEn}, v{vLi}
            ds_read_b32 v{vEn+1}, v{vNx}
            s_mov_b64 exec, -1
            """)
        wait(i)
        qk(i)
        if i == 2:
            k(f"""
            s_waitcnt lgkmcnt(0)
            v_readfirstlane_b32 s{sT0}, v{vEn+1}
            v_readfirstlane_b32 s{sCnt}, v{vEn}
            s_max_u32 s{sT1}, s{sT0}, s{sCnt}
            s_cmp_eq_u32 s{sT1}, -1
            s_cbranch_scc1 L_retry
            s_and_b32 s{sNxt}, s{sT0}, 0xffff8000
            s_and_b32 s{sCnt}, s{sCnt}, 31
            s_and_b32 s{sPol}, s{sT0}, 32
            v_mov_b32 v{vLi}, v{vNx}
            """)
        issue(i)
    for j in (1, 2, 3):
        for i in range(4):
            src1 = vD + 4 * i if j == 1 else vT + i
            k(f"v_add_f32_dpp v{vT+i}, v{vD+4*i+j}, v{src1} quad_perm:[{j},{j},{j},{j}] {ALL}")
    for i in range(4):
        k(f"v_mul_f32 v{vT+i}, s{sC}, v{vT+i}")
    k(f"""
    s_cmp_lt_u32 s{sCnt}, 16
    s_cbranch_scc1 L_mask
    L_nomask:
    """)
    if LAZY:
        k(f"""
        v_max3_f32 v{vMx}, v{vT}, v{vT+1}, v{vT+2}
        v_max_f32 v{vMx}, v{vMx}, v{vT+3}
        v_cmp_gt_f32 vcc, v{vMx}, v{vM}
        s_and_b64 vcc, vcc, {sr(sMB,2)}
        s_cbranch_scc1 L_newmax
        L_maxok:
        """)
        warm(f"""
        L_newmax:
        v_max_f32 v{vMx}, v{vMx}, v{vM}
        v_mov_b32 v{vTmp}, v{vMx}
        v_permlane32_swap_b32 v{vMx}, v{vTmp}
        v_max_f32 v{vMx}, v{vMx}, v{vTmp}
        v_mov_b32 v{vTmp}, v{vMx}
        v_permlane16_swap_b32 v{vMx}, v{vTmp}
        v_max_f32 v{vMx}, v{vMx}, v{vTmp}
        v_sub_f32 v{vAl}, v{vM}, v{vMx}
        v_exp_f32 v{vAl}, v{vAl}
        v_mov_b32 v{vM}, v{vMx}
        v_mul_f32 v{vL}, v{vL}, v{vAl}
        """)
        for i in range(4):
            warm(f"v_mov_b32_dpp v{vAb}, v{vAl} row_newbcast:{4*i} row_mask:{hex(1<<i)} bank_mask:0xf")
        for e in range(8):
            warm(f"v_mul_f32 v{vAcc+4*e}, v{vAb}, v{vAcc+4*e}")
        warm("s_branch L_maxok")
    else:
        k(f"""
    v_max3_f32 v{vMx}, v{vT}, v{vT+1}, v{vT+2}
    v_max3_f32 v{vMx}, v{vMx}, v{vT+3}, v{vM}
    v_mov_b32 v{vTmp}, v{vMx}
    v_permlane32_swap_b32 v{vMx}, v{vTmp}
    v_max_f32 v{vMx}, v{vMx}, v{vTmp}
    v_mov_b32 v{vTmp}, v{vMx}
    v_permlane16_swap_b32 v{vMx}, v{vTmp}
    v_max_f32 v{vMx}, v{vMx}, v{vTmp}
    """)
    cold(f"""
    L_mask:                                    ; tokens at or past context_len
    v_mov_b32 v{vTmp}, s{sNeg}
    """)
    for i in range(4):
        cold(f"""
        s_sub_i32 s{sT0}, s{sCnt}, {i}
        v_cmp_gt_i32 vcc, s{sT0}, v{vG4}
        v_cndmask_b32 v{vT+i}, v{vTmp}, v{vT+i}, vcc
        """)
    cold("s_branch L_nomask")
    wait(4)
    issue(4)
    if LAZY:
        k(f"""
        v_sub_f32 v{vT}, v{vT}, v{vM}
        v_sub_f32 v{vT+1}, v{vT+1}, v{vM}
        v_exp_f32 v{vT}, v{vT}
        v_sub_f32 v{vT+2}, v{vT+2}, v{vM}
        v_exp_f32 v{vT+1}, v{vT+1}
        v_sub_f32 v{vT+3}, v{vT+3}, v{vM}
        v_exp_f32 v{vT+2}, v{vT+2}
        v_add_f32 v{vL}, v{vL}, v{vT}
        v_exp_f32 v{vT+3}, v{vT+3}
        v_add_f32 v{vTmp}, v{vT+1}, v{vT+2}
        v_cvt_pk_bf16_f32 v{vP}, v{vT}, v{vT+1}
        v_add_f32 v{vL}, v{vL}, v{vT+3}
        s_cmp_eq_u32 s{sNxt}, s{sEnd}
        v_cvt_pk_bf16_f32 v{vP+1}, v{vT+2}, v{vT+3}
        v_add_f32 v{vL}, v{vL}, v{vTmp}
        s_cbranch_scc1 L_none
        L_mld:
        """)
    elif TRIM:
        k(f"""
        v_sub_f32 v{vAl}, v{vM}, v{vMx}
        v_sub_f32 v{vT}, v{vT}, v{vMx}
        v_exp_f32 v{vAl}, v{vAl}
        v_sub_f32 v{vT+1}, v{vT+1}, v{vMx}
        v_exp_f32 v{vT}, v{vT}
        v_sub_f32 v{vT+2}, v{vT+2}, v{vMx}
        v_exp_f32 v{vT+1}, v{vT+1}
        v_sub_f32 v{vT+3}, v{vT+3}, v{vMx}
        v_exp_f32 v{vT+2}, v{vT+2}
        v_fma_f32 v{vL}, v{vL}, v{vAl}, v{vT}
        v_exp_f32 v{vT+3}, v{vT+3}
        v_add_f32 v{vTmp}, v{vT+1}, v{vT+2}
        v_mov_b32 v{vM}, v{vMx}
        v_add_f32 v{vL}, v{vL}, v{vT+3}
        s_cmp_eq_u32 s{sNxt}, s{sEnd}
        v_add_f32 v{vL}, v{vL}, v{vTmp}
        s_cbranch_scc1 L_none                      ; last page: (m, l) are final before its V rows land
        L_mld:
        v_mov_b32_dpp v{vAb}, v{vAl} row_newbcast:0 row_mask:0x1 bank_mask:0xf
        v_cvt_pk_bf16_f32 v{vP}, v{vT}, v{vT+1}
        v_cvt_pk_bf16_f32 v{vP+1}, v{vT+2}, v{vT+3}
        v_mov_b32_dpp v{vAb}, v{vAl} row_newbcast:4 row_mask:0x2 bank_mask:0xf
        v_mov_b32_dpp v{vTmp}, v{vAl} row_newbcast:8 row_mask:0x4 bank_mask:0xf
        s_nop 0
        v_mov_b32_dpp v{vAb}, v{vAl} row_newbcast:12 row_mask:0x8 bank_mask:0xf
        v_mov_b32_dpp v{vAb}, v{vAl} row_newbcast:8 row_mask:0x4 bank_mask:0xf
        """.replace(f"        v_mov_b32_dpp v{vTmp}, v{vAl} row_newbcast:8 row_mask:0x4 bank_mask:0xf\n        s_nop 0\n", ""))
        for e in range(8):
            k(f"v_mul_f32 v{vAcc+4*e}, v{vAb}, v{vAcc+4*e}")
    else:
        k(f"""
        v_sub_f32 v{vAl}, v{vM}, v{vMx}
        v_mov_b32 v{vM}, v{vMx}
        v_exp_f32 v{vAl}, v{vAl}
        """)
        for i in range(4):
            k(f"v_sub_f32 v{vT+i}, v{vT+i}, v{vMx}")
        for i in range(4):
            k(f"v_exp_f32 v{vT+i}, v{vT+i}")
            k(f"v_mov_b32_dpp v{vAb}, v{vAl} row_newbcast:{4*i} row_mask:{hex(1<<i)} bank_mask:0xf")
            if i == 1:
                k(f"v_fma_f32 v{vL}, v{vL}, v{vAl}, v{vT}")
            if i == 2:
                k(f"v_cvt_pk_bf16_f32 v{vP}, v{vT}, v{vT+1}")
        k(f"""
        v_add_f32 v{vTmp}, v{vT+1}, v{vT+2}
        v_cvt_pk_bf16_f32 v{vP+1}, v{vT+2}, v{vT+3}
        v_add_f32 v{vL}, v{vL}, v{vT+3}
        v_add_f32 v{vL}, v{vL}, v{vTmp}
        """)
        for e in range(8):
            k(f"v_mul_f32 v{vAcc+4*e}, v{vAb}, v{vAcc+4*e}")
        k(f"""
        s_cmp_eq_u32 s{sNxt}, {hex(END)}
        s_cbranch_scc1 L_ml
        L_mld:
        """)
    wait(5)
    issue(5)
    for e in range(8):
        perm(e, 0)
    if EARLYM:
        k(f"""
        s_cmp_eq_u32 s{sNxt}, s{sEnd}
        s_cbranch_scc1 L_lastp
        """)
        wait(6)
        k("L_lastd:")
        issue(6)
    else:
        k(f"""
        s_cmp_eq_u32 s{sNxt}, s{sEnd}
        s_cbranch_scc0 L_nolast
        s_waitcnt lgkmcnt(0)
        v_readfirstlane_b32 s{sLast}, v{vNx}
        L_nolast:
        """)
        wait(6)
        issue(6)
        if HOOK == 6:
            hook()
    wait(7)
    if DIAG == 2:
        k(st(1))
    if HOOK == 7:
        hook()
    issue(7)
    perm(0, 1)
    perm(1, 1)
    for e in range(8):
        if e + 2 < 8:
            perm(e + 2, 1)
        pv(e)
    k(f"""
    s_mov_b32 s{sOff}, s{sNxt}
    s_cmp_eq_u32 s{sNxt}, {hex(END)}
    s_cbranch_scc0 L_loop
    s_cmp_lg_u32 s{sFb}, 0
    s_cbranch_scc1 L_fbnext
    """)
    vS0 = vD
    k(f"""
    {f"s_cmp_eq_u32 s{sLast}, 13" if EARLYM else ""}
    {"s_cbranch_scc1 L_own" if EARLYM else ""}
    s_cmp_eq_u32 s{sLast}, 12
    s_cbranch_scc0 L_give
    L_mrg:                                     ; lane (c, g): O[query g][8c .. 8c+7]
    """)
    mbase("L_again")
    k(f"""
    {"L_own:" if EARLYM else ""}
    s_cmp_lg_u32 s{sPol}, 0
    """)
    for e in range(8):
        k(f"v_fmac_f32 v{vS0+e}, v{vF4}, v{vAcc+4*e}")
    for j in range(4):
        k(f"v_cvt_pk_bf16_f32 v{vD+j}, v{vS0+2*j}, v{vS0+2*j+1}")
        k(f"v_xor_b32 v{vD+j}, v{vAl}, v{vD+j}")
    k(f"""
    {st(2)}
    s_cbranch_scc1 L_dn1
    buffer_store_dwordx4 {vr(vD,4)}, v{vRo}, {sr(SW,4)}, s{sRec} offen
    """)
    diag_store(1)
    k(f"""
    s_endpgm
    L_dn1:
    buffer_store_dwordx4 {vr(vD,4)}, v{vRo}, {sr(SW,4)}, s{sRec} offen sc1
    s_endpgm
    L_again:
    s_waitcnt lgkmcnt(0)
    """)
    mreads()
    k(f"""
    s_branch L_mrg
    L_give:                                    ; hand the sums to the merging worker
    """)
    for e in range(8):
        k(f"v_mov_b32 v{vS0+e}, v{vAcc+4*e}")
    k(f"""
    ds_write_b128 v{vSl}, {vr(vS0,4)} offset:{ACC}
    ds_write_b128 v{vSl}, {vr(vS0+4,4)} offset:{ACC+1024}
    s_mov_b64 exec, 1
    ds_add_u32 v{vPa}, v{vFour} offset:64
    {st(2)}
    s_waitcnt lgkmcnt(0)
    """)
    diag_store(0)
    k(f"""
    s_endpgm
    """)
    if EARLYM:
        k(f"""
        L_lastp:                                   ; last page, V rows 2 and 3 still to come
        s_waitcnt lgkmcnt(0)
        v_readfirstlane_b32 s{sLast}, v{vNx}
        s_cmp_eq_u32 s{sLast}, 12
        s_cbranch_scc0 L_lastd
        """)
        mreads()
        mbase("L_lastr")
        k(f"""
        s_mov_b32 s{sLast}, 13
        s_branch L_lastd
        L_lastr:
        s_waitcnt vmcnt({D-1}) lgkmcnt(0)
        """)
        mreads()
        k("s_branch L_lastd")
    k(f"""
    L_retry:
    s_cmp_eq_u32 s{sCnt}, {hex(END)}
    s_cbranch_scc0 L_get
    s_mov_b32 s{sPol}, 32
    L_none:
    {st(1) if DIAG == 1 else ""}
    """)
    lreduce(k)
    k(f"""
    s_mov_b32 exec_lo, 0x1111
    s_mov_b32 exec_hi, 0
    ds_write_b64 v{vMw}, {vr(vM,2)} offset:{MLW}
    s_mov_b64 exec, 1
    ds_add_rtn_u32 v{vNx}, v{vPa}, v{vFour} offset:68
    s_mov_b64 exec, -1
    s_cmp_eq_u32 s{sCnt}, {hex(END)}
    s_cbranch_scc0 L_mld
    s_waitcnt lgkmcnt(0)
    v_readfirstlane_b32 s{sLast}, v{vNx}
    s_cmp_eq_u32 s{sLast}, 12
    s_cbranch_scc1 L_again
    s_branch L_give
    """)

    k.lines += warm.lines
    vOf, vMo, vPw, vPm, vPr_, vOo = 2, 3, 4, 5, 6, 7
    vX, vY, vW, vZ = 8, 9, 10, 11
    vML = 12
    vMa, vRr, vSa = 16, 18, 20
    vA, vPr = 24, 28
    vOr, vOs, vU = 32, 34, 36
    vBt, vDyn, vCo, vPq, vCt = 42, 43, 44, 45, 46
    vE4, vEl = 48, 52
    vV2, vBase, vM4 = 56, 58, 60

    def ctxcalc(kk):
        kk(f"""
        s_min_i32 s{sT0}, s{sCtx}, 65536
        s_cmp_le_i32 s{sCtx}, 0
        s_cselect_b32 s{sT0}, 65536, s{sT0}
        s_add_u32 s{sT0}, s{sT0}, 15
        s_lshr_b32 s{sN}, s{sT0}, 4
        s_min_i32 s{sCtx}, s{sCtx}, 65536
        s_max_i32 s{sCtx}, s{sCtx}, 0
        """)

    def entry(kk, vpage, vbt, vt):
        kk(f"""
        v_lshlrev_b32 v{vt}, 4, v{vpage}
        v_sub_u32 v{vt}, s{sCtx}, v{vt}
        v_med3_i32 v{vt}, v{vt}, 0, 16
        v_cmp_gt_u32 vcc, s{sN}, v{vpage}
        v_lshl_or_b32 v{vbt}, v{vbt}, 15, v{vt}
        v_bfrev_b32 v{vt}, 1
        v_and_b32 v{vbt}, 0x7fffffff, v{vbt}
        v_cndmask_b32 v{vbt}, v{vt}, v{vbt}, vcc
        """)

    vMb, vRs, vSb, vW2, vZ2 = 17, 19, 21, 14, 15
    vOr2, vOs2, vOf2 = 56, 58, 60
    k(f"""
    L_service:
    s_mov_b64 {sr(sE,2)}, 0
    v_lshlrev_b32 v{vX}, 9, v{vLane}
    v_lshlrev_b32 v{vCo}, 2, v{vLane}
    v_lshlrev_b32 v{vDyn}, 4, v{vLane}
    v_mov_b32 v{vEl}, -1
    v_mov_b32 v{vEl+1}, -1
    v_mov_b32 v{vEl+2}, -1
    v_mov_b32 v{vEl+3}, -1
    ds_write_b128 v{vDyn}, {vr(vEl,4)}
    v_mov_b32 v{vY}, 0
    v_writelane_b32 v{vY}, 16, 0
    ds_write_b32 v{vCo}, v{vY} offset:{POP}
    s_lshl_b32 s{sIdx}, s{sSh}, 4
    s_lshl_b32 s{sT0}, s{sH}, 15
    s_lshl_b32 s{sT1}, s{sSh}, 5               ; q*256 + oct*32
    s_add_u32 s{sT0}, s{sT0}, s{sT1}
    v_lshrrev_b32 v{vY}, 2, v{vLane}
    v_and_b32 v{vW}, 3, v{vLane}
    v_lshlrev_b32 v{vZ}, 10, v{vY}
    v_lshl_add_u32 v{vZ}, v{vW}, 3, v{vZ}
    v_add_u32 v{vOf}, s{sT0}, v{vZ}
    v_add_u32 v{vOf2}, 0x4000, v{vOf}
    s_lshr_b32 s{sI}, s{sSh}, 3
    s_lshl_b32 s{sT0}, s{sH}, 12
    s_lshl4_add_u32 s{sT0}, s{sI}, s{sT0}
    s_add_u32 s{sT0}, s{sT0}, {ML_OFF}
    v_lshlrev_b32 v{vZ}, 7, v{vY}
    v_lshl_add_u32 v{vZ}, v{vW}, 2, v{vZ}
    v_add_u32 v{vMo}, s{sT0}, v{vZ}
    s_lshl_b32 s{sRec}, s{sH}, 5
    s_add_u32 s{sRec}, s{sRec}, s{sSh}
    s_lshl_b32 s{sRec}, s{sRec}, 10
    s_lshr_b32 s{sMl}, s{sRec}, 3
    s_add_u32 s{sMl}, s{sMl}, {ML_OFF}
    s_waitcnt lgkmcnt(0)
    s_load_dword s{sCtx}, {sr(sCTX,2)}, 0
    s_load_dword s{sR}, {sr(sWS,2)}, s{sRec}
    """)
    srd(k, SB, sBT, 16384)
    k(f"buffer_load_dwordx4 {vr(vE4,4)}, v{vX}, {sr(SB,4)}, s{sIdx} offen")
    srd(k, SW, sWS, WS_USED)
    k(f"""
    buffer_load_dword v{vSa}, v{vMo}, {sr(SW,4)}, 0 offen sc1
    buffer_load_dword v{vSb}, v{vMo}, {sr(SW,4)}, 0 offen offset:2048 sc1
    buffer_load_dwordx2 {vr(vOs,2)}, v{vOf}, {sr(SW,4)}, 0 offen sc1
    buffer_load_dwordx2 {vr(vOs2,2)}, v{vOf2}, {sr(SW,4)}, 0 offen sc1
    s_lshl_b32 s{sT0}, s{sH}, 10
    s_add_u32 s{sT0}, s{sT0}, s{sT1}
    v_lshrrev_b32 v{vX}, 4, v{vLane}
    v_lshl_add_u32 v{vX}, v{vW}, 2, v{vX}
    v_lshl_add_u32 v{vOo}, v{vX}, 1, s{sT0}
    s_barrier
    s_waitcnt lgkmcnt(0)
    s_add_u32 s{sR}, s{sR}, s{sMl}
    s_mul_i32 s{sR}, s{sR}, 0x9e3779b1
    s_lshr_b32 s{sT0}, s{sR}, 15
    s_xor_b32 s{sR}, s{sR}, s{sT0}
    s_mul_i32 s{sR}, s{sR}, 0x85ebca6b         ; salt
    v_mov_b32 v{vW}, {POP}
    v_mov_b32 v{vY}, s{sR}
    ds_write_b32 v{vW}, v{vY} offset:72
    """)
    ctxcalc(k)
    k(f"""
    s_lshr_b32 s{sS}, s{sN}, 7
    s_max_i32 s{sS}, s{sS}, 1
    s_lshl_b32 s{sT1}, s{sSh}, 2
    v_lshl_add_u32 v{vX}, v{vLane}, 7, s{sT1}
    s_lshl_b32 s{sT0}, s{sS}, 7
    s_add_u32 s{sT0}, s{sT0}, s{sSh}
    v_lshl_add_u32 v{vBt}, v{vLane}, 5, s{sT0}
    v_lshlrev_b32 v{vEl}, 2, v{vBt}
    v_cmp_gt_u32 vcc, s{sS}, v{vLane}
    s_mov_b64 exec, 15
    buffer_load_dword v{vEl}, v{vEl}, {sr(SB,4)}, 0 offen
    s_mov_b64 exec, vcc
    s_waitcnt vmcnt(5)
    """)
    for w in range(4):
        entry(k, vX, vE4 + w, vY)
        if w < 3:
            k(f"v_add_u32 v{vX}, 1, v{vX}")
    k(f"""
    ds_write_b128 v{vDyn}, {vr(vE4,4)}
    s_mov_b64 exec, -1
    """)
    srd(k, SO, sOUT, 8192)
    k(f"""
    s_mov_b32 s{sC}, 0xffff0000
    """)
    srd(k, SD, sDBG, 256)
    k(f"""
    s_getreg_b32 s{sXc}, hwreg(HW_REG_XCC_ID)
    s_lshl_b32 s{sT0}, s{sH}, 5
    v_mov_b32 v{vCo}, s{sT0}
    s_and_b32 s{sXc}, s{sXc}, 15
    s_add_u32 s{sXc}, s{sXc}, 1
    s_mov_b32 s{sPol}, {32 if FORCESC else 0}
    s_cmp_eq_u32 s{sSh}, 0
    s_cbranch_scc0 L_nl
    v_mov_b32 v{vX}, s{sXc}
    s_mov_b64 exec, 1
    buffer_store_dword v{vX}, v{vCo}, {sr(SD,4)}, 0 offen offset:4 sc1
    s_mov_b64 exec, -1
    L_nl:
    s_waitcnt vmcnt(0)
    """)
    entry(k, vBt, vEl, vY)
    k(f"""
    s_lshl_b32 s{sE}, s{sS}, 4
    v_lshl_add_u32 v{vDyn}, v{vLane}, 2, s{sE}
    s_sub_i32 s{sE}, s{sE}, {4*LEADP}
    s_min_i32 s{sOff}, s{sE}, {4*CHK}
    s_mov_b32 s{sI}, 0
    L_s0:
    ds_read_b32 v{vX}, v{vW}
    s_waitcnt lgkmcnt(0)
    v_readfirstlane_b32 s{sT0}, v{vX}
    s_cmp_ge_i32 s{sT0}, s{sOff}
    s_cbranch_scc1 L_s2
    s_sleep 4
    s_branch L_s0
    L_s2:
    buffer_load_dwordx2 {vr(vPr,2)}, v{vCo}, {sr(SD,4)}, 0 offen sc1
    s_waitcnt vmcnt(0)
    v_readfirstlane_b32 s{sT1}, v{vPr}
    v_readfirstlane_b32 s{sT0}, v{vPr+1}
    s_or_b32 s{sPol}, s{sPol}, s{sT1}
    s_cmp_lg_u32 s{sI}, 0
    s_cbranch_scc1 L_s1
    s_mov_b32 s{sI}, 1
    s_mov_b32 s{sOff}, s{sE}
    s_cmp_eq_u32 s{sT0}, s{sXc}
    s_cbranch_scc1 L_s0
    s_mov_b32 s{sPol}, 32
    v_mov_b32 v{vX}, 32
    s_mov_b64 exec, 1
    buffer_store_dword v{vX}, v{vCo}, {sr(SD,4)}, 0 offen sc1
    s_mov_b64 exec, -1
    s_branch L_s0
    L_s1:
    s_and_b32 s{sPol}, s{sPol}, 32
    s_mov_b64 exec, 0xffff
    v_or_b32 v{vEl}, s{sPol}, v{vEl}
    ds_write_b32 v{vDyn}, v{vEl}
    s_mov_b64 exec, -1
    s_mov_b32 s{sI}, {LIMIT if FORCEFB else 0}
    s_mov_b32 s{sLim}, {LIMIT if FORCEFB else LIM0}
    v_bfe_u32 v{vX}, v{vLane}, 2, 2
    v_lshlrev_b32 v{vX}, 5, v{vX}
    v_lshlrev_b32 v{vCo}, 2, v{vLane}
    s_waitcnt vmcnt(0)
    L_gate:                                    ; until every worker's (m, l) is there
    {f"s_sleep {GSL}" if GSL else ""}
    ds_read_b32 v{vY}, v{vW} offset:68
    ds_read_b128 v[64:67], v{vX} offset:{MLW}
    ds_read_b128 v[68:71], v{vX} offset:{MLW+16}
    s_waitcnt lgkmcnt(2)
    v_cmp_ne_u32 vcc, 16, v{vY}
    s_cbranch_vccnz L_gate
    {st(1) if DIAG == 1 else ""}
    """)
    if SVML:
        k(f"""
        s_waitcnt lgkmcnt(0)
        v_max3_f32 v{vX}, v64, v66, v68
        v_max_f32 v{vX}, v{vX}, v70
        """)
        mlpub(64, vX, vCo, "b")
    k(f"""
    s_branch L_m1
    L_m0:                                      ; wait for the (m, l, salt) entries
    s_bcnt1_i32_b64 s{sT0}, vcc
    L_m2:                                      ; back off in proportion to the number of missing producers
    s_sleep {GR}
    s_sub_i32 s{sT0}, s{sT0}, {GSUB}
    s_cmp_gt_i32 s{sT0}, 0
    s_cbranch_scc1 L_m2
    s_mov_b64 exec, vcc
    L_m1:
    buffer_load_dword v{vMa}, v{vMo}, {sr(SW,4)}, 0 offen sc1
    buffer_load_dword v{vMb}, v{vMo}, {sr(SW,4)}, 0 offen offset:2048 sc1
    s_mov_b64 exec, -1
    s_add_u32 s{sI}, s{sI}, 1
    s_cmp_ge_u32 s{sI}, s{sLim}
    s_cbranch_scc1 L_chk1
    L_m3:
    s_waitcnt vmcnt(0)
    v_xor_b32 v{vU}, v{vMa}, v{vSa}
    v_xor_b32 v{vU+1}, v{vMb}, v{vSb}
    v_mov_b32_dpp v{vRr}, v{vMa} quad_perm:[2,2,2,2] {ALL}
    v_min_u32 v{vU}, v{vU}, v{vU+1}
    v_mov_b32_dpp v{vRs}, v{vMb} quad_perm:[2,2,2,2] {ALL}
    v_cmp_eq_u32 vcc, 0, v{vU}
    v_xor_b32_dpp v{vW}, v{vMa}, v{vRr} quad_perm:[0,0,0,0] {ALL}     ; m
    s_cbranch_vccnz L_m0
    {st(2) if DIAG == 1 else st(1)}
    buffer_load_dwordx2 {vr(vOr,2)}, v{vOf}, {sr(SW,4)}, 0 offen sc1
    buffer_load_dwordx2 {vr(vOr2,2)}, v{vOf2}, {sr(SW,4)}, 0 offen sc1
    v_xor_b32_dpp v{vW2}, v{vMb}, v{vRs} quad_perm:[0,0,0,0] {ALL}
    v_xor_b32_dpp v{vZ}, v{vMa}, v{vRr} quad_perm:[1,1,1,1] {ALL}     ; l
    v_max_f32 v{vML}, v{vW}, v{vW2}
    v_xor_b32_dpp v{vZ2}, v{vMb}, v{vRs} quad_perm:[1,1,1,1] {ALL}
    v_max_f32_dpp v{vML}, v{vML}, v{vML} row_ror:4 {ALL}
    v_max_f32_dpp v{vML}, v{vML}, v{vML} row_ror:8 {ALL}
    v_mov_b32 v{vY}, v{vML}
    v_permlane16_swap_b32 v{vML}, v{vY}
    v_max_f32 v{vML}, v{vML}, v{vY}
    v_mov_b32 v{vY}, v{vML}
    v_permlane32_swap_b32 v{vML}, v{vY}
    v_max_f32 v{vML}, v{vML}, v{vY}
    v_sub_f32 v{vW}, v{vW}, v{vML}
    v_sub_f32 v{vW2}, v{vW2}, v{vML}
    v_exp_f32 v{vW}, v{vW}
    v_exp_f32 v{vW2}, v{vW2}
    v_mul_f32 v{vZ}, v{vW}, v{vZ}
    v_fmac_f32 v{vZ}, v{vW2}, v{vZ2}
    v_add_f32_dpp v{vZ}, v{vZ}, v{vZ} row_ror:4 {ALL}
    v_add_f32_dpp v{vZ}, v{vZ}, v{vZ} row_ror:8 {ALL}
    v_mov_b32 v{vY}, v{vZ}
    v_permlane16_swap_b32 v{vZ}, v{vY}
    v_add_f32 v{vZ}, v{vZ}, v{vY}
    v_mov_b32 v{vY}, v{vZ}
    v_permlane32_swap_b32 v{vZ}, v{vY}
    v_add_f32 v{vZ}, v{vZ}, v{vY}
    v_rcp_f32 v{vZ}, v{vZ}
    {f"v_mul_f32 v{vW}, v{vW}, v{vZ}" if TRIM else ""}
    {f"v_mul_f32 v{vW2}, v{vW2}, v{vZ}" if TRIM else ""}
    {"s_waitcnt vmcnt(0)" if PIPE else ""}
    s_branch L_o1
    L_o0:                                      ; wait for the record pieces
    s_mov_b64 exec, vcc
    buffer_load_dwordx2 {vr(vOr,2)}, v{vOf}, {sr(SW,4)}, 0 offen sc1
    buffer_load_dwordx2 {vr(vOr2,2)}, v{vOf2}, {sr(SW,4)}, 0 offen sc1
    s_mov_b64 exec, -1
    s_add_u32 s{sI}, s{sI}, 1
    s_cmp_ge_u32 s{sI}, s{sLim}
    s_cbranch_scc1 L_chk2
    L_o1:
    s_waitcnt vmcnt({2*PIPE})
    v_xor_b32 v{vU}, v{vOr}, v{vOs}
    v_xor_b32 v{vU+1}, v{vOr+1}, v{vOs+1}
    v_xor_b32 v{vU+2}, v{vOr2}, v{vOs2}
    v_xor_b32 v{vU+3}, v{vOr2+1}, v{vOs2+1}
    v_min3_u32 v{vU}, v{vU}, v{vU+1}, v{vU+2}
    v_xor_b32 v{vX}, v{vOr}, v{vRr}
    v_min_u32 v{vU}, v{vU}, v{vU+3}
    v_xor_b32 v{vY}, v{vOr+1}, v{vRr}
    v_cmp_eq_u32 vcc, 0, v{vU}
    v_lshlrev_b32 v{vA}, 16, v{vX}
    v_and_b32 v{vA+1}, s{sC}, v{vX}
    v_lshlrev_b32 v{vA+2}, 16, v{vY}
    v_and_b32 v{vA+3}, s{sC}, v{vY}
    s_cbranch_vccnz L_o0
    {st(2) if DIAG == 2 else ""}
    v_xor_b32 v{vX}, v{vOr2}, v{vRs}
    v_xor_b32 v{vY}, v{vOr2+1}, v{vRs}
    v_mul_f32 v{vA}, v{vW}, v{vA}
    v_mul_f32 v{vA+1}, v{vW}, v{vA+1}
    v_mul_f32 v{vA+2}, v{vW}, v{vA+2}
    v_mul_f32 v{vA+3}, v{vW}, v{vA+3}
    v_lshlrev_b32 v{vU}, 16, v{vX}
    v_and_b32 v{vU+1}, s{sC}, v{vX}
    v_lshlrev_b32 v{vU+2}, 16, v{vY}
    v_and_b32 v{vU+3}, s{sC}, v{vY}
    v_fmac_f32 v{vA}, v{vW2}, v{vU}
    v_fmac_f32 v{vA+1}, v{vW2}, v{vU+1}
    v_fmac_f32 v{vA+2}, v{vW2}, v{vU+2}
    v_fmac_f32 v{vA+3}, v{vW2}, v{vU+3}
    """)
    for sh in (4, 8):
        for j in range(4):
            k(f"v_add_f32_dpp v{vA+j}, v{vA+j}, v{vA+j} row_ror:{sh} {ALL}")
    k(f"""
    v_permlane16_swap_b32 v{vA}, v{vA+1}
    s_mov_b32 vcc_lo, 0x000f000f
    v_permlane16_swap_b32 v{vA+2}, v{vA+3}
    v_add_f32 v{vA}, v{vA}, v{vA+1}
    v_add_f32 v{vA+2}, v{vA+2}, v{vA+3}
    s_mov_b32 vcc_hi, 0x000f000f
    v_permlane32_swap_b32 v{vA}, v{vA+2}
    v_add_f32 v{vA}, v{vA}, v{vA+2}
    s_mov_b64 exec, vcc
    {"" if TRIM else f"v_mul_f32 v{vA}, v{vA}, v{vZ}"}
    v_cvt_pk_bf16_f32 v{vA}, v{vA}, v{vA}
    buffer_store_short v{vA}, v{vOo}, {sr(SO,4)}, 0 offen
    """)
    diag_store(f"s{sI}")
    if MX:
        k(f"""
        s_mov_b64 exec, -1
        v_mov_b32 v{vX}, {POP}
        ds_read_b32 v{vX}, v{vX} offset:80
        s_waitcnt lgkmcnt(0)
        v_readfirstlane_b32 s{sT1}, v{vX}
        s_mul_i32 s{sT1}, s{sT1}, 25
        s_add_u32 s{sT1}, s{sT1}, 3000
        s_and_b32 s{sT0}, s2, 0xf8
        s_cmp_eq_u32 s{sT0}, 0x40
        s_cbranch_scc0 L_end
        L_spinx:
        s_sleep 2
        s_memrealtime {sr(sTS+2,2)}
        s_waitcnt lgkmcnt(0)
        s_sub_u32 s{sT0}, s{sTS+2}, s{sTS}
        s_cmp_lt_u32 s{sT0}, s{sT1}
        s_cbranch_scc1 L_spinx
        """)
    if MUL:
        k(f"""
        s_waitcnt vmcnt(0)
        s_memrealtime {sr(sTS+2,2)}
        s_waitcnt lgkmcnt(0)
        s_sub_u32 s{sT1}, s{sTS+2}, s{sTS}
        s_mul_i32 s{sT1}, s{sT1}, {MUL}
        L_spinm:
        s_sleep 2
        s_memrealtime {sr(sTS+2,2)}
        s_waitcnt lgkmcnt(0)
        s_sub_u32 s{sT0}, s{sTS+2}, s{sTS}
        s_cmp_lt_u32 s{sT0}, s{sT1}
        s_cbranch_scc1 L_spinm
        """)
    k("""
    L_end:
    s_endpgm
    """)
    for n, back in ((1, "L_m3"), (2, "L_o1")):
        cold(f"""
        L_chk{n}:                                    ; many looks without success: give up early on a short context
        s_cmp_ge_u32 s{sI}, {LIMIT}
        s_cbranch_scc1 L_fb
        s_load_dword s{sT0}, {sr(sCTX,2)}, 0
        s_mov_b32 s{sLim}, {LIMIT}
        s_waitcnt lgkmcnt(0)
        s_sub_u32 s{sT0}, s{sT0}, 1
        s_cmp_lt_u32 s{sT0}, 8192
        s_cbranch_scc0 {back}
        {"s_branch L_fb" if n == 1 else ""}
        """)
    cold(f"""
    L_fb:
    s_load_dword s{sCtx}, {sr(sCTX,2)}, 0
    s_waitcnt vmcnt(0) lgkmcnt(0)
    """)
    ctxcalc(cold)
    cold(f"""
    s_mov_b32 s{sE}, 0
    s_mov_b32 s{sL0}, 0
    L_fbfill:
    """)
    srd(cold, SB, sBT, 16384)
    cold(f"""
    v_add_u32 v{vFp}, s{sE}, v{vLane}
    v_lshlrev_b32 v{vFb}, 2, v{vFp}
    buffer_load_dword v{vFb}, v{vFb}, {sr(SB,4)}, 0 offen
    s_lshl_b32 s{sIdx}, s{sE}, 2
    s_waitcnt vmcnt(0)
    """)
    entry(cold, vFp, vFb, vTmp)
    cold(f"""
    s_bitset1_b32 s{sFb}, 31
    v_lshlrev_b32 v{vFp}, 2, v{vLane}
    v_writelane_b32 v{vFb}, s{sFb}, 63
    v_mov_b32 v{vPa}, {POP}
    v_mov_b32 v{vFour}, 4
    ds_write_b32 v{vFp}, v{vFb}
    ds_write_b32 v{vPa}, v{vFour}
    {"" if ORD else f"s_load_dword s{sBt0}, {sr(sBT,2)}, s{sIdx}"}
    s_branch L_setup
    L_fbnext:
    s_waitcnt vmcnt(0)
    s_add_u32 s{sE}, s{sE}, 63
    s_cmp_lt_u32 s{sE}, s{sN}
    s_cbranch_scc1 L_fbfill
    """)
    lreduce(cold)
    cold(f"v_rcp_f32 v{vAl}, v{vL}")
    for i in range(4):
        cold(f"v_mov_b32_dpp v{vAb}, v{vAl} row_newbcast:{4*i} row_mask:{hex(1<<i)} bank_mask:0xf")
    for e in range(8):
        cold(f"v_mul_f32 v{vAcc+4*e}, v{vAb}, v{vAcc+4*e}")
    for j in range(4):
        cold(f"v_cvt_pk_bf16_f32 v{vD+j}, v{vAcc+8*j}, v{vAcc+8*j+4}")
    srd(cold, SO, sOUT, 8192)
    cold(f"""
    s_lshl_b32 s{sT0}, s{sSh}, 1
    s_lshl_b32 s{sT1}, s{sH}, 10
    v_lshlrev_b32 v{vTmp}, 4, v{vLane}
    s_lshl_b64 exec, 3, s{sT0}
    buffer_store_dwordx4 {vr(vD,4)}, v{vTmp}, {sr(SO,4)}, s{sT1} offen
    s_endpgm
    """)
    k.lines += cold.lines
    body = k.done()
    body = body.replace('NLINES', str(NLINES))

    out = HEADER + ("; nwaves=1280 diagoff=3145728 p0 w5\n" if DIAG else "") + f"; @launch grid=(256,1,1) block=(320,1,1) lds={LDS}\n" + DOC
    out += '.amdgcn_target "amdgcn-amd-amdhsa--gfx950"\n.text\n'
    out += f".globl {NAME}_kernel\n.p2align 8\n.type {NAME}_kernel,@function\n{NAME}_kernel:\n"
    out += body
    out += f""".section .rodata,"a"
.p2align 6
.amdhsa_kernel {NAME}_kernel
  .amdhsa_next_free_vgpr {NV}
  .amdhsa_next_free_sgpr {NS}
  .amdhsa_accum_offset {NV}
  .amdhsa_group_segment_fixed_size 0
  .amdhsa_kernarg_size 64
  .amdhsa_user_sgpr_count 2
  .amdhsa_user_sgpr_kernarg_segment_ptr 1
  .amdhsa_system_sgpr_workgroup_id_x 1
.end_amdhsa_kernel
"""
    return out


if __name__ == "__main__":
    kw = {}
    for a in sys.argv[2:]:
        key, val = a.split("=")
        kw[key] = int(val, 0)
    open(sys.argv[1], "w").write(gen(**kw))
```

```python
import sys
import struct
from asmlib import K, vr, sr

NAME = "standalone__paged_block_table_kv_pagedattention__decode"
KV_BYTES = 4100 * 32768
HEADER = open("cdna_kernels/" + NAME + ".s.ref").read().split("; Override")[0]
ML_OFF = 0x40000
WS_USED = 0x48000
END = 0x80000000
POP = 1024
CTR = POP + 64
MLW = POP + 128
ACC = 2048
LDS = ACC + 8192

DOC = """;
"""


def f32(x):
    return "0x%08x" % struct.unpack("<I", struct.pack("<f", x))[0]


def gen(GR=1, LIMIT=2048, LIM0=64, CHK=24, LEADP=12, SLOWH=0x22, FASTL=1, FORCEFB=0, FORCESC=0, MUL=0, SCR=0, XD=0, FO=0, GSUB=16, SVML=1, PRE=0, NOSL=0, GSL=1, HOOK=6, TRIM=1, WM=0, WMS=-1, PM=0xff, SKIP=0, ROT=0, PIPE=0, DIAG=0, EARLYM=0, LAZY=1, XW=0, XWF=0, MX=0, ORD=1, PFC=1, TIGHT=1, NLINES=30, MY=0):
    global WS_USED
    if XD or DIAG:
        WS_USED = 0x800000
    D = 6
    k = K()
    cold = K()
    warm = K()
    sQ, sKp, sVp, sBT, sCTX, sOUT, sDBG, sWS = 4, 6, 8, 10, 12, 14, 16, 18
    SK, SV, SB, SQ, SW, SD, SO = 20, 24, 28, 32, 36, 60, 64
    sH, sL0, sWv, sJ, sCtx, sN, sI, sCnt, sOff, sC, sPlo, sPhi, sT0, sT1, sNeg, sIdx = range(40, 56)
    sBt0, sRec, sMl, sNxt = 56, 57, 58, 59
    sE, sFb, sR, sS, sSh, sBad, sHq, sOct, sLim, sPol = range(68, 78)
    sMA, sMB, sXc, sFast, sSp, sEnd = 78, 80, 82, 83, 84, 85
    sLast = sFast
    sTh = sMA
    if WMS < 0:
        WMS = WM
    sMk = 86
    sTS = 88
    NS = 96 if MUL or DIAG or MX or MY else 88
    vLane, vKo0, vKo1, vVo0, vVo1, vLi, vG4, vM, vL, vMx, vTmp, vAl, vAb = range(1, 14)
    vP, vQ, vT, vD, vB, vAcc, vKA, vVA = 14, 16, 20, 24, 40, 56, 88, 104
    vRo, vMo_w, vEn, vPa, vNx, vFour = 120, 121, 122, 124, 125, 126
    vFp, vFb = vEn, vEn + 1
    vPre, vPc, vF4, vAd = 128, 152, 154, 162
    vSl, vMw = 169, 170
    NV = 172
    ALL = "row_mask:0xf bank_mask:0xf"

    def srd(kk, S, ptr, size):
        kk(f"""
        s_mov_b32 s{S}, s{ptr}
        s_mov_b32 s{S+1}, s{ptr+1}
        s_mov_b32 s{S+2}, {size}
        s_mov_b32 s{S+3}, 0x20000
        """)

    def diag_store(flag):
        if not DIAG:
            return
        k(f"""
        s_waitcnt vmcnt(0)
        s_memrealtime {sr(sTS+6,2)}
        s_getreg_b32 s{sT1}, hwreg(HW_REG_XCC_ID)
        s_waitcnt lgkmcnt(0)
        s_mov_b64 exec, -1
        v_mov_b32 v24, s{sTS}
        v_mov_b32 v25, s{sTS+2}
        v_mov_b32 v26, s{sTS+4}
        v_mov_b32 v27, s{sTS+6}
        v_mov_b32 v28, s{sT1}
        v_mov_b32 v29, s{sWv}
        v_mov_b32 v30, 0
        v_mov_b32 v31, {flag}
        s_mul_i32 s{sT0}, s2, 5
        s_add_u32 s{sT0}, s{sT0}, s{sWv}
        s_lshl_b32 s{sT0}, s{sT0}, 5
        s_add_u32 s{sT0}, s{sT0}, 0x300000
        v_mov_b32 v11, 0
        s_mov_b64 exec, 1
        buffer_store_dwordx4 v[24:27], v11, {sr(SW,4)}, s{sT0} offen
        buffer_store_dwordx4 v[28:31], v11, {sr(SW,4)}, s{sT0} offen offset:16
        """)

    def st(n):
        return f"s_memrealtime {sr(sTS+2*n,2)}" if DIAG else ""

    seq = [("K", i) for i in range(4)] + [("V", i) for i in range(4)]

    def ld(t, so):
        which, i = seq[t % 8]
        vo = (vKo0, vKo1) if which == "K" else (vVo0, vVo1)
        S = SK if which == "K" else SV
        base = vKA if which == "K" else vVA
        off = " offset:2048" if i & 1 else ""
        k(f"buffer_load_dwordx4 {vr(base+4*i,4)}, v{vo[i>>1]}, {sr(S,4)}, s{so} offen{off} nt")

    k(f"""
    s_load_dwordx16 s[4:19], s[0:1], 0
    s_cmp_ge_u32 s2, 256
    s_cbranch_scc1 L_end
    {f"s_memrealtime {sr(sTS,2)}" if MUL or DIAG or MX or MY else ""}
    {"s_lshr_b32 s3, s2, 5" if SCR == 1 else ""}
    {"s_lshl3_add_u32 s2, s2, s3" if SCR == 1 else ""}
    {"s_and_b32 s2, s2, 255" if SCR == 1 else ""}
    {"s_and_b32 s3, s2, 0xf8" if SCR == 2 else ""}
    {"s_cmp_eq_u32 s3, 0x50" if SCR == 2 else ""}
    {"s_cselect_b32 s3, 1, 0" if SCR == 2 else ""}
    {"s_xor_b32 s2, s2, s3" if SCR == 2 else ""}
    v_lshrrev_b32 v{vTmp}, 6, v0
    v_and_b32 v{vLane}, 63, v0
    v_readfirstlane_b32 s{sWv}, v{vTmp}
    s_lshr_b32 s{sSh}, s2, 3
    {f"s_add_u32 s2, s2, {ROT}" if ROT else ""}
    s_and_b32 s{sH}, s2, 7
    s_cmp_ge_u32 s{sWv}, 4
    {"s_cbranch_scc0 L_worker" if PFC == 1 else "s_cbranch_scc1 L_service"}
    """)
    if PFC == 1:
        k(f"""
        s_getpc_b64 s[20:21]
        v_min_u32 v2, NLINES, v{vLane}
        v_lshlrev_b32 v2, 7, v2
        global_load_dword v127, v2, s[20:21]
        s_branch L_service
        L_worker:
        """)
    k(f"""
    ; ---------------------------------------------------------------- worker
    s_lshl2_add_u32 s{sJ}, s{sSh}, s{sWv}
    s_lshl_b32 s{sIdx}, s{sJ}, 2
    """)
    first = f"""
    s_waitcnt lgkmcnt(0)
    {f"s_memrealtime {sr(sTS+2,2)}" if MX == 1 else ""}
    s_load_dword s{sBt0}, {sr(sBT,2)}, s{sIdx}
    """
    if ORD == 0:
        k(first)
    k(f"""
    s_mov_b64 {sr(sE,2)}, 0
    s_lshl_b32 s{sL0}, s{sWv}, 2
    L_setup:
    v_lshrrev_b32 v{vG4}, 4, v{vLane}
    v_lshlrev_b32 v{vG4}, 2, v{vG4}            ; 4g
    v_and_b32 v{vTmp}, 3, v{vLane}
    v_add_lshl_u32 v{vTmp}, v{vTmp}, v{vG4}, 4
    v_bfe_u32 v{vMx}, v{vLane}, 2, 2
    s_lshl_b32 s{sT1}, s{sH}, 8
    v_lshl_add_u32 v{vKo0}, v{vMx}, 13, v{vTmp}
    v_add_u32 v{vKo0}, s{sT1}, v{vKo0}
    v_add_u32 v{vKo1}, 0x1000, v{vKo0}
    v_lshl_add_u32 v{vAl}, v{vMx}, 8, v{vTmp}
    v_and_b32 v{vTmp}, 15, v{vLane}
    v_lshlrev_b32 v{vTmp}, 4, v{vTmp}
    v_lshl_add_u32 v{vVo0}, v{vG4}, 11, v{vTmp}
    v_add_u32 v{vVo0}, s{sT1}, v{vVo0}
    {"" if TIGHT else f"v_add_u32 v{vVo1}, 0x1000, v{vVo0}"}
    {f"v_lshl_add_u32 v{vAl}, s{sH}, 10, v{vAl}" if TIGHT else f"s_lshl_b32 s{sT0}, s{sH}, 10"}
    {f"s_mov_b32 s{SK+2}, {KV_BYTES}" if TIGHT else ""}
    {f"s_mov_b32 s{SK+3}, 0x20000" if TIGHT else ""}
    {f"s_mov_b64 {sr(SV+2,2)}, {sr(SK+2,2)}" if TIGHT else ""}
    """)
    if ORD == 1:
        k(first)
    if TIGHT:
        k(f"""
        global_load_dwordx4 {vr(vQ,4)}, v{vAl}, {sr(sQ,2)}
        s_mov_b64 {sr(SK,2)}, {sr(sKp,2)}
        s_mov_b64 {sr(SV,2)}, {sr(sVp,2)}
        """)
    else:
        srd(k, SQ, sQ, 8192)
        k(f"buffer_load_dwordx4 {vr(vQ,4)}, v{vAl}, {sr(SQ,4)}, s{sT0} offen")
        srd(k, SK, sKp, KV_BYTES)
        srd(k, SV, sVp, KV_BYTES)
    k(f"""
    {f"s_memrealtime {sr(sTS+2,2)}" if MX == 5 else ""}
    s_waitcnt lgkmcnt(0)
    {f"s_memrealtime {sr(sTS+2,2)}" if MX == 6 else ""}
    s_lshl_b32 s{sOff}, s{sBt0}, 15
    """)
    for t in range(D):
        ld(t, sOff)
    if MX == 2:
        k(f"s_memrealtime {sr(sTS+2,2)}")
    if TIGHT:
        k(f"v_add_u32 v{vVo1}, 0x1000, v{vVo0}")
    k(f"v_mov_b32 v{vLi}, s{sL0}")
    srd(k, SW, sWS, WS_USED)
    k(f"""
    v_lshlrev_b32 v{vRo}, 4, v{vLane}
    s_cmp_lg_u32 s{sE}, 0
    s_cbranch_scc1 L_loop
    s_mov_b32 s{sC}, {f32(128 ** -0.5 * 1.4426950408889634)}   ; D^-0.5 * log2(e)
    s_mov_b32 s{sPlo}, 0x05040100
    s_mov_b32 s{sPhi}, 0x07060302
    s_mov_b32 s{sNeg}, {f32(-1e9 * 1.4426950408889634)}
    {f"s_lshr_b32 s{sSp}, {hex(SLOWH)}, s{sH}" if SKIP or XWF else ""}
    v_mov_b32 v{vM}, {f32(-3.0e38)}
    v_mov_b32 v{vL}, 0
    v_mov_b32 v{vAb}, 0
    v_mov_b32 v{vPa}, {POP}
    v_mov_b32 v{vFour}, 4
    s_lshr_b32 s{sEnd}, s{sFb}, 31
    s_mov_b32 s{sLast}, 0
    s_mov_b32 s{sMB}, 0x11111111
    s_mov_b32 s{sMB+1}, 0x11111111
    s_bitset1_b32 s{sEnd}, 31
    """)
    for i in range(32):
        k(f"v_mov_b32 v{vAcc+i}, 0")
    k(f"""
    s_cmp_lg_u32 s{sFb}, 0
    s_cbranch_scc1 L_loop
    s_barrier
    s_lshl_b32 s{sT0}, s{sWv}, 3
    v_lshl_add_u32 v{vMw}, v{vMx}, 5, s{sT0}
    v_lshl_add_u32 v{vAd}, v{vG4}, 3, s{sT0}
    v_xor_b32 v{vAd+1}, 8, v{vAd}
    v_xor_b32 v{vAd+2}, 16, v{vAd}
    v_xor_b32 v{vAd+3}, 24, v{vAd}
    s_lshl_b32 s{sT0}, s{sWv}, 11
    v_add_u32 v{vSl}, s{sT0}, v{vRo}
    v_xor_b32 v{vAd+4}, 0x800, v{vSl}
    v_xor_b32 v{vAd+5}, 0x1000, v{vSl}
    v_xor_b32 v{vAd+6}, 0x1800, v{vSl}
    s_lshl_b32 s{sRec}, s{sH}, 5
    s_add_u32 s{sRec}, s{sRec}, s{sSh}
    s_lshl_b32 s{sRec}, s{sRec}, 10            ; record (h*32+s)*1024
    """)
    if MX:
        k(f"""
        {"s_waitcnt vmcnt(5)" if MX == 3 else ""}
        {"s_waitcnt vmcnt(0)" if MX == 4 else ""}
        {f"s_memrealtime {sr(sTS+2,2)}" if MX in (3, 4) else ""}
        s_waitcnt lgkmcnt(0)
        s_sub_u32 s{sT0}, s{sTS+2}, s{sTS}
        v_mov_b32 v{vTmp}, s{sT0}
        s_mov_b64 exec, 1
        ds_add_u32 v{vPa}, v{vTmp} offset:80
        s_mov_b64 exec, -1
        """)
    k(f"""
    """)

    def qk(i):
        k(f"v_mfma_f32_16x16x32_bf16 {vr(vD+4*i,4)}, {vr(vKA+4*i,4)}, {vr(vQ,4)}, 0")

    def perm(e, half):
        j, hi = e >> 1, e & 1
        sel = sPhi if hi else sPlo
        k(f"v_perm_b32 v{vB+2*e+half}, v{vVA+8*half+4+j}, v{vVA+8*half+j}, s{sel}")

    def pv(e):
        k(f"v_mfma_f32_16x16x16_bf16 {vr(vAcc+4*e,4)}, {vr(vP,2)}, {vr(vB+2*e,2)}, {vr(vAcc+4*e,4)}")

    def lreduce(kk):
        kk(f"""
        v_mov_b32 v{vTmp}, v{vL}
        v_permlane32_swap_b32 v{vL}, v{vTmp}
        v_add_f32 v{vL}, v{vL}, v{vTmp}
        v_mov_b32 v{vTmp}, v{vL}
        v_permlane16_swap_b32 v{vL}, v{vTmp}
        v_add_f32 v{vL}, v{vL}, v{vTmp}
        """)

    def mlpub(d, mx, mo, tag):
        for w in range(4):
            k(f"v_sub_f32 v{d+2*w}, v{d+2*w}, v{mx}")
        for w in range(4):
            k(f"v_exp_f32 v{d+2*w}, v{d+2*w}")
        k(f"""
        v_xor_b32 v{d+8}, s{sR}, v{mx}
        v_mul_f32 v{d+9}, v{d}, v{d+1}
        v_fmac_f32 v{d+9}, v{d+2}, v{d+3}
        v_fmac_f32 v{d+9}, v{d+4}, v{d+5}
        v_fmac_f32 v{d+9}, v{d+6}, v{d+7}
        v_mov_b32 v{d+10}, s{sR}
        v_mov_b32 v{d+11}, s{sR}
        s_mov_b32 exec_lo, 0x1111
        s_mov_b32 exec_hi, 0
        s_cmp_lg_u32 s{sPol}, 0
        v_xor_b32 v{d+9}, s{sR}, v{d+9}
        s_cbranch_scc1 L_ml1{tag}
        buffer_store_dwordx4 {vr(d+8,4)}, v{mo}, {sr(SW,4)}, s{sMl} offen
        s_branch L_ml3{tag}
        L_ml1{tag}:
        buffer_store_dwordx4 {vr(d+8,4)}, v{mo}, {sr(SW,4)}, s{sMl} offen sc1
        L_ml3{tag}:
        s_mov_b64 exec, -1
        """)

    def mreads():
        k(f"""
        ds_read_b32 v{vPc}, v{vPa} offset:64
        ds_read_b32 v{vAl}, v{vPa} offset:72       ; salt
        """)
        for j in range(4):
            k(f"ds_read_b32 v{vF4+2*j}, v{vAd+j} offset:{MLW}")
        for j in range(3):
            k(f"ds_read_b128 {vr(vPre+8*j,4)}, v{vAd+4+j} offset:{ACC}")
            k(f"ds_read_b128 {vr(vPre+8*j+4,4)}, v{vAd+4+j} offset:{ACC+1024}")

    def mbase(fail):
        k(f"""
        s_waitcnt lgkmcnt({0 if DIAG else 6})
        v_readfirstlane_b32 s{sT0}, v{vPc}
        v_max3_f32 v{vMx}, v{vF4}, v{vF4+2}, v{vF4+4}
        v_max_f32 v{vMx}, v{vMx}, v{vF4+6}
        """)
        for w in (1, 2, 3, 0):
            k(f"v_sub_f32 v{vF4+2*w}, v{vF4+2*w}, v{vMx}")
        k(f"""
        s_cmp_eq_u32 s{sT0}, 12
        s_cbranch_scc0 {fail}
        """)
        for w in (1, 2, 3, 0):
            k(f"v_exp_f32 v{vF4+2*w}, v{vF4+2*w}")
        for j in range(3):
            k(f"s_waitcnt lgkmcnt({4-2*j})")
            for e in range(0, 8, 2):
                if j == 0:
                    k(f"v_pk_mul_f32 {vr(vD+e,2)}, {vr(vF4+2,2)}, {vr(vPre+e,2)} op_sel_hi:[0,1]")
                else:
                    k(f"v_pk_fma_f32 {vr(vD+e,2)}, {vr(vF4+2*j+2,2)}, {vr(vPre+8*j+e,2)}, {vr(vD+e,2)} op_sel_hi:[0,1,1]")

    def hook():
        k(f"""
        s_cmp_eq_u32 s{sLast}, 12
        s_cbranch_scc0 L_nopre
        """)
        mreads()
        k("L_nopre:")

    def issue(p):
        if (XW >> p) & 1:
            k(f"s_waitcnt vmcnt({D-2})")
        if (XWF >> p) & 1:
            k(f"""
            s_bitcmp1_b32 s{sSp}, 0
            s_cbranch_scc1 L_xf{p}
            s_waitcnt vmcnt({D-2})
            L_xf{p}:
            """)
        if (WM or WMS) and (PM >> p) & 1:
            k(f"""
            s_bitcmp1_b32 s{sTh}, 0
            s_cbranch_scc0 L_th{p}
            s_waitcnt vmcnt({D-2})
            L_th{p}:
            """)
        ld(p + D, sOff if p + D < 8 else sNxt)

    def wait(p):
        if p in (4, 6) and SKIP:
            k(f"""
            s_bitcmp1_b32 s{sSp}, 0
            s_cbranch_scc1 L_sk{p}
            s_waitcnt vmcnt({D-1})
            L_sk{p}:
            """)
        else:
            k(f"s_waitcnt vmcnt({D-1})")

    k(f"""
    L_loop:
    s_mov_b64 exec, 1
    ds_add_rtn_u32 v{vNx}, v{vPa}, v{vFour}
    s_mov_b64 exec, -1
    """)
    for i in range(4):
        if i == 2:
            k(f"""
            s_waitcnt lgkmcnt(0)
            L_get:
            s_mov_b64 exec, 1
            ds_read_b32 v{vEn}, v{vLi}
            ds_read_b32 v{vEn+1}, v{vNx}
            s_mov_b64 exec, -1
            """)
        wait(i)
        qk(i)
        if i == 2:
            k(f"""
            s_waitcnt lgkmcnt(0)
            v_readfirstlane_b32 s{sT0}, v{vEn+1}
            v_readfirstlane_b32 s{sCnt}, v{vEn}
            s_max_u32 s{sT1}, s{sT0}, s{sCnt}
            s_cmp_eq_u32 s{sT1}, -1
            s_cbranch_scc1 L_retry
            s_and_b32 s{sNxt}, s{sT0}, 0xffff8000
            s_and_b32 s{sCnt}, s{sCnt}, 31
            s_and_b32 s{sPol}, s{sT0}, 32
            v_mov_b32 v{vLi}, v{vNx}
            """)
        issue(i)
    for j in (1, 2, 3):
        for i in range(4):
            src1 = vD + 4 * i if j == 1 else vT + i
            k(f"v_add_f32_dpp v{vT+i}, v{vD+4*i+j}, v{src1} quad_perm:[{j},{j},{j},{j}] {ALL}")
    for i in range(4):
        k(f"v_mul_f32 v{vT+i}, s{sC}, v{vT+i}")
    k(f"""
    s_cmp_lt_u32 s{sCnt}, 16
    s_cbranch_scc1 L_mask
    L_nomask:
    """)
    if LAZY:
        k(f"""
        v_max3_f32 v{vMx}, v{vT}, v{vT+1}, v{vT+2}
        v_max_f32 v{vMx}, v{vMx}, v{vT+3}
        v_cmp_gt_f32 vcc, v{vMx}, v{vM}
        s_and_b64 vcc, vcc, {sr(sMB,2)}
        s_cbranch_scc1 L_newmax
        L_maxok:
        """)
        warm(f"""
        L_newmax:
        v_max_f32 v{vMx}, v{vMx}, v{vM}
        v_mov_b32 v{vTmp}, v{vMx}
        v_permlane32_swap_b32 v{vMx}, v{vTmp}
        v_max_f32 v{vMx}, v{vMx}, v{vTmp}
        v_mov_b32 v{vTmp}, v{vMx}
        v_permlane16_swap_b32 v{vMx}, v{vTmp}
        v_max_f32 v{vMx}, v{vMx}, v{vTmp}
        v_sub_f32 v{vAl}, v{vM}, v{vMx}
        v_exp_f32 v{vAl}, v{vAl}
        v_mov_b32 v{vM}, v{vMx}
        v_mul_f32 v{vL}, v{vL}, v{vAl}
        """)
        for i in range(4):
            warm(f"v_mov_b32_dpp v{vAb}, v{vAl} row_newbcast:{4*i} row_mask:{hex(1<<i)} bank_mask:0xf")
        for e in range(8):
            warm(f"v_mul_f32 v{vAcc+4*e}, v{vAb}, v{vAcc+4*e}")
        warm("s_branch L_maxok")
    else:
        k(f"""
    v_max3_f32 v{vMx}, v{vT}, v{vT+1}, v{vT+2}
    v_max3_f32 v{vMx}, v{vMx}, v{vT+3}, v{vM}
    v_mov_b32 v{vTmp}, v{vMx}
    v_permlane32_swap_b32 v{vMx}, v{vTmp}
    v_max_f32 v{vMx}, v{vMx}, v{vTmp}
    v_mov_b32 v{vTmp}, v{vMx}
    v_permlane16_swap_b32 v{vMx}, v{vTmp}
    v_max_f32 v{vMx}, v{vMx}, v{vTmp}
    """)
    cold(f"""
    L_mask:                                    ; tokens at or past context_len
    v_mov_b32 v{vTmp}, s{sNeg}
    """)
    for i in range(4):
        cold(f"""
        s_sub_i32 s{sT0}, s{sCnt}, {i}
        v_cmp_gt_i32 vcc, s{sT0}, v{vG4}
        v_cndmask_b32 v{vT+i}, v{vTmp}, v{vT+i}, vcc
        """)
    cold("s_branch L_nomask")
    wait(4)
    issue(4)
    if LAZY:
        k(f"""
        v_sub_f32 v{vT}, v{vT}, v{vM}
        v_sub_f32 v{vT+1}, v{vT+1}, v{vM}
        v_exp_f32 v{vT}, v{vT}
        v_sub_f32 v{vT+2}, v{vT+2}, v{vM}
        v_exp_f32 v{vT+1}, v{vT+1}
        v_sub_f32 v{vT+3}, v{vT+3}, v{vM}
        v_exp_f32 v{vT+2}, v{vT+2}
        v_add_f32 v{vL}, v{vL}, v{vT}
        v_exp_f32 v{vT+3}, v{vT+3}
        v_add_f32 v{vTmp}, v{vT+1}, v{vT+2}
        v_cvt_pk_bf16_f32 v{vP}, v{vT}, v{vT+1}
        v_add_f32 v{vL}, v{vL}, v{vT+3}
        s_cmp_eq_u32 s{sNxt}, s{sEnd}
        v_cvt_pk_bf16_f32 v{vP+1}, v{vT+2}, v{vT+3}
        v_add_f32 v{vL}, v{vL}, v{vTmp}
        s_cbranch_scc1 L_none
        L_mld:
        """)
    elif TRIM:
        k(f"""
        v_sub_f32 v{vAl}, v{vM}, v{vMx}
        v_sub_f32 v{vT}, v{vT}, v{vMx}
        v_exp_f32 v{vAl}, v{vAl}
        v_sub_f32 v{vT+1}, v{vT+1}, v{vMx}
        v_exp_f32 v{vT}, v{vT}
        v_sub_f32 v{vT+2}, v{vT+2}, v{vMx}
        v_exp_f32 v{vT+1}, v{vT+1}
        v_sub_f32 v{vT+3}, v{vT+3}, v{vMx}
        v_exp_f32 v{vT+2}, v{vT+2}
        v_fma_f32 v{vL}, v{vL}, v{vAl}, v{vT}
        v_exp_f32 v{vT+3}, v{vT+3}
        v_add_f32 v{vTmp}, v{vT+1}, v{vT+2}
        v_mov_b32 v{vM}, v{vMx}
        v_add_f32 v{vL}, v{vL}, v{vT+3}
        s_cmp_eq_u32 s{sNxt}, s{sEnd}
        v_add_f32 v{vL}, v{vL}, v{vTmp}
        s_cbranch_scc1 L_none                      ; last page: (m, l) are final before its V rows land
        L_mld:
        v_mov_b32_dpp v{vAb}, v{vAl} row_newbcast:0 row_mask:0x1 bank_mask:0xf
        v_cvt_pk_bf16_f32 v{vP}, v{vT}, v{vT+1}
        v_cvt_pk_bf16_f32 v{vP+1}, v{vT+2}, v{vT+3}
        v_mov_b32_dpp v{vAb}, v{vAl} row_newbcast:4 row_mask:0x2 bank_mask:0xf
        v_mov_b32_dpp v{vTmp}, v{vAl} row_newbcast:8 row_mask:0x4 bank_mask:0xf
        s_nop 0
        v_mov_b32_dpp v{vAb}, v{vAl} row_newbcast:12 row_mask:0x8 bank_mask:0xf
        v_mov_b32_dpp v{vAb}, v{vAl} row_newbcast:8 row_mask:0x4 bank_mask:0xf
        """.replace(f"        v_mov_b32_dpp v{vTmp}, v{vAl} row_newbcast:8 row_mask:0x4 bank_mask:0xf\n        s_nop 0\n", ""))
        for e in range(8):
            k(f"v_mul_f32 v{vAcc+4*e}, v{vAb}, v{vAcc+4*e}")
    else:
        k(f"""
        v_sub_f32 v{vAl}, v{vM}, v{vMx}
        v_mov_b32 v{vM}, v{vMx}
        v_exp_f32 v{vAl}, v{vAl}
        """)
        for i in range(4):
            k(f"v_sub_f32 v{vT+i}, v{vT+i}, v{vMx}")
        for i in range(4):
            k(f"v_exp_f32 v{vT+i}, v{vT+i}")
            k(f"v_mov_b32_dpp v{vAb}, v{vAl} row_newbcast:{4*i} row_mask:{hex(1<<i)} bank_mask:0xf")
            if i == 1:
                k(f"v_fma_f32 v{vL}, v{vL}, v{vAl}, v{vT}")
            if i == 2:
                k(f"v_cvt_pk_bf16_f32 v{vP}, v{vT}, v{vT+1}")
        k(f"""
        v_add_f32 v{vTmp}, v{vT+1}, v{vT+2}
        v_cvt_pk_bf16_f32 v{vP+1}, v{vT+2}, v{vT+3}
        v_add_f32 v{vL}, v{vL}, v{vT+3}
        v_add_f32 v{vL}, v{vL}, v{vTmp}
        """)
        for e in range(8):
            k(f"v_mul_f32 v{vAcc+4*e}, v{vAb}, v{vAcc+4*e}")
        k(f"""
        s_cmp_eq_u32 s{sNxt}, {hex(END)}
        s_cbranch_scc1 L_ml
        L_mld:
        """)
    wait(5)
    issue(5)
    for e in range(8):
        perm(e, 0)
    if EARLYM:
        k(f"""
        s_cmp_eq_u32 s{sNxt}, s{sEnd}
        s_cbranch_scc1 L_lastp
        """)
        wait(6)
        k("L_lastd:")
        issue(6)
    else:
        k(f"""
        s_cmp_eq_u32 s{sNxt}, s{sEnd}
        s_cbranch_scc0 L_nolast
        s_waitcnt lgkmcnt(0)
        v_readfirstlane_b32 s{sLast}, v{vNx}
        L_nolast:
        """)
        wait(6)
        issue(6)
        if HOOK == 6:
            hook()
    wait(7)
    if DIAG == 2:
        k(st(1))
    if HOOK == 7:
        hook()
    issue(7)
    perm(0, 1)
    perm(1, 1)
    for e in range(8):
        if e + 2 < 8:
            perm(e + 2, 1)
        pv(e)
    k(f"""
    s_mov_b32 s{sOff}, s{sNxt}
    s_cmp_eq_u32 s{sNxt}, {hex(END)}
    s_cbranch_scc0 L_loop
    s_cmp_lg_u32 s{sFb}, 0
    s_cbranch_scc1 L_fbnext
    """)
    vS0 = vD
    k(f"""
    {f"s_cmp_eq_u32 s{sLast}, 13" if EARLYM else ""}
    {"s_cbranch_scc1 L_own" if EARLYM else ""}
    s_cmp_eq_u32 s{sLast}, 12
    s_cbranch_scc0 L_give
    L_mrg:                                     ; lane (c, g): O[query g][8c .. 8c+7]
    """)
    mbase("L_again")
    k(f"""
    {"L_own:" if EARLYM else ""}
    s_cmp_lg_u32 s{sPol}, 0
    """)
    for e in range(8):
        k(f"v_fmac_f32 v{vS0+e}, v{vF4}, v{vAcc+4*e}")
    for j in range(4):
        k(f"v_cvt_pk_bf16_f32 v{vD+j}, v{vS0+2*j}, v{vS0+2*j+1}")
        k(f"v_xor_b32 v{vD+j}, v{vAl}, v{vD+j}")
    k(f"""
    {st(2)}
    s_cbranch_scc1 L_dn1
    buffer_store_dwordx4 {vr(vD,4)}, v{vRo}, {sr(SW,4)}, s{sRec} offen
    """)
    diag_store(1)
    k(f"""
    s_endpgm
    L_dn1:
    buffer_store_dwordx4 {vr(vD,4)}, v{vRo}, {sr(SW,4)}, s{sRec} offen sc1
    s_endpgm
    L_again:
    s_waitcnt lgkmcnt(0)
    """)
    mreads()
    k(f"""
    s_branch L_mrg
    L_give:                                    ; hand the sums to the merging worker
    """)
    for e in range(8):
        k(f"v_mov_b32 v{vS0+e}, v{vAcc+4*e}")
    k(f"""
    ds_write_b128 v{vSl}, {vr(vS0,4)} offset:{ACC}
    ds_write_b128 v{vSl}, {vr(vS0+4,4)} offset:{ACC+1024}
    s_mov_b64 exec, 1
    ds_add_u32 v{vPa}, v{vFour} offset:64
    {st(2)}
    s_waitcnt lgkmcnt(0)
    """)
    diag_store(0)
    k(f"""
    s_endpgm
    """)
    if EARLYM:
        k(f"""
        L_lastp:                                   ; last page, V rows 2 and 3 still to come
        s_waitcnt lgkmcnt(0)
        v_readfirstlane_b32 s{sLast}, v{vNx}
        s_cmp_eq_u32 s{sLast}, 12
        s_cbranch_scc0 L_lastd
        """)
        mreads()
        mbase("L_lastr")
        k(f"""
        s_mov_b32 s{sLast}, 13
        s_branch L_lastd
        L_lastr:
        s_waitcnt vmcnt({D-1}) lgkmcnt(0)
        """)
        mreads()
        k("s_branch L_lastd")
    k(f"""
    L_retry:
    s_cmp_eq_u32 s{sCnt}, {hex(END)}
    s_cbranch_scc0 L_get
    s_mov_b32 s{sPol}, 32
    L_none:
    {st(1) if DIAG == 1 else ""}
    """)
    lreduce(k)
    k(f"""
    s_mov_b32 exec_lo, 0x1111
    s_mov_b32 exec_hi, 0
    ds_write_b64 v{vMw}, {vr(vM,2)} offset:{MLW}
    s_mov_b64 exec, 1
    ds_add_rtn_u32 v{vNx}, v{vPa}, v{vFour} offset:68
    s_mov_b64 exec, -1
    s_cmp_eq_u32 s{sCnt}, {hex(END)}
    s_cbranch_scc0 L_mld
    s_waitcnt lgkmcnt(0)
    v_readfirstlane_b32 s{sLast}, v{vNx}
    s_cmp_eq_u32 s{sLast}, 12
    s_cbranch_scc1 L_again
    s_branch L_give
    """)

    k.lines += warm.lines
    vOf, vMo, vPw, vPm, vPr_, vOo = 2, 3, 4, 5, 6, 7
    vX, vY, vW, vZ = 8, 9, 10, 11
    vML = 12
    vMa, vRr, vSa = 16, 18, 20
    vA, vPr = 24, 28
    vOr, vOs, vU = 32, 34, 36
    vBt, vDyn, vCo, vPq, vCt = 42, 43, 44, 45, 46
    vE4, vEl = 48, 52
    vV2, vBase, vM4 = 56, 58, 60

    def ctxcalc(kk):
        kk(f"""
        s_min_i32 s{sT0}, s{sCtx}, 65536
        s_cmp_le_i32 s{sCtx}, 0
        s_cselect_b32 s{sT0}, 65536, s{sT0}
        s_add_u32 s{sT0}, s{sT0}, 15
        s_lshr_b32 s{sN}, s{sT0}, 4
        s_min_i32 s{sCtx}, s{sCtx}, 65536
        s_max_i32 s{sCtx}, s{sCtx}, 0
        """)

    def entry(kk, vpage, vbt, vt):
        kk(f"""
        v_lshlrev_b32 v{vt}, 4, v{vpage}
        v_sub_u32 v{vt}, s{sCtx}, v{vt}
        v_med3_i32 v{vt}, v{vt}, 0, 16
        v_cmp_gt_u32 vcc, s{sN}, v{vpage}
        v_lshl_or_b32 v{vbt}, v{vbt}, 15, v{vt}
        v_bfrev_b32 v{vt}, 1
        v_and_b32 v{vbt}, 0x7fffffff, v{vbt}
        v_cndmask_b32 v{vbt}, v{vt}, v{vbt}, vcc
        """)

    vMb, vRs, vSb, vW2, vZ2 = 17, 19, 21, 14, 15
    vOr2, vOs2, vOf2 = 56, 58, 60
    k(f"""
    L_service:
    s_mov_b64 {sr(sE,2)}, 0
    v_lshlrev_b32 v{vX}, 9, v{vLane}
    v_lshlrev_b32 v{vCo}, 2, v{vLane}
    v_lshlrev_b32 v{vDyn}, 4, v{vLane}
    v_mov_b32 v{vEl}, -1
    v_mov_b32 v{vEl+1}, -1
    v_mov_b32 v{vEl+2}, -1
    v_mov_b32 v{vEl+3}, -1
    ds_write_b128 v{vDyn}, {vr(vEl,4)}
    v_mov_b32 v{vY}, 0
    v_writelane_b32 v{vY}, 16, 0
    ds_write_b32 v{vCo}, v{vY} offset:{POP}
    s_lshl_b32 s{sIdx}, s{sSh}, 4
    s_lshl_b32 s{sT0}, s{sH}, 15
    s_lshl_b32 s{sT1}, s{sSh}, 5               ; q*256 + oct*32
    s_add_u32 s{sT0}, s{sT0}, s{sT1}
    v_lshrrev_b32 v{vY}, 2, v{vLane}
    v_and_b32 v{vW}, 3, v{vLane}
    v_lshlrev_b32 v{vZ}, 10, v{vY}
    v_lshl_add_u32 v{vZ}, v{vW}, 3, v{vZ}
    v_add_u32 v{vOf}, s{sT0}, v{vZ}
    v_add_u32 v{vOf2}, 0x4000, v{vOf}
    s_lshr_b32 s{sI}, s{sSh}, 3
    s_lshl_b32 s{sT0}, s{sH}, 12
    s_lshl4_add_u32 s{sT0}, s{sI}, s{sT0}
    s_add_u32 s{sT0}, s{sT0}, {ML_OFF}
    v_lshlrev_b32 v{vZ}, 7, v{vY}
    v_lshl_add_u32 v{vZ}, v{vW}, 2, v{vZ}
    v_add_u32 v{vMo}, s{sT0}, v{vZ}
    s_lshl_b32 s{sRec}, s{sH}, 5
    s_add_u32 s{sRec}, s{sRec}, s{sSh}
    s_lshl_b32 s{sRec}, s{sRec}, 10
    s_lshr_b32 s{sMl}, s{sRec}, 3
    s_add_u32 s{sMl}, s{sMl}, {ML_OFF}
    s_waitcnt lgkmcnt(0)
    s_load_dword s{sCtx}, {sr(sCTX,2)}, 0
    s_load_dword s{sR}, {sr(sWS,2)}, s{sRec}
    """)
    srd(k, SB, sBT, 16384)
    k(f"buffer_load_dwordx4 {vr(vE4,4)}, v{vX}, {sr(SB,4)}, s{sIdx} offen")
    srd(k, SW, sWS, WS_USED)
    k(f"""
    buffer_load_dword v{vSa}, v{vMo}, {sr(SW,4)}, 0 offen sc1
    buffer_load_dword v{vSb}, v{vMo}, {sr(SW,4)}, 0 offen offset:2048 sc1
    buffer_load_dwordx2 {vr(vOs,2)}, v{vOf}, {sr(SW,4)}, 0 offen sc1
    buffer_load_dwordx2 {vr(vOs2,2)}, v{vOf2}, {sr(SW,4)}, 0 offen sc1
    s_lshl_b32 s{sT0}, s{sH}, 10
    s_add_u32 s{sT0}, s{sT0}, s{sT1}
    v_lshrrev_b32 v{vX}, 4, v{vLane}
    v_lshl_add_u32 v{vX}, v{vW}, 2, v{vX}
    v_lshl_add_u32 v{vOo}, v{vX}, 1, s{sT0}
    s_barrier
    s_waitcnt lgkmcnt(0)
    s_add_u32 s{sR}, s{sR}, s{sMl}
    s_mul_i32 s{sR}, s{sR}, 0x9e3779b1
    s_lshr_b32 s{sT0}, s{sR}, 15
    s_xor_b32 s{sR}, s{sR}, s{sT0}
    s_mul_i32 s{sR}, s{sR}, 0x85ebca6b         ; salt
    v_mov_b32 v{vW}, {POP}
    v_mov_b32 v{vY}, s{sR}
    ds_write_b32 v{vW}, v{vY} offset:72
    """)
    ctxcalc(k)
    k(f"""
    s_lshr_b32 s{sS}, s{sN}, 7
    s_max_i32 s{sS}, s{sS}, 1
    s_lshl_b32 s{sT1}, s{sSh}, 2
    v_lshl_add_u32 v{vX}, v{vLane}, 7, s{sT1}
    s_lshl_b32 s{sT0}, s{sS}, 7
    s_add_u32 s{sT0}, s{sT0}, s{sSh}
    v_lshl_add_u32 v{vBt}, v{vLane}, 5, s{sT0}
    v_lshlrev_b32 v{vEl}, 2, v{vBt}
    v_cmp_gt_u32 vcc, s{sS}, v{vLane}
    s_mov_b64 exec, 15
    buffer_load_dword v{vEl}, v{vEl}, {sr(SB,4)}, 0 offen
    s_mov_b64 exec, vcc
    s_waitcnt vmcnt(5)
    """)
    for w in range(4):
        entry(k, vX, vE4 + w, vY)
        if w < 3:
            k(f"v_add_u32 v{vX}, 1, v{vX}")
    k(f"""
    ds_write_b128 v{vDyn}, {vr(vE4,4)}
    s_mov_b64 exec, -1
    """)
    srd(k, SO, sOUT, 8192)
    k(f"""
    s_mov_b32 s{sC}, 0xffff0000
    """)
    srd(k, SD, sDBG, 256)
    k(f"""
    s_getreg_b32 s{sXc}, hwreg(HW_REG_XCC_ID)
    s_lshl_b32 s{sT0}, s{sH}, 5
    v_mov_b32 v{vCo}, s{sT0}
    s_and_b32 s{sXc}, s{sXc}, 15
    s_add_u32 s{sXc}, s{sXc}, 1
    s_mov_b32 s{sPol}, {32 if FORCESC else 0}
    s_cmp_eq_u32 s{sSh}, 0
    s_cbranch_scc0 L_nl
    v_mov_b32 v{vX}, s{sXc}
    s_mov_b64 exec, 1
    buffer_store_dword v{vX}, v{vCo}, {sr(SD,4)}, 0 offen offset:4 sc1
    s_mov_b64 exec, -1
    L_nl:
    s_waitcnt vmcnt(0)
    """)
    entry(k, vBt, vEl, vY)
    k(f"""
    s_lshl_b32 s{sE}, s{sS}, 4
    v_lshl_add_u32 v{vDyn}, v{vLane}, 2, s{sE}
    s_sub_i32 s{sE}, s{sE}, {4*LEADP}
    s_min_i32 s{sOff}, s{sE}, {4*CHK}
    s_mov_b32 s{sI}, 0
    L_s0:
    ds_read_b32 v{vX}, v{vW}
    s_waitcnt lgkmcnt(0)
    v_readfirstlane_b32 s{sT0}, v{vX}
    s_cmp_ge_i32 s{sT0}, s{sOff}
    s_cbranch_scc1 L_s2
    s_sleep 4
    s_branch L_s0
    L_s2:
    {f"s_memrealtime {sr(sTS+4,2)}" if MY else ""}
    {"s_waitcnt lgkmcnt(0)" if MY else ""}
    buffer_load_dwordx2 {vr(vPr,2)}, v{vCo}, {sr(SD,4)}, 0 offen sc1
    s_waitcnt vmcnt(0)
    v_readfirstlane_b32 s{sT1}, v{vPr}
    v_readfirstlane_b32 s{sT0}, v{vPr+1}
    s_or_b32 s{sPol}, s{sPol}, s{sT1}
    s_cmp_lg_u32 s{sI}, 0
    s_cbranch_scc1 L_s1
    s_mov_b32 s{sI}, 1
    s_mov_b32 s{sOff}, s{sE}
    {f"s_mov_b32 s{sTS+6}, s{sTS+4}" if MY == 1 else ""}
    s_cmp_eq_u32 s{sT0}, s{sXc}
    s_cbranch_scc1 L_s0
    s_mov_b32 s{sPol}, 32
    v_mov_b32 v{vX}, 32
    s_mov_b64 exec, 1
    buffer_store_dword v{vX}, v{vCo}, {sr(SD,4)}, 0 offen sc1
    s_mov_b64 exec, -1
    s_branch L_s0
    L_s1:
    {f"s_mov_b32 s{sTS+6}, s{sTS+4}" if MY == 2 else ""}
    s_and_b32 s{sPol}, s{sPol}, 32
    s_mov_b64 exec, 0xffff
    v_or_b32 v{vEl}, s{sPol}, v{vEl}
    ds_write_b32 v{vDyn}, v{vEl}
    s_mov_b64 exec, -1
    s_mov_b32 s{sI}, {LIMIT if FORCEFB else 0}
    s_mov_b32 s{sLim}, {LIMIT if FORCEFB else LIM0}
    v_bfe_u32 v{vX}, v{vLane}, 2, 2
    v_lshlrev_b32 v{vX}, 5, v{vX}
    v_lshlrev_b32 v{vCo}, 2, v{vLane}
    s_waitcnt vmcnt(0)
    L_gate:                                    ; until every worker's (m, l) is there
    {f"s_sleep {GSL}" if GSL else ""}
    ds_read_b32 v{vY}, v{vW} offset:68
    ds_read_b128 v[64:67], v{vX} offset:{MLW}
    ds_read_b128 v[68:71], v{vX} offset:{MLW+16}
    s_waitcnt lgkmcnt(2)
    v_cmp_ne_u32 vcc, 16, v{vY}
    s_cbranch_vccnz L_gate
    {f"s_memrealtime {sr(sTS+6,2)}" if MY == 3 else ""}
    {st(1) if DIAG == 1 else ""}
    """)
    if SVML:
        k(f"""
        s_waitcnt lgkmcnt(0)
        v_max3_f32 v{vX}, v64, v66, v68
        v_max_f32 v{vX}, v{vX}, v70
        """)
        mlpub(64, vX, vCo, "b")
    k(f"""
    s_branch L_m1
    L_m0:                                      ; wait for the (m, l, salt) entries
    s_bcnt1_i32_b64 s{sT0}, vcc
    L_m2:                                      ; back off in proportion to the number of missing producers
    s_sleep {GR}
    s_sub_i32 s{sT0}, s{sT0}, {GSUB}
    s_cmp_gt_i32 s{sT0}, 0
    s_cbranch_scc1 L_m2
    s_mov_b64 exec, vcc
    L_m1:
    buffer_load_dword v{vMa}, v{vMo}, {sr(SW,4)}, 0 offen sc1
    buffer_load_dword v{vMb}, v{vMo}, {sr(SW,4)}, 0 offen offset:2048 sc1
    s_mov_b64 exec, -1
    s_add_u32 s{sI}, s{sI}, 1
    s_cmp_ge_u32 s{sI}, s{sLim}
    s_cbranch_scc1 L_chk1
    L_m3:
    s_waitcnt vmcnt(0)
    v_xor_b32 v{vU}, v{vMa}, v{vSa}
    v_xor_b32 v{vU+1}, v{vMb}, v{vSb}
    v_mov_b32_dpp v{vRr}, v{vMa} quad_perm:[2,2,2,2] {ALL}
    v_min_u32 v{vU}, v{vU}, v{vU+1}
    v_mov_b32_dpp v{vRs}, v{vMb} quad_perm:[2,2,2,2] {ALL}
    v_cmp_eq_u32 vcc, 0, v{vU}
    v_xor_b32_dpp v{vW}, v{vMa}, v{vRr} quad_perm:[0,0,0,0] {ALL}     ; m
    s_cbranch_vccnz L_m0
    {st(2) if DIAG == 1 else st(1)}
    buffer_load_dwordx2 {vr(vOr,2)}, v{vOf}, {sr(SW,4)}, 0 offen sc1
    buffer_load_dwordx2 {vr(vOr2,2)}, v{vOf2}, {sr(SW,4)}, 0 offen sc1
    v_xor_b32_dpp v{vW2}, v{vMb}, v{vRs} quad_perm:[0,0,0,0] {ALL}
    v_xor_b32_dpp v{vZ}, v{vMa}, v{vRr} quad_perm:[1,1,1,1] {ALL}     ; l
    v_max_f32 v{vML}, v{vW}, v{vW2}
    v_xor_b32_dpp v{vZ2}, v{vMb}, v{vRs} quad_perm:[1,1,1,1] {ALL}
    v_max_f32_dpp v{vML}, v{vML}, v{vML} row_ror:4 {ALL}
    v_max_f32_dpp v{vML}, v{vML}, v{vML} row_ror:8 {ALL}
    v_mov_b32 v{vY}, v{vML}
    v_permlane16_swap_b32 v{vML}, v{vY}
    v_max_f32 v{vML}, v{vML}, v{vY}
    v_mov_b32 v{vY}, v{vML}
    v_permlane32_swap_b32 v{vML}, v{vY}
    v_max_f32 v{vML}, v{vML}, v{vY}
    v_sub_f32 v{vW}, v{vW}, v{vML}
    v_sub_f32 v{vW2}, v{vW2}, v{vML}
    v_exp_f32 v{vW}, v{vW}
    v_exp_f32 v{vW2}, v{vW2}
    v_mul_f32 v{vZ}, v{vW}, v{vZ}
    v_fmac_f32 v{vZ}, v{vW2}, v{vZ2}
    v_add_f32_dpp v{vZ}, v{vZ}, v{vZ} row_ror:4 {ALL}
    v_add_f32_dpp v{vZ}, v{vZ}, v{vZ} row_ror:8 {ALL}
    v_mov_b32 v{vY}, v{vZ}
    v_permlane16_swap_b32 v{vZ}, v{vY}
    v_add_f32 v{vZ}, v{vZ}, v{vY}
    v_mov_b32 v{vY}, v{vZ}
    v_permlane32_swap_b32 v{vZ}, v{vY}
    v_add_f32 v{vZ}, v{vZ}, v{vY}
    v_rcp_f32 v{vZ}, v{vZ}
    {f"v_mul_f32 v{vW}, v{vW}, v{vZ}" if TRIM else ""}
    {f"v_mul_f32 v{vW2}, v{vW2}, v{vZ}" if TRIM else ""}
    {"s_waitcnt vmcnt(0)" if PIPE else ""}
    s_branch L_o1
    L_o0:                                      ; wait for the record pieces
    s_mov_b64 exec, vcc
    buffer_load_dwordx2 {vr(vOr,2)}, v{vOf}, {sr(SW,4)}, 0 offen sc1
    buffer_load_dwordx2 {vr(vOr2,2)}, v{vOf2}, {sr(SW,4)}, 0 offen sc1
    s_mov_b64 exec, -1
    s_add_u32 s{sI}, s{sI}, 1
    s_cmp_ge_u32 s{sI}, s{sLim}
    s_cbranch_scc1 L_chk2
    L_o1:
    s_waitcnt vmcnt({2*PIPE})
    v_xor_b32 v{vU}, v{vOr}, v{vOs}
    v_xor_b32 v{vU+1}, v{vOr+1}, v{vOs+1}
    v_xor_b32 v{vU+2}, v{vOr2}, v{vOs2}
    v_xor_b32 v{vU+3}, v{vOr2+1}, v{vOs2+1}
    v_min3_u32 v{vU}, v{vU}, v{vU+1}, v{vU+2}
    v_xor_b32 v{vX}, v{vOr}, v{vRr}
    v_min_u32 v{vU}, v{vU}, v{vU+3}
    v_xor_b32 v{vY}, v{vOr+1}, v{vRr}
    v_cmp_eq_u32 vcc, 0, v{vU}
    v_lshlrev_b32 v{vA}, 16, v{vX}
    v_and_b32 v{vA+1}, s{sC}, v{vX}
    v_lshlrev_b32 v{vA+2}, 16, v{vY}
    v_and_b32 v{vA+3}, s{sC}, v{vY}
    s_cbranch_vccnz L_o0
    {st(2) if DIAG == 2 else ""}
    v_xor_b32 v{vX}, v{vOr2}, v{vRs}
    v_xor_b32 v{vY}, v{vOr2+1}, v{vRs}
    v_mul_f32 v{vA}, v{vW}, v{vA}
    v_mul_f32 v{vA+1}, v{vW}, v{vA+1}
    v_mul_f32 v{vA+2}, v{vW}, v{vA+2}
    v_mul_f32 v{vA+3}, v{vW}, v{vA+3}
    v_lshlrev_b32 v{vU}, 16, v{vX}
    v_and_b32 v{vU+1}, s{sC}, v{vX}
    v_lshlrev_b32 v{vU+2}, 16, v{vY}
    v_and_b32 v{vU+3}, s{sC}, v{vY}
    v_fmac_f32 v{vA}, v{vW2}, v{vU}
    v_fmac_f32 v{vA+1}, v{vW2}, v{vU+1}
    v_fmac_f32 v{vA+2}, v{vW2}, v{vU+2}
    v_fmac_f32 v{vA+3}, v{vW2}, v{vU+3}
    """)
    for sh in (4, 8):
        for j in range(4):
            k(f"v_add_f32_dpp v{vA+j}, v{vA+j}, v{vA+j} row_ror:{sh} {ALL}")
    k(f"""
    v_permlane16_swap_b32 v{vA}, v{vA+1}
    s_mov_b32 vcc_lo, 0x000f000f
    v_permlane16_swap_b32 v{vA+2}, v{vA+3}
    v_add_f32 v{vA}, v{vA}, v{vA+1}
    v_add_f32 v{vA+2}, v{vA+2}, v{vA+3}
    s_mov_b32 vcc_hi, 0x000f000f
    v_permlane32_swap_b32 v{vA}, v{vA+2}
    v_add_f32 v{vA}, v{vA}, v{vA+2}
    s_mov_b64 exec, vcc
    {"" if TRIM else f"v_mul_f32 v{vA}, v{vA}, v{vZ}"}
    v_cvt_pk_bf16_f32 v{vA}, v{vA}, v{vA}
    buffer_store_short v{vA}, v{vOo}, {sr(SO,4)}, 0 offen
    """)
    diag_store(f"s{sI}")
    if MY:
        k(f"""
        s_waitcnt lgkmcnt(0)
        s_sub_u32 s{sT1}, s{sTS+6}, s{sTS}
        s_mul_i32 s{sT1}, s{sT1}, 10
        L_spiny:
        s_sleep 2
        s_memrealtime {sr(sTS+2,2)}
        s_waitcnt lgkmcnt(0)
        s_sub_u32 s{sT0}, s{sTS+2}, s{sTS}
        s_cmp_lt_u32 s{sT0}, s{sT1}
        s_cbranch_scc1 L_spiny
        """)
    if MX:
        k(f"""
        s_mov_b64 exec, -1
        v_mov_b32 v{vX}, {POP}
        ds_read_b32 v{vX}, v{vX} offset:80
        s_waitcnt lgkmcnt(0)
        v_readfirstlane_b32 s{sT1}, v{vX}
        s_mul_i32 s{sT1}, s{sT1}, 25
        s_add_u32 s{sT1}, s{sT1}, 3000
        s_and_b32 s{sT0}, s2, 0xf8
        s_cmp_eq_u32 s{sT0}, 0x40
        s_cbranch_scc0 L_end
        L_spinx:
        s_sleep 2
        s_memrealtime {sr(sTS+2,2)}
        s_waitcnt lgkmcnt(0)
        s_sub_u32 s{sT0}, s{sTS+2}, s{sTS}
        s_cmp_lt_u32 s{sT0}, s{sT1}
        s_cbranch_scc1 L_spinx
        """)
    if MUL:
        k(f"""
        s_waitcnt vmcnt(0)
        s_memrealtime {sr(sTS+2,2)}
        s_waitcnt lgkmcnt(0)
        s_sub_u32 s{sT1}, s{sTS+2}, s{sTS}
        s_mul_i32 s{sT1}, s{sT1}, {MUL}
        L_spinm:
        s_sleep 2
        s_memrealtime {sr(sTS+2,2)}
        s_waitcnt lgkmcnt(0)
        s_sub_u32 s{sT0}, s{sTS+2}, s{sTS}
        s_cmp_lt_u32 s{sT0}, s{sT1}
        s_cbranch_scc1 L_spinm
        """)
    k("""
    L_end:
    s_endpgm
    """)
    for n, back in ((1, "L_m3"), (2, "L_o1")):
        cold(f"""
        L_chk{n}:                                    ; many looks without success: give up early on a short context
        s_cmp_ge_u32 s{sI}, {LIMIT}
        s_cbranch_scc1 L_fb
        s_load_dword s{sT0}, {sr(sCTX,2)}, 0
        s_mov_b32 s{sLim}, {LIMIT}
        s_waitcnt lgkmcnt(0)
        s_sub_u32 s{sT0}, s{sT0}, 1
        s_cmp_lt_u32 s{sT0}, 8192
        s_cbranch_scc0 {back}
        {"s_branch L_fb" if n == 1 else ""}
        """)
    cold(f"""
    L_fb:
    s_load_dword s{sCtx}, {sr(sCTX,2)}, 0
    s_waitcnt vmcnt(0) lgkmcnt(0)
    """)
    ctxcalc(cold)
    cold(f"""
    s_mov_b32 s{sE}, 0
    s_mov_b32 s{sL0}, 0
    L_fbfill:
    """)
    srd(cold, SB, sBT, 16384)
    cold(f"""
    v_add_u32 v{vFp}, s{sE}, v{vLane}
    v_lshlrev_b32 v{vFb}, 2, v{vFp}
    buffer_load_dword v{vFb}, v{vFb}, {sr(SB,4)}, 0 offen
    s_lshl_b32 s{sIdx}, s{sE}, 2
    s_waitcnt vmcnt(0)
    """)
    entry(cold, vFp, vFb, vTmp)
    cold(f"""
    s_bitset1_b32 s{sFb}, 31
    v_lshlrev_b32 v{vFp}, 2, v{vLane}
    v_writelane_b32 v{vFb}, s{sFb}, 63
    v_mov_b32 v{vPa}, {POP}
    v_mov_b32 v{vFour}, 4
    ds_write_b32 v{vFp}, v{vFb}
    ds_write_b32 v{vPa}, v{vFour}
    {"" if ORD else f"s_load_dword s{sBt0}, {sr(sBT,2)}, s{sIdx}"}
    s_branch L_setup
    L_fbnext:
    s_waitcnt vmcnt(0)
    s_add_u32 s{sE}, s{sE}, 63
    s_cmp_lt_u32 s{sE}, s{sN}
    s_cbranch_scc1 L_fbfill
    """)
    lreduce(cold)
    cold(f"v_rcp_f32 v{vAl}, v{vL}")
    for i in range(4):
        cold(f"v_mov_b32_dpp v{vAb}, v{vAl} row_newbcast:{4*i} row_mask:{hex(1<<i)} bank_mask:0xf")
    for e in range(8):
        cold(f"v_mul_f32 v{vAcc+4*e}, v{vAb}, v{vAcc+4*e}")
    for j in range(4):
        cold(f"v_cvt_pk_bf16_f32 v{vD+j}, v{vAcc+8*j}, v{vAcc+8*j+4}")
    srd(cold, SO, sOUT, 8192)
    cold(f"""
    s_lshl_b32 s{sT0}, s{sSh}, 1
    s_lshl_b32 s{sT1}, s{sH}, 10
    v_lshlrev_b32 v{vTmp}, 4, v{vLane}
    s_lshl_b64 exec, 3, s{sT0}
    buffer_store_dwordx4 {vr(vD,4)}, v{vTmp}, {sr(SO,4)}, s{sT1} offen
    s_endpgm
    """)
    k.lines += cold.lines
    body = k.done()
    body = body.replace('NLINES', str(NLINES))

    out = HEADER + ("; nwaves=1280 diagoff=3145728 p0 w5\n" if DIAG else "") + f"; @launch grid=(256,1,1) block=(320,1,1) lds={LDS}\n" + DOC
    out += '.amdgcn_target "amdgcn-amd-amdhsa--gfx950"\n.text\n'
    out += f".globl {NAME}_kernel\n.p2align 8\n.type {NAME}_kernel,@function\n{NAME}_kernel:\n"
    out += body
    out += f""".section .rodata,"a"
.p2align 6
.amdhsa_kernel {NAME}_kernel
  .amdhsa_next_free_vgpr {NV}
  .amdhsa_next_free_sgpr {NS}
  .amdhsa_accum_offset {NV}
  .amdhsa_group_segment_fixed_size 0
  .amdhsa_kernarg_size 64
  .amdhsa_user_sgpr_count 2
  .amdhsa_user_sgpr_kernarg_segment_ptr 1
  .amdhsa_system_sgpr_workgroup_id_x 1
.end_amdhsa_kernel
"""
    return out


if __name__ == "__main__":
    kw = {}
    for a in sys.argv[2:]:
        key, val = a.split("=")
        kw[key] = int(val, 0)
    open(sys.argv[1], "w").write(gen(**kw))
```

```python
import sys
import struct
from asmlib import K, vr, sr

NAME = "standalone__paged_block_table_kv_pagedattention__decode"
KV_BYTES = 4100 * 32768
HEADER = open("cdna_kernels/" + NAME + ".s.ref").read().split("; Override")[0]
ML_OFF = 0x40000
WS_USED = 0x48000
END = 0x80000000
POP = 1024
CTR = POP + 64
MLW = POP + 128
ACC = 2048
LDS = ACC + 8192

DOC = """;
"""


def f32(x):
    return "0x%08x" % struct.unpack("<I", struct.pack("<f", x))[0]


def gen(GR=1, LIMIT=2048, LIM0=64, CHK=24, LEADP=12, SLOWH=0x22, FASTL=1, FORCEFB=0, FORCESC=0, MUL=0, SCR=0, XD=0, FO=0, GSUB=16, SVML=1, PRE=0, NOSL=0, GSL=1, HOOK=6, TRIM=1, WM=0, WMS=-1, PM=0xff, SKIP=0, ROT=0, PIPE=0, DIAG=0, EARLYM=0, LAZY=1, XW=0, XWF=0, MX=0, ORD=1, PFC=0, TIGHT=1, NLINES=30, MY=0, PFN=32, MULH=-1):
    global WS_USED
    if XD or DIAG:
        WS_USED = 0x800000
    D = 6
    k = K()
    cold = K()
    warm = K()
    sQ, sKp, sVp, sBT, sCTX, sOUT, sDBG, sWS = 4, 6, 8, 10, 12, 14, 16, 18
    SK, SV, SB, SQ, SW, SD, SO = 20, 24, 28, 32, 36, 60, 64
    sH, sL0, sWv, sJ, sCtx, sN, sI, sCnt, sOff, sC, sPlo, sPhi, sT0, sT1, sNeg, sIdx = range(40, 56)
    sBt0, sRec, sMl, sNxt = 56, 57, 58, 59
    sE, sFb, sR, sS, sSh, sBad, sHq, sOct, sLim, sPol = range(68, 78)
    sMA, sMB, sXc, sFast, sSp, sEnd = 78, 80, 82, 83, 84, 85
    sLast = sFast
    sTh = sMA
    if WMS < 0:
        WMS = WM
    sMk = 86
    sTS = 88
    NS = 96 if MUL or DIAG or MX or MY else 88
    vLane, vKo0, vKo1, vVo0, vVo1, vLi, vG4, vM, vL, vMx, vTmp, vAl, vAb = range(1, 14)
    vP, vQ, vT, vD, vB, vAcc, vKA, vVA = 14, 16, 20, 24, 40, 56, 88, 104
    vRo, vMo_w, vEn, vPa, vNx, vFour = 120, 121, 122, 124, 125, 126
    vFp, vFb = vEn, vEn + 1
    vPre, vPc, vF4, vAd = 128, 152, 154, 162
    vSl, vMw = 169, 170
    NV = 172
    ALL = "row_mask:0xf bank_mask:0xf"

    def srd(kk, S, ptr, size):
        kk(f"""
        s_mov_b64 {sr(S,2)}, {sr(ptr,2)}
        s_mov_b32 s{S+2}, {size}
        s_mov_b32 s{S+3}, 0x20000
        """)

    def diag_store(flag):
        if not DIAG:
            return
        k(f"""
        s_waitcnt vmcnt(0)
        s_memrealtime {sr(sTS+6,2)}
        s_getreg_b32 s{sT1}, hwreg(HW_REG_XCC_ID)
        s_waitcnt lgkmcnt(0)
        s_mov_b64 exec, -1
        v_mov_b32 v24, s{sTS}
        v_mov_b32 v25, s{sTS+2}
        v_mov_b32 v26, s{sTS+4}
        v_mov_b32 v27, s{sTS+6}
        v_mov_b32 v28, s{sT1}
        v_mov_b32 v29, s{sWv}
        v_mov_b32 v30, 0
        v_mov_b32 v31, {flag}
        s_mul_i32 s{sT0}, s2, 5
        s_add_u32 s{sT0}, s{sT0}, s{sWv}
        s_lshl_b32 s{sT0}, s{sT0}, 5
        s_add_u32 s{sT0}, s{sT0}, 0x300000
        v_mov_b32 v11, 0
        s_mov_b64 exec, 1
        buffer_store_dwordx4 v[24:27], v11, {sr(SW,4)}, s{sT0} offen
        buffer_store_dwordx4 v[28:31], v11, {sr(SW,4)}, s{sT0} offen offset:16
        """)

    def st(n):
        return f"s_memrealtime {sr(sTS+2*n,2)}" if DIAG else ""

    seq = [("K", i) for i in range(4)] + [("V", i) for i in range(4)]

    def ld(t, so):
        which, i = seq[t % 8]
        vo = (vKo0, vKo1) if which == "K" else (vVo0, vVo1)
        S = SK if which == "K" else SV
        base = vKA if which == "K" else vVA
        off = " offset:2048" if i & 1 else ""
        k(f"buffer_load_dwordx4 {vr(base+4*i,4)}, v{vo[i>>1]}, {sr(S,4)}, s{so} offen{off} nt")

    k(f"""
    s_load_dwordx16 s[4:19], s[0:1], 0
    s_cmp_ge_u32 s2, 256
    s_cbranch_scc1 L_end
    {f"s_memrealtime {sr(sTS,2)}" if MUL or DIAG or MX or MY else ""}
    {"s_lshr_b32 s3, s2, 5" if SCR == 1 else ""}
    {"s_lshl3_add_u32 s2, s2, s3" if SCR == 1 else ""}
    {"s_and_b32 s2, s2, 255" if SCR == 1 else ""}
    {"s_and_b32 s3, s2, 0xf8" if SCR == 2 else ""}
    {"s_cmp_eq_u32 s3, 0x50" if SCR == 2 else ""}
    {"s_cselect_b32 s3, 1, 0" if SCR == 2 else ""}
    {"s_xor_b32 s2, s2, s3" if SCR == 2 else ""}
    v_lshrrev_b32 v{vTmp}, 6, v0
    v_and_b32 v{vLane}, 63, v0
    v_readfirstlane_b32 s{sWv}, v{vTmp}
    s_lshr_b32 s{sSh}, s2, 3
    {f"s_add_u32 s2, s2, {ROT}" if ROT else ""}
    s_and_b32 s{sH}, s2, 7
    s_cmp_ge_u32 s{sWv}, 4
    {"s_cbranch_scc0 L_worker" if PFC == 1 else "s_cbranch_scc1 L_service"}
    """)
    if PFC == 1:
        k(f"""
        {f"s_cmp_ge_u32 s{sSh}, {PFN}" if PFN < 32 else ""}
        {"s_cbranch_scc1 L_service" if PFN < 32 else ""}
        s_getpc_b64 s[20:21]
        v_min_u32 v2, NLINES, v{vLane}
        v_lshlrev_b32 v2, 7, v2
        global_load_dword v127, v2, s[20:21]
        s_branch L_service
        L_worker:
        """)
    k(f"""
    ; ---------------------------------------------------------------- worker
    s_lshl2_add_u32 s{sJ}, s{sSh}, s{sWv}
    s_lshl_b32 s{sIdx}, s{sJ}, 2
    """)
    first = f"""
    s_waitcnt lgkmcnt(0)
    {f"s_memrealtime {sr(sTS+2,2)}" if MX == 1 else ""}
    s_load_dword s{sBt0}, {sr(sBT,2)}, s{sIdx}
    """
    if ORD == 0:
        k(first)
    k(f"""
    s_mov_b64 {sr(sE,2)}, 0
    s_lshl_b32 s{sL0}, s{sWv}, 2
    L_setup:
    v_lshrrev_b32 v{vG4}, 4, v{vLane}
    v_lshlrev_b32 v{vG4}, 2, v{vG4}            ; 4g
    v_and_b32 v{vTmp}, 3, v{vLane}
    v_add_lshl_u32 v{vTmp}, v{vTmp}, v{vG4}, 4
    v_bfe_u32 v{vMx}, v{vLane}, 2, 2
    s_lshl_b32 s{sT1}, s{sH}, 8
    v_lshl_add_u32 v{vKo0}, v{vMx}, 13, v{vTmp}
    v_add_u32 v{vKo0}, s{sT1}, v{vKo0}
    v_add_u32 v{vKo1}, 0x1000, v{vKo0}
    v_lshl_add_u32 v{vAl}, v{vMx}, 8, v{vTmp}
    v_and_b32 v{vTmp}, 15, v{vLane}
    v_lshlrev_b32 v{vTmp}, 4, v{vTmp}
    v_lshl_add_u32 v{vVo0}, v{vG4}, 11, v{vTmp}
    v_add_u32 v{vVo0}, s{sT1}, v{vVo0}
    {"" if TIGHT else f"v_add_u32 v{vVo1}, 0x1000, v{vVo0}"}
    {f"v_lshl_add_u32 v{vAl}, s{sH}, 10, v{vAl}" if TIGHT else f"s_lshl_b32 s{sT0}, s{sH}, 10"}
    {f"s_mov_b32 s{SK+2}, {KV_BYTES}" if TIGHT else ""}
    {f"s_mov_b32 s{SK+3}, 0x20000" if TIGHT else ""}
    {f"s_mov_b64 {sr(SV+2,2)}, {sr(SK+2,2)}" if TIGHT else ""}
    """)
    if ORD == 1:
        k(first)
    if TIGHT:
        k(f"""
        global_load_dwordx4 {vr(vQ,4)}, v{vAl}, {sr(sQ,2)}
        s_mov_b64 {sr(SK,2)}, {sr(sKp,2)}
        s_mov_b64 {sr(SV,2)}, {sr(sVp,2)}
        """)
    else:
        srd(k, SQ, sQ, 8192)
        k(f"buffer_load_dwordx4 {vr(vQ,4)}, v{vAl}, {sr(SQ,4)}, s{sT0} offen")
        srd(k, SK, sKp, KV_BYTES)
        srd(k, SV, sVp, KV_BYTES)
    k(f"""
    {f"s_memrealtime {sr(sTS+2,2)}" if MX == 5 else ""}
    s_waitcnt lgkmcnt(0)
    {f"s_memrealtime {sr(sTS+2,2)}" if MX == 6 else ""}
    s_lshl_b32 s{sOff}, s{sBt0}, 15
    """)
    for t in range(D):
        ld(t, sOff)
    if MX == 2:
        k(f"s_memrealtime {sr(sTS+2,2)}")
    if TIGHT:
        k(f"v_add_u32 v{vVo1}, 0x1000, v{vVo0}")
    k(f"v_mov_b32 v{vLi}, s{sL0}")
    srd(k, SW, sWS, WS_USED)
    k(f"""
    v_lshlrev_b32 v{vRo}, 4, v{vLane}
    s_cmp_lg_u32 s{sE}, 0
    s_cbranch_scc1 L_loop
    s_mov_b32 s{sC}, {f32(128 ** -0.5 * 1.4426950408889634)}   ; D^-0.5 * log2(e)
    s_mov_b32 s{sPlo}, 0x05040100
    s_mov_b32 s{sPhi}, 0x07060302
    s_mov_b32 s{sNeg}, {f32(-1e9 * 1.4426950408889634)}
    {f"s_lshr_b32 s{sSp}, {hex(SLOWH)}, s{sH}" if SKIP or XWF else ""}
    v_mov_b32 v{vM}, {f32(-3.0e38)}
    v_mov_b32 v{vL}, 0
    v_mov_b32 v{vPa}, {POP}
    v_mov_b32 v{vFour}, 4
    s_lshr_b32 s{sEnd}, s{sFb}, 31
    s_mov_b32 s{sLast}, 0
    s_mov_b32 s{sMB}, 0x11111111
    s_mov_b32 s{sMB+1}, s{sMB}
    s_bitset1_b32 s{sEnd}, 31
    """)
    for i in range(0, 32, 4 if TIGHT else 1):
        k(f"v_mov_b32 v{vAcc+i}, 0" + ("                          ; only row 0 of each accumulator is ever read" if i == 0 else ""))
    k(f"""
    s_cmp_lg_u32 s{sFb}, 0
    s_cbranch_scc1 L_loop
    s_barrier
    s_lshl_b32 s{sT0}, s{sWv}, 3
    v_lshl_add_u32 v{vMw}, v{vMx}, 5, s{sT0}
    v_lshl_add_u32 v{vAd}, v{vG4}, 3, s{sT0}
    v_xor_b32 v{vAd+1}, 8, v{vAd}
    v_xor_b32 v{vAd+2}, 16, v{vAd}
    v_xor_b32 v{vAd+3}, 24, v{vAd}
    s_lshl_b32 s{sT0}, s{sWv}, 11
    v_add_u32 v{vSl}, s{sT0}, v{vRo}
    v_xor_b32 v{vAd+4}, 0x800, v{vSl}
    v_xor_b32 v{vAd+5}, 0x1000, v{vSl}
    v_xor_b32 v{vAd+6}, 0x1800, v{vSl}
    s_lshl_b32 s{sRec}, s{sH}, 5
    s_add_u32 s{sRec}, s{sRec}, s{sSh}
    s_lshl_b32 s{sRec}, s{sRec}, 10            ; record (h*32+s)*1024
    """)
    if MX:
        k(f"""
        {"s_waitcnt vmcnt(5)" if MX == 3 else ""}
        {"s_waitcnt vmcnt(0)" if MX == 4 else ""}
        {f"s_memrealtime {sr(sTS+2,2)}" if MX in (3, 4) else ""}
        s_waitcnt lgkmcnt(0)
        s_sub_u32 s{sT0}, s{sTS+2}, s{sTS}
        v_mov_b32 v{vTmp}, s{sT0}
        s_mov_b64 exec, 1
        ds_add_u32 v{vPa}, v{vTmp} offset:80
        s_mov_b64 exec, -1
        """)
    k(f"""
    """)

    def qk(i):
        k(f"v_mfma_f32_16x16x32_bf16 {vr(vD+4*i,4)}, {vr(vKA+4*i,4)}, {vr(vQ,4)}, 0")

    def perm(e, half):
        j, hi = e >> 1, e & 1
        sel = sPhi if hi else sPlo
        k(f"v_perm_b32 v{vB+2*e+half}, v{vVA+8*half+4+j}, v{vVA+8*half+j}, s{sel}")

    def pv(e):
        k(f"v_mfma_f32_16x16x16_bf16 {vr(vAcc+4*e,4)}, {vr(vP,2)}, {vr(vB+2*e,2)}, {vr(vAcc+4*e,4)}")

    def lreduce(kk):
        kk(f"""
        v_mov_b32 v{vTmp}, v{vL}
        v_permlane32_swap_b32 v{vL}, v{vTmp}
        v_add_f32 v{vL}, v{vL}, v{vTmp}
        v_mov_b32 v{vTmp}, v{vL}
        v_permlane16_swap_b32 v{vL}, v{vTmp}
        v_add_f32 v{vL}, v{vL}, v{vTmp}
        """)

    def mlpub(d, mx, mo, tag):
        for w in range(4):
            k(f"v_sub_f32 v{d+2*w}, v{d+2*w}, v{mx}")
        for w in range(4):
            k(f"v_exp_f32 v{d+2*w}, v{d+2*w}")
        k(f"""
        v_xor_b32 v{d+8}, s{sR}, v{mx}
        v_mul_f32 v{d+9}, v{d}, v{d+1}
        v_fmac_f32 v{d+9}, v{d+2}, v{d+3}
        v_fmac_f32 v{d+9}, v{d+4}, v{d+5}
        v_fmac_f32 v{d+9}, v{d+6}, v{d+7}
        v_mov_b32 v{d+10}, s{sR}
        v_mov_b32 v{d+11}, s{sR}
        s_mov_b32 exec_lo, 0x1111
        s_mov_b32 exec_hi, 0
        s_cmp_lg_u32 s{sPol}, 0
        v_xor_b32 v{d+9}, s{sR}, v{d+9}
        s_cbranch_scc1 L_ml1{tag}
        buffer_store_dwordx4 {vr(d+8,4)}, v{mo}, {sr(SW,4)}, s{sMl} offen
        s_branch L_ml3{tag}
        L_ml1{tag}:
        buffer_store_dwordx4 {vr(d+8,4)}, v{mo}, {sr(SW,4)}, s{sMl} offen sc1
        L_ml3{tag}:
        s_mov_b64 exec, -1
        """)

    def mreads():
        k(f"""
        ds_read_b32 v{vPc}, v{vPa} offset:64
        ds_read_b32 v{vAl}, v{vPa} offset:72       ; salt
        """)
        for j in range(4):
            k(f"ds_read_b32 v{vF4+2*j}, v{vAd+j} offset:{MLW}")
        for j in range(3):
            k(f"ds_read_b128 {vr(vPre+8*j,4)}, v{vAd+4+j} offset:{ACC}")
            k(f"ds_read_b128 {vr(vPre+8*j+4,4)}, v{vAd+4+j} offset:{ACC+1024}")

    def mbase(fail):
        k(f"""
        s_waitcnt lgkmcnt({0 if DIAG else 6})
        v_readfirstlane_b32 s{sT0}, v{vPc}
        v_max3_f32 v{vMx}, v{vF4}, v{vF4+2}, v{vF4+4}
        v_max_f32 v{vMx}, v{vMx}, v{vF4+6}
        """)
        for w in (1, 2, 3, 0):
            k(f"v_sub_f32 v{vF4+2*w}, v{vF4+2*w}, v{vMx}")
        k(f"""
        s_cmp_eq_u32 s{sT0}, 12
        s_cbranch_scc0 {fail}
        """)
        for w in (1, 2, 3, 0):
            k(f"v_exp_f32 v{vF4+2*w}, v{vF4+2*w}")
        for j in range(3):
            k(f"s_waitcnt lgkmcnt({4-2*j})")
            for e in range(0, 8, 2):
                if j == 0:
                    k(f"v_pk_mul_f32 {vr(vD+e,2)}, {vr(vF4+2,2)}, {vr(vPre+e,2)} op_sel_hi:[0,1]")
                else:
                    k(f"v_pk_fma_f32 {vr(vD+e,2)}, {vr(vF4+2*j+2,2)}, {vr(vPre+8*j+e,2)}, {vr(vD+e,2)} op_sel_hi:[0,1,1]")

    def hook():
        k(f"""
        s_cmp_eq_u32 s{sLast}, 12
        s_cbranch_scc0 L_nopre
        """)
        mreads()
        k("L_nopre:")

    def issue(p):
        if (XW >> p) & 1:
            k(f"s_waitcnt vmcnt({D-2})")
        if (XWF >> p) & 1:
            k(f"""
            s_bitcmp1_b32 s{sSp}, 0
            s_cbranch_scc1 L_xf{p}
            s_waitcnt vmcnt({D-2})
            L_xf{p}:
            """)
        if (WM or WMS) and (PM >> p) & 1:
            k(f"""
            s_bitcmp1_b32 s{sTh}, 0
            s_cbranch_scc0 L_th{p}
            s_waitcnt vmcnt({D-2})
            L_th{p}:
            """)
        ld(p + D, sOff if p + D < 8 else sNxt)

    def wait(p):
        if p in (4, 6) and SKIP:
            k(f"""
            s_bitcmp1_b32 s{sSp}, 0
            s_cbranch_scc1 L_sk{p}
            s_waitcnt vmcnt({D-1})
            L_sk{p}:
            """)
        else:
            k(f"s_waitcnt vmcnt({D-1})")

    k(f"""
    L_loop:
    s_mov_b64 exec, 1
    ds_add_rtn_u32 v{vNx}, v{vPa}, v{vFour}
    s_mov_b64 exec, -1
    """)
    for i in range(4):
        if i == 2:
            k(f"""
            s_waitcnt lgkmcnt(0)
            L_get:
            s_mov_b64 exec, 1
            ds_read_b32 v{vEn}, v{vLi}
            ds_read_b32 v{vEn+1}, v{vNx}
            s_mov_b64 exec, -1
            """)
        wait(i)
        qk(i)
        if i == 2:
            k(f"""
            s_waitcnt lgkmcnt(0)
            v_readfirstlane_b32 s{sT0}, v{vEn+1}
            v_readfirstlane_b32 s{sCnt}, v{vEn}
            s_max_u32 s{sT1}, s{sT0}, s{sCnt}
            s_cmp_eq_u32 s{sT1}, -1
            s_cbranch_scc1 L_retry
            s_and_b32 s{sNxt}, s{sT0}, 0xffff8000
            s_and_b32 s{sCnt}, s{sCnt}, 31
            s_and_b32 s{sPol}, s{sT0}, 32
            v_mov_b32 v{vLi}, v{vNx}
            """)
        issue(i)
    for j in (1, 2, 3):
        for i in range(4):
            src1 = vD + 4 * i if j == 1 else vT + i
            k(f"v_add_f32_dpp v{vT+i}, v{vD+4*i+j}, v{src1} quad_perm:[{j},{j},{j},{j}] {ALL}")
    for i in range(4):
        k(f"v_mul_f32 v{vT+i}, s{sC}, v{vT+i}")
    k(f"""
    s_cmp_lt_u32 s{sCnt}, 16
    s_cbranch_scc1 L_mask
    L_nomask:
    """)
    if LAZY:
        k(f"""
        v_max3_f32 v{vMx}, v{vT}, v{vT+1}, v{vT+2}
        v_max_f32 v{vMx}, v{vMx}, v{vT+3}
        v_cmp_gt_f32 vcc, v{vMx}, v{vM}
        s_and_b64 vcc, vcc, {sr(sMB,2)}
        s_cbranch_scc1 L_newmax
        L_maxok:
        """)
        warm(f"""
        L_newmax:
        v_max_f32 v{vMx}, v{vMx}, v{vM}
        v_mov_b32 v{vTmp}, v{vMx}
        v_permlane32_swap_b32 v{vMx}, v{vTmp}
        v_max_f32 v{vMx}, v{vMx}, v{vTmp}
        v_mov_b32 v{vTmp}, v{vMx}
        v_permlane16_swap_b32 v{vMx}, v{vTmp}
        v_max_f32 v{vMx}, v{vMx}, v{vTmp}
        v_sub_f32 v{vAl}, v{vM}, v{vMx}
        v_exp_f32 v{vAl}, v{vAl}
        v_mov_b32 v{vM}, v{vMx}
        v_mul_f32 v{vL}, v{vL}, v{vAl}
        """)
        for i in range(4):
            warm(f"v_mov_b32_dpp v{vAb}, v{vAl} row_newbcast:{4*i} row_mask:{hex(1<<i)} bank_mask:0xf")
        for e in range(8):
            warm(f"v_mul_f32 v{vAcc+4*e}, v{vAb}, v{vAcc+4*e}")
        warm("s_branch L_maxok")
    else:
        k(f"""
    v_max3_f32 v{vMx}, v{vT}, v{vT+1}, v{vT+2}
    v_max3_f32 v{vMx}, v{vMx}, v{vT+3}, v{vM}
    v_mov_b32 v{vTmp}, v{vMx}
    v_permlane32_swap_b32 v{vMx}, v{vTmp}
    v_max_f32 v{vMx}, v{vMx}, v{vTmp}
    v_mov_b32 v{vTmp}, v{vMx}
    v_permlane16_swap_b32 v{vMx}, v{vTmp}
    v_max_f32 v{vMx}, v{vMx}, v{vTmp}
    """)
    cold(f"""
    L_mask:                                    ; tokens at or past context_len
    v_mov_b32 v{vTmp}, s{sNeg}
    """)
    for i in range(4):
        cold(f"""
        s_sub_i32 s{sT0}, s{sCnt}, {i}
        v_cmp_gt_i32 vcc, s{sT0}, v{vG4}
        v_cndmask_b32 v{vT+i}, v{vTmp}, v{vT+i}, vcc
        """)
    cold("s_branch L_nomask")
    wait(4)
    issue(4)
    if LAZY:
        k(f"""
        v_sub_f32 v{vT}, v{vT}, v{vM}
        v_sub_f32 v{vT+1}, v{vT+1}, v{vM}
        v_exp_f32 v{vT}, v{vT}
        v_sub_f32 v{vT+2}, v{vT+2}, v{vM}
        v_exp_f32 v{vT+1}, v{vT+1}
        v_sub_f32 v{vT+3}, v{vT+3}, v{vM}
        v_exp_f32 v{vT+2}, v{vT+2}
        v_add_f32 v{vL}, v{vL}, v{vT}
        v_exp_f32 v{vT+3}, v{vT+3}
        v_add_f32 v{vTmp}, v{vT+1}, v{vT+2}
        v_cvt_pk_bf16_f32 v{vP}, v{vT}, v{vT+1}
        v_add_f32 v{vL}, v{vL}, v{vT+3}
        s_cmp_eq_u32 s{sNxt}, s{sEnd}
        v_cvt_pk_bf16_f32 v{vP+1}, v{vT+2}, v{vT+3}
        v_add_f32 v{vL}, v{vL}, v{vTmp}
        s_cbranch_scc1 L_none
        L_mld:
        """)
    elif TRIM:
        k(f"""
        v_sub_f32 v{vAl}, v{vM}, v{vMx}
        v_sub_f32 v{vT}, v{vT}, v{vMx}
        v_exp_f32 v{vAl}, v{vAl}
        v_sub_f32 v{vT+1}, v{vT+1}, v{vMx}
        v_exp_f32 v{vT}, v{vT}
        v_sub_f32 v{vT+2}, v{vT+2}, v{vMx}
        v_exp_f32 v{vT+1}, v{vT+1}
        v_sub_f32 v{vT+3}, v{vT+3}, v{vMx}
        v_exp_f32 v{vT+2}, v{vT+2}
        v_fma_f32 v{vL}, v{vL}, v{vAl}, v{vT}
        v_exp_f32 v{vT+3}, v{vT+3}
        v_add_f32 v{vTmp}, v{vT+1}, v{vT+2}
        v_mov_b32 v{vM}, v{vMx}
        v_add_f32 v{vL}, v{vL}, v{vT+3}
        s_cmp_eq_u32 s{sNxt}, s{sEnd}
        v_add_f32 v{vL}, v{vL}, v{vTmp}
        s_cbranch_scc1 L_none                      ; last page: (m, l) are final before its V rows land
        L_mld:
        v_mov_b32_dpp v{vAb}, v{vAl} row_newbcast:0 row_mask:0x1 bank_mask:0xf
        v_cvt_pk_bf16_f32 v{vP}, v{vT}, v{vT+1}
        v_cvt_pk_bf16_f32 v{vP+1}, v{vT+2}, v{vT+3}
        v_mov_b32_dpp v{vAb}, v{vAl} row_newbcast:4 row_mask:0x2 bank_mask:0xf
        v_mov_b32_dpp v{vTmp}, v{vAl} row_newbcast:8 row_mask:0x4 bank_mask:0xf
        s_nop 0
        v_mov_b32_dpp v{vAb}, v{vAl} row_newbcast:12 row_mask:0x8 bank_mask:0xf
        v_mov_b32_dpp v{vAb}, v{vAl} row_newbcast:8 row_mask:0x4 bank_mask:0xf
        """.replace(f"        v_mov_b32_dpp v{vTmp}, v{vAl} row_newbcast:8 row_mask:0x4 bank_mask:0xf\n        s_nop 0\n", ""))
        for e in range(8):
            k(f"v_mul_f32 v{vAcc+4*e}, v{vAb}, v{vAcc+4*e}")
    else:
        k(f"""
        v_sub_f32 v{vAl}, v{vM}, v{vMx}
        v_mov_b32 v{vM}, v{vMx}
        v_exp_f32 v{vAl}, v{vAl}
        """)
        for i in range(4):
            k(f"v_sub_f32 v{vT+i}, v{vT+i}, v{vMx}")
        for i in range(4):
            k(f"v_exp_f32 v{vT+i}, v{vT+i}")
            k(f"v_mov_b32_dpp v{vAb}, v{vAl} row_newbcast:{4*i} row_mask:{hex(1<<i)} bank_mask:0xf")
            if i == 1:
                k(f"v_fma_f32 v{vL}, v{vL}, v{vAl}, v{vT}")
            if i == 2:
                k(f"v_cvt_pk_bf16_f32 v{vP}, v{vT}, v{vT+1}")
        k(f"""
        v_add_f32 v{vTmp}, v{vT+1}, v{vT+2}
        v_cvt_pk_bf16_f32 v{vP+1}, v{vT+2}, v{vT+3}
        v_add_f32 v{vL}, v{vL}, v{vT+3}
        v_add_f32 v{vL}, v{vL}, v{vTmp}
        """)
        for e in range(8):
            k(f"v_mul_f32 v{vAcc+4*e}, v{vAb}, v{vAcc+4*e}")
        k(f"""
        s_cmp_eq_u32 s{sNxt}, {hex(END)}
        s_cbranch_scc1 L_ml
        L_mld:
        """)
    wait(5)
    issue(5)
    for e in range(8):
        perm(e, 0)
    if EARLYM:
        k(f"""
        s_cmp_eq_u32 s{sNxt}, s{sEnd}
        s_cbranch_scc1 L_lastp
        """)
        wait(6)
        k("L_lastd:")
        issue(6)
    else:
        k(f"""
        s_cmp_eq_u32 s{sNxt}, s{sEnd}
        s_cbranch_scc0 L_nolast
        s_waitcnt lgkmcnt(0)
        v_readfirstlane_b32 s{sLast}, v{vNx}
        L_nolast:
        """)
        wait(6)
        issue(6)
        if HOOK == 6:
            hook()
    wait(7)
    if DIAG == 2:
        k(st(1))
    if HOOK == 7:
        hook()
    issue(7)
    perm(0, 1)
    perm(1, 1)
    for e in range(8):
        if e + 2 < 8:
            perm(e + 2, 1)
        pv(e)
    k(f"""
    s_mov_b32 s{sOff}, s{sNxt}
    s_cmp_eq_u32 s{sNxt}, {hex(END)}
    s_cbranch_scc0 L_loop
    s_cmp_lg_u32 s{sFb}, 0
    s_cbranch_scc1 L_fbnext
    """)
    vS0 = vD
    k(f"""
    {f"s_cmp_eq_u32 s{sLast}, 13" if EARLYM else ""}
    {"s_cbranch_scc1 L_own" if EARLYM else ""}
    s_cmp_eq_u32 s{sLast}, 12
    s_cbranch_scc0 L_give
    L_mrg:                                     ; lane (c, g): O[query g][8c .. 8c+7]
    """)
    mbase("L_again")
    k(f"""
    {"L_own:" if EARLYM else ""}
    s_cmp_lg_u32 s{sPol}, 0
    """)
    for e in range(8):
        k(f"v_fmac_f32 v{vS0+e}, v{vF4}, v{vAcc+4*e}")
    for j in range(4):
        k(f"v_cvt_pk_bf16_f32 v{vD+j}, v{vS0+2*j}, v{vS0+2*j+1}")
        k(f"v_xor_b32 v{vD+j}, v{vAl}, v{vD+j}")
    k(f"""
    {st(2)}
    s_cbranch_scc1 L_dn1
    buffer_store_dwordx4 {vr(vD,4)}, v{vRo}, {sr(SW,4)}, s{sRec} offen
    """)
    diag_store(1)
    k(f"""
    s_endpgm
    L_dn1:
    buffer_store_dwordx4 {vr(vD,4)}, v{vRo}, {sr(SW,4)}, s{sRec} offen sc1
    s_endpgm
    L_again:
    s_waitcnt lgkmcnt(0)
    """)
    mreads()
    k(f"""
    s_branch L_mrg
    L_give:                                    ; hand the sums to the merging worker
    """)
    for e in range(8):
        k(f"v_mov_b32 v{vS0+e}, v{vAcc+4*e}")
    k(f"""
    ds_write_b128 v{vSl}, {vr(vS0,4)} offset:{ACC}
    ds_write_b128 v{vSl}, {vr(vS0+4,4)} offset:{ACC+1024}
    s_mov_b64 exec, 1
    ds_add_u32 v{vPa}, v{vFour} offset:64
    {st(2)}
    s_waitcnt lgkmcnt(0)
    """)
    diag_store(0)
    k(f"""
    s_endpgm
    """)
    if EARLYM:
        k(f"""
        L_lastp:                                   ; last page, V rows 2 and 3 still to come
        s_waitcnt lgkmcnt(0)
        v_readfirstlane_b32 s{sLast}, v{vNx}
        s_cmp_eq_u32 s{sLast}, 12
        s_cbranch_scc0 L_lastd
        """)
        mreads()
        mbase("L_lastr")
        k(f"""
        s_mov_b32 s{sLast}, 13
        s_branch L_lastd
        L_lastr:
        s_waitcnt vmcnt({D-1}) lgkmcnt(0)
        """)
        mreads()
        k("s_branch L_lastd")
    k(f"""
    L_retry:
    s_cmp_eq_u32 s{sCnt}, {hex(END)}
    s_cbranch_scc0 L_get
    s_mov_b32 s{sPol}, 32
    L_none:
    {st(1) if DIAG == 1 else ""}
    """)
    lreduce(k)
    k(f"""
    s_mov_b32 exec_lo, 0x1111
    s_mov_b32 exec_hi, 0
    ds_write_b64 v{vMw}, {vr(vM,2)} offset:{MLW}
    s_mov_b64 exec, 1
    ds_add_rtn_u32 v{vNx}, v{vPa}, v{vFour} offset:68
    s_mov_b64 exec, -1
    s_cmp_eq_u32 s{sCnt}, {hex(END)}
    s_cbranch_scc0 L_mld
    s_waitcnt lgkmcnt(0)
    v_readfirstlane_b32 s{sLast}, v{vNx}
    s_cmp_eq_u32 s{sLast}, 12
    s_cbranch_scc1 L_again
    s_branch L_give
    """)

    k.lines += warm.lines
    vOf, vMo, vPw, vPm, vPr_, vOo = 2, 3, 4, 5, 6, 7
    vX, vY, vW, vZ = 8, 9, 10, 11
    vML = 12
    vMa, vRr, vSa = 16, 18, 20
    vA, vPr = 24, 28
    vOr, vOs, vU = 32, 34, 36
    vBt, vDyn, vCo, vPq, vCt = 42, 43, 44, 45, 46
    vE4, vEl = 48, 52
    vV2, vBase, vM4 = 56, 58, 60

    def ctxcalc(kk):
        kk(f"""
        s_min_i32 s{sT0}, s{sCtx}, 65536
        s_cmp_le_i32 s{sCtx}, 0
        s_cselect_b32 s{sT0}, 65536, s{sT0}
        s_add_u32 s{sT0}, s{sT0}, 15
        s_lshr_b32 s{sN}, s{sT0}, 4
        s_min_i32 s{sCtx}, s{sCtx}, 65536
        s_max_i32 s{sCtx}, s{sCtx}, 0
        """)

    def entry(kk, vpage, vbt, vt):
        kk(f"""
        v_lshlrev_b32 v{vt}, 4, v{vpage}
        v_sub_u32 v{vt}, s{sCtx}, v{vt}
        v_med3_i32 v{vt}, v{vt}, 0, 16
        v_cmp_gt_u32 vcc, s{sN}, v{vpage}
        v_lshl_or_b32 v{vbt}, v{vbt}, 15, v{vt}
        v_bfrev_b32 v{vt}, 1
        v_and_b32 v{vbt}, 0x7fffffff, v{vbt}
        v_cndmask_b32 v{vbt}, v{vt}, v{vbt}, vcc
        """)

    vMb, vRs, vSb, vW2, vZ2 = 17, 19, 21, 14, 15
    vOr2, vOs2, vOf2 = 56, 58, 60
    k(f"""
    L_service:
    s_mov_b64 {sr(sE,2)}, 0
    v_lshlrev_b32 v{vX}, 9, v{vLane}
    v_lshlrev_b32 v{vCo}, 2, v{vLane}
    v_lshlrev_b32 v{vDyn}, 4, v{vLane}
    v_mov_b32 v{vEl}, -1
    v_mov_b32 v{vEl+1}, -1
    v_mov_b32 v{vEl+2}, -1
    v_mov_b32 v{vEl+3}, -1
    ds_write_b128 v{vDyn}, {vr(vEl,4)}
    v_mov_b32 v{vY}, 0
    v_writelane_b32 v{vY}, 16, 0
    ds_write_b32 v{vCo}, v{vY} offset:{POP}
    s_lshl_b32 s{sIdx}, s{sSh}, 4
    s_lshl_b32 s{sT0}, s{sH}, 15
    s_lshl_b32 s{sT1}, s{sSh}, 5               ; q*256 + oct*32
    s_add_u32 s{sT0}, s{sT0}, s{sT1}
    v_lshrrev_b32 v{vY}, 2, v{vLane}
    v_and_b32 v{vW}, 3, v{vLane}
    v_lshlrev_b32 v{vZ}, 10, v{vY}
    v_lshl_add_u32 v{vZ}, v{vW}, 3, v{vZ}
    v_add_u32 v{vOf}, s{sT0}, v{vZ}
    v_add_u32 v{vOf2}, 0x4000, v{vOf}
    s_lshr_b32 s{sI}, s{sSh}, 3
    s_lshl_b32 s{sT0}, s{sH}, 12
    s_lshl4_add_u32 s{sT0}, s{sI}, s{sT0}
    s_add_u32 s{sT0}, s{sT0}, {ML_OFF}
    v_lshlrev_b32 v{vZ}, 7, v{vY}
    v_lshl_add_u32 v{vZ}, v{vW}, 2, v{vZ}
    v_add_u32 v{vMo}, s{sT0}, v{vZ}
    s_lshl_b32 s{sRec}, s{sH}, 5
    s_add_u32 s{sRec}, s{sRec}, s{sSh}
    s_lshl_b32 s{sRec}, s{sRec}, 10
    s_lshr_b32 s{sMl}, s{sRec}, 3
    s_add_u32 s{sMl}, s{sMl}, {ML_OFF}
    s_waitcnt lgkmcnt(0)
    s_load_dword s{sCtx}, {sr(sCTX,2)}, 0
    s_load_dword s{sR}, {sr(sWS,2)}, s{sRec}
    """)
    srd(k, SB, sBT, 16384)
    k(f"buffer_load_dwordx4 {vr(vE4,4)}, v{vX}, {sr(SB,4)}, s{sIdx} offen")
    srd(k, SW, sWS, WS_USED)
    k(f"""
    buffer_load_dword v{vSa}, v{vMo}, {sr(SW,4)}, 0 offen sc1
    buffer_load_dword v{vSb}, v{vMo}, {sr(SW,4)}, 0 offen offset:2048 sc1
    buffer_load_dwordx2 {vr(vOs,2)}, v{vOf}, {sr(SW,4)}, 0 offen sc1
    buffer_load_dwordx2 {vr(vOs2,2)}, v{vOf2}, {sr(SW,4)}, 0 offen sc1
    s_lshl_b32 s{sT0}, s{sH}, 10
    s_add_u32 s{sT0}, s{sT0}, s{sT1}
    v_lshrrev_b32 v{vX}, 4, v{vLane}
    v_lshl_add_u32 v{vX}, v{vW}, 2, v{vX}
    v_lshl_add_u32 v{vOo}, v{vX}, 1, s{sT0}
    s_barrier
    s_waitcnt lgkmcnt(0)
    s_add_u32 s{sR}, s{sR}, s{sMl}
    s_mul_i32 s{sR}, s{sR}, 0x9e3779b1
    s_lshr_b32 s{sT0}, s{sR}, 15
    s_xor_b32 s{sR}, s{sR}, s{sT0}
    s_mul_i32 s{sR}, s{sR}, 0x85ebca6b         ; salt
    v_mov_b32 v{vW}, {POP}
    v_mov_b32 v{vY}, s{sR}
    ds_write_b32 v{vW}, v{vY} offset:72
    """)
    ctxcalc(k)
    k(f"""
    s_lshr_b32 s{sS}, s{sN}, 7
    s_max_i32 s{sS}, s{sS}, 1
    s_lshl_b32 s{sT1}, s{sSh}, 2
    v_lshl_add_u32 v{vX}, v{vLane}, 7, s{sT1}
    s_lshl_b32 s{sT0}, s{sS}, 7
    s_add_u32 s{sT0}, s{sT0}, s{sSh}
    v_lshl_add_u32 v{vBt}, v{vLane}, 5, s{sT0}
    v_lshlrev_b32 v{vEl}, 2, v{vBt}
    v_cmp_gt_u32 vcc, s{sS}, v{vLane}
    s_mov_b64 exec, 15
    buffer_load_dword v{vEl}, v{vEl}, {sr(SB,4)}, 0 offen
    s_mov_b64 exec, vcc
    s_waitcnt vmcnt(5)
    """)
    for w in range(4):
        entry(k, vX, vE4 + w, vY)
        if w < 3:
            k(f"v_add_u32 v{vX}, 1, v{vX}")
    k(f"""
    ds_write_b128 v{vDyn}, {vr(vE4,4)}
    s_mov_b64 exec, -1
    """)
    srd(k, SO, sOUT, 8192)
    k(f"""
    s_mov_b32 s{sC}, 0xffff0000
    """)
    srd(k, SD, sDBG, 256)
    k(f"""
    s_getreg_b32 s{sXc}, hwreg(HW_REG_XCC_ID)
    s_lshl_b32 s{sT0}, s{sH}, 5
    v_mov_b32 v{vCo}, s{sT0}
    s_and_b32 s{sXc}, s{sXc}, 15
    s_add_u32 s{sXc}, s{sXc}, 1
    s_mov_b32 s{sPol}, {32 if FORCESC else 0}
    s_cmp_eq_u32 s{sSh}, 0
    s_cbranch_scc0 L_nl
    v_mov_b32 v{vX}, s{sXc}
    s_mov_b64 exec, 1
    buffer_store_dword v{vX}, v{vCo}, {sr(SD,4)}, 0 offen offset:4 sc1
    s_mov_b64 exec, -1
    L_nl:
    s_waitcnt vmcnt(0)
    """)
    entry(k, vBt, vEl, vY)
    k(f"""
    s_lshl_b32 s{sE}, s{sS}, 4
    v_lshl_add_u32 v{vDyn}, v{vLane}, 2, s{sE}
    s_sub_i32 s{sE}, s{sE}, {4*LEADP}
    s_min_i32 s{sOff}, s{sE}, {4*CHK}
    s_mov_b32 s{sI}, 0
    L_s0:
    ds_read_b32 v{vX}, v{vW}
    s_waitcnt lgkmcnt(0)
    v_readfirstlane_b32 s{sT0}, v{vX}
    s_cmp_ge_i32 s{sT0}, s{sOff}
    s_cbranch_scc1 L_s2
    s_sleep 4
    s_branch L_s0
    L_s2:
    {f"s_memrealtime {sr(sTS+4,2)}" if MY else ""}
    {"s_waitcnt lgkmcnt(0)" if MY else ""}
    buffer_load_dwordx2 {vr(vPr,2)}, v{vCo}, {sr(SD,4)}, 0 offen sc1
    s_waitcnt vmcnt(0)
    v_readfirstlane_b32 s{sT1}, v{vPr}
    v_readfirstlane_b32 s{sT0}, v{vPr+1}
    s_or_b32 s{sPol}, s{sPol}, s{sT1}
    s_cmp_lg_u32 s{sI}, 0
    s_cbranch_scc1 L_s1
    s_mov_b32 s{sI}, 1
    s_mov_b32 s{sOff}, s{sE}
    {f"s_mov_b32 s{sTS+6}, s{sTS+4}" if MY == 1 else ""}
    s_cmp_eq_u32 s{sT0}, s{sXc}
    s_cbranch_scc1 L_s0
    s_mov_b32 s{sPol}, 32
    v_mov_b32 v{vX}, 32
    s_mov_b64 exec, 1
    buffer_store_dword v{vX}, v{vCo}, {sr(SD,4)}, 0 offen sc1
    s_mov_b64 exec, -1
    s_branch L_s0
    L_s1:
    {f"s_mov_b32 s{sTS+6}, s{sTS+4}" if MY == 2 else ""}
    s_and_b32 s{sPol}, s{sPol}, 32
    s_mov_b64 exec, 0xffff
    v_or_b32 v{vEl}, s{sPol}, v{vEl}
    ds_write_b32 v{vDyn}, v{vEl}
    s_mov_b64 exec, -1
    s_mov_b32 s{sI}, {LIMIT if FORCEFB else 0}
    s_mov_b32 s{sLim}, {LIMIT if FORCEFB else LIM0}
    v_bfe_u32 v{vX}, v{vLane}, 2, 2
    v_lshlrev_b32 v{vX}, 5, v{vX}
    v_lshlrev_b32 v{vCo}, 2, v{vLane}
    s_waitcnt vmcnt(0)
    L_gate:                                    ; until every worker's (m, l) is there
    {f"s_sleep {GSL}" if GSL else ""}
    ds_read_b32 v{vY}, v{vW} offset:68
    ds_read_b128 v[64:67], v{vX} offset:{MLW}
    ds_read_b128 v[68:71], v{vX} offset:{MLW+16}
    s_waitcnt lgkmcnt(2)
    v_cmp_ne_u32 vcc, 16, v{vY}
    s_cbranch_vccnz L_gate
    {f"s_memrealtime {sr(sTS+6,2)}" if MY == 3 else ""}
    {st(1) if DIAG == 1 else ""}
    """)
    if SVML:
        k(f"""
        s_waitcnt lgkmcnt(0)
        v_max3_f32 v{vX}, v64, v66, v68
        v_max_f32 v{vX}, v{vX}, v70
        """)
        mlpub(64, vX, vCo, "b")
    k(f"""
    s_branch L_m1
    L_m0:                                      ; wait for the (m, l, salt) entries
    s_bcnt1_i32_b64 s{sT0}, vcc
    L_m2:                                      ; back off in proportion to the number of missing producers
    s_sleep {GR}
    s_sub_i32 s{sT0}, s{sT0}, {GSUB}
    s_cmp_gt_i32 s{sT0}, 0
    s_cbranch_scc1 L_m2
    s_mov_b64 exec, vcc
    L_m1:
    buffer_load_dword v{vMa}, v{vMo}, {sr(SW,4)}, 0 offen sc1
    buffer_load_dword v{vMb}, v{vMo}, {sr(SW,4)}, 0 offen offset:2048 sc1
    s_mov_b64 exec, -1
    s_add_u32 s{sI}, s{sI}, 1
    s_cmp_ge_u32 s{sI}, s{sLim}
    s_cbranch_scc1 L_chk1
    L_m3:
    s_waitcnt vmcnt(0)
    v_xor_b32 v{vU}, v{vMa}, v{vSa}
    v_xor_b32 v{vU+1}, v{vMb}, v{vSb}
    v_mov_b32_dpp v{vRr}, v{vMa} quad_perm:[2,2,2,2] {ALL}
    v_min_u32 v{vU}, v{vU}, v{vU+1}
    v_mov_b32_dpp v{vRs}, v{vMb} quad_perm:[2,2,2,2] {ALL}
    v_cmp_eq_u32 vcc, 0, v{vU}
    v_xor_b32_dpp v{vW}, v{vMa}, v{vRr} quad_perm:[0,0,0,0] {ALL}     ; m
    s_cbranch_vccnz L_m0
    {st(2) if DIAG == 1 else st(1)}
    buffer_load_dwordx2 {vr(vOr,2)}, v{vOf}, {sr(SW,4)}, 0 offen sc1
    buffer_load_dwordx2 {vr(vOr2,2)}, v{vOf2}, {sr(SW,4)}, 0 offen sc1
    v_xor_b32_dpp v{vW2}, v{vMb}, v{vRs} quad_perm:[0,0,0,0] {ALL}
    v_xor_b32_dpp v{vZ}, v{vMa}, v{vRr} quad_perm:[1,1,1,1] {ALL}     ; l
    v_max_f32 v{vML}, v{vW}, v{vW2}
    v_xor_b32_dpp v{vZ2}, v{vMb}, v{vRs} quad_perm:[1,1,1,1] {ALL}
    v_max_f32_dpp v{vML}, v{vML}, v{vML} row_ror:4 {ALL}
    v_max_f32_dpp v{vML}, v{vML}, v{vML} row_ror:8 {ALL}
    v_mov_b32 v{vY}, v{vML}
    v_permlane16_swap_b32 v{vML}, v{vY}
    v_max_f32 v{vML}, v{vML}, v{vY}
    v_mov_b32 v{vY}, v{vML}
    v_permlane32_swap_b32 v{vML}, v{vY}
    v_max_f32 v{vML}, v{vML}, v{vY}
    v_sub_f32 v{vW}, v{vW}, v{vML}
    v_sub_f32 v{vW2}, v{vW2}, v{vML}
    v_exp_f32 v{vW}, v{vW}
    v_exp_f32 v{vW2}, v{vW2}
    v_mul_f32 v{vZ}, v{vW}, v{vZ}
    v_fmac_f32 v{vZ}, v{vW2}, v{vZ2}
    v_add_f32_dpp v{vZ}, v{vZ}, v{vZ} row_ror:4 {ALL}
    v_add_f32_dpp v{vZ}, v{vZ}, v{vZ} row_ror:8 {ALL}
    v_mov_b32 v{vY}, v{vZ}
    v_permlane16_swap_b32 v{vZ}, v{vY}
    v_add_f32 v{vZ}, v{vZ}, v{vY}
    v_mov_b32 v{vY}, v{vZ}
    v_permlane32_swap_b32 v{vZ}, v{vY}
    v_add_f32 v{vZ}, v{vZ}, v{vY}
    v_rcp_f32 v{vZ}, v{vZ}
    {f"v_mul_f32 v{vW}, v{vW}, v{vZ}" if TRIM else ""}
    {f"v_mul_f32 v{vW2}, v{vW2}, v{vZ}" if TRIM else ""}
    {"s_waitcnt vmcnt(0)" if PIPE else ""}
    s_branch L_o1
    L_o0:                                      ; wait for the record pieces
    s_mov_b64 exec, vcc
    buffer_load_dwordx2 {vr(vOr,2)}, v{vOf}, {sr(SW,4)}, 0 offen sc1
    buffer_load_dwordx2 {vr(vOr2,2)}, v{vOf2}, {sr(SW,4)}, 0 offen sc1
    s_mov_b64 exec, -1
    s_add_u32 s{sI}, s{sI}, 1
    s_cmp_ge_u32 s{sI}, s{sLim}
    s_cbranch_scc1 L_chk2
    L_o1:
    s_waitcnt vmcnt({2*PIPE})
    v_xor_b32 v{vU}, v{vOr}, v{vOs}
    v_xor_b32 v{vU+1}, v{vOr+1}, v{vOs+1}
    v_xor_b32 v{vU+2}, v{vOr2}, v{vOs2}
    v_xor_b32 v{vU+3}, v{vOr2+1}, v{vOs2+1}
    v_min3_u32 v{vU}, v{vU}, v{vU+1}, v{vU+2}
    v_xor_b32 v{vX}, v{vOr}, v{vRr}
    v_min_u32 v{vU}, v{vU}, v{vU+3}
    v_xor_b32 v{vY}, v{vOr+1}, v{vRr}
    v_cmp_eq_u32 vcc, 0, v{vU}
    v_lshlrev_b32 v{vA}, 16, v{vX}
    v_and_b32 v{vA+1}, s{sC}, v{vX}
    v_lshlrev_b32 v{vA+2}, 16, v{vY}
    v_and_b32 v{vA+3}, s{sC}, v{vY}
    s_cbranch_vccnz L_o0
    {st(2) if DIAG == 2 else ""}
    v_xor_b32 v{vX}, v{vOr2}, v{vRs}
    v_xor_b32 v{vY}, v{vOr2+1}, v{vRs}
    v_mul_f32 v{vA}, v{vW}, v{vA}
    v_mul_f32 v{vA+1}, v{vW}, v{vA+1}
    v_mul_f32 v{vA+2}, v{vW}, v{vA+2}
    v_mul_f32 v{vA+3}, v{vW}, v{vA+3}
    v_lshlrev_b32 v{vU}, 16, v{vX}
    v_and_b32 v{vU+1}, s{sC}, v{vX}
    v_lshlrev_b32 v{vU+2}, 16, v{vY}
    v_and_b32 v{vU+3}, s{sC}, v{vY}
    v_fmac_f32 v{vA}, v{vW2}, v{vU}
    v_fmac_f32 v{vA+1}, v{vW2}, v{vU+1}
    v_fmac_f32 v{vA+2}, v{vW2}, v{vU+2}
    v_fmac_f32 v{vA+3}, v{vW2}, v{vU+3}
    """)
    for sh in (4, 8):
        for j in range(4):
            k(f"v_add_f32_dpp v{vA+j}, v{vA+j}, v{vA+j} row_ror:{sh} {ALL}")
    k(f"""
    v_permlane16_swap_b32 v{vA}, v{vA+1}
    s_mov_b32 vcc_lo, 0x000f000f
    v_permlane16_swap_b32 v{vA+2}, v{vA+3}
    v_add_f32 v{vA}, v{vA}, v{vA+1}
    v_add_f32 v{vA+2}, v{vA+2}, v{vA+3}
    s_mov_b32 vcc_hi, 0x000f000f
    v_permlane32_swap_b32 v{vA}, v{vA+2}
    v_add_f32 v{vA}, v{vA}, v{vA+2}
    s_mov_b64 exec, vcc
    {"" if TRIM else f"v_mul_f32 v{vA}, v{vA}, v{vZ}"}
    v_cvt_pk_bf16_f32 v{vA}, v{vA}, v{vA}
    buffer_store_short v{vA}, v{vOo}, {sr(SO,4)}, 0 offen
    """)
    diag_store(f"s{sI}")
    if MY:
        k(f"""
        s_waitcnt lgkmcnt(0)
        s_sub_u32 s{sT1}, s{sTS+6}, s{sTS}
        s_mul_i32 s{sT1}, s{sT1}, 10
        L_spiny:
        s_sleep 2
        s_memrealtime {sr(sTS+2,2)}
        s_waitcnt lgkmcnt(0)
        s_sub_u32 s{sT0}, s{sTS+2}, s{sTS}
        s_cmp_lt_u32 s{sT0}, s{sT1}
        s_cbranch_scc1 L_spiny
        """)
    if MX:
        k(f"""
        s_mov_b64 exec, -1
        v_mov_b32 v{vX}, {POP}
        ds_read_b32 v{vX}, v{vX} offset:80
        s_waitcnt lgkmcnt(0)
        v_readfirstlane_b32 s{sT1}, v{vX}
        s_mul_i32 s{sT1}, s{sT1}, 25
        s_add_u32 s{sT1}, s{sT1}, 3000
        s_and_b32 s{sT0}, s2, 0xf8
        s_cmp_eq_u32 s{sT0}, 0x40
        s_cbranch_scc0 L_end
        L_spinx:
        s_sleep 2
        s_memrealtime {sr(sTS+2,2)}
        s_waitcnt lgkmcnt(0)
        s_sub_u32 s{sT0}, s{sTS+2}, s{sTS}
        s_cmp_lt_u32 s{sT0}, s{sT1}
        s_cbranch_scc1 L_spinx
        """)
    if MUL:
        k(f"""
        {f"s_cmp_eq_u32 s{sH}, {MULH}" if MULH >= 0 else ""}
        {"s_cbranch_scc0 L_end" if MULH >= 0 else ""}
        s_waitcnt vmcnt(0)
        s_memrealtime {sr(sTS+2,2)}
        s_waitcnt lgkmcnt(0)
        s_sub_u32 s{sT1}, s{sTS+2}, s{sTS}
        s_mul_i32 s{sT1}, s{sT1}, {MUL}
        L_spinm:
        s_sleep 2
        s_memrealtime {sr(sTS+2,2)}
        s_waitcnt lgkmcnt(0)
        s_sub_u32 s{sT0}, s{sTS+2}, s{sTS}
        s_cmp_lt_u32 s{sT0}, s{sT1}
        s_cbranch_scc1 L_spinm
        """)
    k("""
    L_end:
    s_endpgm
    """)
    for n, back in ((1, "L_m3"), (2, "L_o1")):
        cold(f"""
        L_chk{n}:                                    ; many looks without success: give up early on a short context
        s_cmp_ge_u32 s{sI}, {LIMIT}
        s_cbranch_scc1 L_fb
        s_load_dword s{sT0}, {sr(sCTX,2)}, 0
        s_mov_b32 s{sLim}, {LIMIT}
        s_waitcnt lgkmcnt(0)
        s_sub_u32 s{sT0}, s{sT0}, 1
        s_cmp_lt_u32 s{sT0}, 8192
        s_cbranch_scc0 {back}
        {"s_branch L_fb" if n == 1 else ""}
        """)
    cold(f"""
    L_fb:
    s_load_dword s{sCtx}, {sr(sCTX,2)}, 0
    s_waitcnt vmcnt(0) lgkmcnt(0)
    """)
    ctxcalc(cold)
    cold(f"""
    s_mov_b32 s{sE}, 0
    s_mov_b32 s{sL0}, 0
    L_fbfill:
    """)
    srd(cold, SB, sBT, 16384)
    cold(f"""
    v_add_u32 v{vFp}, s{sE}, v{vLane}
    v_lshlrev_b32 v{vFb}, 2, v{vFp}
    buffer_load_dword v{vFb}, v{vFb}, {sr(SB,4)}, 0 offen
    s_lshl_b32 s{sIdx}, s{sE}, 2
    s_waitcnt vmcnt(0)
    """)
    entry(cold, vFp, vFb, vTmp)
    cold(f"""
    s_bitset1_b32 s{sFb}, 31
    v_lshlrev_b32 v{vFp}, 2, v{vLane}
    v_writelane_b32 v{vFb}, s{sFb}, 63
    v_mov_b32 v{vPa}, {POP}
    v_mov_b32 v{vFour}, 4
    ds_write_b32 v{vFp}, v{vFb}
    ds_write_b32 v{vPa}, v{vFour}
    {"" if ORD else f"s_load_dword s{sBt0}, {sr(sBT,2)}, s{sIdx}"}
    s_branch L_setup
    L_fbnext:
    s_waitcnt vmcnt(0)
    s_add_u32 s{sE}, s{sE}, 63
    s_cmp_lt_u32 s{sE}, s{sN}
    s_cbranch_scc1 L_fbfill
    """)
    lreduce(cold)
    cold(f"v_rcp_f32 v{vAl}, v{vL}")
    for i in range(4):
        cold(f"v_mov_b32_dpp v{vAb}, v{vAl} row_newbcast:{4*i} row_mask:{hex(1<<i)} bank_mask:0xf")
    for e in range(8):
        cold(f"v_mul_f32 v{vAcc+4*e}, v{vAb}, v{vAcc+4*e}")
    for j in range(4):
        cold(f"v_cvt_pk_bf16_f32 v{vD+j}, v{vAcc+8*j}, v{vAcc+8*j+4}")
    srd(cold, SO, sOUT, 8192)
    cold(f"""
    s_lshl_b32 s{sT0}, s{sSh}, 1
    s_lshl_b32 s{sT1}, s{sH}, 10
    v_lshlrev_b32 v{vTmp}, 4, v{vLane}
    s_lshl_b64 exec, 3, s{sT0}
    buffer_store_dwordx4 {vr(vD,4)}, v{vTmp}, {sr(SO,4)}, s{sT1} offen
    s_endpgm
    """)
    k.lines += cold.lines
    body = k.done()
    body = body.replace('NLINES', str(NLINES))

    out = HEADER + ("; nwaves=1280 diagoff=3145728 p0 w5\n" if DIAG else "") + f"; @launch grid=(256,1,1) block=(320,1,1) lds={LDS}\n" + DOC
    out += '.amdgcn_target "amdgcn-amd-amdhsa--gfx950"\n.text\n'
    out += f".globl {NAME}_kernel\n.p2align 8\n.type {NAME}_kernel,@function\n{NAME}_kernel:\n"
    out += body
    out += f""".section .rodata,"a"
.p2align 6
.amdhsa_kernel {NAME}_kernel
  .amdhsa_next_free_vgpr {NV}
  .amdhsa_next_free_sgpr {NS}
  .amdhsa_accum_offset {NV}
  .amdhsa_group_segment_fixed_size 0
  .amdhsa_kernarg_size 64
  .amdhsa_user_sgpr_count 2
  .amdhsa_user_sgpr_kernarg_segment_ptr 1
  .amdhsa_system_sgpr_workgroup_id_x 1
.end_amdhsa_kernel
"""
    return out


if __name__ == "__main__":
    kw = {}
    for a in sys.argv[2:]:
        key, val = a.split("=")
        kw[key] = int(val, 0)
    open(sys.argv[1], "w").write(gen(**kw))
```

```python
import sys
import struct
from asmlib import K, vr, sr

NAME = "standalone__paged_block_table_kv_pagedattention__decode"
KV_BYTES = 4100 * 32768
HEADER = open("cdna_kernels/" + NAME + ".s.ref").read().split("; Override")[0]
ML_OFF = 0x40000
WS_USED = 0x48000
END = 0x80000000
POP = 1024
CTR = POP + 64
MLW = POP + 128
ACC = 2048
LDS = ACC + 8192

DOC = """;
"""


def f32(x):
    return "0x%08x" % struct.unpack("<I", struct.pack("<f", x))[0]


def gen(GR=1, LIMIT=2048, LIM0=64, CHK=24, LEADP=12, SLOWH=0x22, FASTL=1, FORCEFB=0, FORCESC=0, MUL=0, SCR=0, XD=0, FO=0, GSUB=16, SVML=1, PRE=0, NOSL=0, GSL=1, HOOK=6, TRIM=1, WM=0, WMS=-1, PM=0xff, SKIP=0, ROT=0, PIPE=0, DIAG=0, EARLYM=0, LAZY=1, XW=0, XWF=0, MX=0, ORD=1, PFC=0, TIGHT=1, NLINES=30, MY=0, PFN=32, MULH=-1, EMU=0, LASTC=0):
    global WS_USED
    if XD or DIAG:
        WS_USED = 0x800000
    D = 6
    k = K()
    cold = K()
    warm = K()
    sQ, sKp, sVp, sBT, sCTX, sOUT, sDBG, sWS = 4, 6, 8, 10, 12, 14, 16, 18
    SK, SV, SB, SQ, SW, SD, SO = 20, 24, 28, 32, 36, 60, 64
    sH, sL0, sWv, sJ, sCtx, sN, sI, sCnt, sOff, sC, sPlo, sPhi, sT0, sT1, sNeg, sIdx = range(40, 56)
    sBt0, sRec, sMl, sNxt = 56, 57, 58, 59
    sE, sFb, sR, sS, sSh, sBad, sHq, sOct, sLim, sPol = range(68, 78)
    sMA, sMB, sXc, sFast, sSp, sEnd = 78, 80, 82, 83, 84, 85
    sLast = sFast
    sTh = sMA
    if WMS < 0:
        WMS = WM
    sMk = 86
    sTS = 88
    NS = 96 if MUL or DIAG or MX or MY else 88
    vLane, vKo0, vKo1, vVo0, vVo1, vLi, vG4, vM, vL, vMx, vTmp, vAl, vAb = range(1, 14)
    vP, vQ, vT, vD, vB, vAcc, vKA, vVA = 14, 16, 20, 24, 40, 56, 88, 104
    vRo, vMo_w, vEn, vPa, vNx, vFour = 120, 121, 122, 124, 125, 126
    vFp, vFb = vEn, vEn + 1
    vPre, vPc, vF4, vAd = 128, 152, 154, 162
    vSl, vMw = 169, 170
    NV = 172
    ALL = "row_mask:0xf bank_mask:0xf"

    def srd(kk, S, ptr, size):
        kk(f"""
        s_mov_b64 {sr(S,2)}, {sr(ptr,2)}
        s_mov_b32 s{S+2}, {size}
        s_mov_b32 s{S+3}, 0x20000
        """)

    def diag_store(flag):
        if not DIAG:
            return
        k(f"""
        s_waitcnt vmcnt(0)
        s_memrealtime {sr(sTS+6,2)}
        s_getreg_b32 s{sT1}, hwreg(HW_REG_XCC_ID)
        s_waitcnt lgkmcnt(0)
        s_mov_b64 exec, -1
        v_mov_b32 v24, s{sTS}
        v_mov_b32 v25, s{sTS+2}
        v_mov_b32 v26, s{sTS+4}
        v_mov_b32 v27, s{sTS+6}
        v_mov_b32 v28, s{sT1}
        v_mov_b32 v29, s{sWv}
        v_mov_b32 v30, 0
        v_mov_b32 v31, {flag}
        s_mul_i32 s{sT0}, s2, 5
        s_add_u32 s{sT0}, s{sT0}, s{sWv}
        s_lshl_b32 s{sT0}, s{sT0}, 5
        s_add_u32 s{sT0}, s{sT0}, 0x300000
        v_mov_b32 v11, 0
        s_mov_b64 exec, 1
        buffer_store_dwordx4 v[24:27], v11, {sr(SW,4)}, s{sT0} offen
        buffer_store_dwordx4 v[28:31], v11, {sr(SW,4)}, s{sT0} offen offset:16
        """)

    def st(n):
        return f"s_memrealtime {sr(sTS+2*n,2)}" if DIAG else ""

    seq = [("K", i) for i in range(4)] + [("V", i) for i in range(4)]

    def ld(t, so):
        which, i = seq[t % 8]
        vo = (vKo0, vKo1) if which == "K" else (vVo0, vVo1)
        S = SK if which == "K" else SV
        base = vKA if which == "K" else vVA
        off = " offset:2048" if i & 1 else ""
        k(f"buffer_load_dwordx4 {vr(base+4*i,4)}, v{vo[i>>1]}, {sr(S,4)}, s{so} offen{off} nt")

    k(f"""
    s_load_dwordx16 s[4:19], s[0:1], 0
    s_cmp_ge_u32 s2, 256
    s_cbranch_scc1 L_end
    {f"s_memrealtime {sr(sTS,2)}" if MUL or DIAG or MX or MY else ""}
    {"s_lshr_b32 s3, s2, 5" if SCR == 1 else ""}
    {"s_lshl3_add_u32 s2, s2, s3" if SCR == 1 else ""}
    {"s_and_b32 s2, s2, 255" if SCR == 1 else ""}
    {"s_and_b32 s3, s2, 0xf8" if SCR == 2 else ""}
    {"s_cmp_eq_u32 s3, 0x50" if SCR == 2 else ""}
    {"s_cselect_b32 s3, 1, 0" if SCR == 2 else ""}
    {"s_xor_b32 s2, s2, s3" if SCR == 2 else ""}
    v_lshrrev_b32 v{vTmp}, 6, v0
    v_and_b32 v{vLane}, 63, v0
    v_readfirstlane_b32 s{sWv}, v{vTmp}
    s_lshr_b32 s{sSh}, s2, 3
    {f"s_add_u32 s2, s2, {ROT}" if ROT else ""}
    s_and_b32 s{sH}, s2, 7
    s_cmp_ge_u32 s{sWv}, 4
    {"s_cbranch_scc0 L_worker" if PFC == 1 else "s_cbranch_scc1 L_service"}
    """)
    if PFC == 1:
        k(f"""
        {f"s_cmp_ge_u32 s{sSh}, {PFN}" if PFN < 32 else ""}
        {"s_cbranch_scc1 L_service" if PFN < 32 else ""}
        s_getpc_b64 s[20:21]
        v_min_u32 v2, NLINES, v{vLane}
        v_lshlrev_b32 v2, 7, v2
        global_load_dword v127, v2, s[20:21]
        s_branch L_service
        L_worker:
        """)
    k(f"""
    ; ---------------------------------------------------------------- worker
    s_lshl2_add_u32 s{sJ}, s{sSh}, s{sWv}
    s_lshl_b32 s{sIdx}, s{sJ}, 2
    """)
    first = f"""
    s_waitcnt lgkmcnt(0)
    {f"s_memrealtime {sr(sTS+2,2)}" if MX == 1 else ""}
    s_load_dword s{sBt0}, {sr(sBT,2)}, s{sIdx}
    """
    if ORD == 0:
        k(first)
    k(f"""
    s_mov_b64 {sr(sE,2)}, 0
    s_lshl_b32 s{sL0}, s{sWv}, 2
    L_setup:
    v_lshrrev_b32 v{vG4}, 4, v{vLane}
    v_lshlrev_b32 v{vG4}, 2, v{vG4}            ; 4g
    v_and_b32 v{vTmp}, 3, v{vLane}
    v_add_lshl_u32 v{vTmp}, v{vTmp}, v{vG4}, 4
    v_bfe_u32 v{vMx}, v{vLane}, 2, 2
    s_lshl_b32 s{sT1}, s{sH}, 8
    v_lshl_add_u32 v{vKo0}, v{vMx}, 13, v{vTmp}
    v_add_u32 v{vKo0}, s{sT1}, v{vKo0}
    v_add_u32 v{vKo1}, 0x1000, v{vKo0}
    v_lshl_add_u32 v{vAl}, v{vMx}, 8, v{vTmp}
    v_and_b32 v{vTmp}, 15, v{vLane}
    v_lshlrev_b32 v{vTmp}, 4, v{vTmp}
    v_lshl_add_u32 v{vVo0}, v{vG4}, 11, v{vTmp}
    v_add_u32 v{vVo0}, s{sT1}, v{vVo0}
    {"" if TIGHT else f"v_add_u32 v{vVo1}, 0x1000, v{vVo0}"}
    {f"v_lshl_add_u32 v{vAl}, s{sH}, 10, v{vAl}" if TIGHT else f"s_lshl_b32 s{sT0}, s{sH}, 10"}
    {f"s_mov_b32 s{SK+2}, {KV_BYTES}" if TIGHT else ""}
    {f"s_mov_b32 s{SK+3}, 0x20000" if TIGHT else ""}
    {f"s_mov_b64 {sr(SV+2,2)}, {sr(SK+2,2)}" if TIGHT else ""}
    """)
    if ORD == 1:
        k(first)
    if TIGHT:
        k(f"""
        global_load_dwordx4 {vr(vQ,4)}, v{vAl}, {sr(sQ,2)}
        s_mov_b64 {sr(SK,2)}, {sr(sKp,2)}
        s_mov_b64 {sr(SV,2)}, {sr(sVp,2)}
        """)
    else:
        srd(k, SQ, sQ, 8192)
        k(f"buffer_load_dwordx4 {vr(vQ,4)}, v{vAl}, {sr(SQ,4)}, s{sT0} offen")
        srd(k, SK, sKp, KV_BYTES)
        srd(k, SV, sVp, KV_BYTES)
    k(f"""
    {f"s_memrealtime {sr(sTS+2,2)}" if MX == 5 else ""}
    s_waitcnt lgkmcnt(0)
    {f"s_memrealtime {sr(sTS+2,2)}" if MX == 6 else ""}
    s_lshl_b32 s{sOff}, s{sBt0}, 15
    """)
    for t in range(D):
        ld(t, sOff)
    if MX == 2:
        k(f"s_memrealtime {sr(sTS+2,2)}")
    if TIGHT:
        k(f"v_add_u32 v{vVo1}, 0x1000, v{vVo0}")
    k(f"v_mov_b32 v{vLi}, s{sL0}")
    srd(k, SW, sWS, WS_USED)
    k(f"""
    v_lshlrev_b32 v{vRo}, 4, v{vLane}
    s_cmp_lg_u32 s{sE}, 0
    s_cbranch_scc1 L_loop
    s_mov_b32 s{sC}, {f32(128 ** -0.5 * 1.4426950408889634)}   ; D^-0.5 * log2(e)
    s_mov_b32 s{sPlo}, 0x05040100
    s_mov_b32 s{sPhi}, 0x07060302
    s_mov_b32 s{sNeg}, {f32(-1e9 * 1.4426950408889634)}
    {f"s_lshr_b32 s{sSp}, {hex(SLOWH)}, s{sH}" if SKIP or XWF else ""}
    v_mov_b32 v{vM}, {f32(-3.0e38)}
    v_mov_b32 v{vL}, 0
    v_mov_b32 v{vPa}, {POP}
    v_mov_b32 v{vFour}, 4
    s_lshr_b32 s{sEnd}, s{sFb}, 31
    s_mov_b32 s{sLast}, 0
    s_mov_b32 s{sMB}, 0x11111111
    s_mov_b32 s{sMB+1}, s{sMB}
    s_bitset1_b32 s{sEnd}, 31
    """)
    for i in range(0, 32, 4 if TIGHT else 1):
        k(f"v_mov_b32 v{vAcc+i}, 0" + ("                          ; only row 0 of each accumulator is ever read" if i == 0 else ""))
    k(f"""
    s_cmp_lg_u32 s{sFb}, 0
    s_cbranch_scc1 L_loop
    s_barrier
    s_lshl_b32 s{sT0}, s{sWv}, 3
    v_lshl_add_u32 v{vMw}, v{vMx}, 5, s{sT0}
    v_lshl_add_u32 v{vAd}, v{vG4}, 3, s{sT0}
    v_xor_b32 v{vAd+1}, 8, v{vAd}
    v_xor_b32 v{vAd+2}, 16, v{vAd}
    v_xor_b32 v{vAd+3}, 24, v{vAd}
    s_lshl_b32 s{sT0}, s{sWv}, 11
    v_add_u32 v{vSl}, s{sT0}, v{vRo}
    v_xor_b32 v{vAd+4}, 0x800, v{vSl}
    v_xor_b32 v{vAd+5}, 0x1000, v{vSl}
    v_xor_b32 v{vAd+6}, 0x1800, v{vSl}
    s_lshl_b32 s{sRec}, s{sH}, 5
    s_add_u32 s{sRec}, s{sRec}, s{sSh}
    s_lshl_b32 s{sRec}, s{sRec}, 10            ; record (h*32+s)*1024
    """)
    if MX:
        k(f"""
        {"s_waitcnt vmcnt(5)" if MX == 3 else ""}
        {"s_waitcnt vmcnt(0)" if MX == 4 else ""}
        {f"s_memrealtime {sr(sTS+2,2)}" if MX in (3, 4) else ""}
        s_waitcnt lgkmcnt(0)
        s_sub_u32 s{sT0}, s{sTS+2}, s{sTS}
        v_mov_b32 v{vTmp}, s{sT0}
        s_mov_b64 exec, 1
        ds_add_u32 v{vPa}, v{vTmp} offset:80
        s_mov_b64 exec, -1
        """)
    k(f"""
    """)

    def qk(i):
        k(f"v_mfma_f32_16x16x32_bf16 {vr(vD+4*i,4)}, {vr(vKA+4*i,4)}, {vr(vQ,4)}, 0")

    def perm(e, half):
        j, hi = e >> 1, e & 1
        sel = sPhi if hi else sPlo
        k(f"v_perm_b32 v{vB+2*e+half}, v{vVA+8*half+4+j}, v{vVA+8*half+j}, s{sel}")

    def pv(e):
        k(f"v_mfma_f32_16x16x16_bf16 {vr(vAcc+4*e,4)}, {vr(vP,2)}, {vr(vB+2*e,2)}, {vr(vAcc+4*e,4)}")

    def lreduce(kk):
        kk(f"""
        v_mov_b32 v{vTmp}, v{vL}
        v_permlane32_swap_b32 v{vL}, v{vTmp}
        v_add_f32 v{vL}, v{vL}, v{vTmp}
        v_mov_b32 v{vTmp}, v{vL}
        v_permlane16_swap_b32 v{vL}, v{vTmp}
        v_add_f32 v{vL}, v{vL}, v{vTmp}
        """)

    def mlpub(d, mx, mo, tag):
        for w in range(4):
            k(f"v_sub_f32 v{d+2*w}, v{d+2*w}, v{mx}")
        for w in range(4):
            k(f"v_exp_f32 v{d+2*w}, v{d+2*w}")
        k(f"""
        v_xor_b32 v{d+8}, s{sR}, v{mx}
        v_mul_f32 v{d+9}, v{d}, v{d+1}
        v_fmac_f32 v{d+9}, v{d+2}, v{d+3}
        v_fmac_f32 v{d+9}, v{d+4}, v{d+5}
        v_fmac_f32 v{d+9}, v{d+6}, v{d+7}
        v_mov_b32 v{d+10}, s{sR}
        v_mov_b32 v{d+11}, s{sR}
        s_mov_b32 exec_lo, 0x1111
        s_mov_b32 exec_hi, 0
        s_cmp_lg_u32 s{sPol}, 0
        v_xor_b32 v{d+9}, s{sR}, v{d+9}
        s_cbranch_scc1 L_ml1{tag}
        buffer_store_dwordx4 {vr(d+8,4)}, v{mo}, {sr(SW,4)}, s{sMl} offen
        s_branch L_ml3{tag}
        L_ml1{tag}:
        buffer_store_dwordx4 {vr(d+8,4)}, v{mo}, {sr(SW,4)}, s{sMl} offen sc1
        L_ml3{tag}:
        s_mov_b64 exec, -1
        """)

    def mreads():
        k(f"""
        ds_read_b32 v{vPc}, v{vPa} offset:64
        ds_read_b32 v{vAl}, v{vPa} offset:72       ; salt
        """)
        for j in range(4):
            k(f"ds_read_b32 v{vF4+2*j}, v{vAd+j} offset:{MLW}")
        for j in range(3):
            k(f"ds_read_b128 {vr(vPre+8*j,4)}, v{vAd+4+j} offset:{ACC}")
            k(f"ds_read_b128 {vr(vPre+8*j+4,4)}, v{vAd+4+j} offset:{ACC+1024}")

    def mbase(fail):
        k(f"""
        s_waitcnt lgkmcnt({0 if DIAG else 6})
        v_readfirstlane_b32 s{sT0}, v{vPc}
        v_max3_f32 v{vMx}, v{vF4}, v{vF4+2}, v{vF4+4}
        v_max_f32 v{vMx}, v{vMx}, v{vF4+6}
        """)
        for w in (1, 2, 3, 0):
            k(f"v_sub_f32 v{vF4+2*w}, v{vF4+2*w}, v{vMx}")
        k(f"""
        s_cmp_eq_u32 s{sT0}, 12
        s_cbranch_scc0 {fail}
        """)
        for w in (1, 2, 3, 0):
            k(f"v_exp_f32 v{vF4+2*w}, v{vF4+2*w}")
        for j in range(3):
            k(f"s_waitcnt lgkmcnt({4-2*j})")
            for e in range(0, 8, 2):
                if j == 0:
                    k(f"v_pk_mul_f32 {vr(vD+e,2)}, {vr(vF4+2,2)}, {vr(vPre+e,2)} op_sel_hi:[0,1]")
                else:
                    k(f"v_pk_fma_f32 {vr(vD+e,2)}, {vr(vF4+2*j+2,2)}, {vr(vPre+8*j+e,2)}, {vr(vD+e,2)} op_sel_hi:[0,1,1]")

    def hook():
        k(f"""
        s_cmp_eq_u32 s{sLast}, 12
        s_cbranch_scc0 L_nopre
        """)
        mreads()
        k("L_nopre:")

    def issue(p):
        if (XW >> p) & 1:
            k(f"s_waitcnt vmcnt({D-2})")
        if (XWF >> p) & 1:
            k(f"""
            s_bitcmp1_b32 s{sSp}, 0
            s_cbranch_scc1 L_xf{p}
            s_waitcnt vmcnt({D-2})
            L_xf{p}:
            """)
        if (WM or WMS) and (PM >> p) & 1:
            k(f"""
            s_bitcmp1_b32 s{sTh}, 0
            s_cbranch_scc0 L_th{p}
            s_waitcnt vmcnt({D-2})
            L_th{p}:
            """)
        ld(p + D, sOff if p + D < 8 else sNxt)

    def wait(p):
        if p in (4, 6) and SKIP:
            k(f"""
            s_bitcmp1_b32 s{sSp}, 0
            s_cbranch_scc1 L_sk{p}
            s_waitcnt vmcnt({D-1})
            L_sk{p}:
            """)
        else:
            k(f"s_waitcnt vmcnt({D-1})")

    k(f"""
    L_loop:
    s_mov_b64 exec, 1
    ds_add_rtn_u32 v{vNx}, v{vPa}, v{vFour}
    s_mov_b64 exec, -1
    """)
    for i in range(4):
        if i == 2:
            k(f"""
            s_waitcnt lgkmcnt(0)
            L_get:
            s_mov_b64 exec, 1
            ds_read_b32 v{vEn}, v{vLi}
            ds_read_b32 v{vEn+1}, v{vNx}
            s_mov_b64 exec, -1
            """)
        wait(i)
        qk(i)
        if i == 2:
            k(f"""
            s_waitcnt lgkmcnt(0)
            v_readfirstlane_b32 s{sT0}, v{vEn+1}
            v_readfirstlane_b32 s{sCnt}, v{vEn}
            s_max_u32 s{sT1}, s{sT0}, s{sCnt}
            s_cmp_eq_u32 s{sT1}, -1
            s_cbranch_scc1 L_retry
            s_and_b32 s{sNxt}, s{sT0}, 0xffff8000
            s_and_b32 s{sCnt}, s{sCnt}, 31
            s_and_b32 s{sPol}, s{sT0}, 32
            {f"s_cmp_eq_u32 s{sNxt}, s{sEnd}" if LASTC else ""}
            v_mov_b32 v{vLi}, v{vNx}
            {"s_cbranch_scc1 L_last" if LASTC else ""}
            """)
        issue(i)
    for j in (1, 2, 3):
        for i in range(4):
            src1 = vD + 4 * i if j == 1 else vT + i
            k(f"v_add_f32_dpp v{vT+i}, v{vD+4*i+j}, v{src1} quad_perm:[{j},{j},{j},{j}] {ALL}")
    for i in range(4):
        k(f"v_mul_f32 v{vT+i}, s{sC}, v{vT+i}")
    k(f"""
    s_cmp_lt_u32 s{sCnt}, 16
    s_cbranch_scc1 L_mask
    L_nomask:
    """)
    if LAZY:
        k(f"""
        v_max3_f32 v{vMx}, v{vT}, v{vT+1}, v{vT+2}
        v_max_f32 v{vMx}, v{vMx}, v{vT+3}
        v_cmp_gt_f32 vcc, v{vMx}, v{vM}
        s_and_b64 vcc, vcc, {sr(sMB,2)}
        s_cbranch_scc1 L_newmax
        L_maxok:
        """)
        warm(f"""
        L_newmax:
        v_max_f32 v{vMx}, v{vMx}, v{vM}
        v_mov_b32 v{vTmp}, v{vMx}
        v_permlane32_swap_b32 v{vMx}, v{vTmp}
        v_max_f32 v{vMx}, v{vMx}, v{vTmp}
        v_mov_b32 v{vTmp}, v{vMx}
        v_permlane16_swap_b32 v{vMx}, v{vTmp}
        v_max_f32 v{vMx}, v{vMx}, v{vTmp}
        v_sub_f32 v{vAl}, v{vM}, v{vMx}
        v_exp_f32 v{vAl}, v{vAl}
        v_mov_b32 v{vM}, v{vMx}
        v_mul_f32 v{vL}, v{vL}, v{vAl}
        """)
        for i in range(4):
            warm(f"v_mov_b32_dpp v{vAb}, v{vAl} row_newbcast:{4*i} row_mask:{hex(1<<i)} bank_mask:0xf")
        for e in range(8):
            warm(f"v_mul_f32 v{vAcc+4*e}, v{vAb}, v{vAcc+4*e}")
        if LASTC:
            warm(f"""
            s_cmp_eq_u32 s{sNxt}, s{sEnd}
            s_cbranch_scc1 L_maxok2
            """)
        warm("s_branch L_maxok")
    else:
        k(f"""
    v_max3_f32 v{vMx}, v{vT}, v{vT+1}, v{vT+2}
    v_max3_f32 v{vMx}, v{vMx}, v{vT+3}, v{vM}
    v_mov_b32 v{vTmp}, v{vMx}
    v_permlane32_swap_b32 v{vMx}, v{vTmp}
    v_max_f32 v{vMx}, v{vMx}, v{vTmp}
    v_mov_b32 v{vTmp}, v{vMx}
    v_permlane16_swap_b32 v{vMx}, v{vTmp}
    v_max_f32 v{vMx}, v{vMx}, v{vTmp}
    """)
    cold(f"""
    L_mask:                                    ; tokens at or past context_len
    v_mov_b32 v{vTmp}, s{sNeg}
    """)
    for i in range(4):
        cold(f"""
        s_sub_i32 s{sT0}, s{sCnt}, {i}
        v_cmp_gt_i32 vcc, s{sT0}, v{vG4}
        v_cndmask_b32 v{vT+i}, v{vTmp}, v{vT+i}, vcc
        """)
    cold("s_branch L_nomask")
    wait(4)
    issue(4)
    if LAZY:
        k(f"""
        v_sub_f32 v{vT}, v{vT}, v{vM}
        v_sub_f32 v{vT+1}, v{vT+1}, v{vM}
        v_exp_f32 v{vT}, v{vT}
        v_sub_f32 v{vT+2}, v{vT+2}, v{vM}
        v_exp_f32 v{vT+1}, v{vT+1}
        v_sub_f32 v{vT+3}, v{vT+3}, v{vM}
        v_exp_f32 v{vT+2}, v{vT+2}
        v_add_f32 v{vL}, v{vL}, v{vT}
        v_exp_f32 v{vT+3}, v{vT+3}
        v_add_f32 v{vTmp}, v{vT+1}, v{vT+2}
        v_cvt_pk_bf16_f32 v{vP}, v{vT}, v{vT+1}
        v_add_f32 v{vL}, v{vL}, v{vT+3}
        {"" if LASTC else f"s_cmp_eq_u32 s{sNxt}, s{sEnd}"}
        v_cvt_pk_bf16_f32 v{vP+1}, v{vT+2}, v{vT+3}
        v_add_f32 v{vL}, v{vL}, v{vTmp}
        {"" if LASTC else "s_cbranch_scc1 L_none                      ; last page: (m, l) are final before its V rows land"}
        {"" if LASTC else "L_mld:"}
        """)
    elif TRIM:
        k(f"""
        v_sub_f32 v{vAl}, v{vM}, v{vMx}
        v_sub_f32 v{vT}, v{vT}, v{vMx}
        v_exp_f32 v{vAl}, v{vAl}
        v_sub_f32 v{vT+1}, v{vT+1}, v{vMx}
        v_exp_f32 v{vT}, v{vT}
        v_sub_f32 v{vT+2}, v{vT+2}, v{vMx}
        v_exp_f32 v{vT+1}, v{vT+1}
        v_sub_f32 v{vT+3}, v{vT+3}, v{vMx}
        v_exp_f32 v{vT+2}, v{vT+2}
        v_fma_f32 v{vL}, v{vL}, v{vAl}, v{vT}
        v_exp_f32 v{vT+3}, v{vT+3}
        v_add_f32 v{vTmp}, v{vT+1}, v{vT+2}
        v_mov_b32 v{vM}, v{vMx}
        v_add_f32 v{vL}, v{vL}, v{vT+3}
        s_cmp_eq_u32 s{sNxt}, s{sEnd}
        v_add_f32 v{vL}, v{vL}, v{vTmp}
        s_cbranch_scc1 L_none                      ; last page: (m, l) are final before its V rows land
        L_mld:
        v_mov_b32_dpp v{vAb}, v{vAl} row_newbcast:0 row_mask:0x1 bank_mask:0xf
        v_cvt_pk_bf16_f32 v{vP}, v{vT}, v{vT+1}
        v_cvt_pk_bf16_f32 v{vP+1}, v{vT+2}, v{vT+3}
        v_mov_b32_dpp v{vAb}, v{vAl} row_newbcast:4 row_mask:0x2 bank_mask:0xf
        v_mov_b32_dpp v{vTmp}, v{vAl} row_newbcast:8 row_mask:0x4 bank_mask:0xf
        s_nop 0
        v_mov_b32_dpp v{vAb}, v{vAl} row_newbcast:12 row_mask:0x8 bank_mask:0xf
        v_mov_b32_dpp v{vAb}, v{vAl} row_newbcast:8 row_mask:0x4 bank_mask:0xf
        """.replace(f"        v_mov_b32_dpp v{vTmp}, v{vAl} row_newbcast:8 row_mask:0x4 bank_mask:0xf\n        s_nop 0\n", ""))
        for e in range(8):
            k(f"v_mul_f32 v{vAcc+4*e}, v{vAb}, v{vAcc+4*e}")
    else:
        k(f"""
        v_sub_f32 v{vAl}, v{vM}, v{vMx}
        v_mov_b32 v{vM}, v{vMx}
        v_exp_f32 v{vAl}, v{vAl}
        """)
        for i in range(4):
            k(f"v_sub_f32 v{vT+i}, v{vT+i}, v{vMx}")
        for i in range(4):
            k(f"v_exp_f32 v{vT+i}, v{vT+i}")
            k(f"v_mov_b32_dpp v{vAb}, v{vAl} row_newbcast:{4*i} row_mask:{hex(1<<i)} bank_mask:0xf")
            if i == 1:
                k(f"v_fma_f32 v{vL}, v{vL}, v{vAl}, v{vT}")
            if i == 2:
                k(f"v_cvt_pk_bf16_f32 v{vP}, v{vT}, v{vT+1}")
        k(f"""
        v_add_f32 v{vTmp}, v{vT+1}, v{vT+2}
        v_cvt_pk_bf16_f32 v{vP+1}, v{vT+2}, v{vT+3}
        v_add_f32 v{vL}, v{vL}, v{vT+3}
        v_add_f32 v{vL}, v{vL}, v{vTmp}
        """)
        for e in range(8):
            k(f"v_mul_f32 v{vAcc+4*e}, v{vAb}, v{vAcc+4*e}")
        k(f"""
        s_cmp_eq_u32 s{sNxt}, {hex(END)}
        s_cbranch_scc1 L_ml
        L_mld:
        """)
    wait(5)
    issue(5)
    for e in range(8):
        perm(e, 0)
    if LASTC:
        wait(6)
        issue(6)
    elif EARLYM:
        k(f"""
        s_cmp_eq_u32 s{sNxt}, s{sEnd}
        s_cbranch_scc1 L_lastp
        """)
        wait(6)
        k("L_lastd:")
        issue(6)
    else:
        k(f"""
        s_cmp_eq_u32 s{sNxt}, s{sEnd}
        s_cbranch_scc0 L_nolast
        s_waitcnt lgkmcnt(0)
        v_readfirstlane_b32 s{sLast}, v{vNx}
        L_nolast:
        """)
        wait(6)
        issue(6)
        if HOOK == 6:
            hook()
    wait(7)
    if DIAG == 2:
        k(st(1))
    if HOOK == 7:
        hook()
    issue(7)
    perm(0, 1)
    perm(1, 1)
    for e in range(8):
        if e + 2 < 8:
            perm(e + 2, 1)
        pv(e)
    k(f"""
    s_mov_b32 s{sOff}, s{sNxt}
    s_cmp_eq_u32 s{sNxt}, {hex(END)}
    s_cbranch_scc0 L_loop
    {"s_branch L_fbnext                          ; only the fallback leaves the loop here" if LASTC else f"s_cmp_lg_u32 s{sFb}, 0"}
    {"" if LASTC else "s_cbranch_scc1 L_fbnext"}
    """)
    if LASTC:
        k(f"""
        L_last:                                    ; a worker's last page: nothing left to fetch
        """)
        for j in (1, 2, 3):
            for i in range(3):
                src1 = vD + 4 * i if j == 1 else vT + i
                k(f"v_add_f32_dpp v{vT+i}, v{vD+4*i+j}, v{src1} quad_perm:[{j},{j},{j},{j}] {ALL}")
        k("s_waitcnt vmcnt(4)")
        qk(3)
        for i in range(3):
            k(f"v_mul_f32 v{vT+i}, s{sC}, v{vT+i}")
        k(f"s_cmp_lt_u32 s{sCnt}, 16")
        for j in (1, 2, 3):
            src1 = vD + 12 if j == 1 else vT + 3
            k(f"v_add_f32_dpp v{vT+3}, v{vD+12+j}, v{src1} quad_perm:[{j},{j},{j},{j}] {ALL}")
        k(f"""
        v_mul_f32 v{vT+3}, s{sC}, v{vT+3}
        s_cbranch_scc1 L_mask2
        L_nomask2:
        v_max3_f32 v{vMx}, v{vT}, v{vT+1}, v{vT+2}
        v_max_f32 v{vMx}, v{vMx}, v{vT+3}
        v_cmp_gt_f32 vcc, v{vMx}, v{vM}
        s_and_b64 vcc, vcc, {sr(sMB,2)}
        s_cbranch_scc1 L_newmax
        L_maxok2:
        v_sub_f32 v{vT}, v{vT}, v{vM}
        v_sub_f32 v{vT+1}, v{vT+1}, v{vM}
        v_exp_f32 v{vT}, v{vT}
        v_sub_f32 v{vT+2}, v{vT+2}, v{vM}
        v_exp_f32 v{vT+1}, v{vT+1}
        v_sub_f32 v{vT+3}, v{vT+3}, v{vM}
        v_exp_f32 v{vT+2}, v{vT+2}
        v_add_f32 v{vL}, v{vL}, v{vT}
        v_exp_f32 v{vT+3}, v{vT+3}
        v_add_f32 v{vTmp}, v{vT+1}, v{vT+2}
        v_add_f32 v{vL}, v{vL}, v{vTmp}
        v_add_f32 v{vL}, v{vL}, v{vT+3}
        v_mov_b32 v{vTmp}, v{vL}
        v_cvt_pk_bf16_f32 v{vP}, v{vT}, v{vT+1}
        v_cvt_pk_bf16_f32 v{vP+1}, v{vT+2}, v{vT+3}
        v_permlane32_swap_b32 v{vL}, v{vTmp}
        v_add_f32 v{vL}, v{vL}, v{vTmp}
        v_mov_b32 v{vTmp}, v{vL}
        v_permlane16_swap_b32 v{vL}, v{vTmp}
        v_add_f32 v{vL}, v{vL}, v{vTmp}
        s_mov_b32 exec_lo, 0x1111
        s_mov_b32 exec_hi, 0
        ds_write_b64 v{vMw}, {vr(vM,2)} offset:{MLW}
        s_mov_b64 exec, 1
        ds_add_rtn_u32 v{vNx}, v{vPa}, v{vFour} offset:68
        s_mov_b64 exec, -1
        s_waitcnt vmcnt(2)
        """)
        cold(f"""
        L_mask2:
        v_mov_b32 v{vTmp}, s{sNeg}
        """)
        for i in range(4):
            cold(f"""
            s_sub_i32 s{sT0}, s{sCnt}, {i}
            v_cmp_gt_i32 vcc, s{sT0}, v{vG4}
            v_cndmask_b32 v{vT+i}, v{vTmp}, v{vT+i}, vcc
            """)
        cold("s_branch L_nomask2")
        for e in range(8):
            perm(e, 0)
        k(f"""
        s_waitcnt lgkmcnt(0)
        v_readfirstlane_b32 s{sLast}, v{vNx}
        """)
        hook()
        k("s_waitcnt vmcnt(0)")
        perm(0, 1)
        perm(1, 1)
        for e in range(8):
            if e + 2 < 8:
                perm(e + 2, 1)
            pv(e)
    vS0 = vD
    k(f"""
    {f"s_cmp_eq_u32 s{sLast}, 13" if EARLYM else ""}
    {"s_cbranch_scc1 L_own" if EARLYM else ""}
    s_cmp_eq_u32 s{sLast}, 12
    s_cbranch_scc0 L_give
    L_mrg:                                     ; lane (c, g): O[query g][8c .. 8c+7]
    """)
    mbase("L_again")
    k(f"""
    {"L_own:" if EARLYM else ""}
    s_cmp_lg_u32 s{sPol}, 0
    """)
    for e in range(8):
        k(f"v_fmac_f32 v{vS0+e}, v{vF4}, v{vAcc+4*e}")
    for j in range(4):
        k(f"v_cvt_pk_bf16_f32 v{vD+j}, v{vS0+2*j}, v{vS0+2*j+1}")
        k(f"v_xor_b32 v{vD+j}, v{vAl}, v{vD+j}")
    k(f"""
    {st(2)}
    s_cbranch_scc1 L_dn1
    buffer_store_dwordx4 {vr(vD,4)}, v{vRo}, {sr(SW,4)}, s{sRec} offen
    """)
    diag_store(1)
    k(f"""
    s_endpgm
    L_dn1:
    buffer_store_dwordx4 {vr(vD,4)}, v{vRo}, {sr(SW,4)}, s{sRec} offen sc1
    s_endpgm
    L_again:
    s_waitcnt lgkmcnt(0)
    """)
    mreads()
    k(f"""
    s_branch L_mrg
    L_give:                                    ; hand the sums to the merging worker
    """)
    for e in range(8):
        k(f"v_mov_b32 v{vS0+e}, v{vAcc+4*e}")
    k(f"""
    ds_write_b128 v{vSl}, {vr(vS0,4)} offset:{ACC}
    ds_write_b128 v{vSl}, {vr(vS0+4,4)} offset:{ACC+1024}
    s_mov_b64 exec, 1
    ds_add_u32 v{vPa}, v{vFour} offset:64
    {st(2)}
    s_waitcnt lgkmcnt(0)
    """)
    diag_store(0)
    k(f"""
    s_endpgm
    """)
    if EARLYM:
        k(f"""
        L_lastp:                                   ; last page, V rows 2 and 3 still to come
        s_waitcnt lgkmcnt(0)
        v_readfirstlane_b32 s{sLast}, v{vNx}
        s_cmp_eq_u32 s{sLast}, 12
        s_cbranch_scc0 L_lastd
        """)
        mreads()
        mbase("L_lastr")
        k(f"""
        s_mov_b32 s{sLast}, 13
        s_branch L_lastd
        L_lastr:
        s_waitcnt vmcnt({D-1}) lgkmcnt(0)
        """)
        mreads()
        k("s_branch L_lastd")
    k(f"""
    L_retry:
    s_cmp_eq_u32 s{sCnt}, {hex(END)}
    s_cbranch_scc0 L_get
    s_mov_b32 s{sPol}, 32
    L_none:
    {st(1) if DIAG == 1 else ""}
    """)
    lreduce(k)
    k(f"""
    s_mov_b32 exec_lo, 0x1111
    s_mov_b32 exec_hi, 0
    ds_write_b64 v{vMw}, {vr(vM,2)} offset:{MLW}
    s_mov_b64 exec, 1
    ds_add_rtn_u32 v{vNx}, v{vPa}, v{vFour} offset:68
    s_mov_b64 exec, -1
    {"" if LASTC else f"s_cmp_eq_u32 s{sCnt}, {hex(END)}"}
    {"" if LASTC else "s_cbranch_scc0 L_mld"}
    s_waitcnt lgkmcnt(0)
    v_readfirstlane_b32 s{sLast}, v{vNx}
    s_cmp_eq_u32 s{sLast}, 12
    s_cbranch_scc1 L_again
    s_branch L_give
    """)

    k.lines += warm.lines
    vOf, vMo, vPw, vPm, vPr_, vOo = 2, 3, 4, 5, 6, 7
    vX, vY, vW, vZ = 8, 9, 10, 11
    vML = 12
    vMa, vRr, vSa = 16, 18, 20
    vA, vPr = 24, 28
    vOr, vOs, vU = 32, 34, 36
    vBt, vDyn, vCo, vPq, vCt = 42, 43, 44, 45, 46
    vE4, vEl = 48, 52
    vV2, vBase, vM4 = 56, 58, 60

    def ctxcalc(kk):
        kk(f"""
        s_min_i32 s{sT0}, s{sCtx}, 65536
        s_cmp_le_i32 s{sCtx}, 0
        s_cselect_b32 s{sT0}, 65536, s{sT0}
        s_add_u32 s{sT0}, s{sT0}, 15
        s_lshr_b32 s{sN}, s{sT0}, 4
        s_min_i32 s{sCtx}, s{sCtx}, 65536
        s_max_i32 s{sCtx}, s{sCtx}, 0
        """)

    def entry(kk, vpage, vbt, vt):
        kk(f"""
        v_lshlrev_b32 v{vt}, 4, v{vpage}
        v_sub_u32 v{vt}, s{sCtx}, v{vt}
        v_med3_i32 v{vt}, v{vt}, 0, 16
        v_cmp_gt_u32 vcc, s{sN}, v{vpage}
        v_lshl_or_b32 v{vbt}, v{vbt}, 15, v{vt}
        v_bfrev_b32 v{vt}, 1
        v_and_b32 v{vbt}, 0x7fffffff, v{vbt}
        v_cndmask_b32 v{vbt}, v{vt}, v{vbt}, vcc
        """)

    vMb, vRs, vSb, vW2, vZ2 = 17, 19, 21, 14, 15
    vOr2, vOs2, vOf2 = 56, 58, 60
    k(f"""
    L_service:
    s_mov_b64 {sr(sE,2)}, 0
    v_lshlrev_b32 v{vX}, 9, v{vLane}
    v_lshlrev_b32 v{vCo}, 2, v{vLane}
    v_lshlrev_b32 v{vDyn}, 4, v{vLane}
    v_mov_b32 v{vEl}, -1
    v_mov_b32 v{vEl+1}, -1
    v_mov_b32 v{vEl+2}, -1
    v_mov_b32 v{vEl+3}, -1
    ds_write_b128 v{vDyn}, {vr(vEl,4)}
    v_mov_b32 v{vY}, 0
    v_writelane_b32 v{vY}, 16, 0
    ds_write_b32 v{vCo}, v{vY} offset:{POP}
    s_lshl_b32 s{sIdx}, s{sSh}, 4
    s_lshl_b32 s{sT0}, s{sH}, 15
    s_lshl_b32 s{sT1}, s{sSh}, 5               ; q*256 + oct*32
    s_add_u32 s{sT0}, s{sT0}, s{sT1}
    v_lshrrev_b32 v{vY}, 2, v{vLane}
    v_and_b32 v{vW}, 3, v{vLane}
    v_lshlrev_b32 v{vZ}, 10, v{vY}
    v_lshl_add_u32 v{vZ}, v{vW}, 3, v{vZ}
    v_add_u32 v{vOf}, s{sT0}, v{vZ}
    v_add_u32 v{vOf2}, 0x4000, v{vOf}
    s_lshr_b32 s{sI}, s{sSh}, 3
    s_lshl_b32 s{sT0}, s{sH}, 12
    s_lshl4_add_u32 s{sT0}, s{sI}, s{sT0}
    s_add_u32 s{sT0}, s{sT0}, {ML_OFF}
    v_lshlrev_b32 v{vZ}, 7, v{vY}
    v_lshl_add_u32 v{vZ}, v{vW}, 2, v{vZ}
    v_add_u32 v{vMo}, s{sT0}, v{vZ}
    s_lshl_b32 s{sRec}, s{sH}, 5
    s_add_u32 s{sRec}, s{sRec}, s{sSh}
    s_lshl_b32 s{sRec}, s{sRec}, 10
    s_lshr_b32 s{sMl}, s{sRec}, 3
    s_add_u32 s{sMl}, s{sMl}, {ML_OFF}
    s_waitcnt lgkmcnt(0)
    s_load_dword s{sCtx}, {sr(sCTX,2)}, 0
    s_load_dword s{sR}, {sr(sWS,2)}, s{sRec}
    """)
    srd(k, SB, sBT, 16384)
    k(f"buffer_load_dwordx4 {vr(vE4,4)}, v{vX}, {sr(SB,4)}, s{sIdx} offen")
    srd(k, SW, sWS, WS_USED)
    k(f"""
    buffer_load_dword v{vSa}, v{vMo}, {sr(SW,4)}, 0 offen sc1
    buffer_load_dword v{vSb}, v{vMo}, {sr(SW,4)}, 0 offen offset:2048 sc1
    buffer_load_dwordx2 {vr(vOs,2)}, v{vOf}, {sr(SW,4)}, 0 offen sc1
    buffer_load_dwordx2 {vr(vOs2,2)}, v{vOf2}, {sr(SW,4)}, 0 offen sc1
    s_lshl_b32 s{sT0}, s{sH}, 10
    s_add_u32 s{sT0}, s{sT0}, s{sT1}
    v_lshrrev_b32 v{vX}, 4, v{vLane}
    v_lshl_add_u32 v{vX}, v{vW}, 2, v{vX}
    v_lshl_add_u32 v{vOo}, v{vX}, 1, s{sT0}
    s_barrier
    s_waitcnt lgkmcnt(0)
    s_add_u32 s{sR}, s{sR}, s{sMl}
    s_mul_i32 s{sR}, s{sR}, 0x9e3779b1
    s_lshr_b32 s{sT0}, s{sR}, 15
    s_xor_b32 s{sR}, s{sR}, s{sT0}
    s_mul_i32 s{sR}, s{sR}, 0x85ebca6b         ; salt
    v_mov_b32 v{vW}, {POP}
    v_mov_b32 v{vY}, s{sR}
    ds_write_b32 v{vW}, v{vY} offset:72
    """)
    if EMU:
        k(f"""
        s_lshr_b32 s{sT0}, 0x22, s{sH}
        s_bitcmp1_b32 s{sT0}, 0
        s_movk_i32 s{sT0}, {16*EMU//3}
        s_cmovk_i32 s{sT0}, {-16*EMU}
        s_add_i32 s{sCtx}, s{sCtx}, s{sT0}
        """)
    ctxcalc(k)
    k(f"""
    s_lshr_b32 s{sS}, s{sN}, 7
    s_max_i32 s{sS}, s{sS}, 1
    s_lshl_b32 s{sT1}, s{sSh}, 2
    v_lshl_add_u32 v{vX}, v{vLane}, 7, s{sT1}
    s_lshl_b32 s{sT0}, s{sS}, 7
    s_add_u32 s{sT0}, s{sT0}, s{sSh}
    v_lshl_add_u32 v{vBt}, v{vLane}, 5, s{sT0}
    v_lshlrev_b32 v{vEl}, 2, v{vBt}
    v_cmp_gt_u32 vcc, s{sS}, v{vLane}
    s_mov_b64 exec, 15
    buffer_load_dword v{vEl}, v{vEl}, {sr(SB,4)}, 0 offen
    s_mov_b64 exec, vcc
    s_waitcnt vmcnt(5)
    """)
    for w in range(4):
        entry(k, vX, vE4 + w, vY)
        if w < 3:
            k(f"v_add_u32 v{vX}, 1, v{vX}")
    k(f"""
    ds_write_b128 v{vDyn}, {vr(vE4,4)}
    s_mov_b64 exec, -1
    """)
    srd(k, SO, sOUT, 8192)
    k(f"""
    s_mov_b32 s{sC}, 0xffff0000
    """)
    srd(k, SD, sDBG, 256)
    k(f"""
    s_getreg_b32 s{sXc}, hwreg(HW_REG_XCC_ID)
    s_lshl_b32 s{sT0}, s{sH}, 5
    v_mov_b32 v{vCo}, s{sT0}
    s_and_b32 s{sXc}, s{sXc}, 15
    s_add_u32 s{sXc}, s{sXc}, 1
    s_mov_b32 s{sPol}, {32 if FORCESC else 0}
    s_cmp_eq_u32 s{sSh}, 0
    s_cbranch_scc0 L_nl
    v_mov_b32 v{vX}, s{sXc}
    s_mov_b64 exec, 1
    buffer_store_dword v{vX}, v{vCo}, {sr(SD,4)}, 0 offen offset:4 sc1
    s_mov_b64 exec, -1
    L_nl:
    s_waitcnt vmcnt(0)
    """)
    entry(k, vBt, vEl, vY)
    k(f"""
    s_lshl_b32 s{sE}, s{sS}, 4
    v_lshl_add_u32 v{vDyn}, v{vLane}, 2, s{sE}
    s_sub_i32 s{sE}, s{sE}, {4*LEADP}
    s_min_i32 s{sOff}, s{sE}, {4*CHK}
    s_mov_b32 s{sI}, 0
    L_s0:
    ds_read_b32 v{vX}, v{vW}
    s_waitcnt lgkmcnt(0)
    v_readfirstlane_b32 s{sT0}, v{vX}
    s_cmp_ge_i32 s{sT0}, s{sOff}
    s_cbranch_scc1 L_s2
    s_sleep 4
    s_branch L_s0
    L_s2:
    {f"s_memrealtime {sr(sTS+4,2)}" if MY else ""}
    {"s_waitcnt lgkmcnt(0)" if MY else ""}
    buffer_load_dwordx2 {vr(vPr,2)}, v{vCo}, {sr(SD,4)}, 0 offen sc1
    s_waitcnt vmcnt(0)
    v_readfirstlane_b32 s{sT1}, v{vPr}
    v_readfirstlane_b32 s{sT0}, v{vPr+1}
    s_or_b32 s{sPol}, s{sPol}, s{sT1}
    s_cmp_lg_u32 s{sI}, 0
    s_cbranch_scc1 L_s1
    s_mov_b32 s{sI}, 1
    s_mov_b32 s{sOff}, s{sE}
    {f"s_mov_b32 s{sTS+6}, s{sTS+4}" if MY == 1 else ""}
    s_cmp_eq_u32 s{sT0}, s{sXc}
    s_cbranch_scc1 L_s0
    s_mov_b32 s{sPol}, 32
    v_mov_b32 v{vX}, 32
    s_mov_b64 exec, 1
    buffer_store_dword v{vX}, v{vCo}, {sr(SD,4)}, 0 offen sc1
    s_mov_b64 exec, -1
    s_branch L_s0
    L_s1:
    {f"s_mov_b32 s{sTS+6}, s{sTS+4}" if MY == 2 else ""}
    s_and_b32 s{sPol}, s{sPol}, 32
    s_mov_b64 exec, 0xffff
    v_or_b32 v{vEl}, s{sPol}, v{vEl}
    ds_write_b32 v{vDyn}, v{vEl}
    s_mov_b64 exec, -1
    s_mov_b32 s{sI}, {LIMIT if FORCEFB else 0}
    s_mov_b32 s{sLim}, {LIMIT if FORCEFB else LIM0}
    v_bfe_u32 v{vX}, v{vLane}, 2, 2
    v_lshlrev_b32 v{vX}, 5, v{vX}
    v_lshlrev_b32 v{vCo}, 2, v{vLane}
    s_waitcnt vmcnt(0)
    L_gate:                                    ; until every worker's (m, l) is there
    {f"s_sleep {GSL}" if GSL else ""}
    ds_read_b32 v{vY}, v{vW} offset:68
    ds_read_b128 v[64:67], v{vX} offset:{MLW}
    ds_read_b128 v[68:71], v{vX} offset:{MLW+16}
    s_waitcnt lgkmcnt(2)
    v_cmp_ne_u32 vcc, 16, v{vY}
    s_cbranch_vccnz L_gate
    {f"s_memrealtime {sr(sTS+6,2)}" if MY == 3 else ""}
    {st(1) if DIAG == 1 else ""}
    """)
    if SVML:
        k(f"""
        s_waitcnt lgkmcnt(0)
        v_max3_f32 v{vX}, v64, v66, v68
        v_max_f32 v{vX}, v{vX}, v70
        """)
        mlpub(64, vX, vCo, "b")
    k(f"""
    s_branch L_m1
    L_m0:                                      ; wait for the (m, l, salt) entries
    s_bcnt1_i32_b64 s{sT0}, vcc
    L_m2:                                      ; back off in proportion to the number of missing producers
    s_sleep {GR}
    s_sub_i32 s{sT0}, s{sT0}, {GSUB}
    s_cmp_gt_i32 s{sT0}, 0
    s_cbranch_scc1 L_m2
    s_mov_b64 exec, vcc
    L_m1:
    buffer_load_dword v{vMa}, v{vMo}, {sr(SW,4)}, 0 offen sc1
    buffer_load_dword v{vMb}, v{vMo}, {sr(SW,4)}, 0 offen offset:2048 sc1
    s_mov_b64 exec, -1
    s_add_u32 s{sI}, s{sI}, 1
    s_cmp_ge_u32 s{sI}, s{sLim}
    s_cbranch_scc1 L_chk1
    L_m3:
    s_waitcnt vmcnt(0)
    v_xor_b32 v{vU}, v{vMa}, v{vSa}
    v_xor_b32 v{vU+1}, v{vMb}, v{vSb}
    v_mov_b32_dpp v{vRr}, v{vMa} quad_perm:[2,2,2,2] {ALL}
    v_min_u32 v{vU}, v{vU}, v{vU+1}
    v_mov_b32_dpp v{vRs}, v{vMb} quad_perm:[2,2,2,2] {ALL}
    v_cmp_eq_u32 vcc, 0, v{vU}
    v_xor_b32_dpp v{vW}, v{vMa}, v{vRr} quad_perm:[0,0,0,0] {ALL}     ; m
    s_cbranch_vccnz L_m0
    {st(2) if DIAG == 1 else st(1)}
    buffer_load_dwordx2 {vr(vOr,2)}, v{vOf}, {sr(SW,4)}, 0 offen sc1
    buffer_load_dwordx2 {vr(vOr2,2)}, v{vOf2}, {sr(SW,4)}, 0 offen sc1
    v_xor_b32_dpp v{vW2}, v{vMb}, v{vRs} quad_perm:[0,0,0,0] {ALL}
    v_xor_b32_dpp v{vZ}, v{vMa}, v{vRr} quad_perm:[1,1,1,1] {ALL}     ; l
    v_max_f32 v{vML}, v{vW}, v{vW2}
    v_xor_b32_dpp v{vZ2}, v{vMb}, v{vRs} quad_perm:[1,1,1,1] {ALL}
    v_max_f32_dpp v{vML}, v{vML}, v{vML} row_ror:4 {ALL}
    v_max_f32_dpp v{vML}, v{vML}, v{vML} row_ror:8 {ALL}
    v_mov_b32 v{vY}, v{vML}
    v_permlane16_swap_b32 v{vML}, v{vY}
    v_max_f32 v{vML}, v{vML}, v{vY}
    v_mov_b32 v{vY}, v{vML}
    v_permlane32_swap_b32 v{vML}, v{vY}
    v_max_f32 v{vML}, v{vML}, v{vY}
    v_sub_f32 v{vW}, v{vW}, v{vML}
    v_sub_f32 v{vW2}, v{vW2}, v{vML}
    v_exp_f32 v{vW}, v{vW}
    v_exp_f32 v{vW2}, v{vW2}
    v_mul_f32 v{vZ}, v{vW}, v{vZ}
    v_fmac_f32 v{vZ}, v{vW2}, v{vZ2}
    v_add_f32_dpp v{vZ}, v{vZ}, v{vZ} row_ror:4 {ALL}
    v_add_f32_dpp v{vZ}, v{vZ}, v{vZ} row_ror:8 {ALL}
    v_mov_b32 v{vY}, v{vZ}
    v_permlane16_swap_b32 v{vZ}, v{vY}
    v_add_f32 v{vZ}, v{vZ}, v{vY}
    v_mov_b32 v{vY}, v{vZ}
    v_permlane32_swap_b32 v{vZ}, v{vY}
    v_add_f32 v{vZ}, v{vZ}, v{vY}
    v_rcp_f32 v{vZ}, v{vZ}
    {f"v_mul_f32 v{vW}, v{vW}, v{vZ}" if TRIM else ""}
    {f"v_mul_f32 v{vW2}, v{vW2}, v{vZ}" if TRIM else ""}
    {"s_waitcnt vmcnt(0)" if PIPE else ""}
    s_branch L_o1
    L_o0:                                      ; wait for the record pieces
    s_mov_b64 exec, vcc
    buffer_load_dwordx2 {vr(vOr,2)}, v{vOf}, {sr(SW,4)}, 0 offen sc1
    buffer_load_dwordx2 {vr(vOr2,2)}, v{vOf2}, {sr(SW,4)}, 0 offen sc1
    s_mov_b64 exec, -1
    s_add_u32 s{sI}, s{sI}, 1
    s_cmp_ge_u32 s{sI}, s{sLim}
    s_cbranch_scc1 L_chk2
    L_o1:
    s_waitcnt vmcnt({2*PIPE})
    v_xor_b32 v{vU}, v{vOr}, v{vOs}
    v_xor_b32 v{vU+1}, v{vOr+1}, v{vOs+1}
    v_xor_b32 v{vU+2}, v{vOr2}, v{vOs2}
    v_xor_b32 v{vU+3}, v{vOr2+1}, v{vOs2+1}
    v_min3_u32 v{vU}, v{vU}, v{vU+1}, v{vU+2}
    v_xor_b32 v{vX}, v{vOr}, v{vRr}
    v_min_u32 v{vU}, v{vU}, v{vU+3}
    v_xor_b32 v{vY}, v{vOr+1}, v{vRr}
    v_cmp_eq_u32 vcc, 0, v{vU}
    v_lshlrev_b32 v{vA}, 16, v{vX}
    v_and_b32 v{vA+1}, s{sC}, v{vX}
    v_lshlrev_b32 v{vA+2}, 16, v{vY}
    v_and_b32 v{vA+3}, s{sC}, v{vY}
    s_cbranch_vccnz L_o0
    {st(2) if DIAG == 2 else ""}
    v_xor_b32 v{vX}, v{vOr2}, v{vRs}
    v_xor_b32 v{vY}, v{vOr2+1}, v{vRs}
    v_mul_f32 v{vA}, v{vW}, v{vA}
    v_mul_f32 v{vA+1}, v{vW}, v{vA+1}
    v_mul_f32 v{vA+2}, v{vW}, v{vA+2}
    v_mul_f32 v{vA+3}, v{vW}, v{vA+3}
    v_lshlrev_b32 v{vU}, 16, v{vX}
    v_and_b32 v{vU+1}, s{sC}, v{vX}
    v_lshlrev_b32 v{vU+2}, 16, v{vY}
    v_and_b32 v{vU+3}, s{sC}, v{vY}
    v_fmac_f32 v{vA}, v{vW2}, v{vU}
    v_fmac_f32 v{vA+1}, v{vW2}, v{vU+1}
    v_fmac_f32 v{vA+2}, v{vW2}, v{vU+2}
    v_fmac_f32 v{vA+3}, v{vW2}, v{vU+3}
    """)
    for sh in (4, 8):
        for j in range(4):
            k(f"v_add_f32_dpp v{vA+j}, v{vA+j}, v{vA+j} row_ror:{sh} {ALL}")
    k(f"""
    v_permlane16_swap_b32 v{vA}, v{vA+1}
    s_mov_b32 vcc_lo, 0x000f000f
    v_permlane16_swap_b32 v{vA+2}, v{vA+3}
    v_add_f32 v{vA}, v{vA}, v{vA+1}
    v_add_f32 v{vA+2}, v{vA+2}, v{vA+3}
    s_mov_b32 vcc_hi, 0x000f000f
    v_permlane32_swap_b32 v{vA}, v{vA+2}
    v_add_f32 v{vA}, v{vA}, v{vA+2}
    s_mov_b64 exec, vcc
    {"" if TRIM else f"v_mul_f32 v{vA}, v{vA}, v{vZ}"}
    v_cvt_pk_bf16_f32 v{vA}, v{vA}, v{vA}
    buffer_store_short v{vA}, v{vOo}, {sr(SO,4)}, 0 offen
    """)
    diag_store(f"s{sI}")
    if MY:
        k(f"""
        s_waitcnt lgkmcnt(0)
        s_sub_u32 s{sT1}, s{sTS+6}, s{sTS}
        s_mul_i32 s{sT1}, s{sT1}, 10
        L_spiny:
        s_sleep 2
        s_memrealtime {sr(sTS+2,2)}
        s_waitcnt lgkmcnt(0)
        s_sub_u32 s{sT0}, s{sTS+2}, s{sTS}
        s_cmp_lt_u32 s{sT0}, s{sT1}
        s_cbranch_scc1 L_spiny
        """)
    if MX:
        k(f"""
        s_mov_b64 exec, -1
        v_mov_b32 v{vX}, {POP}
        ds_read_b32 v{vX}, v{vX} offset:80
        s_waitcnt lgkmcnt(0)
        v_readfirstlane_b32 s{sT1}, v{vX}
        s_mul_i32 s{sT1}, s{sT1}, 25
        s_add_u32 s{sT1}, s{sT1}, 3000
        s_and_b32 s{sT0}, s2, 0xf8
        s_cmp_eq_u32 s{sT0}, 0x40
        s_cbranch_scc0 L_end
        L_spinx:
        s_sleep 2
        s_memrealtime {sr(sTS+2,2)}
        s_waitcnt lgkmcnt(0)
        s_sub_u32 s{sT0}, s{sTS+2}, s{sTS}
        s_cmp_lt_u32 s{sT0}, s{sT1}
        s_cbranch_scc1 L_spinx
        """)
    if MUL:
        k(f"""
        {f"s_cmp_eq_u32 s{sH}, {MULH}" if MULH >= 0 else ""}
        {"s_cbranch_scc0 L_end" if MULH >= 0 else ""}
        s_waitcnt vmcnt(0)
        s_memrealtime {sr(sTS+2,2)}
        s_waitcnt lgkmcnt(0)
        s_sub_u32 s{sT1}, s{sTS+2}, s{sTS}
        s_mul_i32 s{sT1}, s{sT1}, {MUL}
        L_spinm:
        s_sleep 2
        s_memrealtime {sr(sTS+2,2)}
        s_waitcnt lgkmcnt(0)
        s_sub_u32 s{sT0}, s{sTS+2}, s{sTS}
        s_cmp_lt_u32 s{sT0}, s{sT1}
        s_cbranch_scc1 L_spinm
        """)
    k("""
    L_end:
    s_endpgm
    """)
    for n, back in ((1, "L_m3"), (2, "L_o1")):
        cold(f"""
        L_chk{n}:                                    ; many looks without success: give up early on a short context
        s_cmp_ge_u32 s{sI}, {LIMIT}
        s_cbranch_scc1 L_fb
        s_load_dword s{sT0}, {sr(sCTX,2)}, 0
        s_mov_b32 s{sLim}, {LIMIT}
        s_waitcnt lgkmcnt(0)
        s_sub_u32 s{sT0}, s{sT0}, 1
        s_cmp_lt_u32 s{sT0}, 8192
        s_cbranch_scc0 {back}
        {"s_branch L_fb" if n == 1 else ""}
        """)
    cold(f"""
    L_fb:
    s_load_dword s{sCtx}, {sr(sCTX,2)}, 0
    s_waitcnt vmcnt(0) lgkmcnt(0)
    """)
    ctxcalc(cold)
    cold(f"""
    s_mov_b32 s{sE}, 0
    s_mov_b32 s{sL0}, 0
    L_fbfill:
    """)
    srd(cold, SB, sBT, 16384)
    cold(f"""
    v_add_u32 v{vFp}, s{sE}, v{vLane}
    v_lshlrev_b32 v{vFb}, 2, v{vFp}
    buffer_load_dword v{vFb}, v{vFb}, {sr(SB,4)}, 0 offen
    s_lshl_b32 s{sIdx}, s{sE}, 2
    s_waitcnt vmcnt(0)
    """)
    entry(cold, vFp, vFb, vTmp)
    cold(f"""
    s_bitset1_b32 s{sFb}, 31
    v_lshlrev_b32 v{vFp}, 2, v{vLane}
    v_writelane_b32 v{vFb}, s{sFb}, 63
    v_mov_b32 v{vPa}, {POP}
    v_mov_b32 v{vFour}, 4
    ds_write_b32 v{vFp}, v{vFb}
    ds_write_b32 v{vPa}, v{vFour}
    {"" if ORD else f"s_load_dword s{sBt0}, {sr(sBT,2)}, s{sIdx}"}
    s_branch L_setup
    L_fbnext:
    s_waitcnt vmcnt(0)
    s_add_u32 s{sE}, s{sE}, 63
    s_cmp_lt_u32 s{sE}, s{sN}
    s_cbranch_scc1 L_fbfill
    """)
    lreduce(cold)
    cold(f"v_rcp_f32 v{vAl}, v{vL}")
    for i in range(4):
        cold(f"v_mov_b32_dpp v{vAb}, v{vAl} row_newbcast:{4*i} row_mask:{hex(1<<i)} bank_mask:0xf")
    for e in range(8):
        cold(f"v_mul_f32 v{vAcc+4*e}, v{vAb}, v{vAcc+4*e}")
    for j in range(4):
        cold(f"v_cvt_pk_bf16_f32 v{vD+j}, v{vAcc+8*j}, v{vAcc+8*j+4}")
    srd(cold, SO, sOUT, 8192)
    cold(f"""
    s_lshl_b32 s{sT0}, s{sSh}, 1
    s_lshl_b32 s{sT1}, s{sH}, 10
    v_lshlrev_b32 v{vTmp}, 4, v{vLane}
    s_lshl_b64 exec, 3, s{sT0}
    buffer_store_dwordx4 {vr(vD,4)}, v{vTmp}, {sr(SO,4)}, s{sT1} offen
    s_endpgm
    """)
    k.lines += cold.lines
    body = k.done()
    body = body.replace('NLINES', str(NLINES))

    out = HEADER + ("; nwaves=1280 diagoff=3145728 p0 w5\n" if DIAG else "") + f"; @launch grid=(256,1,1) block=(320,1,1) lds={LDS}\n" + DOC
    out += '.amdgcn_target "amdgcn-amd-amdhsa--gfx950"\n.text\n'
    out += f".globl {NAME}_kernel\n.p2align 8\n.type {NAME}_kernel,@function\n{NAME}_kernel:\n"
    out += body
    out += f""".section .rodata,"a"
.p2align 6
.amdhsa_kernel {NAME}_kernel
  .amdhsa_next_free_vgpr {NV}
  .amdhsa_next_free_sgpr {NS}
  .amdhsa_accum_offset {NV}
  .amdhsa_group_segment_fixed_size 0
  .amdhsa_kernarg_size 64
  .amdhsa_user_sgpr_count 2
  .amdhsa_user_sgpr_kernarg_segment_ptr 1
  .amdhsa_system_sgpr_workgroup_id_x 1
.end_amdhsa_kernel
"""
    return out


if __name__ == "__main__":
    kw = {}
    for a in sys.argv[2:]:
        key, val = a.split("=")
        kw[key] = int(val, 0)
    open(sys.argv[1], "w").write(gen(**kw))
```
